```python
import torch

def _softmax(x, axis=-1):
    return torch.softmax(x, dim=axis)
def _gelu(x):
    return torch.nn.functional.gelu(x, approximate="tanh")
def _silu(x):
    return torch.nn.functional.silu(x)
def _sigmoid(x):
    return torch.sigmoid(x)
def _layernorm(x, axis=-1, eps=1e-5):
    m = x.mean(dim=axis, keepdim=True)
    v = x.var(dim=axis, keepdim=True, unbiased=False)
    return (x - m) / torch.sqrt(v + eps)
def _scatter_add(tgt, idx, src, axis=0):
    return tgt.clone().index_add_(axis, idx, src)
def _segment_sum(src, seg, n):
    out = torch.zeros((n,) + src.shape[1:], dtype=src.dtype)
    return out.index_add_(0, seg, src)
def _pad(x, pw):
    flat = tuple(v for pair in reversed(pw) for v in pair)
    return torch.nn.functional.pad(x, flat)

kernel_name = 'sequential_preLN__linear_attn_block__dense_activation_relu__prompt'

def setup_inputs():

    _w = (lambda a: (lambda t: t.to(torch.bfloat16) if t.is_floating_point() else t)(torch.as_tensor(a)))
    def _A_setup():
        B, S, D = 1, 2048, 640
        return {
            "x": _w((lambda *s: torch.randn(*s, dtype=torch.bfloat16) * 0.05)(B, S, D)),
            "wqkv": _w((lambda *s: torch.randn(*s, dtype=torch.bfloat16) * 0.05)(D, 3 * D)),
            "wo": _w((lambda *s: torch.randn(*s, dtype=torch.bfloat16) * 0.05)(D, D)),
        }
    _A_in = _A_setup()

    def _B_setup():
        B, S, D, Dff = 1, 2048, 640, 1728
        return {
            "x": _w((lambda *s: torch.randn(*s, dtype=torch.bfloat16) * 0.05)(B, S, D)),
            "w1": _w((lambda *s: torch.randn(*s, dtype=torch.bfloat16) * 0.05)(D, Dff)),
            "w2": _w((lambda *s: torch.randn(*s, dtype=torch.bfloat16) * 0.05)(Dff, D)),
        }
    _B_in = _B_setup()

    return {
        "A_x": _A_in["x"],
        "A_wqkv": _A_in["wqkv"],
        "A_wo": _A_in["wo"],
        "B_x": _B_in["x"],
        "B_w1": _B_in["w1"],
        "B_w2": _B_in["w2"],
    }

def reference(A_x, A_wqkv, A_wo, B_x, B_w1, B_w2):
    def _A_ref(x, wqkv, wo):
        B, S, D = x.shape
        H = 32; Dh = D // H
        qkv = (lambda x, *d: x.permute(*d))((x @ wqkv).reshape(B, S, 3, H, Dh), 2, 0, 3, 1, 4)
        q, k, v = qkv[0], qkv[1], qkv[2]
        phi = lambda t: torch.where(t > 0, t + 1, torch.exp(t)) + 1e-6
        pq, pk = phi(q), phi(k)
        kv = torch.einsum("bhsd,bhse->bhde", pk, v)
        z = torch.einsum("bhsd->bhd", pk)
        num = torch.einsum("bhqd,bhde->bhqe", pq, kv)
        den = torch.einsum("bhqd,bhd->bhq", pq, z)[..., None] + 1e-6
        o = num / den
        return (lambda x, *d: x.permute(*d))(o, 0, 2, 1, 3).reshape(B, S, D) @ wo

    def _B_ref(x, w1, w2):
        h = torch.einsum("bsd,df->bsf", x, w1)
        zero = torch.zeros_like(h)
        h = torch.maximum(h, zero)
        return torch.einsum("bsf,fd->bsd", h, w2)

    x = A_x
    h = x + _A_ref(_layernorm(x, axis=-1), A_wqkv, A_wo)
    h2 = h + _B_ref(_layernorm(h, axis=-1), B_w1, B_w2)
    return h2
```

```python
class Kern:
    def __init__(self, name):
        self.name = name
        self.lines = []
        self.vtop = 1
        self.stop = 4
        self.vmax = 1
        self.smax = 4
        self.nlabel = 0

    def v(self, n=1, align=None):
        if align is None:
            align = 1 if n == 1 else (2 if n < 4 else 4)
        b = (self.vtop + align - 1) // align * align
        self.vtop = b + n
        self.vmax = max(self.vmax, self.vtop)
        assert self.vtop <= 256, f"{self.name}: out of VGPRs"
        return b

    def s(self, n=1, align=None):
        if align is None:
            align = 1 if n == 1 else (2 if n < 4 else 4)
        b = (self.stop + align - 1) // align * align
        self.stop = b + n
        self.smax = max(self.smax, self.stop)
        assert self.stop <= 100, f"{self.name}: out of SGPRs"
        return b

    def mark(self):
        return (self.vtop, self.stop)

    def release(self, m):
        self.vtop, self.stop = m

    def e(self, txt):
        for ln in txt.split("\n"):
            ln = ln.strip()
            if ln:
                self.lines.append("    " + ln)

    def emit_list(self, lst):
        for x in lst:
            self.e(x)

    def label(self, hint="L"):
        self.nlabel += 1
        return f"{self.name}_{hint}{self.nlabel}"

    def place(self, lab):
        self.lines.append(f"{lab}:")

    def comment(self, t):
        self.lines.append(f"    ; {t}")

    def srd(self, ptr_s, nbytes, off=0):
        d = self.s(4)
        if off:
            self.e(f"s_add_u32 s{d}, s{ptr_s}, {off}")
            self.e(f"s_addc_u32 s{d+1}, s{ptr_s+1}, 0")
        else:
            self.e(f"s_mov_b32 s{d}, s{ptr_s}")
            self.e(f"s_mov_b32 s{d+1}, s{ptr_s+1}")
        self.e(f"s_mov_b32 s{d+2}, {nbytes}")
        self.e(f"s_mov_b32 s{d+3}, 0x20000")
        return d

    def text(self):
        hdr = [f".globl {self.name}", ".p2align 8", f".type {self.name},@function", f"{self.name}:"]
        return "\n".join(hdr + self.lines) + "\n"

    def descriptor(self):
        vg = (self.vmax + 3) // 4 * 4
        return (f".p2align 6\n.amdhsa_kernel {self.name}\n"
                f"  .amdhsa_next_free_vgpr {vg}\n"
                f"  .amdhsa_next_free_sgpr {max(self.smax, 16)}\n"
                f"  .amdhsa_accum_offset {vg}\n"
                "  .amdhsa_group_segment_fixed_size 0\n"
                "  .amdhsa_kernarg_size 72\n"
                "  .amdhsa_user_sgpr_count 2\n"
                "  .amdhsa_user_sgpr_kernarg_segment_ptr 1\n"
                "  .amdhsa_system_sgpr_workgroup_id_x 1\n"
                "  .amdhsa_float_denorm_mode_32 3\n"
                ".end_amdhsa_kernel\n")


def vr(b, n):
    return f"v[{b}:{b+n-1}]" if n > 1 else f"v{b}"


def sr(b, n):
    return f"s[{b}:{b+n-1}]" if n > 1 else f"s{b}"


def interleave(main, fill, per=2, start=0):
    out = []
    fi = 0
    for i, m in enumerate(main):
        out.append(m)
        if i >= start:
            for _ in range(per):
                if fi < len(fill):
                    out.append(fill[fi]); fi += 1
    out.extend(fill[fi:])
    return out
```

```python
from asmlib import *

OOB = 0x7FFFF000


class GemmCfg:
    def __init__(self, BM, NS, lda, ldw, wl, nseg=1, segoff=(0,), S=3, R=1, WM=2, WN=2, NT=None, transposed=True,
                 colsum=False, lds_base=0):
        self.BM, self.NS, self.lda, self.ldw = BM, NS, lda, ldw
        self.wl = wl
        self.nseg, self.segoff = nseg, segoff
        self.S, self.R = S, R
        self.WM, self.WN = WM, WN
        self.transposed = transposed
        self.colsum = colsum
        self.lds_base = lds_base
        self.abytes = BM * 128
        if wl == 'odd':
            self.BN = 80 * nseg
            self.w_r16_instr = (160 * nseg + 63) // 64
        elif wl == 'x16':
            self.BN = 128
            self.w_r16_instr = 4
        elif wl == 'x8':
            self.BN = 64
            self.w_r16_instr = 2
        self.r16b = self.w_r16_instr * 1024
        self.wbytes = 4 * self.r16b
        self.slot = self.abytes + self.wbytes
        self.MT = BM // 16 // WM
        self.NT = self.BN // 16 // WN
        self.nA = BM // 8
        assert self.nA % 2 == 0
        self.n_l = self.nA // 2 + 2 * self.w_r16_instr
        assert S >= R + 2
        assert (R + 1) * self.n_l <= 63
        self.lds_end = lds_base + S * self.slot


def lane_id(k):
    vl = k.v()
    k.e(f"v_and_b32 v{vl}, 63, v0")
    return vl


def gen_loader(k, c, srdA, srdW, sRow, sCol, sLW, pre=None, post=None, aflags="", wflags=""):
    m = k.mark()
    vl = lane_id(k)
    t0, t1, t2 = k.v(), k.v(), k.v()
    sT = k.s()
    vA = k.v()
    k.e(f"""
    v_lshrrev_b32 v{t0}, 3, v{vl}
    v_and_b32 v{t1}, 6, v{t0}
    v_and_b32 v{t2}, 7, v{vl}
    v_xor_b32 v{t1}, v{t1}, v{t2}
    v_lshlrev_b32 v{t1}, 4, v{t1}
    s_mov_b32 s{sT}, {c.lda}
    v_mad_u32_u24 v{vA}, v{t0}, s{sT}, v{t1}
    """)
    wins = []
    k.e(f"s_mov_b32 s{sT}, {c.ldw}")
    if c.wl == 'odd':
        tot = 160 * c.nseg
        for mI in range(c.w_r16_instr):
            vW = k.v()
            k.e(f"""
            v_add_u32 v{t0}, {64*mI}, v{vl}
            v_mul_u32_u24 v{t1}, 205, v{t0}
            v_lshrrev_b32 v{t1}, 11, v{t1}
            v_mul_u32_u24 v{t2}, 10, v{t1}
            v_sub_u32 v{t2}, v{t0}, v{t2}
            v_lshlrev_b32 v{vW}, 4, v{t2}
            """)
            if c.nseg == 2:
                d = c.segoff[1] - c.segoff[0]
                k.e(f"""
                v_lshrrev_b32 v{t2}, 4, v{t1}
                v_mul_u32_u24 v{t2}, {d}, v{t2}
                v_add_u32 v{vW}, v{vW}, v{t2}
                """)
            k.e(f"""
            v_and_b32 v{t2}, 3, v{t1}
            v_and_b32 v{t0}, 4, v{t1}
            v_lshl_or_b32 v{t2}, v{t0}, 1, v{t2}
            v_and_b32 v{t0}, 8, v{t1}
            v_lshrrev_b32 v{t0}, 1, v{t0}
            v_or_b32 v{t2}, v{t2}, v{t0}
            v_mad_u32_u24 v{vW}, v{t2}, s{sT}, v{vW}
            """)
            if 64 * (mI + 1) > tot:
                k.e(f"""
                v_cmp_gt_u32 vcc, {tot - 64*mI}, v{vl}
                v_mov_b32 v{t0}, {OOB}
                s_nop 0
                v_cndmask_b32 v{vW}, v{t0}, v{vW}, vcc
                """)
            wins.append((vW, 0, mI * 1024))
    elif c.wl == 'x16':
        pats = []
        for par in range(2):
            vW = k.v()
            k.e(f"""
            v_lshrrev_b32 v{t0}, 4, v{vl}
            v_bfe_u32 v{t1}, v{vl}, 1, 3
            v_xor_b32 v{t1}, v{t1}, v{t0}
            v_xor_b32 v{t1}, {4*par}, v{t1}
            v_and_b32 v{t2}, 1, v{vl}
            v_lshl_or_b32 v{t1}, v{t1}, 1, v{t2}
            v_lshlrev_b32 v{t1}, 4, v{t1}
            v_mad_u32_u24 v{vW}, v{t0}, s{sT}, v{t1}
            """)
            pats.append(vW)
        for mI in range(4):
            wins.append((pats[mI & 1], 8 * (mI & 1) + 4 * (mI >> 1), mI * 1024))
    elif c.wl == 'x8':
        vW = k.v()
        k.e(f"""
        v_bfe_u32 v{t1}, v{vl}, 1, 2
        v_lshrrev_b32 v{t0}, 4, v{vl}
        v_xor_b32 v{t1}, v{t1}, v{t0}
        v_and_b32 v{t2}, 1, v{vl}
        v_lshl_or_b32 v{t1}, v{t1}, 1, v{t2}
        v_lshlrev_b32 v{t1}, 4, v{t1}
        v_lshrrev_b32 v{t0}, 5, v{vl}
        v_bfe_u32 v{t2}, v{vl}, 3, 2
        v_lshl_or_b32 v{t0}, v{t0}, 3, v{t2}
        v_mad_u32_u24 v{vW}, v{t0}, s{sT}, v{t1}
        """)
        for mI in range(2):
            wins.append((vW, 4 * mI, mI * 1024))
    sKA, sKW, sLA, sLWd, sI, sSl, sWr = k.s(), k.s(), k.s(), k.s(), k.s(), k.s(), k.s()
    k.e(f"s_mov_b32 s{sWr}, {(-(c.S - 1) * c.slot) & 0xffffffff}")
    hA = c.nA // 2
    k.e(f"""
    s_mul_i32 s{sT}, s{sLW}, {hA * 8 * c.lda}
    s_add_u32 s{sKA}, s{sRow}, s{sT}
    s_mul_i32 s{sT}, s{sLW}, {32 * c.ldw}
    s_add_u32 s{sKW}, s{sCol}, s{sT}
    s_add_u32 s{sKW}, s{sKW}, {c.segoff[0]}
    s_mul_i32 s{sLA}, s{sLW}, {hA * 1024}
    s_add_u32 s{sLA}, s{sLA}, {c.lds_base}
    s_mul_i32 s{sLWd}, s{sLW}, {2 * c.r16b}
    s_add_u32 s{sLWd}, s{sLWd}, {c.lds_base + c.abytes}
    s_mov_b32 s{sI}, 0
    s_mov_b32 s{sSl}, 0
    """)
    if pre:
        pre()
    L = k.label("ld")
    k.place(L)
    for i in range(hA):
        k.e(f"s_add_u32 m0, s{sLA}, {i*1024}")
        k.e(f"s_add_u32 s{sT}, s{sKA}, {i * 8 * c.lda}")
        k.e(f"buffer_load_dwordx4 v{vA}, s[{srdA}:{srdA+3}], s{sT} offen {aflags} lds")
    for r in range(2):
        for (vW, ro, lo) in wins:
            k.e(f"s_add_u32 m0, s{sLWd}, {r * c.r16b + lo}")
            k.e(f"s_add_u32 s{sT}, s{sKW}, {(r * 16 + ro) * c.ldw}")
            k.e(f"buffer_load_dwordx4 v{vW}, s[{srdW}:{srdW+3}], s{sT} offen {wflags} lds")
    k.e(f"""
    s_add_u32 s{sKA}, s{sKA}, 128
    s_add_u32 s{sKW}, s{sKW}, {64 * c.ldw}
    s_add_u32 s{sSl}, s{sSl}, 1
    s_cmp_eq_u32 s{sSl}, {c.S}
    s_cselect_b32 s{sT}, s{sWr}, {c.slot}
    s_cselect_b32 s{sSl}, 0, s{sSl}
    s_add_u32 s{sLA}, s{sLA}, s{sT}
    s_add_u32 s{sLWd}, s{sLWd}, s{sT}
    s_add_u32 s{sI}, s{sI}, 1
    s_cmp_le_u32 s{sI}, {c.R}
    s_cbranch_scc1 {L}
    s_waitcnt vmcnt({c.R * c.n_l})
    s_barrier
    s_cmp_lt_u32 s{sI}, {c.NS}
    s_cbranch_scc1 {L}
    """)
    for r in range(c.R - 1, -1, -1):
        k.e(f"s_waitcnt vmcnt({r * c.n_l})")
        k.e("s_barrier")
    if post:
        post()
    k.release(m)


class Cons:
    pass


def gen_consumer(k, c, sWave, vl, mid=None):
    o = Cons()
    MT, NT = c.MT, c.NT
    o.acc = [[k.v(4) for _ in range(NT)] for _ in range(MT)]
    ncs = 0
    if c.colsum:
        ncs = (NT + 1) // 2 if c.WM == 4 else NT
        o.cs = [k.v(4) for _ in range(ncs)]
        o.ones = k.v(4)
    m = k.mark()
    fa = [[k.v(4) for _ in range(MT)] for _ in range(2)]
    fw = [[k.v(4) for _ in range(NT)] for _ in range(2)]
    t0, t1, t2 = k.v(), k.v(), k.v()
    sT, sWM, sWN, sI, sSl, sWr = k.s(), k.s(), k.s(), k.s(), k.s(), k.s()
    k.e(f"s_mov_b32 s{sWr}, {(-(c.S - 1) * c.slot) & 0xffffffff}")
    if c.WM == 4:
        k.e(f"s_mov_b32 s{sWM}, s{sWave}")
        k.e(f"s_mov_b32 s{sWN}, 0")
    else:
        k.e(f"s_lshr_b32 s{sWM}, s{sWave}, 1")
        k.e(f"s_and_b32 s{sWN}, s{sWave}, 1")
    vA0, vA1 = k.v(), k.v()
    k.e(f"""
    v_and_b32 v{t0}, 15, v{vl}
    v_lshrrev_b32 v{t1}, 4, v{vl}
    v_and_b32 v{t2}, 6, v{t0}
    v_xor_b32 v{t2}, v{t2}, v{t1}
    v_lshlrev_b32 v{t2}, 4, v{t2}
    v_lshl_add_u32 v{vA0}, v{t0}, 7, v{t2}
    s_mul_i32 s{sT}, s{sWM}, {MT * 16 * 128}
    s_add_u32 s{sT}, s{sT}, {c.lds_base}
    v_add_u32 v{vA0}, s{sT}, v{vA0}
    v_xor_b32 v{vA1}, 64, v{vA0}
    """)
    pitch = {'odd': 160, 'x16': 256, 'x8': 128}[c.wl]
    vB = k.v()
    k.e(f"""
    v_bfe_u32 v{t0}, v{vl}, 2, 3
    v_lshrrev_b32 v{t1}, 5, v{vl}
    v_mul_u32_u24 v{t1}, {c.r16b}, v{t1}
    v_mul_u32_u24 v{t2}, {pitch}, v{t0}
    v_add_u32 v{vB}, v{t1}, v{t2}
    v_and_b32 v{t2}, 3, v{vl}
    v_lshl_add_u32 v{vB}, v{t2}, 3, v{vB}
    v_add_u32 v{vB}, {c.lds_base + c.abytes}, v{vB}
    """)
    if c.wl == 'odd':
        assert c.WN == 1
        vW = [vB]

        def waddr(nt, t, h):
            seg, jt = nt // 5, nt % 5
            return vB, t * 2 * c.r16b + h * 8 * 160 + seg * 2560 + jt * 32
    else:
        vW = [vB] + [k.v() for _ in range(NT - 1)]
        if c.wl == 'x8':
            k.e(f"v_lshrrev_b32 v{t0}, 1, v{t0}")
        k.e(f"s_mul_i32 s{sT}, s{sWN}, {NT}")
        k.e(f"v_xor_b32 v{t0}, s{sT}, v{t0}")
        for j in range(NT - 1, -1, -1):
            k.e(f"v_xor_b32 v{t1}, {j}, v{t0}")
            k.e(f"v_lshl_add_u32 v{vW[j]}, v{t1}, 5, v{vB}")

        def waddr(nt, t, h):
            return vW[nt], t * 2 * c.r16b + h * 8 * pitch
    for mt in range(MT):
        for nt in range(NT):
            for j in range(4):
                k.e(f"v_mov_b32 v{o.acc[mt][nt]+j}, 0")
    for r in fa[1] + fw[1]:
        for j in range(4):
            k.e(f"v_mov_b32 v{r+j}, 0")
    if c.colsum:
        for r in o.cs:
            for j in range(4):
                k.e(f"v_mov_b32 v{r+j}, 0")
        for j in range(4):
            k.e(f"v_mov_b32 v{o.ones+j}, 0x3f803f80")
    k.e(f"s_mov_b32 s{sI}, 0")
    k.e(f"s_mov_b32 s{sSl}, 0")

    def reads(t):
        lst = []
        va = vA1 if t else vA0
        ar = [f"ds_read_b128 {vr(fa[t][mt], 4)}, v{va} offset:{mt * 2048}" for mt in range(MT)]
        wr = []
        for nt in range(NT):
            for h in range(2):
                vv, off = waddr(nt, t, h)
                wr.append(f"ds_read_b64_tr_b16 {vr(fw[t][nt] + 2 * h, 2)}, v{vv} offset:{off}")
        return ar + wr

    def mf(d, a, w):
        if c.transposed:
            return f"v_mfma_f32_16x16x32_bf16 {vr(d,4)}, {vr(w,4)}, {vr(a,4)}, {vr(d,4)}"
        return f"v_mfma_f32_16x16x32_bf16 {vr(d,4)}, {vr(a,4)}, {vr(w,4)}, {vr(d,4)}"

    def mfmas(t):
        return [mf(o.acc[mt][nt], fa[t][mt], fw[t][nt]) for nt in range(NT) for mt in range(MT)]

    def colsum(t):
        if not c.colsum:
            return
        if c.WM == 4:
            for hf in range(2):
                tiles = list(range(hf * ncs, min(NT, (hf + 1) * ncs)))
                sk = k.label("cs")
                k.e(f"s_cmp_eq_u32 s{sWave}, {2*t + hf}")
                k.e(f"s_cbranch_scc0 {sk}")
                for i, nt in enumerate(tiles):
                    k.e(mf(o.cs[i], o.ones, fw[t][nt]))
                k.place(sk)
        else:
            sk = k.label("cs")
            k.e(f"s_cmp_eq_u32 s{sWM}, {t}")
            k.e(f"s_cbranch_scc0 {sk}")
            for nt in range(NT):
                k.e(mf(o.cs[nt], o.ones, fw[t][nt]))
            k.place(sk)

    nm = MT * NT
    nr = MT + 2 * NT
    per = max(2, -(-nr * 3 // (nm * 2)))
    L = k.label("mm")
    k.place(L)
    k.e("s_barrier")
    if mid:
        mid(sI)
    r0 = reads(0)
    k.emit_list(r0[:2])
    k.emit_list(interleave(mfmas(1), r0[2:], per))
    colsum(1)
    k.e("s_waitcnt lgkmcnt(0)")
    r1 = reads(1)
    adv = [f"s_add_u32 s{sSl}, s{sSl}, 1",
           f"s_cmp_eq_u32 s{sSl}, {c.S}",
           f"s_cselect_b32 s{sT}, s{sWr}, {c.slot}",
           f"s_cselect_b32 s{sSl}, 0, s{sSl}"]
    adv += [f"v_add_u32 v{x}, s{sT}, v{x}" for x in [vA0, vA1] + vW]
    k.emit_list(r1[:2])
    k.emit_list(interleave(mfmas(0), r1[2:] + adv, per))
    colsum(0)
    k.e(f"""
    s_add_u32 s{sI}, s{sI}, 1
    s_cmp_lt_u32 s{sI}, {c.NS}
    s_waitcnt lgkmcnt(0)
    s_cbranch_scc1 {L}
    """)
    k.emit_list(mfmas(1))
    colsum(1)
    k.e("s_nop 7")
    k.e("s_nop 1")
    o.sWM, o.sWN = sWM, sWN
    keep_s = k.stop
    k.release(m)
    k.stop = keep_s
    return o
```

```python
from asmlib import *
from gemm import *

S_, D_, F_ = 2048, 640, 1728
WS_PQ = 0x0
PQ_LD = 1536
WS_H = 0x400000
WS_HH = 0x800000
WS_KV = 0x1000000
KV_BYTES = 65536
WS_ST1 = 0x1020000
WS_ST2 = 0x1040000
KA_X, KA_WQKV, KA_WO, KA_BX, KA_W1, KA_W2, KA_OUT, KA_DBG, KA_WS = [8 * i for i in range(9)]


def prologue(k, nwg):
    k.end = k.label("end")
    k.e(f"s_cmp_ge_u32 s2, {nwg}")
    k.e(f"s_cbranch_scc1 {k.end}")
    p = k.s(16, 4)
    q = k.s(2, 2)
    k.e(f"s_load_dwordx16 s[{p}:{p+15}], s[0:1], 0")
    k.e(f"s_load_dwordx2 s[{q}:{q+1}], s[0:1], 64")
    sWave = k.s()
    t = k.v()
    k.e(f"v_lshrrev_b32 v{t}, 6, v0")
    k.e("s_nop 0")
    k.e(f"v_readfirstlane_b32 s{sWave}, v{t}")
    ptr = dict(x=p, wqkv=p + 2, wo=p + 4, w1=p + 8, w2=p + 10, out=p + 12, dbg=p + 14, ws=q)
    return ptr, sWave


def finish(k):
    k.place(k.end)
    k.e("s_endpgm")


def bf16_round_f32(k, v):
    k.e(f"v_cvt_pk_bf16_f32 v{v}, v{v}, v{v}")
    k.e(f"v_lshlrev_b32 v{v}, 16, v{v}")


def gen_p4(name="p4_kernel"):
    k = Kern(name)
    c = GemmCfg(BM=96, NS=27, lda=2 * F_, ldw=2 * D_, wl='x8', S=4, R=2, WM=2, WN=2, transposed=True)
    ptr, sWave = prologue(k, 256)
    sX, sJ, sRB, sCT, sT = k.s(), k.s(), k.s(), k.s(), k.s()
    k.e(f"""
    s_and_b32 s{sX}, s2, 7
    s_lshr_b32 s{sJ}, s2, 3
    s_mul_i32 s{sRB}, s{sJ}, 205
    s_lshr_b32 s{sRB}, s{sRB}, 10
    s_mul_i32 s{sT}, s{sRB}, 5
    s_sub_u32 s{sCT}, s{sJ}, s{sT}
    s_and_b32 s{sT}, s{sX}, 1
    s_mul_i32 s{sT}, s{sT}, 5
    s_add_u32 s{sCT}, s{sCT}, s{sT}
    s_lshr_b32 s{sX}, s{sX}, 1
    s_cmp_lt_u32 s{sX}, 2
    s_cselect_b32 s{sT}, 6, 5
    s_cmp_ge_u32 s{sRB}, s{sT}
    s_cbranch_scc1 {k.end}
    s_mul_i32 s{sT}, s{sX}, 6
    s_add_u32 s{sRB}, s{sRB}, s{sT}
    s_cmp_eq_u32 s{sX}, 3
    s_cselect_b32 s{sT}, 1, 0
    s_sub_u32 s{sRB}, s{sRB}, s{sT}
    s_waitcnt lgkmcnt(0)
    """)
    Lc = k.label("cons")
    k.e(f"s_cmp_lt_u32 s{sWave}, 4")
    k.e(f"s_cbranch_scc1 {Lc}")
    m = k.mark()
    srdA = k.srd(ptr['ws'], S_ * F_ * 2, WS_HH)
    srdW = k.srd(ptr['w2'], F_ * D_ * 2)
    sRow, sCol, sLW = k.s(), k.s(), k.s()
    k.e(f"s_mul_i32 s{sRow}, s{sRB}, {96 * 2 * F_}")
    k.e(f"s_lshl_b32 s{sCol}, s{sCT}, 7")
    k.e(f"s_sub_u32 s{sLW}, s{sWave}, 4")
    gen_loader(k, c, srdA, srdW, sRow, sCol, sLW)
    k.e("s_endpgm")
    k.release(m)
    k.place(Lc)
    vl = lane_id(k)
    srdH = k.srd(ptr['ws'], S_ * D_ * 2, WS_H)
    srdO = k.srd(ptr['out'], S_ * D_ * 2)
    vO = k.v()
    hreg = [k.v(4) for _ in range(c.MT)]
    t0, t1 = k.v(), k.v()
    sA, sB = k.s(), k.s()
    k.e(f"""
    v_and_b32 v{t0}, 15, v{vl}
    v_mul_u32_u24 v{vO}, {2*D_}, v{t0}
    v_bfe_u32 v{t0}, v{vl}, 4, 1
    v_lshl_add_u32 v{vO}, v{t0}, 5, v{vO}
    v_lshrrev_b32 v{t0}, 5, v{vl}
    v_lshl_add_u32 v{vO}, v{t0}, 4, v{vO}
    s_lshr_b32 s{sA}, s{sWave}, 1
    s_mul_i32 s{sA}, s{sA}, 48
    s_mul_i32 s{sB}, s{sRB}, 96
    s_add_u32 s{sA}, s{sA}, s{sB}
    s_mul_i32 s{sA}, s{sA}, {2*D_}
    s_lshl_b32 s{sB}, s{sCT}, 7
    s_add_u32 s{sA}, s{sA}, s{sB}
    s_and_b32 s{sB}, s{sWave}, 1
    s_lshl_b32 s{sB}, s{sB}, 6
    s_add_u32 s{sA}, s{sA}, s{sB}
    v_add_u32 v{vO}, s{sA}, v{vO}
    """)
    for mt in range(c.MT):
        k.e(f"s_mov_b32 s{sB}, {mt * 16 * 2 * D_}")
        k.e(f"buffer_load_dwordx4 {vr(hreg[mt],4)}, v{vO}, s[{srdH}:{srdH+3}], s{sB} offen")
    o = gen_consumer(k, c, sWave, vl)
    pk = k.v(4)
    for mt in range(c.MT):
        a0, a1 = o.acc[mt][0], o.acc[mt][1]
        k.e(f"""
        v_cvt_pk_bf16_f32 v{pk}, v{a0}, v{a0+1}
        v_cvt_pk_bf16_f32 v{pk+1}, v{a0+2}, v{a0+3}
        v_cvt_pk_bf16_f32 v{pk+2}, v{a1}, v{a1+1}
        v_cvt_pk_bf16_f32 v{pk+3}, v{a1+2}, v{a1+3}
        s_nop 1
        v_permlane16_swap_b32 v{pk}, v{pk+2}
        v_permlane16_swap_b32 v{pk+1}, v{pk+3}
        s_waitcnt vmcnt({c.MT - 1 - mt + mt})
        """)
        h = hreg[mt]
        for d in range(4):
            lo, hi = a0, a0 + 1
            k.e(f"""
            v_lshlrev_b32 v{a0}, 16, v{pk+d}
            v_and_b32 v{a0+1}, 0xffff0000, v{pk+d}
            v_lshlrev_b32 v{a0+2}, 16, v{h+d}
            v_and_b32 v{a0+3}, 0xffff0000, v{h+d}
            v_add_f32 v{a0}, v{a0}, v{a0+2}
            v_add_f32 v{a0+1}, v{a0+1}, v{a0+3}
            v_cvt_pk_bf16_f32 v{a1+d}, v{a0}, v{a0+1}
            """)
        k.e(f"s_mov_b32 s{sB}, {mt * 16 * 2 * D_}")
        k.e(f"buffer_store_dwordx4 {vr(a1,4)}, v{vO}, s[{srdO}:{srdO+3}], s{sB} offen")
    finish(k)
    return k, dict(grid=256, block=384, lds=c.lds_end)


def allreduce4(k, x, t):
    k.e(f"""
    v_mov_b32 v{t}, v{x}
    s_nop 1
    v_permlane16_swap_b32 v{x}, v{t}
    s_nop 1
    v_add_f32 v{x}, v{x}, v{t}
    v_mov_b32 v{t}, v{x}
    s_nop 1
    v_permlane32_swap_b32 v{x}, v{t}
    s_nop 1
    v_add_f32 v{x}, v{x}, v{t}
    """)


def ln_finalize(k, vm, vv, sEps):
    bf16_round_f32(k, vm)
    bf16_round_f32(k, vv)
    k.e(f"v_add_f32 v{vv}, s{sEps}, v{vv}")
    bf16_round_f32(k, vv)
    k.e(f"v_sqrt_f32 v{vv}, v{vv}")
    k.e("s_nop 0")
    bf16_round_f32(k, vv)
    k.e(f"v_rcp_f32 v{vv}, v{vv}")
    k.e("s_nop 0")


def f32bits(x):
    import struct
    return struct.unpack("<I", struct.pack("<f", x))[0]


def gen_p3(name="p3_kernel"):
    k = Kern(name)
    c = GemmCfg(BM=128, NS=10, lda=2 * D_, ldw=2 * F_, wl='x16', S=4, R=2, WM=2, WN=2, transposed=True, colsum=True)
    scratch = c.lds_end
    ptr, sWave = prologue(k, 224)
    sX, sJ, sRB, sCT, sT = k.s(), k.s(), k.s(), k.s(), k.s()
    k.e(f"""
    s_and_b32 s{sX}, s2, 7
    s_lshr_b32 s{sJ}, s2, 3
    s_and_b32 s{sRB}, s{sJ}, 3
    s_lshr_b32 s{sT}, s{sX}, 1
    s_lshl_b32 s{sT}, s{sT}, 2
    s_add_u32 s{sRB}, s{sRB}, s{sT}
    s_lshr_b32 s{sCT}, s{sJ}, 2
    s_and_b32 s{sT}, s{sX}, 1
    s_mul_i32 s{sT}, s{sT}, 7
    s_add_u32 s{sCT}, s{sCT}, s{sT}
    s_waitcnt lgkmcnt(0)
    """)
    Lc = k.label("cons")
    k.e(f"s_cmp_lt_u32 s{sWave}, 4")
    k.e(f"s_cbranch_scc1 {Lc}")
    m = k.mark()
    srdA = k.srd(ptr['ws'], S_ * D_ * 2, WS_H)
    srdW = k.srd(ptr['w1'], F_ * D_ * 2)
    sRow, sCol, sLW = k.s(), k.s(), k.s()
    k.e(f"s_mul_i32 s{sRow}, s{sRB}, {128 * 2 * D_}")
    k.e(f"s_lshl_b32 s{sCol}, s{sCT}, 8")
    k.e(f"s_sub_u32 s{sLW}, s{sWave}, 4")
    gen_loader(k, c, srdA, srdW, sRow, sCol, sLW)
    k.e("s_endpgm")
    k.release(m)
    k.place(Lc)
    vl = lane_id(k)
    srdS = k.srd(ptr['ws'], S_ * 64, WS_ST2)
    srdO = k.srd(ptr['ws'], S_ * F_ * 2, WS_HH)
    vO = k.v()
    vm = [k.v() for _ in range(4)]
    vs = [k.v() for _ in range(4)]
    sA, sB, sR0 = k.s(), k.s(), k.s()
    m = k.mark()
    st = [k.v(4) for _ in range(4)]
    t0, t1 = k.v(), k.v()
    k.e(f"""
    s_lshr_b32 s{sA}, s{sWave}, 1
    s_lshl_b32 s{sA}, s{sA}, 6
    s_lshl_b32 s{sR0}, s{sRB}, 7
    s_add_u32 s{sR0}, s{sR0}, s{sA}
    v_and_b32 v{t0}, 15, v{vl}
    v_lshrrev_b32 v{t1}, 4, v{vl}
    v_lshlrev_b32 v{t1}, 4, v{t1}
    v_lshl_add_u32 v{t1}, v{t0}, 6, v{t1}
    s_lshl_b32 s{sA}, s{sR0}, 6
    """)
    for mt in range(4):
        k.e(f"buffer_load_dwordx4 {vr(st[mt],4)}, v{t1}, s[{srdS}:{srdS+3}], s{sA} offen offset:{mt*1024}")
    k.e(f"""
    s_mov_b32 s{sB}, {2*F_}
    v_mul_lo_u32 v{vO}, v{t0}, s{sB}
    v_bfe_u32 v{t0}, v{vl}, 4, 1
    v_lshl_add_u32 v{vO}, v{t0}, 5, v{vO}
    v_lshrrev_b32 v{t0}, 5, v{vl}
    v_lshl_add_u32 v{vO}, v{t0}, 4, v{vO}
    s_mul_i32 s{sA}, s{sR0}, {2*F_}
    s_lshl_b32 s{sB}, s{sCT}, 8
    s_add_u32 s{sA}, s{sA}, s{sB}
    s_and_b32 s{sB}, s{sWave}, 1
    s_lshl_b32 s{sB}, s{sB}, 7
    s_add_u32 s{sA}, s{sA}, s{sB}
    v_add_u32 v{vO}, s{sA}, v{vO}
    s_mov_b32 s{sA}, {f32bits(1.0/640)}
    s_mov_b32 s{sB}, {f32bits(1e-5)}
    """)
    for mt in range(4):
        k.e(f"s_waitcnt vmcnt({3-mt})")
        k.e(f"v_add_f32 v{vm[mt]}, v{st[mt]}, v{st[mt]+2}")
        k.e(f"v_add_f32 v{vs[mt]}, v{st[mt]+1}, v{st[mt]+3}")
        allreduce4(k, vm[mt], t0)
        allreduce4(k, vs[mt], t0)
        k.e(f"""
        v_mul_f32 v{vm[mt]}, s{sA}, v{vm[mt]}
        v_mul_f32 v{vs[mt]}, s{sA}, v{vs[mt]}
        v_fma_f32 v{vs[mt]}, -v{vm[mt]}, v{vm[mt]}, v{vs[mt]}
        v_max_f32 v{vs[mt]}, 0, v{vs[mt]}
        """)
        ln_finalize(k, vm[mt], vs[mt], sB)
    k.release(m)
    o = gen_consumer(k, c, sWave, vl)
    t0, t1 = k.v(), k.v()
    oth = [k.v(4) for _ in range(4)]
    k.e(f"""
    v_lshrrev_b32 v{t0}, 4, v{vl}
    v_lshlrev_b32 v{t0}, 4, v{t0}
    s_lshl_b32 s{sA}, s{sWave}, 8
    s_add_u32 s{sA}, s{sA}, {scratch}
    v_add_u32 v{t0}, s{sA}, v{t0}
    v_xor_b32 v{t1}, 512, v{t0}
    """)
    assert scratch % 1024 == 0
    for nt in range(4):
        k.e(f"ds_write_b128 v{t0}, {vr(o.cs[nt],4)} offset:{nt*64}")
    k.e("s_waitcnt lgkmcnt(0)")
    k.e("s_barrier")
    for nt in range(4):
        k.e(f"ds_read_b128 {vr(oth[nt],4)}, v{t1} offset:{nt*64}")
    k.e("s_waitcnt lgkmcnt(0)")
    for nt in range(4):
        for j in range(4):
            k.e(f"v_add_f32 v{o.cs[nt]+j}, v{o.cs[nt]+j}, v{oth[nt]+j}")
    k.e(f"""
    s_and_b32 s{sA}, s{sWave}, 1
    s_lshl_b32 s{sB}, s{sCT}, 1
    s_add_u32 s{sA}, s{sA}, s{sB}
    s_cmp_ge_u32 s{sA}, 27
    s_cbranch_scc1 {k.end}
    """)
    for mt in range(4):
        k.e(f"s_mov_b32 s{sB}, {mt * 16 * 2 * F_}")
        for pr in range(2):
            a0, a1 = o.acc[mt][2*pr], o.acc[mt][2*pr+1]
            for a, nt in ((a0, 2*pr), (a1, 2*pr+1)):
                for j in range(4):
                    k.e(f"v_fma_f32 v{a+j}, -v{vm[mt]}, v{o.cs[nt]+j}, v{a+j}")
                for j in range(4):
                    k.e(f"v_mul_f32 v{a+j}, v{vs[mt]}, v{a+j}")
            pk = oth[(2 * mt + pr) % 4]
            k.e(f"""
            v_cvt_pk_bf16_f32 v{pk}, v{a0}, v{a0+1}
            v_cvt_pk_bf16_f32 v{pk+1}, v{a0+2}, v{a0+3}
            v_cvt_pk_bf16_f32 v{pk+2}, v{a1}, v{a1+1}
            v_cvt_pk_bf16_f32 v{pk+3}, v{a1+2}, v{a1+3}
            v_pk_max_i16 v{pk}, v{pk}, 0
            v_pk_max_i16 v{pk+1}, v{pk+1}, 0
            v_pk_max_i16 v{pk+2}, v{pk+2}, 0
            v_pk_max_i16 v{pk+3}, v{pk+3}, 0
            s_nop 1
            v_permlane16_swap_b32 v{pk}, v{pk+2}
            v_permlane16_swap_b32 v{pk+1}, v{pk+3}
            s_nop 0
            buffer_store_dwordx4 {vr(pk,4)}, v{vO}, s[{srdO}:{srdO+3}], s{sB} offen offset:{pr*64}
            """)
    finish(k)
    return k, dict(grid=224, block=384, lds=scratch + 1024)


LOG2E = 1.4426950408889634


def dpp_rowsum(k, x):
    for r in (8, 4, 2, 1):
        k.e("s_nop 1")
        k.e(f"v_add_f32_dpp v{x}, v{x}, v{x} row_ror:{r} row_mask:0xf bank_mask:0xf")


def phi_ops(k, a, pre, vr_, vr2, sEps, t):
    k.e(f"""
    v_mul_f32 v{t}, v{vr2}, v{pre}
    v_fma_f32 v{a}, v{pre}, v{vr_}, s{sEps}
    v_min_f32 v{t}, 0, v{t}
    v_exp_f32 v{t}, v{t}
    v_max_f32 v{a}, s{sEps}, v{a}
    v_add_f32 v{a}, v{a}, v{t}
    """)


def gen_p1(name="p1_kernel"):
    k = Kern(name)
    ckv = GemmCfg(BM=128, NS=10, lda=2 * D_, ldw=6 * D_, wl='odd', nseg=2, segoff=(2 * D_, 4 * D_), S=4, R=2, WM=4, WN=1,
                  transposed=False, colsum=True)
    cq = GemmCfg(BM=128, NS=10, lda=2 * D_, ldw=6 * D_, wl='odd', nseg=1, segoff=(0,), S=4, R=2, WM=4, WN=1,
                 transposed=True, colsum=True)
    scratch = ckv.lds_end
    ptr, sWave = prologue(k, 256)
    sX, sJ, sG, sC, sTy, sT = k.s(), k.s(), k.s(), k.s(), k.s(), k.s()
    k.e(f"""
    s_and_b32 s{sX}, s2, 7
    s_lshr_b32 s{sJ}, s2, 3
    s_and_b32 s{sG}, s{sJ}, 3
    s_lshr_b32 s{sT}, s{sX}, 1
    s_lshl_b32 s{sT}, s{sT}, 2
    s_add_u32 s{sG}, s{sG}, s{sT}
    s_lshr_b32 s{sC}, s{sJ}, 3
    s_and_b32 s{sT}, s{sX}, 1
    s_lshl_b32 s{sT}, s{sT}, 2
    s_add_u32 s{sC}, s{sC}, s{sT}
    s_bfe_u32 s{sTy}, s{sJ}, 0x10002
    s_waitcnt lgkmcnt(0)
    """)
    srdX = k.srd(ptr['x'], S_ * D_ * 2)
    Lc, Lq, Llq = k.label("cons"), k.label("consq"), k.label("ldq")
    k.e(f"s_cmp_lt_u32 s{sWave}, 4")
    k.e(f"s_cbranch_scc1 {Lc}")
    m = k.mark()
    srdW = k.srd(ptr['wqkv'], 3 * D_ * D_ * 2)
    sRow, sCol, sLW = k.s(), k.s(), k.s()
    k.e(f"s_mul_i32 s{sRow}, s{sG}, {128 * 2 * D_}")
    k.e(f"s_mul_i32 s{sCol}, s{sC}, 160")
    k.e(f"s_sub_u32 s{sLW}, s{sWave}, 4")
    k.e(f"s_cmp_eq_u32 s{sTy}, 1")
    k.e(f"s_cbranch_scc1 {Llq}")
    gen_loader(k, ckv, srdX, srdW, sRow, sCol, sLW)
    k.e("s_endpgm")
    k.place(Llq)
    gen_loader(k, cq, srdX, srdW, sRow, sCol, sLW)
    k.e("s_endpgm")
    k.release(m)
    k.place(Lc)
    vl = lane_id(k)
    srdS = k.srd(ptr['ws'], S_ * 8, WS_ST1)
    srdD = k.srd(ptr['dbg'], 256)
    srdK = k.srd(ptr['ws'], KV_BYTES, WS_KV)
    sA, sB, sEps, sR0 = k.s(), k.s(), k.s(), k.s()
    vflag, vfa = k.v(), k.v()
    k.e(f"""
    s_lshl_b32 s{sR0}, s{sG}, 7
    s_lshl_b32 s{sA}, s{sWave}, 5
    s_add_u32 s{sR0}, s{sR0}, s{sA}
    s_mov_b32 s{sEps}, {f32bits(1e-6)}
    v_and_b32 v{vfa}, 31, v{vl}
    v_lshlrev_b32 v{vfa}, 2, v{vfa}
    """)

    def poll_hooks(c, sI, stat_loads):
        l1, l2, lp = k.label("h"), k.label("h"), k.label("h")
        k.e(f"""
        s_cmp_eq_u32 s{sI}, {c.NS - 3}
        s_cbranch_scc0 {l1}
        buffer_load_dword v{vflag}, v{vfa}, s[{srdD}:{srdD+3}], 0 offen sc1
        """)
        k.place(l1)
        k.e(f"""
        s_cmp_eq_u32 s{sI}, {c.NS - 2}
        s_cbranch_scc0 {l2}
        """)
        k.place(lp)
        k.e(f"""
        s_waitcnt vmcnt(0)
        v_cmp_ne_u32 vcc, 0x01010101, v{vflag}
        s_nop 4
        s_cbranch_vccz {lp}_ok
        s_sleep 2
        buffer_load_dword v{vflag}, v{vfa}, s[{srdD}:{srdD+3}], 0 offen sc1
        s_branch {lp}
        """)
        k.place(lp + "_ok")
        stat_loads()
        k.place(l2)

    k.e(f"s_cmp_eq_u32 s{sTy}, 1")
    k.e(f"s_cbranch_scc1 {Lq}")
    m0 = k.mark()
    c = ckv
    st = [k.v(8, 4) for _ in range(2)]
    vsa = k.v()
    k.e(f"""
    v_lshrrev_b32 v{vsa}, 4, v{vl}
    v_lshlrev_b32 v{vsa}, 5, v{vsa}
    s_lshl_b32 s{sA}, s{sR0}, 3
    v_add_u32 v{vsa}, s{sA}, v{vsa}
    """)

    def kv_stat_loads():
        for mt in range(2):
            for hf in range(2):
                k.e(f"buffer_load_dwordx4 {vr(st[mt] + 4*hf, 4)}, v{vsa}, s[{srdS}:{srdS+3}], 0 offen offset:{mt*128 + hf*16} sc1")
    o = gen_consumer(k, c, sWave, vl, mid=lambda sI: poll_hooks(c, sI, kv_stat_loads))
    t0, t1, t2 = k.v(), k.v(), k.v()
    cs = [k.v() for _ in range(10)]
    cs2 = [k.v() for _ in range(10)]
    k.e(f"""
    v_and_b32 v{t0}, 15, v{vl}
    v_lshlrev_b32 v{t0}, 2, v{t0}
    v_add_u32 v{t0}, {scratch}, v{t0}
    s_mul_i32 s{sA}, s{sWave}, 320
    v_add_u32 v{t1}, s{sA}, v{t0}
    """)
    for i in range(5):
        k.e(f"ds_write_b32 v{t1}, v{o.cs[i]} offset:{i*64}")
    k.e("s_waitcnt lgkmcnt(0)")
    k.e("s_barrier")
    for nt in range(10):
        k.e(f"ds_read_b32 v{cs[nt]}, v{t0} offset:{nt*64}")
        k.e(f"ds_read_b32 v{cs2[nt]}, v{t0} offset:{640 + nt*64}")
        if nt == 6:
            k.e("s_waitcnt lgkmcnt(8)")
    r2 = [k.v() for _ in range(8)]
    k.e(f"s_mov_b32 s{sA}, {f32bits(LOG2E)}")
    k.e("s_waitcnt vmcnt(0)")
    for mt in range(2):
        for j in range(4):
            k.e(f"v_mul_f32 v{r2[4*mt+j]}, s{sA}, v{st[mt] + 2*j + 1}")
    k.e("s_waitcnt lgkmcnt(0)")
    for nt in range(10):
        k.e(f"v_add_f32 v{cs[nt]}, v{cs[nt]}, v{cs2[nt]}")
    k.e(f"""
    s_mul_i32 s{sA}, s{sWave}, 10240
    v_lshlrev_b32 v{t1}, 4, v{vl}
    v_add_u32 v{t0}, s{sA}, v{t1}
    """)
    fr = [k.v(4), k.v(4)]
    for nt in range(10):
        for mt in range(2):
            a = o.acc[mt][nt]
            for j in range(4):
                k.e(f"v_fma_f32 v{a+j}, -v{st[mt] + 2*j}, v{cs[nt]}, v{a+j}")
            for j in range(4):
                if nt < 5:
                    phi_ops(k, a + j, a + j, st[mt] + 2 * j + 1, r2[4 * mt + j], sEps, t2)
                else:
                    k.e(f"v_mul_f32 v{a+j}, v{st[mt] + 2*j + 1}, v{a+j}")
        f = fr[nt & 1]
        for mt in range(2):
            a = o.acc[mt][nt]
            k.e(f"v_cvt_pk_bf16_f32 v{f + 2*mt}, v{a}, v{a+1}")
            k.e(f"v_cvt_pk_bf16_f32 v{f + 2*mt + 1}, v{a+2}, v{a+3}")
        k.e(f"ds_write_b128 v{t0}, {vr(f,4)} offset:{nt*1024}")
    k.e("s_waitcnt lgkmcnt(0)")
    k.e("s_barrier")
    k.e(f"""
    s_lshl_b32 s{sA}, s{sWave}, 10
    v_add_u32 v{t0}, s{sA}, v{t1}
    """)
    accs = [o.acc[mt][nt] for mt in range(2) for nt in range(10)]
    F = {}
    idx = 0
    for tg in range(4):
        for nm, off in (("k0", 0), ("k1", 1), ("v0", 5), ("v1", 6)):
            F[(tg, nm)] = accs[idx]; idx += 1
            k.e(f"ds_read_b128 {vr(F[(tg, nm)],4)}, v{t0} offset:{tg*10240 + off*1024}")
        if tg == 2:
            k.e("s_waitcnt lgkmcnt(8)")
    Dk = {(vi, ki): accs[16 + 2 * vi + ki] for vi in range(2) for ki in range(2)}
    Dz = [o.cs[0], o.cs[1]]
    va = {(vi, ki): k.v() for vi in range(2) for ki in range(2)}
    vz = [k.v(), k.v()]
    vd = [k.v(), k.v()]
    ve = [k.v(), k.v()]
    voob = k.v()
    k.e(f"""
    s_lshl_b32 s{sA}, s{sWave}, 2
    v_and_b32 v{t1}, 15, v{vl}
    v_subrev_u32 v{vd[0]}, s{sA}, v{t1}
    v_add_u32 v{vd[1]}, 16, v{vd[0]}
    v_lshrrev_b32 v{t1}, 4, v{vl}
    v_lshlrev_b32 v{t1}, 2, v{t1}
    v_subrev_u32 v{ve[0]}, s{sA}, v{t1}
    v_add_u32 v{ve[1]}, 16, v{ve[0]}
    v_mov_b32 v{voob}, {OOB}
    """)
    sM = k.s(2)
    for vi in range(2):
        for ki in range(2):
            k.e(f"""
            v_mul_u32_u24 v{t1}, 24, v{ve[vi]}
            v_add_lshl_u32 v{t1}, v{t1}, v{vd[ki]}, 2
            v_cmp_gt_u32 vcc, 20, v{ve[vi]}
            v_cmp_gt_u32 s[{sM}:{sM+1}], 20, v{vd[ki]}
            s_nop 1
            s_and_b64 vcc, vcc, s[{sM}:{sM+1}]
            s_nop 1
            v_cndmask_b32 v{va[(vi,ki)]}, v{voob}, v{t1}, vcc
            """)
    for ki in range(2):
        k.e(f"""
        v_lshlrev_b32 v{t1}, 2, v{vd[ki]}
        v_add_u32 v{t1}, {20*96}, v{t1}
        v_cmp_gt_u32 vcc, 16, v{vl}
        v_cmp_gt_u32 s[{sM}:{sM+1}], 20, v{vd[ki]}
        s_nop 1
        s_and_b64 vcc, vcc, s[{sM}:{sM+1}]
        s_nop 1
        v_cndmask_b32 v{vz[ki]}, v{voob}, v{t1}, vcc
        """)
    k.e(f"""
    s_lshl_b32 s{sA}, s{sC}, 2
    s_add_u32 s{sA}, s{sA}, s{sWave}
    s_lshl_b32 s{sA}, s{sA}, 11
    s_waitcnt lgkmcnt(0)
    """)
    for tg in range(4):
        for vi in range(2):
            for ki in range(2):
                d = Dk[(vi, ki)]
                k.e(f"v_mfma_f32_16x16x32_bf16 {vr(d,4)}, {vr(F[(tg, f'v{vi}')],4)}, {vr(F[(tg, f'k{ki}')],4)}, " + ("0" if tg == 0 else vr(d, 4)))
        for ki in range(2):
            d = Dz[ki]
            k.e(f"v_mfma_f32_16x16x32_bf16 {vr(d,4)}, {vr(o.ones,4)}, {vr(F[(tg, f'k{ki}')],4)}, " + ("0" if tg == 0 else vr(d, 4)))
    k.e("s_nop 7")
    k.e("s_nop 1")
    for vi in range(2):
        for ki in range(2):
            for j in range(4):
                k.e(f"buffer_atomic_add_f32 v{Dk[(vi,ki)]+j}, v{va[(vi,ki)]}, s[{srdK}:{srdK+3}], s{sA} offen offset:{j*96}")
    for ki in range(2):
        k.e(f"buffer_atomic_add_f32 v{Dz[ki]}, v{vz[ki]}, s[{srdK}:{srdK+3}], s{sA} offen")
    k.e("s_endpgm")
    k.release(m0)
    k.place(Lq)
    c = cq
    srdP = k.srd(ptr['ws'], S_ * PQ_LD, WS_PQ)
    sFlag = k.s()
    st = [k.v(2) for _ in range(2)]
    vsa = k.v()
    m1 = k.mark()
    xr = [k.v(4) for _ in range(5)]
    ux = [k.v() for _ in range(40)]
    t0, t1, vs_, vq_ = k.v(), k.v(), k.v(2), None
    vq_ = vs_ + 1
    z4 = k.v(4)
    sP = k.s()
    k.e(f"""
    s_lshl_b32 s{sP}, s{sG}, 3
    s_add_u32 s{sP}, s{sP}, s{sC}
    s_lshl_b32 s{sA}, s{sP}, 2
    s_add_u32 s{sA}, s{sA}, s{sWave}
    s_lshl_b32 s{sA}, s{sA}, 2
    v_lshrrev_b32 v{t0}, 4, v{vl}
    v_add_u32 v{t0}, s{sA}, v{t0}
    v_mul_u32_u24 v{t1}, {2*D_}, v{t0}
    v_and_b32 v{vs_}, 15, v{vl}
    v_lshl_add_u32 v{t1}, v{vs_}, 4, v{t1}
    """)
    for i in range(5):
        k.e(f"buffer_load_dwordx4 {vr(xr[i],4)}, v{t1}, s[{srdX}:{srdX+3}], 0 offen offset:{i*256}")
    k.e(f"""
    v_mov_b32 v{z4}, 0
    v_mov_b32 v{z4+1}, 0
    v_mov_b32 v{z4+2}, 0
    v_mov_b32 v{z4+3}, 0
    s_lshl_b32 s{sB}, s{sA}, 5
    v_lshlrev_b32 v{t1}, 4, v{vl}
    s_mov_b64 exec, 0xff
    buffer_store_dwordx4 {vr(z4,4)}, v{t1}, s[{srdK}:{srdK+3}], s{sB} offen sc1
    s_mov_b64 exec, -1
    v_mov_b32 v{vs_}, 0
    """)
    for i in range(5):
        k.e(f"s_waitcnt vmcnt({5 - i})")
        for d in range(4):
            k.e(f"v_lshlrev_b32 v{ux[8*i+2*d]}, 16, v{xr[i]+d}")
            k.e(f"v_and_b32 v{ux[8*i+2*d+1]}, 0xffff0000, v{xr[i]+d}")
        for d in range(8):
            k.e(f"v_add_f32 v{vs_}, v{vs_}, v{ux[8*i+d]}")
    dpp_rowsum(k, vs_)
    k.e(f"""
    s_mov_b32 s{sB}, {f32bits(1.0/640)}
    v_mul_f32 v{vs_}, s{sB}, v{vs_}
    v_mov_b32 v{vq_}, 0
    """)
    for i in range(40):
        k.e(f"v_sub_f32 v{ux[i]}, v{ux[i]}, v{vs_}")
        k.e(f"v_fmac_f32 v{vq_}, v{ux[i]}, v{ux[i]}")
    dpp_rowsum(k, vq_)
    k.e(f"v_mul_f32 v{vq_}, s{sB}, v{vq_}")
    k.e(f"s_mov_b32 s{sB}, {f32bits(1e-5)}")
    ln_finalize(k, vs_, vq_, sB)
    k.e(f"""
    v_lshlrev_b32 v{t0}, 3, v{t0}
    s_mov_b32 exec_lo, 0x00010001
    s_mov_b32 exec_hi, 0x00010001
    buffer_store_dwordx2 {vr(vs_,2)}, v{t0}, s[{srdS}:{srdS+3}], 0 offen sc1
    s_mov_b64 exec, -1
    s_cmp_eq_u32 s{sWave}, 0
    s_cselect_b32 s{sFlag}, 1, 0
    v_and_b32 v{vsa}, 15, v{vl}
    v_add_u32 v{vsa}, s{sR0}, v{vsa}
    v_lshlrev_b32 v{vsa}, 3, v{vsa}
    s_waitcnt vmcnt(0)
    """)
    keep = k.stop
    k.release(m1)
    k.stop = keep

    def q_stat_loads():
        for mt in range(2):
            k.e(f"buffer_load_dwordx2 {vr(st[mt], 2)}, v{vsa}, s[{srdS}:{srdS+3}], 0 offen offset:{mt*128} sc1")

    def q_mid(sI):
        l0 = k.label("f")
        k.e(f"""
        s_cmp_lg_u32 s{sFlag}, 0
        s_cbranch_scc0 {l0}
        s_mov_b32 s{sFlag}, 0
        v_mov_b32 v{vflag}, 1
        v_mov_b32 v{st[0]}, s{sP}
        s_mov_b64 exec, 1
        buffer_store_byte v{vflag}, v{st[0]}, s[{srdD}:{srdD+3}], 0 offen sc1
        s_mov_b64 exec, -1
        """)
        k.place(l0)
        poll_hooks(c, sI, q_stat_loads)
    o = gen_consumer(k, c, sWave, vl, mid=q_mid)
    t0, t1, t2 = k.v(), k.v(), k.v()
    cs = [k.v(4) for _ in range(5)]
    cs2 = [k.v(4) for _ in range(5)]
    k.e(f"""
    v_lshrrev_b32 v{t0}, 4, v{vl}
    v_lshlrev_b32 v{t0}, 4, v{t0}
    v_add_u32 v{t0}, {scratch}, v{t0}
    s_mul_i32 s{sA}, s{sWave}, 192
    v_add_u32 v{t1}, s{sA}, v{t0}
    """)
    for i in range(3):
        k.e(f"ds_write_b128 v{t1}, {vr(o.cs[i],4)} offset:{i*64}")
    k.e("s_waitcnt lgkmcnt(0)")
    k.e("s_barrier")
    for nt in range(5):
        k.e(f"ds_read_b128 {vr(cs[nt],4)}, v{t0} offset:{nt*64}")
        k.e(f"ds_read_b128 {vr(cs2[nt],4)}, v{t0} offset:{384 + nt*64}")
    vo = [k.v() for _ in range(5)]
    vp = k.v()
    r2 = [k.v(), k.v()]
    k.e(f"""
    v_and_b32 v{t0}, 15, v{vl}
    v_add_u32 v{t0}, s{sR0}, v{t0}
    v_mul_u32_u24 v{t0}, {PQ_LD}, v{t0}
    s_mul_i32 s{sA}, s{sC}, 192
    v_add_u32 v{t0}, s{sA}, v{t0}
    v_lshrrev_b32 v{t1}, 4, v{vl}
    v_mad_u32_u24 v{vp}, v{t1}, 48, v{t0}
    """)
    for nt in range(5):
        k.e(f"""
        v_add_u32 v{t2}, {4*nt}, v{t1}
        v_mul_u32_u24 v{vo[nt]}, 205, v{t2}
        v_lshrrev_b32 v{vo[nt]}, 10, v{vo[nt]}
        v_add_u32 v{vo[nt]}, v{vo[nt]}, v{t2}
        v_lshl_add_u32 v{vo[nt]}, v{vo[nt]}, 3, v{t0}
        """)
    k.e(f"s_mov_b32 s{sA}, {f32bits(LOG2E)}")
    k.e("s_waitcnt vmcnt(0)")
    for mt in range(2):
        k.e(f"v_mul_f32 v{r2[mt]}, s{sA}, v{st[mt]+1}")
    k.e("s_waitcnt lgkmcnt(0)")
    for nt in range(5):
        for j in range(4):
            k.e(f"v_add_f32 v{cs[nt]+j}, v{cs[nt]+j}, v{cs2[nt]+j}")
    z2 = cs2[0]
    k.e(f"v_mov_b32 v{z2}, 0")
    k.e(f"v_mov_b32 v{z2+1}, 0")
    for mt in range(2):
        k.e(f"s_mov_b32 s{sB}, {mt * 16 * PQ_LD}")
        k.e(f"buffer_store_dwordx2 {vr(z2,2)}, v{vp}, s[{srdP}:{srdP+3}], s{sB} offen offset:40")
        for nt in range(5):
            a = o.acc[mt][nt]
            for j in range(4):
                k.e(f"v_fma_f32 v{a+j}, -v{st[mt]}, v{cs[nt]+j}, v{a+j}")
            for j in range(4):
                phi_ops(k, a + j, a + j, st[mt] + 1, r2[mt], sEps, t2)
            k.e(f"v_cvt_pk_bf16_f32 v{a}, v{a}, v{a+1}")
            k.e(f"v_cvt_pk_bf16_f32 v{a+1}, v{a+2}, v{a+3}")
            k.e(f"buffer_store_dwordx2 {vr(a,2)}, v{vo[nt]}, s[{srdP}:{srdP+3}], s{sB} offen")
    finish(k)
    return k, dict(grid=256, block=384, lds=scratch + 2048)


def gen_p2(name="p2_kernel"):
    k = Kern(name)
    L_KV = 98304
    L_WS = 131072
    LDS = L_WS + 6 * 5120

    def wloc(step):
        if step < 6:
            return L_WS + step * 5120
        q = step - 6
        return (q // 4) * 24576 + (q % 4) * 5120
    ptr, sWave = prologue(k, 256)
    sX, sJ, sRB, sCT, sT = k.s(), k.s(), k.s(), k.s(), k.s()
    k.e(f"""
    s_and_b32 s{sX}, s2, 7
    s_lshr_b32 s{sJ}, s2, 3
    s_and_b32 s{sRB}, s{sJ}, 7
    s_lshr_b32 s{sT}, s{sX}, 1
    s_lshl_b32 s{sT}, s{sT}, 3
    s_add_u32 s{sRB}, s{sRB}, s{sT}
    s_lshr_b32 s{sCT}, s{sJ}, 3
    s_and_b32 s{sT}, s{sX}, 1
    s_lshl_b32 s{sT}, s{sT}, 2
    s_add_u32 s{sCT}, s{sCT}, s{sT}
    s_waitcnt lgkmcnt(0)
    """)
    vl = lane_id(k)
    Lc = k.label("cons")
    k.e(f"s_cmp_lt_u32 s{sWave}, 4")
    k.e(f"s_cbranch_scc1 {Lc}")
    m = k.mark()
    srdP = k.srd(ptr['ws'], S_ * PQ_LD, WS_PQ)
    srdW = k.srd(ptr['wo'], D_ * D_ * 2)
    sLW, sKA, sLA, sKW, sLWd = k.s(), k.s(), k.s(), k.s(), k.s()
    t0, t1, t2, vA = k.v(), k.v(), k.v(), k.v()
    k.e(f"""
    s_sub_u32 s{sLW}, s{sWave}, 4
    v_lshrrev_b32 v{t0}, 3, v{vl}
    v_and_b32 v{t1}, 6, v{t0}
    v_and_b32 v{t2}, 7, v{vl}
    v_xor_b32 v{t1}, v{t1}, v{t2}
    v_lshlrev_b32 v{t1}, 4, v{t1}
    s_mov_b32 s{sT}, {PQ_LD}
    v_mad_u32_u24 v{vA}, v{t0}, s{sT}, v{t1}
    s_lshl_b32 s{sKA}, s{sRB}, 1
    s_add_u32 s{sKA}, s{sKA}, s{sLW}
    s_mul_i32 s{sKA}, s{sKA}, {32 * PQ_LD}
    s_lshl_b32 s{sLA}, s{sLW}, 12
    s_mul_i32 s{sKW}, s{sCT}, 160
    s_mul_i32 s{sLWd}, s{sLW}, 5120
    """)

    def pq_oct(o):
        for lc in range(3 * o, 3 * o + 3):
            for i in range(4):
                k.e(f"s_add_u32 m0, s{sLA}, {lc * 8192 + i * 1024}")
                k.e(f"s_add_u32 s{sT}, s{sKA}, {i * 8 * PQ_LD + lc * 128}")
                k.e(f"buffer_load_dwordx4 v{vA}, s[{srdP}:{srdP+3}], s{sT} offen lds")
    pq_oct(0)
    pq_oct(1)
    pat = [[k.v() for _ in range(5)] for _ in range(5)]
    vi_, vb_ = k.v(), k.v()
    sF = k.s()
    k.e(f"s_lshl_b32 s{sF}, s{sLW}, 3")
    k.e(f"s_mov_b32 s{sT}, 1280")
    for mI in range(5):
        k.e(f"""
        v_add_u32 v{t0}, {64*mI}, v{vl}
        v_mul_u32_u24 v{t1}, 205, v{t0}
        v_lshrrev_b32 v{t1}, 11, v{t1}
        v_mul_u32_u24 v{t2}, 10, v{t1}
        v_sub_u32 v{t2}, v{t0}, v{t2}
        v_lshlrev_b32 v{vb_}, 4, v{t2}
        v_and_b32 v{vi_}, 3, v{t1}
        v_bfe_u32 v{t0}, v{t1}, 3, 1
        v_lshl_or_b32 v{vi_}, v{t0}, 2, v{vi_}
        v_add_u32 v{vi_}, s{sF}, v{vi_}
        v_bfe_u32 v{t0}, v{t1}, 2, 1
        v_lshrrev_b32 v{t2}, 4, v{t1}
        v_lshl_or_b32 v{t0}, v{t2}, 1, v{t0}
        v_mul_u32_u24 v{t0}, {5 * 1280}, v{t0}
        v_add_u32 v{vb_}, v{vb_}, v{t0}
        """)
        for u in range(5):
            k.e(f"""
            v_add_u32 v{t0}, {16*u}, v{vi_}
            v_mul_u32_u24 v{t1}, 205, v{t0}
            v_lshrrev_b32 v{t1}, 10, v{t1}
            v_mad_u32_u24 v{t0}, v{t1}, 15, v{t0}
            v_mad_u32_u24 v{pat[u][mI]}, v{t0}, s{sT}, v{vb_}
            """)

    def wsteps(s0, s1):
        for s in range(s0, s1, 2):
            assert wloc(s + 1) == wloc(s) + 5120
            u = (s % 10) // 2
            k.e(f"s_add_u32 s{sT}, s{sKW}, {(s // 10) * 320 * 1280}")
            for mI in range(5):
                k.e(f"s_add_u32 m0, s{sLWd}, {wloc(s) + mI * 1024}")
                k.e("s_nop 0")
                k.e(f"buffer_load_dwordx4 v{pat[u][mI]}, s[{srdW}:{srdW+3}], s{sT} offen lds")

    def bar(n):
        k.e(f"s_waitcnt vmcnt({n})")
        k.e("s_barrier")
    bar(12)
    pq_oct(2)
    bar(12)
    pq_oct(3)
    bar(12)
    wsteps(0, 6)
    bar(15)
    wsteps(6, 10)
    bar(10)
    wsteps(10, 14)
    bar(10)
    wsteps(14, 18)
    bar(10)
    wsteps(18, 20)
    bar(5)
    bar(0)
    k.e("s_endpgm")
    k.release(m)
    k.place(Lc)
    srdK = k.srd(ptr['ws'], KV_BYTES, WS_KV)
    srdX = k.srd(ptr['x'], S_ * D_ * 2)
    srdH = k.srd(ptr['ws'], S_ * D_ * 2, WS_H)
    srdS = k.srd(ptr['ws'], S_ * 64, WS_ST2)
    sA, sB, sEps = k.s(), k.s(), k.s()
    O = k.v(80, 4)
    xr = [k.v(2) for _ in range(5)]
    vO = k.v()
    t0, t1, t2 = k.v(), k.v(), k.v()
    k.e(f"v_lshlrev_b32 v{t0}, 4, v0")
    for i in range(16):
        k.e(f"s_mov_b32 s{sA}, {i * 4096}")
        k.e(f"buffer_load_dwordx4 {vr(O + 4*i, 4)}, v{t0}, s[{srdK}:{srdK+3}], s{sA} offen")
    vrow = k.v()
    k.e(f"""
    s_lshl_b32 s{sA}, s{sRB}, 6
    s_lshl_b32 s{sB}, s{sWave}, 4
    s_add_u32 s{sA}, s{sA}, s{sB}
    v_and_b32 v{vrow}, 15, v{vl}
    v_add_u32 v{vrow}, s{sA}, v{vrow}
    v_mul_u32_u24 v{vO}, {2*D_}, v{vrow}
    v_lshrrev_b32 v{t1}, 4, v{vl}
    v_lshl_add_u32 v{vO}, v{t1}, 3, v{vO}
    s_mul_i32 s{sA}, s{sCT}, 160
    v_add_u32 v{vO}, s{sA}, v{vO}
    s_mov_b32 s{sEps}, {f32bits(1e-6)}
    """)
    for nt in range(5):
        k.e(f"buffer_load_dwordx2 {vr(xr[nt],2)}, v{vO}, s[{srdX}:{srdX+3}], 0 offen offset:{nt*32}")
    vP = [k.v() for _ in range(8)]
    vKa, vKb, vW = k.v(), k.v(), k.v()
    k.e(f"""
    v_lshrrev_b32 v{t1}, 4, v{vl}
    v_cmp_eq_u32 vcc, 3, v{t1}
    v_and_b32 v{t2}, 15, v{vl}
    s_lshl_b32 s{sA}, s{sWave}, 4
    v_cndmask_b32 v{t0}, v{t1}, 1, vcc
    v_add_u32 v{vKa}, s{sA}, v{t2}
    v_lshlrev_b32 v{vKa}, 7, v{vKa}
    v_and_b32 v{vKb}, 6, v{t2}
    """)
    for hh in range(8):
        k.e(f"""
        v_add_u32 v{vW}, {3*hh}, v{t0}
        v_lshrrev_b32 v{vP[hh]}, 3, v{vW}
        v_lshl_add_u32 v{vP[hh]}, v{vP[hh]}, 13, v{vKa}
        v_and_b32 v{vW}, 7, v{vW}
        v_xor_b32 v{vW}, v{vW}, v{vKb}
        v_lshl_add_u32 v{vP[hh]}, v{vW}, 4, v{vP[hh]}
        """)
    sM = k.s(2)
    k.e(f"""
    v_lshrrev_b32 v{t0}, 2, v{t2}
    v_add_u32 v{vKa}, v{t0}, v{t2}
    v_mul_u32_u24 v{vKb}, 5, v{t0}
    v_add_u32 v{vKb}, 4, v{vKb}
    v_and_b32 v{t0}, 3, v{t2}
    v_cmp_eq_u32 s[{sM}:{sM+1}], 0, v{t0}
    v_mov_b32 v{t0}, 20
    s_nop 0
    v_cndmask_b32 v{vKb}, v{t0}, v{vKb}, s[{sM}:{sM+1}]
    v_mul_u32_u24 v{vKa}, 48, v{vKa}
    v_mul_u32_u24 v{vKb}, 48, v{vKb}
    v_lshl_add_u32 v{vKa}, v{t1}, 4, v{vKa}
    v_lshl_add_u32 v{vKb}, v{t1}, 4, v{vKb}
    v_mov_b32 v{t0}, 1008
    v_cndmask_b32 v{vKa}, v{vKa}, v{t0}, vcc
    v_cndmask_b32 v{vKb}, v{vKb}, v{t0}, vcc
    v_add_u32 v{vKa}, {L_KV}, v{vKa}
    v_add_u32 v{vKb}, {L_KV}, v{vKb}
    """)
    vW2, vW3 = k.v(), k.v()
    k.e(f"""
    v_bfe_u32 v{t0}, v{vl}, 2, 3
    v_lshrrev_b32 v{t1}, 5, v{vl}
    v_mul_u32_u24 v{t1}, 2560, v{t1}
    v_mul_u32_u24 v{t0}, 160, v{t0}
    v_add_u32 v{vW}, v{t1}, v{t0}
    v_and_b32 v{t0}, 3, v{vl}
    v_lshl_add_u32 v{vW}, v{t0}, 3, v{vW}
    v_add_u32 v{vW2}, 49152, v{vW}
    v_add_u32 v{vW3}, {L_WS}, v{vW}
    v_lshlrev_b32 v{t0}, 3, v0
    v_add_u32 v{t0}, {L_KV}, v{t0}
    """)
    for i in range(16):
        r = O + 4 * i
        k.e(f"s_waitcnt vmcnt({15 - i + 5})")
        k.e(f"v_cvt_pk_bf16_f32 v{r}, v{r}, v{r+1}")
        k.e(f"v_cvt_pk_bf16_f32 v{r+1}, v{r+2}, v{r+3}")
        k.e(f"ds_write_b64 v{t0}, {vr(r,2)} offset:{i*2048}")
        if i % 8 == 7:
            k.e("s_waitcnt lgkmcnt(0)")
    NB = 2
    fp = [[k.v(4) for _ in range(2)] for _ in range(NB)]
    fka = [[k.v(4) for _ in range(2)] for _ in range(NB)]
    fkb = [[k.v(4) for _ in range(2)] for _ in range(NB)]
    Da = [[k.v(4) for _ in range(2)] for _ in range(NB)]
    Db = [[k.v(4) for _ in range(2)] for _ in range(NB)]

    def rd(p):
        b = p % NB
        for i in range(2):
            h = 2 * p + i
            oc = h // 8
            off = (oc % 3) * 24576
            k.e(f"ds_read_b128 {vr(fp[b][i],4)}, v{vP[h % 8]} offset:{off}")
            k.e(f"ds_read_b128 {vr(fka[b][i],4)}, v{vKa} offset:{h*1024}")
            k.e(f"ds_read_b128 {vr(fkb[b][i],4)}, v{vKb} offset:{h*1024}")

    def mm(p):
        b = p % NB
        for i in range(2):
            k.e(f"v_mfma_f32_16x16x32_bf16 {vr(Db[b][i],4)}, {vr(fkb[b][i],4)}, {vr(fp[b][i],4)}, 0")
            k.e(f"v_mfma_f32_16x16x32_bf16 {vr(Da[b][i],4)}, {vr(fka[b][i],4)}, {vr(fp[b][i],4)}, 0")

    def fin(p):
        b = p % NB
        vals = []
        for i in range(2):
            k.e(f"v_add_f32 v{Db[b][i]+1}, s{sEps}, v{Db[b][i]+1}")
            k.e(f"v_rcp_f32 v{Db[b][i]+1}, v{Db[b][i]+1}")
        k.e("s_nop 0")
        for i in range(2):
            rc = Db[b][i] + 1
            for x in [Da[b][i], Da[b][i] + 1, Da[b][i] + 2, Da[b][i] + 3, Db[b][i]]:
                k.e(f"v_mul_f32 v{x}, v{x}, v{rc}")
                vals.append(x)
        for d in range(5):
            k.e(f"v_cvt_pk_bf16_f32 v{O + 5*p + d}, v{vals[2*d]}, v{vals[2*d+1]}")
    for oc in range(4):
        k.e("s_barrier")
        if oc == 3:
            for hh in range(8):
                k.e(f"v_add_u32 v{vP[hh]}, 73728, v{vP[hh]}")
        p0 = 4 * oc
        rd(p0)
        rd(p0 + 1)
        k.e("s_waitcnt lgkmcnt(6)")
        mm(p0)
        k.e("s_waitcnt lgkmcnt(0)")
        mm(p0 + 1)
        rd(p0 + 2)
        k.e("s_nop 1")
        fin(p0)
        k.e("s_waitcnt lgkmcnt(0)")
        mm(p0 + 2)
        rd(p0 + 3)
        fin(p0 + 1)
        k.e("s_waitcnt lgkmcnt(0)")
        mm(p0 + 3)
        k.e("s_nop 3")
        fin(p0 + 2)
        fin(p0 + 3)
    acc = [Da[0][0], Da[0][1], Da[1][0], Da[1][1], Db[0][0]]
    fw = [[fp[0][0], fp[0][1], fp[1][0], fp[1][1], fka[0][0]], [fka[0][1], fka[1][0], fka[1][1], fkb[0][0], fkb[0][1]]]

    def wrd(s):
        loc = wloc(s)
        if loc >= L_WS:
            vb, off = vW3, loc - L_WS
        elif loc >= 49152:
            vb, off = vW2, loc - 49152
        else:
            vb, off = vW, loc
        return [f"ds_read_b64_tr_b16 {vr(fw[s & 1][nt] + 2*h, 2)}, v{vb} offset:{off + h * 1280 + nt * 32}" for nt in range(5) for h in range(2)]

    def wmm(s):
        return [f"v_mfma_f32_16x16x32_bf16 {vr(acc[nt],4)}, {vr(fw[s & 1][nt],4)}, {vr(O + 4*s,4)}, " + ("0" if s == 0 else vr(acc[nt], 4)) for nt in range(5)]
    groups = [(0, 6), (6, 10), (10, 14), (14, 18), (18, 20)]
    prev = None
    for (a, b) in groups:
        k.e("s_barrier")
        for s in range(a, b):
            r = wrd(s)
            if prev is None:
                k.emit_list(r)
            else:
                k.emit_list(r[:4])
                k.emit_list(interleave(wmm(prev), r[4:], 3))
            k.e("s_waitcnt lgkmcnt(0)")
            prev = s
    k.emit_list(wmm(prev))
    k.e("s_nop 7")
    k.e("s_waitcnt vmcnt(0)")
    vs_ = fp[0][0]
    vq_ = vs_ + 1
    u = fp[0][1]
    k.e(f"v_mov_b32 v{vs_}, 0")
    k.e(f"v_mov_b32 v{vq_}, 0")
    for nt in range(5):
        a = acc[nt]
        k.e(f"v_cvt_pk_bf16_f32 v{a}, v{a}, v{a+1}")
        k.e(f"v_cvt_pk_bf16_f32 v{a+1}, v{a+2}, v{a+3}")
        for d in range(2):
            k.e(f"""
            v_lshlrev_b32 v{u}, 16, v{a+d}
            v_and_b32 v{u+1}, 0xffff0000, v{a+d}
            v_lshlrev_b32 v{u+2}, 16, v{xr[nt]+d}
            v_and_b32 v{u+3}, 0xffff0000, v{xr[nt]+d}
            v_add_f32 v{u}, v{u}, v{u+2}
            v_add_f32 v{u+1}, v{u+1}, v{u+3}
            v_cvt_pk_bf16_f32 v{a+d}, v{u}, v{u+1}
            v_lshlrev_b32 v{u}, 16, v{a+d}
            v_and_b32 v{u+1}, 0xffff0000, v{a+d}
            v_add_f32 v{vs_}, v{vs_}, v{u}
            v_fmac_f32 v{vq_}, v{u}, v{u}
            v_add_f32 v{vs_}, v{vs_}, v{u+1}
            v_fmac_f32 v{vq_}, v{u+1}, v{u+1}
            """)
        k.e(f"buffer_store_dwordx2 {vr(a,2)}, v{vO}, s[{srdH}:{srdH+3}], 0 offen offset:{nt*32}")
    allreduce4(k, vs_, t0)
    allreduce4(k, vq_, t0)
    k.e(f"""
    v_lshlrev_b32 v{vrow}, 6, v{vrow}
    s_lshl_b32 s{sA}, s{sCT}, 3
    s_mov_b64 exec, 0xffff
    buffer_store_dwordx2 {vr(vs_,2)}, v{vrow}, s[{srdS}:{srdS+3}], s{sA} offen
    """)
    finish(k)
    return k, dict(grid=256, block=384, lds=LDS)


def assemble(kerns, path, header=""):
    out = header
    for k, l in kerns:
        out += f"; @launch kernel={k.name} grid=({l['grid']},1,1) block=({l['block']},1,1) lds={l['lds']}\n"
    out += '.amdgcn_target "amdgcn-amd-amdhsa--gfx950"\n.text\n'
    seen = []
    for k, l in kerns:
        if k.name in seen: continue
        seen.append(k.name)
        out += k.text()
    out += '.section .rodata,"a"\n'
    seen = []
    for k, l in kerns:
        if k.name in seen: continue
        seen.append(k.name)
        out += k.descriptor()
    open(path, "w").write(out)
```

```python
import sys
from kernels import *
ref = open('sequential_preLN__linear_attn_block__dense_activation_relu__prompt.s.ref').read()
hdr = "".join(l + "\n" for l in ref.splitlines()[:10])
out = sys.argv[1] if len(sys.argv) > 1 else 'sequential_preLN__linear_attn_block__dense_activation_relu__prompt.s'
assemble([gen_p1(), gen_p2(), gen_p3(), gen_p4()], out, hdr)
```

```python
import sys
from kernels import *
ref = open('sequential_preLN__linear_attn_block__dense_activation_relu__prompt.s.ref').read()
hdr = "".join(l + "\n" for l in ref.splitlines()[:10])
def nop():
    k = Kern("nop_kernel"); k.e("s_endpgm"); return k, dict(grid=256, block=64, lds=0)
base = lambda: [gen_p1(), gen_p2(), gen_p3(), gen_p4()]
assemble(base(), 'a.s', hdr)
assemble(base() + [nop()] * 4, 'b.s', hdr)
b = base()
assemble(b + [b[3]] * 2, 'c.s', hdr)
assemble(b[:3] + [b[2]] * 2 + b[3:], 'd.s', hdr)
assemble(b[:2] + [b[1]] * 2 + b[2:], 'e.s', hdr)
assemble([b[0]] * 2 + b, 'f.s', hdr)
```

```python
class Kern:
    def __init__(self, name):
        self.name = name
        self.lines = []
        self.vtop = 1
        self.stop = 4
        self.vmax = 1
        self.smax = 4
        self.nlabel = 0
        self.slimit, self.vlimit = 75, 256
        self.stamps = {}
        self.prof = None

    def v(self, n=1, align=None):
        if align is None:
            align = 1 if n == 1 else (2 if n < 4 else 4)
        b = (self.vtop + align - 1) // align * align
        self.vtop = b + n
        self.vmax = max(self.vmax, self.vtop)
        assert self.vtop <= self.vlimit, f"{self.name}: out of VGPRs"
        return b

    def s(self, n=1, align=None):
        if align is None:
            align = 1 if n == 1 else (2 if n < 4 else 4)
        b = (self.stop + align - 1) // align * align
        self.stop = b + n
        self.smax = max(self.smax, self.stop)
        assert self.stop <= self.slimit, f"{self.name}: out of SGPRs"
        return b

    def mark(self):
        return (self.vtop, self.stop)

    def release(self, m):
        self.vtop, self.stop = m

    def e(self, txt):
        for ln in txt.split("\n"):
            ln = ln.strip()
            if ln:
                self.lines.append("    " + ln)

    def emit_list(self, lst):
        for x in lst:
            self.e(x)

    def label(self, hint="L"):
        self.nlabel += 1
        return f"{self.name}_{hint}{self.nlabel}"

    def place(self, lab):
        self.lines.append(f"{lab}:")

    def comment(self, t):
        self.lines.append(f"    ; {t}")

    def srd(self, ptr_s, nbytes, off=0):
        d = self.s(4)
        if off:
            self.e(f"s_add_u32 s{d}, s{ptr_s}, {off}")
            self.e(f"s_addc_u32 s{d+1}, s{ptr_s+1}, 0")
        else:
            self.e(f"s_mov_b32 s{d}, s{ptr_s}")
            self.e(f"s_mov_b32 s{d+1}, s{ptr_s+1}")
        self.e(f"s_mov_b32 s{d+2}, {nbytes}")
        self.e(f"s_mov_b32 s{d+3}, 0x20000")
        return d

    def stamp(self, i, real=False):
        if self.prof is None:
            return
        assert i < 10
        self.e(f"{'s_memrealtime' if real else 's_memtime'} s[{80+2*i}:{81+2*i}]")
        self.e("s_waitcnt lgkmcnt(0)")

    def dump(self, ws, sWave, drain=True):
        if self.prof is None:
            return
        self.smax = 100
        if drain:
            self.e("s_waitcnt vmcnt(0)")
        self.stamp(8)
        self.stamp(9, real=True)
        self.e(f"""
        s_mov_b64 exec, 1
        s_add_u32 s76, s{ws}, 0x2000000
        s_addc_u32 s77, s{ws+1}, 0
        s_mov_b32 s78, 0x100000
        s_mov_b32 s79, 0x20000
        s_add_u32 s75, s2, {self.prof * 256}
        s_lshl_b32 s75, s75, 3
        s_add_u32 s75, s75, s{sWave}
        s_lshl_b32 s75, s75, 6
        v_mov_b32 v1, 0
        """)
        for i in range(10):
            self.e(f"v_mov_b32 v2, s{80+2*i}")
            self.e(f"buffer_store_dword v2, v1, s[76:79], s75 offen offset:{4*i}")

    def stamp_c(self, name, ns="c"):
        if not getattr(self, 'prof3', False):
            return
        d = self.stamps.setdefault(ns, {"start": 0, "end": 1})
        if name not in d:
            d[name] = len(d)
        i = d[name]
        assert i < 30
        self.e("s_memtime s[96:97]")
        self.e("s_waitcnt lgkmcnt(0)")
        self.e(f"s_mov_b32 s{64+i}, s96")

    def stamp_l(self, name):
        self.stamp_c(name, "l")

    def dump3(self, ws, sWave):
        if not getattr(self, 'prof3', False):
            return
        self.smax = 100
        self.e("s_waitcnt vmcnt(0)")
        self.stamp_c("end")
        self.e("s_memrealtime s[96:97]")
        self.e("s_waitcnt lgkmcnt(0)")
        self.e("s_mov_b32 s95, s96")
        self.e(f"""
        s_mov_b64 exec, 1
        s_add_u32 s96, s{ws}, 0x2000000
        s_addc_u32 s97, s{ws+1}, 0
        s_mov_b32 s98, 0x100000
        s_mov_b32 s99, 0x20000
        s_lshl_b32 s3, s2, 4
        s_add_u32 s3, s3, s{sWave}
        s_lshl_b32 s3, s3, 7
        v_mov_b32 v1, 0
        """)
        for i in range(32):
            self.e(f"v_mov_b32 v2, s{64+i}")
            self.e(f"buffer_store_dword v2, v1, s[96:99], s3 offen offset:{4*i}")

    def text(self):
        hdr = [f".globl {self.name}", ".p2align 8", f".type {self.name},@function", f"{self.name}:"]
        return "\n".join(hdr + self.lines) + "\n"

    def descriptor(self):
        vg = (self.vmax + 3) // 4 * 4
        return (f".p2align 6\n.amdhsa_kernel {self.name}\n"
                f"  .amdhsa_next_free_vgpr {vg}\n"
                f"  .amdhsa_next_free_sgpr {max(self.smax, 16)}\n"
                f"  .amdhsa_accum_offset {vg}\n"
                "  .amdhsa_group_segment_fixed_size 0\n"
                "  .amdhsa_kernarg_size 72\n"
                "  .amdhsa_user_sgpr_count 2\n"
                "  .amdhsa_user_sgpr_kernarg_segment_ptr 1\n"
                "  .amdhsa_system_sgpr_workgroup_id_x 1\n"
                "  .amdhsa_float_denorm_mode_32 3\n"
                ".end_amdhsa_kernel\n")


def vr(b, n):
    return f"v[{b}:{b+n-1}]" if n > 1 else f"v{b}"


def sr(b, n):
    return f"s[{b}:{b+n-1}]" if n > 1 else f"s{b}"


def interleave(main, fill, per=2, start=0):
    out = []
    fi = 0
    for i, m in enumerate(main):
        out.append(m)
        if i >= start:
            for _ in range(per):
                if fi < len(fill):
                    out.append(fill[fi]); fi += 1
    out.extend(fill[fi:])
    return out
```

```python
from asmlib import *

OOB = 0x7FFFF000
DBG = dict(nodma=False, nomma=False)


class Cfg:
    def __init__(self, BM, NS, lda, ldw, wl, SA, SW, baseA, baseW, WM, WN, transposed, colsum, H, nseg=1, segd=0,
                 wait_span=4, read_frac=90):
        self.__dict__.update(locals())
        self.abytes = BM * 128
        if wl == 'odd':
            self.r16b = 5120
            self.BN = 160
            self.w_r16_instr = 5 if nseg == 2 else 3
        elif wl == 'x16':
            self.r16b = 4096
            self.BN = 128
            self.w_r16_instr = 4
        else:
            self.r16b = 2048
            self.BN = 64
            self.w_r16_instr = 2
        self.wbytes = 4 * self.r16b
        self.MT = BM // 16 // WM
        self.NT = self.BN // 16 // WN
        self.nA = BM // 16
        self.nW = 2 * self.w_r16_instr
        self.endA = baseA + SA * self.abytes
        self.endW = baseW + SW * self.wbytes


class Loader:
    def __init__(self, k, c, vl, sLW):
        self.k, self.c, self.vl, self.sLW = k, c, vl, sLW
        self.out = 0

    def patterns(self):
        k, c, vl = self.k, self.c, self.vl
        t0, t1, t2 = k.v(), k.v(), k.v()
        self.sT = sT = k.s()
        self.vA = vA = k.v()
        k.e(f"""
        v_lshrrev_b32 v{t0}, 3, v{vl}
        v_and_b32 v{t1}, 6, v{t0}
        v_and_b32 v{t2}, 7, v{vl}
        v_xor_b32 v{t1}, v{t1}, v{t2}
        v_lshlrev_b32 v{t1}, 4, v{t1}
        s_mov_b32 s{sT}, {c.lda}
        v_mad_u32_u24 v{vA}, v{t0}, s{sT}, v{t1}
        s_mov_b32 s{sT}, {c.ldw}
        """)
        wins = []
        if c.wl == 'odd':
            tot = 160 * c.nseg
            for mI in range(c.w_r16_instr):
                vW = k.v()
                k.e(f"""
                v_add_u32 v{t0}, {64*mI}, v{vl}
                v_mul_u32_u24 v{t1}, 205, v{t0}
                v_lshrrev_b32 v{t1}, 11, v{t1}
                v_mul_u32_u24 v{t2}, 10, v{t1}
                v_sub_u32 v{t2}, v{t0}, v{t2}
                v_lshlrev_b32 v{vW}, 4, v{t2}
                """)
                if c.nseg == 2:
                    k.e(f"""
                    v_lshrrev_b32 v{t2}, 4, v{t1}
                    v_mul_u32_u24 v{t2}, {c.segd}, v{t2}
                    v_add_u32 v{vW}, v{vW}, v{t2}
                    """)
                k.e(f"""
                v_and_b32 v{t2}, 3, v{t1}
                v_and_b32 v{t0}, 4, v{t1}
                v_lshl_or_b32 v{t2}, v{t0}, 1, v{t2}
                v_and_b32 v{t0}, 8, v{t1}
                v_lshrrev_b32 v{t0}, 1, v{t0}
                v_or_b32 v{t2}, v{t2}, v{t0}
                v_mad_u32_u24 v{vW}, v{t2}, s{sT}, v{vW}
                """)
                if 64 * (mI + 1) > tot:
                    k.e(f"""
                    v_cmp_gt_u32 vcc, {tot - 64*mI}, v{vl}
                    v_mov_b32 v{t0}, {OOB}
                    s_nop 0
                    v_cndmask_b32 v{vW}, v{t0}, v{vW}, vcc
                    """)
                wins.append((vW, 0, mI * 1024))
        elif c.wl == 'x16':
            pats = []
            for par in range(2):
                vW = k.v()
                k.e(f"""
                v_lshrrev_b32 v{t0}, 4, v{vl}
                v_bfe_u32 v{t1}, v{vl}, 1, 3
                v_xor_b32 v{t1}, v{t1}, v{t0}
                v_xor_b32 v{t1}, {4*par}, v{t1}
                v_and_b32 v{t2}, 1, v{vl}
                v_lshl_or_b32 v{t1}, v{t1}, 1, v{t2}
                v_lshlrev_b32 v{t1}, 4, v{t1}
                v_mad_u32_u24 v{vW}, v{t0}, s{sT}, v{t1}
                """)
                pats.append(vW)
            for mI in range(4):
                wins.append((pats[mI & 1], 8 * (mI & 1) + 4 * (mI >> 1), mI * 1024))
        else:
            vW = k.v()
            k.e(f"""
            v_bfe_u32 v{t1}, v{vl}, 1, 2
            v_lshrrev_b32 v{t0}, 4, v{vl}
            v_xor_b32 v{t1}, v{t1}, v{t0}
            v_and_b32 v{t2}, 1, v{vl}
            v_lshl_or_b32 v{t1}, v{t1}, 1, v{t2}
            v_lshlrev_b32 v{t1}, 4, v{t1}
            v_lshrrev_b32 v{t0}, 5, v{vl}
            v_bfe_u32 v{t2}, v{vl}, 3, 2
            v_lshl_or_b32 v{t0}, v{t0}, 3, v{t2}
            v_mad_u32_u24 v{vW}, v{t0}, s{sT}, v{t1}
            """)
            for mI in range(2):
                wins.append((vW, 4 * mI, mI * 1024))
        self.wins = wins

    def bases(self, sRow, sCol):
        k, c, sLW, sT = self.k, self.c, self.sLW, self.sT
        self.sKA, self.sKW, self.sLA, self.sLWd = k.s(), k.s(), k.s(), k.s()
        k.e(f"""
        s_mul_i32 s{sT}, s{sLW}, {c.nA * 8 * c.lda}
        s_add_u32 s{self.sKA}, s{sRow}, s{sT}
        s_mul_i32 s{sT}, s{sLW}, {32 * c.ldw}
        s_add_u32 s{self.sKW}, s{sCol}, s{sT}
        s_mul_i32 s{self.sLA}, s{sLW}, {c.nA * 1024}
        s_mul_i32 s{self.sLWd}, s{sLW}, {2 * c.r16b}
        """)

    def _A(self, j, srd, flags):
        c = self.c
        return [([f"s_add_u32 m0, s{self.sLA}, {c.baseA + (j % c.SA) * c.abytes + i * 1024}",
                  f"s_add_u32 s{self.sT}, s{self.sKA}, {i * 8 * c.lda + j * 128}",
                  f"buffer_load_dwordx4 v{self.vA}, s[{srd}:{srd+3}], s{self.sT} offen {flags} lds"], j, j - c.SA + 2)
                for i in range(c.nA)]

    def _W(self, m, srd):
        c = self.c
        return [([f"s_add_u32 m0, s{self.sLWd}, {c.baseW + (m % c.SW) * c.wbytes + r * c.r16b + lo}",
                  f"s_add_u32 s{self.sT}, s{self.sKW}, {(m * 64 + r * 16 + ro) * c.ldw}",
                  f"buffer_load_dwordx4 v{vW}, s[{srd}:{srd+3}], s{self.sT} offen lds"], m, m - c.SW + 2)
                for r in range(2) for (vW, ro, lo) in self.wins]

    def emit_op(self, op):
        ins = op[0][:2] if DBG['nodma'] else op[0]
        self.k.emit_list(ins)

    def prefill_w(self, srdW, n):
        for m in range(n):
            for op in self._W(m, srdW):
                self.emit_op(op)
        self.pw = n

    def stream(self, srdA, srdW, aflags="", hooks=None, last=None, tag=""):
        k, c = self.k, self.c
        pw = getattr(self, 'pw', 0)
        ops = []
        nextw = pw
        for j in range(c.NS):
            if pw == 0:
                ops += self._A(j, srdA, aflags) + self._W(j, srdW)
            else:
                ops += self._A(j, srdA, aflags)
                while nextw < c.NS and nextw - c.SW + 2 <= j - 1:
                    ops += self._W(nextw, srdW); nextw += 1
        assert pw == 0 or nextw == c.NS
        pos = 0
        extras = []
        done_last = False
        for i in range(c.NS):
            end = max([n + 1 for n, op in enumerate(ops) if op[1] == i] + [0])
            end = max(end, 0)
            limit = len(ops)
            for n in range(pos, len(ops)):
                if ops[n][2] >= i:
                    limit = n
                    break
            assert limit >= end, (i, limit, end)
            p = max(pos, min(end + c.H, limit))
            for n in range(pos, p):
                self.emit_op(ops[n])
            pos = p
            if pos == len(ops) and not done_last:
                done_last = True
                k.stamp_l(tag + "_last")
                if last:
                    extras += [pos] * last()
            cnt = pos - end + sum(1 for x in extras if x >= end)
            assert cnt <= 63
            k.e(f"s_waitcnt vmcnt({cnt})")
            k.e("s_barrier")
            if hooks and i in hooks:
                extras += [pos] * hooks[i]()
        assert pos == len(ops)
        k.e("s_barrier")


class Cons:
    pass


def consumer_setup(k, c, sWM, sWN, vl):
    o = Cons()
    o.c = c
    MT, NT = c.MT, c.NT
    o.acc = [[k.v(4) for _ in range(NT)] for _ in range(MT)]
    o.ncs = (NT + 1) // 2
    if c.colsum:
        o.cs = [k.v(4) for _ in range(o.ncs)]
        o.ones = k.v(4)
    o.mark = k.mark()
    o.fa = [[k.v(4) for _ in range(MT)] for _ in range(2)]
    o.fw = [[k.v(4) for _ in range(NT)] for _ in range(2)]
    t0, t1, t2 = k.v(), k.v(), k.v()
    o.sT, o.sT2, o.sI, o.sA, o.sW, o.sWrA, o.sWrW = (k.s() for _ in range(7))
    sT = o.sT
    o.vA0, o.vA1 = vA0, vA1 = k.v(), k.v()
    k.e(f"""
    s_mov_b32 s{o.sWrA}, {(-(c.SA - 1) * c.abytes) & 0xffffffff}
    s_mov_b32 s{o.sWrW}, {(-(c.SW - 1) * c.wbytes) & 0xffffffff}
    v_and_b32 v{t0}, 15, v{vl}
    v_lshrrev_b32 v{t1}, 4, v{vl}
    v_and_b32 v{t2}, 6, v{t0}
    v_xor_b32 v{t2}, v{t2}, v{t1}
    v_lshlrev_b32 v{t2}, 4, v{t2}
    v_lshl_add_u32 v{vA0}, v{t0}, 7, v{t2}
    s_mul_i32 s{sT}, s{sWM}, {MT * 16 * 128}
    s_add_u32 s{sT}, s{sT}, {c.baseA}
    v_add_u32 v{vA0}, s{sT}, v{vA0}
    v_xor_b32 v{vA1}, 64, v{vA0}
    """)
    pitch = {'odd': 160, 'x16': 256, 'x8': 128}[c.wl]
    vB = k.v()
    k.e(f"""
    v_bfe_u32 v{t0}, v{vl}, 2, 3
    v_lshrrev_b32 v{t1}, 5, v{vl}
    v_mul_u32_u24 v{t1}, {c.r16b}, v{t1}
    v_mul_u32_u24 v{t2}, {pitch}, v{t0}
    v_add_u32 v{vB}, v{t1}, v{t2}
    v_and_b32 v{t2}, 3, v{vl}
    v_lshl_add_u32 v{vB}, v{t2}, 3, v{vB}
    v_add_u32 v{vB}, {c.baseW}, v{vB}
    """)
    if c.wl == 'odd':
        assert c.WN == 2
        k.e(f"s_mul_i32 s{sT}, s{sWN}, 2560")
        k.e(f"v_add_u32 v{vB}, s{sT}, v{vB}")
        o.vW = [vB]
        o.waddr = lambda nt, t, h: (vB, t * 2 * c.r16b + h * 8 * 160 + nt * 32)
    else:
        o.vW = vW = [vB] + [k.v() for _ in range(NT - 1)]
        if c.wl == 'x8':
            k.e(f"v_lshrrev_b32 v{t0}, 1, v{t0}")
        k.e(f"s_mul_i32 s{sT}, s{sWN}, {NT}")
        k.e(f"v_xor_b32 v{t0}, s{sT}, v{t0}")
        for j in range(NT - 1, -1, -1):
            k.e(f"v_xor_b32 v{t1}, {j}, v{t0}")
            k.e(f"v_lshl_add_u32 v{vW[j]}, v{t1}, 5, v{vB}")
        o.waddr = lambda nt, t, h: (vW[nt], t * 2 * c.r16b + h * 8 * pitch)
    for mt in range(MT):
        for nt in range(NT):
            for j in range(2):
                k.e(f"v_mov_b64 {vr(o.acc[mt][nt]+2*j, 2)}, 0")
    if c.colsum:
        for r in o.cs:
            for j in range(2):
                k.e(f"v_mov_b64 {vr(r+2*j, 2)}, 0")
        for j in range(4):
            k.e(f"v_mov_b32 v{o.ones+j}, 0x3f803f80")
    k.e(f"s_mov_b32 s{o.sI}, 0")
    k.e(f"s_mov_b32 s{o.sA}, 0")
    k.e(f"s_mov_b32 s{o.sW}, 0")
    return o


def consumer_loop(k, o, sVar, after_b0=None, tag=""):
    c = o.c
    MT, NT = c.MT, c.NT
    fa, fw = o.fa, o.fw

    def reads(t):
        va = o.vA1 if t else o.vA0
        ar = [f"ds_read_b128 {vr(fa[t][mt], 4)}, v{va} offset:{mt * 2048}" for mt in range(MT)]
        wr = []
        for nt in range(NT):
            for h in range(2):
                vv, off = o.waddr(nt, t, h)
                wr.append(f"ds_read_b64_tr_b16 {vr(fw[t][nt] + 2 * h, 2)}, v{vv} offset:{off}")
        if DBG['nomma']:
            return ["s_nop 0"] * 3
        return ar + wr

    def mf(d, a, w):
        if c.transposed:
            return f"v_mfma_f32_16x16x32_bf16 {vr(d,4)}, {vr(w,4)}, {vr(a,4)}, {vr(d,4)}"
        return f"v_mfma_f32_16x16x32_bf16 {vr(d,4)}, {vr(a,4)}, {vr(w,4)}, {vr(d,4)}"

    def block(t, csl, pre_instr):
        rd = reads(1 - t)
        nR = len(rd)
        ml = []
        for nt in range(NT):
            for mt in range(MT):
                ml.append((mf(o.acc[mt][nt], fa[t][mt], fw[t][nt]), MT + 2 * nt + 1))
            for (cr, cn) in csl:
                if cn == nt:
                    ml.append((mf(cr, o.ones, fw[t][nt]), MT + 2 * nt + 1))
        if DBG['nomma']:
            ml = []
        n = len(ml)
        out = list(pre_instr)
        lead = 1
        out += rd[:lead]
        issued = lead
        guar = -1
        for j, (txt, need) in enumerate(ml):
            if need > guar:
                tgt = max(x[1] for x in ml[j:j + c.wait_span])
                allowed = (nR - 1 - tgt) + issued
                N = min(15, allowed)
                out.append(f"s_waitcnt lgkmcnt({N})")
                guar = nR - 1 - (N - issued) if N >= issued else nR - 1
            out.append(txt)
            want = min(nR, lead + -(-(j + 1) * (nR - lead) * 100 // (n * c.read_frac)))
            while issued < want:
                out.append(rd[issued]); issued += 1
        out += rd[issued:]
        return out

    def cs_lists(w):
        if not c.colsum:
            return [], []
        t, hf = w >> 1, w & 1
        tiles = list(range(hf * o.ncs, min(NT, (hf + 1) * o.ncs)))
        l = [(o.cs[i], nt) for i, nt in enumerate(tiles)]
        return (l, []) if t == 0 else ([], l)

    nvar = 4 if c.colsum else 1
    k.stamp_c(tag + "_pre")
    k.e("s_barrier")
    k.stamp_c(tag + "_b0")
    k.emit_list(reads(0))
    if after_b0:
        after_b0()
    labs = [k.label("mm") for _ in range(nvar)]
    Ld = k.label("mmdone")
    for w in range(1, nvar):
        k.e(f"s_cmp_eq_u32 s{sVar}, {w}")
        k.e(f"s_cbranch_scc1 {labs[w]}")
    for w in range(nvar):
        c0, c1 = cs_lists(w)
        k.place(labs[w])
        adv = [f"s_add_u32 s{o.sA}, s{o.sA}, 1",
               f"s_cmp_eq_u32 s{o.sA}, {c.SA}",
               f"s_cselect_b32 s{o.sT}, s{o.sWrA}, {c.abytes}",
               f"s_cselect_b32 s{o.sA}, 0, s{o.sA}",
               f"v_add_u32 v{o.vA0}, s{o.sT}, v{o.vA0}"]
        adv2 = [f"s_add_u32 s{o.sW}, s{o.sW}, 1",
                f"s_cmp_eq_u32 s{o.sW}, {c.SW}",
                f"s_cselect_b32 s{o.sT2}, s{o.sWrW}, {c.wbytes}",
                f"s_cselect_b32 s{o.sW}, 0, s{o.sW}"]
        X = block(0, c0, [])
        a, b = len(X) // 3, 2 * len(X) // 3
        X = X[:a] + adv + X[a:b] + adv2 + X[b:]
        k.emit_list(X)
        k.e("s_barrier")
        Y = block(1, c1, [f"v_add_u32 v{x}, s{o.sT2}, v{x}" for x in o.vW])
        a = len(Y) // 2
        Y = Y[:a] + [f"v_add_u32 v{o.vA1}, s{o.sT}, v{o.vA1}", f"s_add_u32 s{o.sI}, s{o.sI}, 1", f"s_cmp_lt_u32 s{o.sI}, {c.NS}"] + Y[a:]
        k.emit_list(Y)
        k.e(f"s_cbranch_scc1 {labs[w]}")
        if w < nvar - 1:
            k.e(f"s_branch {Ld}")
    k.place(Ld)
    k.e("s_waitcnt lgkmcnt(0)")
    k.e("s_nop 7")
    k.stamp_c(tag + "_loop")
    k.release(o.mark)


def idle_barriers(k, n):
    if n <= 4:
        for _ in range(n):
            k.e("s_barrier")
        return
    s = k.s()
    L = k.label("idle")
    k.e(f"s_mov_b32 s{s}, {n}")
    k.place(L)
    k.e(f"""
    s_barrier
    s_sub_u32 s{s}, s{s}, 1
    s_cmp_lg_u32 s{s}, 0
    s_cbranch_scc1 {L}
    """)
```

```python
from asmlib import *
from g3 import *
import g3
import struct, json

S_, D_, F_ = 2048, 640, 1728
WS_PQ = 0x0
WS_H = 0x400000
WS_HH = 0x800000
WS_KV = 0x1000000
KV_BYTES = 65536
WS_FL = WS_KV + KV_BYTES
FL_Q, FL_K, FL_2, FL_3 = 0, 512, 1024, 2048
WS_ST1 = 0x1020000
WS_ST2 = 0x1040000
LOG2E = 1.4426950408889634
NAME = "sequential_preLN__linear_attn_block__dense_activation_relu__prompt_kernel"
OPT = dict(kvH=11, qH=11, p3H=10, p4H=12, touch1=True)
LDS_TOTAL = 163840


def f32bits(x):
    return struct.unpack("<I", struct.pack("<f", x))[0]


def bf16_round_f32(k, v):
    k.e(f"v_cvt_pk_bf16_f32 v{v}, v{v}, v{v}")
    k.e(f"v_lshlrev_b32 v{v}, 16, v{v}")


def allreduce4_multi(k, xs, ts):
    for sw in ("v_permlane16_swap_b32", "v_permlane32_swap_b32"):
        for x, t in zip(xs, ts):
            k.e(f"v_mov_b32 v{t}, v{x}")
        k.e("s_nop 1" if len(xs) < 2 else "s_nop 0")
        for x, t in zip(xs, ts):
            k.e(f"{sw} v{x}, v{t}")
        k.e("s_nop 1" if len(xs) < 2 else "s_nop 0")
        for x, t in zip(xs, ts):
            k.e(f"v_add_f32 v{x}, v{x}, v{t}")


def ln_finalize_multi(k, vms, vvs, sEps):
    for vm in vms:
        bf16_round_f32(k, vm)
    for vv in vvs:
        bf16_round_f32(k, vv)
        k.e(f"v_add_f32 v{vv}, s{sEps}, v{vv}")
        bf16_round_f32(k, vv)
    for vv in vvs:
        k.e(f"v_sqrt_f32 v{vv}, v{vv}")
    k.e("s_nop 0")
    for vv in vvs:
        bf16_round_f32(k, vv)
    for vv in vvs:
        k.e(f"v_rcp_f32 v{vv}, v{vv}")
    k.e("s_nop 0")


def dpp_rowsum(k, x):
    for r in (8, 4, 2, 1):
        k.e("s_nop 1")
        k.e(f"v_add_f32_dpp v{x}, v{x}, v{x} row_ror:{r} row_mask:0xf bank_mask:0xf")


def set_srd(k, d, p, nbytes, off=0):
    if off:
        k.e(f"s_add_u32 s{d}, s{p}, {off}")
        k.e(f"s_addc_u32 s{d+1}, s{p+1}, 0")
    else:
        k.e(f"s_mov_b64 s[{d}:{d+1}], s[{p}:{p+1}]")
    k.e(f"s_mov_b32 s{d+2}, {nbytes}")
    k.e(f"s_mov_b32 s{d+3}, 0x20000")


class Touch:
    def __init__(self, k, vl, nA, nW, ptrA, sRowOff, ldA, ptrW, sColOff, ldW, seg5=False):
        self.__dict__.update(locals())
        self.sS, self.sR, self.sO, self.sP = k.s(), k.s(), k.s(), k.s()
        self.sB = k.s(2, 2)
        self.vo, self.vd = k.v(), k.vdummy

    def unit(self, sU, add, limit):
        k = self.k
        n = self.nA + self.nW
        magic = (65536 + n - 1) // n
        for u in range(limit):
            assert (u * magic) >> 16 == u // n
        sS, sR, sO, sP, sB = self.sS, self.sR, self.sO, self.sP, self.sB
        lw, lj, le = k.label("tw"), k.label("tj"), k.label("te")
        k.e(f"""
        s_add_u32 s{sR}, s{sU}, {add}
        s_cmp_ge_u32 s{sR}, {limit}
        s_cbranch_scc1 {le}
        s_mul_i32 s{sS}, s{sR}, {magic}
        s_lshr_b32 s{sS}, s{sS}, 16
        s_mul_i32 s{sO}, s{sS}, {n}
        s_sub_u32 s{sR}, s{sR}, s{sO}
        """)
        if self.nA:
            k.e(f"""
            s_cmp_ge_u32 s{sR}, {self.nA}
            s_cbranch_scc1 {lw}
            s_mul_i32 s{sO}, s{sR}, {64 * self.ldA}
            s_lshl_b32 s{sS}, s{sS}, 7
            s_add_u32 s{sO}, s{sO}, s{sS}
            s_add_u32 s{sO}, s{sO}, s{self.sRowOff}
            s_add_u32 s{sB}, s{self.ptrA}, s{sO}
            s_addc_u32 s{sB+1}, s{self.ptrA+1}, 0
            s_mov_b32 s{sP}, {self.ldA}
            s_branch {lj}
            """)
            k.place(lw)
            k.e(f"s_sub_u32 s{sR}, s{sR}, {self.nA}")
        k.e(f"""
        s_mul_i32 s{sO}, s{sS}, {64 * self.ldW}
        s_add_u32 s{sO}, s{sO}, s{self.sColOff}
        s_lshl_b32 s{sS}, s{sR}, 7
        s_add_u32 s{sO}, s{sO}, s{sS}
        """)
        if self.seg5:
            k.e(f"""
            s_mul_i32 s{sS}, s{sR}, 205
            s_lshr_b32 s{sS}, s{sS}, 10
            s_mul_i32 s{sS}, s{sS}, 640
            s_add_u32 s{sO}, s{sO}, s{sS}
            """)
        k.e(f"""
        s_add_u32 s{sB}, s{self.ptrW}, s{sO}
        s_addc_u32 s{sB+1}, s{self.ptrW+1}, 0
        s_mov_b32 s{sP}, {self.ldW}
        """)
        k.place(lj)
        k.e(f"""
        v_mul_u32_u24 v{self.vo}, s{sP}, v{self.vl}
        global_load_dword v{self.vd}, v{self.vo}, s[{sB}:{sB+1}]
        """)
        k.place(le)


def phi_pair(k, a, vrs, vr2, sEps2, t):
    k.e(f"v_pk_mul_f32 {vr(t,2)}, {vr(a,2)}, {vr(vr2,2)}")
    k.e(f"v_pk_fma_f32 {vr(a,2)}, {vr(a,2)}, {vr(vrs,2)}, 1.0 op_sel_hi:[1,1,0]")
    k.e(f"v_exp_f32_e64 v{t}, v{t} clamp")
    k.e(f"v_exp_f32_e64 v{t+1}, v{t+1} clamp")
    k.e(f"v_max_f32 v{a}, v{a}, v{t}")
    k.e(f"v_max_f32 v{a+1}, v{a+1}, v{t+1}")
    k.e(f"v_pk_add_f32 {vr(a,2)}, {vr(a,2)}, s[{sEps2}:{sEps2+1}]")


def gen(prof=False):
    k = Kern(NAME)
    k.prof3 = prof
    k.slimit, k.vlimit = 64, 168
    ckv = Cfg(BM=128, NS=10, lda=2 * D_, ldw=6 * D_, wl='odd', SA=4, SW=4, baseA=0, baseW=65536, WM=4, WN=2,
              transposed=False, colsum=True, H=OPT['kvH'], nseg=2, segd=2 * D_)
    cq = Cfg(BM=128, NS=10, lda=2 * D_, ldw=6 * D_, wl='odd', SA=4, SW=4, baseA=0, baseW=65536, WM=4, WN=2,
             transposed=False, colsum=True, H=OPT['qH'], nseg=1)
    P1_SCR = ckv.endW
    P1_ST = P1_SCR + 2048
    c3 = Cfg(BM=128, NS=10, lda=2 * D_, ldw=2 * F_, wl='x16', SA=4, SW=5, baseA=81920, baseW=0, WM=4, WN=2,
             transposed=True, colsum=True, H=OPT['p3H'])
    P3_SCR = c3.endA
    c4 = Cfg(BM=96, NS=27, lda=2 * F_, ldw=2 * D_, wl='x8', SA=6, SW=11, baseA=90112, baseW=0, WM=2, WN=2,
             transposed=True, colsum=False, H=OPT['p4H'])
    assert c4.endW <= c4.baseA and c4.endA <= LDS_TOTAL and P3_SCR + 1024 <= LDS_TOTAL and P1_ST + 1024 <= LDS_TOTAL
    L_KV, L_X2 = 102400, 135168

    k.end = k.label("end")
    if prof:
        for i in range(32):
            k.e(f"s_mov_b32 s{64+i}, 0")
        k.stamp_c("start")
        k.e("s_memrealtime s[96:97]")
        k.e("s_waitcnt lgkmcnt(0)")
        k.e("s_mov_b32 s94, s96")
    k.e("s_cmp_ge_u32 s2, 256")
    k.e(f"s_cbranch_scc1 {k.end}")
    p = k.s(16, 4)
    pws = k.s(2, 2)
    k.e(f"s_load_dwordx16 s[{p}:{p+15}], s[0:1], 0")
    k.e(f"s_load_dwordx2 s[{pws}:{pws+1}], s[0:1], 64")
    ptr = dict(x=p, wqkv=p + 2, wo=p + 4, w1=p + 8, w2=p + 10, out=p + 12, dbg=p + 14, ws=pws)
    sWave, sJ, sRQ, sCH = k.s(), k.s(), k.s(), k.s()
    vl = k.v()
    k.vdummy = k.v()
    k.e(f"""
    v_lshrrev_b32 v{vl}, 6, v0
    s_lshr_b32 s{sJ}, s2, 3
    v_readfirstlane_b32 s{sWave}, v{vl}
    v_and_b32 v{vl}, 63, v0
    s_bfe_u32 s{sRQ}, s2, 0x20001
    s_and_b32 s{sCH}, s2, 1
    """)

    def endwave():
        k.dump3(pws, sWave)
        k.e("s_endpgm")

    def dec1():
        sG, sC, sTy = k.s(), k.s(), k.s()
        k.e(f"""
        s_and_b32 s{sG}, s{sJ}, 3
        s_lshl_b32 s3, s{sRQ}, 2
        s_add_u32 s{sG}, s{sG}, s3
        s_lshr_b32 s{sC}, s{sJ}, 3
        s_lshl_b32 s3, s{sCH}, 2
        s_add_u32 s{sC}, s{sC}, s3
        s_bfe_u32 s{sTy}, s{sJ}, 0x10002
        """)
        return sG, sC, sTy

    def dec2():
        sRB, sCT = k.s(), k.s()
        k.e(f"""
        s_and_b32 s{sRB}, s{sJ}, 7
        s_lshl_b32 s3, s{sRQ}, 3
        s_add_u32 s{sRB}, s{sRB}, s3
        s_lshr_b32 s{sCT}, s{sJ}, 3
        s_lshl_b32 s3, s{sCH}, 2
        s_add_u32 s{sCT}, s{sCT}, s3
        """)
        return sRB, sCT

    def dec3():
        sRB, sCT = k.s(), k.s()
        k.e(f"""
        s_and_b32 s{sRB}, s{sJ}, 3
        s_lshl_b32 s3, s{sRQ}, 2
        s_add_u32 s{sRB}, s{sRB}, s3
        s_lshr_b32 s{sCT}, s{sJ}, 2
        s_mul_i32 s3, s{sCH}, 7
        s_add_u32 s{sCT}, s{sCT}, s3
        """)
        return sRB, sCT

    def dec4(skip):
        sRB, sCT = k.s(), k.s()
        k.e(f"""
        s_mul_i32 s{sRB}, s{sJ}, 205
        s_lshr_b32 s{sRB}, s{sRB}, 10
        s_mul_i32 s3, s{sRB}, 5
        s_sub_u32 s{sCT}, s{sJ}, s3
        s_mul_i32 s3, s{sCH}, 5
        s_add_u32 s{sCT}, s{sCT}, s3
        s_cmp_lt_u32 s{sRQ}, 2
        s_cselect_b32 s3, 6, 5
        s_cmp_ge_u32 s{sRB}, s3
        s_cbranch_scc1 {skip}
        s_mul_i32 s3, s{sRQ}, 6
        s_add_u32 s{sRB}, s{sRB}, s3
        s_cmp_eq_u32 s{sRQ}, 3
        s_cselect_b32 s3, 1, 0
        s_sub_u32 s{sRB}, s{sRB}, s3
        """)
        return sRB, sCT

    Lc = k.label("cons")
    k.e(f"s_cmp_lt_u32 s{sWave}, 8")
    k.e(f"s_cbranch_scc1 {Lc}")
    mL = k.mark()
    sLW, sRow, sCol, sSpin, sP = k.s(), k.s(), k.s(), k.s(), k.s()
    srdA, srdW, srdF = k.s(4), k.s(4), k.s(4)
    vf, vfa, vone = k.v(), k.v(), k.v()
    k.e(f"s_sub_u32 s{sLW}, s{sWave}, 8")
    k.e(f"v_mov_b32 v{vone}, 1")

    def poll(srd, expect, first_issued=False, tag=""):
        lp, lo = k.label("poll"), k.label("pollok")
        k.e(f"s_mov_b32 s{sSpin}, 0")
        if not first_issued:
            k.e(f"buffer_load_dword v{vf}, v{vfa}, s[{srd}:{srd+3}], 0 offen sc1")
        k.place(lp)
        k.e(f"""
        s_waitcnt vmcnt(0)
        v_cmp_ne_u32 vcc, {expect}, v{vf}
        s_add_u32 s{sSpin}, s{sSpin}, 1
        s_nop 3
        s_cbranch_vccz {lo}
        s_cmp_gt_u32 s{sSpin}, 0x40000
        s_cbranch_scc1 {k.end}
        s_sleep 1
        buffer_load_dword v{vf}, v{vfa}, s[{srd}:{srd+3}], 0 offen sc1
        s_branch {lp}
        """)
        k.place(lo)
        k.stamp_l(tag)

    def set_flag(sOff, base):
        l0 = k.label("fl")
        k.e(f"""
        s_cmp_eq_u32 s{sLW}, 0
        s_cbranch_scc0 {l0}
        s_lshl_b32 s3, s{sOff}, 2
        v_mov_b32 v{vfa}, s3
        s_mov_b64 exec, 1
        buffer_store_dword v{vone}, v{vfa}, s[{srdF}:{srdF+3}], 0 offen offset:{base} sc1
        s_mov_b64 exec, -1
        """)
        k.place(l0)

    m = k.mark()
    sG, sC, sTy = dec1()
    srdD = k.s(4)
    k.e(f"""
    s_lshl_b32 s{sP}, s{sG}, 3
    s_add_u32 s{sP}, s{sP}, s{sC}
    s_mul_i32 s{sRow}, s{sG}, {128 * 2 * D_}
    s_mul_i32 s{sCol}, s{sC}, 160
    """)
    Llq, Ltail = k.label("ldq"), k.label("ldtail")

    def p1_srds():
        k.e("s_waitcnt lgkmcnt(0)")
        set_srd(k, srdA, ptr['x'], S_ * D_ * 2)
        set_srd(k, srdW, ptr['wqkv'], 3 * D_ * D_ * 2)
        k.stamp_l("ld_first")

    def p1_late_srds():
        set_srd(k, srdD, ptr['dbg'], 256)
        set_srd(k, srdF, ptr['ws'], 4096, WS_FL)
        return 0

    def f0_store():
        p1_late_srds()
        l0 = k.label("fl")
        k.e(f"""
        s_cmp_eq_u32 s{sLW}, 0
        s_cbranch_scc0 {l0}
        v_mov_b32 v{vfa}, s{sP}
        s_mov_b64 exec, 1
        buffer_store_byte v{vone}, v{vfa}, s[{srdD}:{srdD+3}], 0 offen sc1
        s_mov_b64 exec, -1
        """)
        k.place(l0)
        return 0

    def f0_poll_issue():
        k.e(f"v_and_b32 v{vfa}, 31, v{vl}")
        k.e(f"v_lshlrev_b32 v{vfa}, 2, v{vfa}")
        k.e(f"buffer_load_dword v{vf}, v{vfa}, s[{srdD}:{srdD+3}], 0 offen sc1")
        return 1
    k.e(f"s_cmp_eq_u32 s{sTy}, 1")
    k.e(f"s_cbranch_scc1 {Llq}")
    m2 = k.mark()
    ld = Loader(k, ckv, vl, sLW)
    ld.patterns()
    k.e(f"s_add_u32 s{sCol}, s{sCol}, {2 * D_}")
    ld.bases(sRow, sCol)
    p1_srds()
    ld.stream(srdA, srdW, hooks={0: p1_late_srds}, last=f0_poll_issue, tag="p1")
    k.e(f"s_branch {Ltail}")
    k.release(m2)
    k.place(Llq)
    ld = Loader(k, cq, vl, sLW)
    ld.patterns()
    ld.bases(sRow, sCol)
    p1_srds()
    ld.stream(srdA, srdW, hooks={0: f0_store}, last=f0_poll_issue, tag="p1")
    k.release(m2)
    k.place(Ltail)
    poll(srdD, "0x01010101", first_issued=True, tag="f0ok")
    set_srd(k, srdA, ptr['ws'], S_ * 8, WS_ST1)
    k.e(f"""
    s_mov_b32 m0, {P1_ST}
    s_lshl_b32 s3, s{sG}, 10
    v_lshlrev_b32 v{vfa}, 4, v{vl}
    buffer_load_dwordx4 v{vfa}, s[{srdA}:{srdA+3}], s3 offen sc1 lds
    s_waitcnt vmcnt(0)
    s_barrier
    """)
    k.e(f"""
    s_xor_b32 s3, s{sTy}, 1
    s_lshl_b32 s3, s3, 7
    s_add_u32 s{sP}, s{sP}, s3
    """)
    sRB2, sCT2 = dec2()
    set_srd(k, srdW, ptr['wo'], D_ * D_ * 2)
    t0, t1, t2 = k.v(), k.v(), k.v()
    pat = [[k.v() for _ in range(5)] for _ in range(5)]
    vi_, vb_ = k.v(), k.v()
    sF, sT, sKW, sLWd = k.s(), k.s(), k.s(), k.s()
    k.e(f"""
    s_lshl_b32 s{sF}, s{sLW}, 3
    s_mov_b32 s{sT}, 1280
    s_mul_i32 s{sKW}, s{sCT2}, 160
    s_mul_i32 s{sLWd}, s{sLW}, 5120
    """)
    for mI in range(5):
        k.e(f"""
        v_add_u32 v{t0}, {64*mI}, v{vl}
        v_mul_u32_u24 v{t1}, 205, v{t0}
        v_lshrrev_b32 v{t1}, 11, v{t1}
        v_mul_u32_u24 v{t2}, 10, v{t1}
        v_sub_u32 v{t2}, v{t0}, v{t2}
        v_lshlrev_b32 v{vb_}, 4, v{t2}
        v_and_b32 v{vi_}, 3, v{t1}
        v_bfe_u32 v{t0}, v{t1}, 3, 1
        v_lshl_or_b32 v{vi_}, v{t0}, 2, v{vi_}
        v_add_u32 v{vi_}, s{sF}, v{vi_}
        v_bfe_u32 v{t0}, v{t1}, 2, 1
        v_lshrrev_b32 v{t2}, 4, v{t1}
        v_lshl_or_b32 v{t0}, v{t2}, 1, v{t0}
        v_mul_u32_u24 v{t0}, {5 * 1280}, v{t0}
        v_add_u32 v{vb_}, v{vb_}, v{t0}
        """)
        for u in range(5):
            k.e(f"""
            v_add_u32 v{t0}, {16*u}, v{vi_}
            v_mul_u32_u24 v{t1}, 205, v{t0}
            v_lshrrev_b32 v{t1}, 10, v{t1}
            v_mad_u32_u24 v{t0}, v{t1}, 15, v{t0}
            v_mad_u32_u24 v{pat[u][mI]}, v{t0}, s{sT}, v{vb_}
            """)
        if mI == 1:
            k.e("s_barrier")
    k.e("s_barrier")
    set_flag(sP, FL_Q)
    k.stamp_l("f1set")
    for s in range(0, 20, 2):
        u = (s % 10) // 2
        k.e(f"s_add_u32 s{sT}, s{sKW}, {(s // 10) * 320 * 1280}")
        for mI in range(5):
            k.e(f"s_add_u32 m0, s{sLWd}, {s * 5120 + mI * 1024}")
            k.e("s_nop 0")
            if not g3.DBG['nodma']:
                k.e(f"buffer_load_dwordx4 v{pat[u][mI]}, s[{srdW}:{srdW+3}], s{sT} offen lds")
    k.e(f"""
    s_lshr_b32 s3, s{sRB2}, 1
    s_lshl_b32 s3, s3, 5
    v_and_b32 v{vfa}, 7, v{vl}
    v_lshlrev_b32 v{vfa}, 2, v{vfa}
    v_add_u32 v{vfa}, s3, v{vfa}
    """)
    poll(srdF, 1, tag="f1q")
    k.e("s_barrier")
    k.e(f"""
    s_lshl_b32 s3, s{sLW}, 8
    s_add_u32 s3, s3, {FL_K}
    v_lshlrev_b32 v{vfa}, 2, v{vl}
    v_add_u32 v{vfa}, s3, v{vfa}
    """)
    poll(srdF, 1, tag="f1k")
    k.e("s_barrier")
    k.e(f"""
    s_lshl_b32 s{sP}, s{sRB2}, 3
    s_add_u32 s{sP}, s{sP}, s{sCT2}
    """)
    keepP = sP
    k.release(m)
    mS = k.mark()
    Lp4, Lskip3 = k.label("ldp4"), k.label("ldskip3")
    sRB3, sCT3 = dec3()
    ld = Loader(k, c3, vl, sLW)
    ld.patterns()
    k.e(f"s_mul_i32 s{sRow}, s{sRB3}, {128 * 2 * D_}")
    k.e(f"s_lshl_b32 s{sCol}, s{sCT3}, 8")
    ld.bases(sRow, sCol)
    set_srd(k, srdA, ptr['ws'], S_ * D_ * 2, WS_H)
    set_srd(k, srdW, ptr['w1'], F_ * D_ * 2)
    k.e("s_barrier")
    k.e("s_barrier")
    k.e("s_barrier")
    set_flag(keepP, FL_2)
    k.stamp_l("f2set")
    k.e(f"s_cmp_ge_u32 s{sJ}, 28")
    k.e(f"s_cbranch_scc1 {Lskip3}")
    ld.prefill_w(srdW, c3.SW)
    k.e(f"""
    s_lshl_b32 s3, s{sRB3}, 6
    s_add_u32 s3, s3, {FL_2}
    v_and_b32 v{vfa}, 15, v{vl}
    v_lshlrev_b32 v{vfa}, 2, v{vfa}
    v_add_u32 v{vfa}, s3, v{vfa}
    """)
    poll(srdF, 1, tag="f2ok")
    ld.stream(srdA, srdW, aflags="sc1", tag="p3")
    k.e(f"""
    s_lshl_b32 s{keepP}, s{sRB3}, 4
    s_add_u32 s{keepP}, s{keepP}, s{sCT3}
    s_barrier
    s_barrier
    """)
    set_flag(keepP, FL_3)
    k.stamp_l("f3set")
    k.place(Lskip3)
    k.release(mS)
    Lend = k.label("ldend")
    sRB4, sCT4 = dec4(Lend)
    ld = Loader(k, c4, vl, sLW)
    ld.patterns()
    k.e(f"s_mul_i32 s{sRow}, s{sRB4}, {96 * 2 * F_}")
    k.e(f"s_lshl_b32 s{sCol}, s{sCT4}, 7")
    ld.bases(sRow, sCol)
    set_srd(k, srdA, ptr['ws'], S_ * F_ * 2, WS_HH)
    set_srd(k, srdW, ptr['w2'], F_ * D_ * 2)
    ld.prefill_w(srdW, c4.SW)
    sg0, sg1 = k.s(), k.s()
    tt = k.v()
    k.e(f"""
    s_mul_i32 s{sg0}, s{sRB4}, 96
    s_add_u32 s{sg1}, s{sg0}, 95
    s_lshr_b32 s{sg0}, s{sg0}, 7
    s_lshr_b32 s{sg1}, s{sg1}, 7
    s_min_u32 s{sg1}, s{sg1}, 15
    s_sub_u32 s{sg1}, s{sg1}, s{sg0}
    s_lshl_b32 s{sg0}, s{sg0}, 6
    s_add_u32 s{sg0}, s{sg0}, {FL_3}
    v_and_b32 v{vfa}, 15, v{vl}
    v_min_u32 v{vfa}, 13, v{vfa}
    v_bfe_u32 v{tt}, v{vl}, 4, 1
    v_mul_u32_u24 v{tt}, s{sg1}, v{tt}
    v_lshl_add_u32 v{vfa}, v{tt}, 4, v{vfa}
    v_lshlrev_b32 v{vfa}, 2, v{vfa}
    v_add_u32 v{vfa}, s{sg0}, v{vfa}
    """)
    poll(srdF, 1, tag="f3ok")
    ld.stream(srdA, srdW, aflags="sc1", tag="p4")
    k.place(Lend)
    endwave()
    k.release(mL)

    k.place(Lc)
    sW3, sWH, sA, sB = k.s(), k.s(), k.s(), k.s()
    sEps = k.s(2, 2)
    srd0, srd1, srd2 = k.s(4), k.s(4), k.s(4)
    k.e(f"""
    s_and_b32 s{sW3}, s{sWave}, 3
    s_lshr_b32 s{sWH}, s{sWave}, 2
    s_mov_b32 s{sEps}, {f32bits(1e-6)}
    s_mov_b32 s{sEps+1}, {f32bits(1e-6)}
    """)
    mC = k.mark()
    sG, sC, sTy = dec1()
    k.e("s_waitcnt lgkmcnt(0)")
    srdK = srd0
    set_srd(k, srdK, ptr['ws'], KV_BYTES + 4096, WS_KV)
    Lprod, Lepi, Lqfin, Lp1done = k.label("prod"), k.label("epi1"), k.label("qfin"), k.label("p1done")
    mT = k.mark()
    sRo, sCo, sU = k.s(), k.s(), k.s()
    k.e(f"""
    s_mul_i32 s{sRo}, s{sRQ}, {512 * 2 * D_}
    s_mul_i32 s{sCo}, s{sCH}, 640
    s_mul_i32 s{sU}, s{sJ}, 3
    s_add_u32 s{sU}, s{sU}, s{sWave}
    s_cmp_ge_u32 s{sWave}, 3
    s_cselect_b32 s{sU}, 1000, s{sU}
    """)
    T = Touch(k, vl, 8, 15, ptr['x'], sRo, 2 * D_, ptr['wqkv'], sCo, 6 * D_, seg5=True)
    if OPT['touch1']:
        T.unit(sU, 0, 230)
    k.e(f"""
    s_and_b32 s3, s{sTy}, s{sWH}
    s_cmp_eq_u32 s3, 1
    s_cbranch_scc1 {Lprod}
    """)
    mT2 = k.mark()
    k.release(mT)
    o = consumer_setup(k, ckv, sW3, sWH, vl)
    consumer_loop(k, o, sW3, tag="p1")
    t0, t1, t3 = k.v(), k.v(), k.v()
    tp = k.v(2)
    cs = [k.v(2) for _ in range(5)]
    stm = [k.v(4) for _ in range(2)]
    str_ = [k.v(4) for _ in range(2)]
    r2 = [k.v(4) for _ in range(2)]
    k.e(f"""
    v_and_b32 v{t0}, 15, v{vl}
    v_lshlrev_b32 v{t0}, 2, v{t0}
    s_lshl_b32 s{sA}, s{sWH}, 10
    s_add_u32 s{sA}, s{sA}, {P1_SCR}
    v_add_u32 v{t0}, s{sA}, v{t0}
    s_lshr_b32 s{sA}, s{sW3}, 1
    s_lshl_b32 s{sA}, s{sA}, 9
    s_and_b32 s{sB}, s{sW3}, 1
    s_mul_i32 s{sB}, s{sB}, 192
    s_add_u32 s{sA}, s{sA}, s{sB}
    v_add_u32 v{t1}, s{sA}, v{t0}
    """)
    for i in range(3):
        k.e(f"ds_write_b32 v{t1}, v{o.cs[i]} offset:{i*64}")
    k.e(f"""
    v_lshrrev_b32 v{t3}, 4, v{vl}
    v_lshlrev_b32 v{t3}, 4, v{t3}
    s_lshl_b32 s{sA}, s{sW3}, 7
    s_add_u32 s{sA}, s{sA}, {P1_ST}
    v_add_u32 v{t3}, s{sA}, v{t3}
    s_waitcnt lgkmcnt(0)
    s_barrier
    """)
    k.stamp_c("p1_e1")
    for mt in range(2):
        k.e(f"ds_read_b128 {vr(str_[mt],4)}, v{t3} offset:{512 + mt*64}")
        k.e(f"ds_read_b128 {vr(stm[mt],4)}, v{t3} offset:{mt*64}")
    for nt in range(5):
        k.e(f"ds_read2_b32 {vr(cs[nt],2)}, v{t0} offset0:{nt*16} offset1:{128 + nt*16}")
    k.e(f"""
    s_mul_i32 s{sA}, s{sW3}, 10240
    s_mul_i32 s{sB}, s{sWH}, 5120
    s_add_u32 s{sA}, s{sA}, s{sB}
    v_lshlrev_b32 v{t1}, 4, v{vl}
    v_add_u32 v{t0}, s{sA}, v{t1}
    s_mov_b32 s{sA}, {f32bits(LOG2E)}
    s_waitcnt lgkmcnt(0)
    """)
    for nt in range(5):
        k.e(f"v_add_f32 v{cs[nt]}, v{cs[nt]}, v{cs[nt]+1}")
    for nt in range(5):
        for mt in range(2):
            a = o.acc[mt][nt]
            for j in range(2):
                k.e(f"v_pk_fma_f32 {vr(a+2*j,2)}, {vr(stm[mt]+2*j,2)}, {vr(cs[nt],2)}, {vr(a+2*j,2)} op_sel_hi:[1,0,1] neg_lo:[1,0,0] neg_hi:[1,0,0]")
    fr = [k.v(4), k.v(4)]
    Lv, Lj = k.label("vpath"), k.label("vjoin")

    def pack(nt):
        f = fr[nt & 1]
        for mt in range(2):
            a = o.acc[mt][nt]
            k.e(f"v_cvt_pk_bf16_f32 v{f + 2*mt}, v{a}, v{a+1}")
            k.e(f"v_cvt_pk_bf16_f32 v{f + 2*mt + 1}, v{a+2}, v{a+3}")
        k.e(f"ds_write_b128 v{t0}, {vr(f,4)} offset:{nt*1024}")
    k.e(f"s_cmp_eq_u32 s{sWH}, 1")
    k.e(f"s_cbranch_scc1 {Lv}")
    for mt in range(2):
        for j in range(4):
            k.e(f"v_mul_f32 v{r2[mt]+j}, s{sA}, v{str_[mt]+j}")
    for nt in range(5):
        for mt in range(2):
            for j in range(2):
                phi_pair(k, o.acc[mt][nt] + 2 * j, str_[mt] + 2 * j, r2[mt] + 2 * j, sEps, tp)
        pack(nt)
    k.e(f"s_branch {Lj}")
    k.place(Lv)
    for nt in range(5):
        for mt in range(2):
            for j in range(2):
                a = o.acc[mt][nt] + 2 * j
                k.e(f"v_pk_mul_f32 {vr(a,2)}, {vr(a,2)}, {vr(str_[mt]+2*j,2)}")
        pack(nt)
    k.place(Lj)
    k.e(f"s_cmp_eq_u32 s{sTy}, 1")
    k.e(f"s_cbranch_scc1 {Lqfin}")
    va = [k.v(), k.v()]
    vz, vd0, vd1, ve, voob = k.v(), k.v(), k.v(), k.v(), k.v()
    sM = k.s(2)
    k.e(f"""
    s_lshl_b32 s{sA}, s{sW3}, 2
    v_and_b32 v{t3}, 15, v{vl}
    v_subrev_u32 v{vd0}, s{sA}, v{t3}
    v_add_u32 v{vd1}, 16, v{vd0}
    v_lshrrev_b32 v{t3}, 4, v{vl}
    v_lshlrev_b32 v{t3}, 2, v{t3}
    s_lshl_b32 s{sB}, s{sWH}, 4
    s_sub_u32 s{sB}, s{sB}, s{sA}
    v_add_u32 v{ve}, s{sB}, v{t3}
    v_mov_b32 v{voob}, {OOB}
    v_mul_u32_u24 v{t3}, 24, v{ve}
    v_cmp_gt_u32 s[{sM}:{sM+1}], 20, v{ve}
    """)
    for ki, vd in enumerate((vd0, vd1)):
        k.e(f"""
        v_add_lshl_u32 v{va[ki]}, v{t3}, v{vd}, 2
        v_cmp_gt_u32 vcc, 20, v{vd}
        s_nop 1
        s_and_b64 vcc, vcc, s[{sM}:{sM+1}]
        s_nop 1
        v_cndmask_b32 v{va[ki]}, v{voob}, v{va[ki]}, vcc
        """)
    k.e(f"""
    s_lshl_b32 s{sB}, s{sWH}, 4
    v_add_u32 v{vd0}, s{sB}, v{vd0}
    v_lshlrev_b32 v{vz}, 2, v{vd0}
    v_add_u32 v{vz}, {20*96}, v{vz}
    v_cmp_gt_u32 vcc, 16, v{vl}
    v_cmp_gt_u32 s[{sM}:{sM+1}], 20, v{vd0}
    s_nop 1
    s_and_b64 vcc, vcc, s[{sM}:{sM+1}]
    s_nop 1
    v_cndmask_b32 v{vz}, v{voob}, v{vz}, vcc
    s_lshl_b32 s{sA}, s{sW3}, 10
    v_add_u32 v{t0}, s{sA}, v{t1}
    s_lshl_b32 s{sA}, s{sWH}, 10
    v_add_u32 v{t3}, s{sA}, v{t0}
    s_lshl_b32 s{sA}, s{sC}, 2
    s_add_u32 s{sA}, s{sA}, s{sW3}
    s_lshl_b32 s{sA}, s{sA}, 11
    s_waitcnt lgkmcnt(0)
    s_barrier
    """)
    k.stamp_c("p1_e2")
    F = {}
    pool = [o.acc[mt][nt] for mt in range(2) for nt in range(5)] + [k.v(4) for _ in range(6)]
    idx = 0
    for tg in range(4):
        for nm, vb, off in (("k0", t0, 0), ("k1", t0, 1), ("v", t3, 5), ("kz", t3, 0)):
            F[(tg, nm)] = pool[idx]; idx += 1
            if idx == 16:
                k.e("s_waitcnt lgkmcnt(11)")
            k.e(f"ds_read_b128 {vr(F[(tg, nm)],4)}, v{vb} offset:{tg*10240 + off*1024}")
    Dk = [o.cs[0], o.cs[1]]
    Dz = o.cs[2]
    for tg in range(4):
        k.e(f"s_waitcnt lgkmcnt({12 - 4*tg})")
        for ki in range(2):
            k.e(f"v_mfma_f32_16x16x32_bf16 {vr(Dk[ki],4)}, {vr(F[(tg,'v')],4)}, {vr(F[(tg, f'k{ki}')],4)}, " + ("0" if tg == 0 else vr(Dk[ki], 4)))
        k.e(f"v_mfma_f32_16x16x32_bf16 {vr(Dz,4)}, {vr(o.ones,4)}, {vr(F[(tg,'kz')],4)}, " + ("0" if tg == 0 else vr(Dz, 4)))
    k.e("s_nop 6")
    for ki in range(2):
        for j in range(4):
            k.e(f"buffer_atomic_add_f32 v{Dk[ki]+j}, v{va[ki]}, s[{srdK}:{srdK+3}], s{sA} offen offset:{j*96}")
    k.e(f"buffer_atomic_add_f32 v{Dz}, v{vz}, s[{srdK}:{srdK+3}], s{sA} offen")
    k.e(f"s_branch {Lp1done}")
    k.release(mT2)
    k.place(Lprod)
    srdX, srdS = srd1, srd2
    set_srd(k, srdX, ptr['x'], S_ * D_ * 2)
    set_srd(k, srdS, ptr['ws'], S_ * 8, WS_ST1)
    xr = [k.v(4) for _ in range(5)]
    ux = [k.v(2) for _ in range(20)]
    t0, t1, vs_, vq_ = k.v(), k.v(), k.v(2), k.v(2)
    z4 = k.v(4)
    k.e(f"""
    s_lshl_b32 s{sA}, s{sG}, 3
    s_add_u32 s{sA}, s{sA}, s{sC}
    s_lshl_b32 s{sA}, s{sA}, 2
    s_add_u32 s{sA}, s{sA}, s{sW3}
    s_lshl_b32 s{sA}, s{sA}, 2
    v_lshrrev_b32 v{t0}, 4, v{vl}
    v_add_u32 v{t0}, s{sA}, v{t0}
    v_mul_u32_u24 v{t1}, {2*D_}, v{t0}
    v_and_b32 v{vs_}, 15, v{vl}
    v_lshl_add_u32 v{t1}, v{vs_}, 4, v{t1}
    """)
    for i in range(5):
        k.e(f"buffer_load_dwordx4 {vr(xr[i],4)}, v{t1}, s[{srdX}:{srdX+3}], 0 offen offset:{i*256}")
    k.e(f"""
    v_mov_b64 {vr(z4,2)}, 0
    v_mov_b64 {vr(z4+2,2)}, 0
    s_lshl_b32 s{sB}, s{sA}, 5
    v_lshlrev_b32 v{t1}, 4, v{vl}
    s_mov_b64 exec, 0xff
    buffer_store_dwordx4 {vr(z4,4)}, v{t1}, s[{srdK}:{srdK+3}], s{sB} offen sc1
    s_mov_b64 exec, 1
    s_lshl_b32 s{sB}, s{sA}, 1
    s_add_u32 s{sB}, s{sB}, {KV_BYTES}
    buffer_store_dwordx2 {vr(z4,2)}, v{t1}, s[{srdK}:{srdK+3}], s{sB} offen sc1
    s_mov_b64 exec, -1
    v_mov_b64 {vr(vs_,2)}, 0
    v_mov_b64 {vr(vq_,2)}, 0
    """)
    for i in range(5):
        k.e(f"s_waitcnt vmcnt({6 - i})")
        for d in range(4):
            k.e(f"v_lshlrev_b32 v{ux[4*i+d]}, 16, v{xr[i]+d}")
            k.e(f"v_and_b32 v{ux[4*i+d]+1}, 0xffff0000, v{xr[i]+d}")
            k.e(f"v_pk_add_f32 {vr(vs_,2)}, {vr(vs_,2)}, {vr(ux[4*i+d],2)}")
    k.e(f"v_add_f32 v{vs_}, v{vs_}, v{vs_+1}")
    dpp_rowsum(k, vs_)
    k.e(f"s_mov_b32 s{sB}, {f32bits(1.0/640)}")
    k.e(f"v_mul_f32 v{vs_}, s{sB}, v{vs_}")
    for i in range(20):
        k.e(f"v_pk_add_f32 {vr(ux[i],2)}, {vr(ux[i],2)}, {vr(vs_,2)} op_sel_hi:[1,0] neg_lo:[0,1] neg_hi:[0,1]")
        k.e(f"v_pk_fma_f32 {vr(vq_,2)}, {vr(ux[i],2)}, {vr(ux[i],2)}, {vr(vq_,2)}")
    k.e(f"v_add_f32 v{vq_}, v{vq_}, v{vq_+1}")
    dpp_rowsum(k, vq_)
    k.e(f"v_mul_f32 v{vq_}, s{sB}, v{vq_}")
    k.e(f"s_mov_b32 s{sB}, {f32bits(1e-5)}")
    ln_finalize_multi(k, [vs_], [vq_], sB)
    k.e(f"""
    v_and_b32 v{t0}, 127, v{t0}
    v_lshlrev_b32 v{t0}, 2, v{t0}
    s_lshl_b32 s{sB}, s{sG}, 10
    s_mov_b32 exec_lo, 0x00010001
    s_mov_b32 exec_hi, 0x00010001
    buffer_store_dword v{vs_}, v{t0}, s[{srdS}:{srdS+3}], s{sB} offen sc1
    buffer_store_dword v{vq_}, v{t0}, s[{srdS}:{srdS+3}], s{sB} offen offset:512 sc1
    s_mov_b64 exec, -1
    s_waitcnt vmcnt(0)
    """)
    if OPT['touch1']:
        k.e(f"""
        s_lshr_b32 s{sU}, s{sJ}, 3
        s_lshl_b32 s{sU}, s{sU}, 2
        s_and_b32 s{sA}, s{sJ}, 3
        s_add_u32 s{sU}, s{sU}, s{sA}
        s_lshl_b32 s{sU}, s{sU}, 2
        s_add_u32 s{sU}, s{sU}, s{sW3}
        """)
        for it in range(3):
            T.unit(sU, 96 + 64 * it, 230)
    idle_barriers(k, 12)
    k.release(mT)
    k.place(Lqfin)
    srdP = srd1
    set_srd(k, srdP, ptr['ws'], S_ * 1536, WS_PQ)
    vb, vc, t0, t1, vst = k.v(), k.v(), k.v(), k.v(), k.v()
    ad = [[k.v(), k.v()] for _ in range(4)]
    q = [k.v(4) for _ in range(4)]
    k.e(f"""
    s_lshr_b32 s{sA}, s{sWave}, 1
    s_mul_i32 s{sA}, s{sA}, 10240
    s_and_b32 s{sB}, s{sWave}, 1
    s_lshl_b32 s{sB}, s{sB}, 3
    s_add_u32 s{sA}, s{sA}, s{sB}
    v_and_b32 v{vb}, 3, v{vl}
    v_lshlrev_b32 v{vb}, 8, v{vb}
    v_add_u32 v{vb}, s{sA}, v{vb}
    v_lshrrev_b32 v{t0}, 4, v{vl}
    v_min_u32 v{t0}, 2, v{t0}
    v_bfe_u32 v{vc}, v{vl}, 2, 2
    v_lshl_add_u32 v{vc}, v{t0}, 3, v{vc}
    v_cmp_gt_u32 vcc, 2, v{t0}
    v_lshlrev_b32 v{vst}, 4, v{vl}
    s_nop 0
    v_cndmask_b32 v{t1}, 0, 4, vcc
    """)
    for hh in range(4):
        for hf in range(2):
            a = ad[hh][hf]
            k.e(f"v_add_u32 v{t0}, {20*hh}, v{vc}")
            if hf:
                k.e(f"v_add_u32 v{t0}, v{t0}, v{t1}")
            k.e(f"""
            v_lshrrev_b32 v{a}, 4, v{t0}
            v_lshl_add_u32 v{a}, v{a}, 10, v{vb}
            v_and_b32 v{t0}, 15, v{t0}
            v_lshl_add_u32 v{a}, v{t0}, 4, v{a}
            """)
    k.e(f"""
    s_lshl_b32 s{sA}, s{sG}, 3
    s_add_u32 s{sA}, s{sA}, s{sWave}
    s_lshl_b32 s{sA}, s{sA}, 3
    s_add_u32 s{sA}, s{sA}, s{sC}
    s_mul_i32 s{sA}, s{sA}, {4 * 768}
    s_waitcnt lgkmcnt(0)
    s_barrier
    """)
    for hh in range(4):
        for hf in range(2):
            k.e(f"ds_read_b64_tr_b16 {vr(q[hh] + 2*hf, 2)}, v{ad[hh][hf]}")
    k.e("s_waitcnt lgkmcnt(0)")
    k.e("s_mov_b32 exec_hi, 0xffff")
    for hh in range(4):
        k.e(f"buffer_store_dwordx4 {vr(q[hh],4)}, v{vst}, s[{srdP}:{srdP+3}], s{sA} offen offset:{hh*768} sc1")
    k.e("s_mov_b64 exec, -1")
    k.place(Lp1done)
    k.stamp_c("p1_st")
    k.release(mC)
    sRB, sCT = dec2()
    PQ = k.v(64, 4)
    O = PQ
    big = k.v(64, 4)
    xr = [k.v(4), k.v(4), k.v(2)]
    vO, vO2, vrow, vPq, vKa, vKb, vW, vW2, vX, t0, t1, t2 = (k.v() for _ in range(12))
    sM = k.s(2)
    k.e(f"""
    s_lshl_b32 s{sA}, s{sRB}, 6
    s_lshl_b32 s{sB}, s{sW3}, 4
    s_add_u32 s{sA}, s{sA}, s{sB}
    v_and_b32 v{t2}, 15, v{vl}
    v_add_u32 v{vrow}, s{sA}, v{t2}
    v_mul_u32_u24 v{vO}, {2*D_}, v{vrow}
    s_mul_i32 s{sA}, s{sCT}, 160
    v_add_u32 v{vO}, s{sA}, v{vO}
    v_lshrrev_b32 v{t1}, 4, v{vl}
    v_lshl_add_u32 v{vO2}, v{t1}, 3, v{vO}
    v_bfe_u32 v{t0}, v{vl}, 4, 1
    v_lshl_add_u32 v{vO}, v{t0}, 5, v{vO}
    v_lshrrev_b32 v{t0}, 5, v{vl}
    v_lshl_add_u32 v{vO}, v{t0}, 4, v{vO}
    v_cmp_eq_u32 vcc, 3, v{t1}
    v_lshrrev_b32 v{t0}, 2, v{t2}
    v_add_u32 v{vKa}, v{t0}, v{t2}
    v_cndmask_b32 v{vPq}, v{t1}, 1, vcc
    v_lshlrev_b32 v{vPq}, 8, v{vPq}
    v_lshl_add_u32 v{vPq}, v{t2}, 4, v{vPq}
    v_mul_u32_u24 v{vKb}, 5, v{t0}
    v_add_u32 v{vKb}, 4, v{vKb}
    v_and_b32 v{t0}, 3, v{t2}
    v_cmp_eq_u32 s[{sM}:{sM+1}], 0, v{t0}
    v_mov_b32 v{t0}, 20
    s_nop 0
    v_cndmask_b32 v{vKb}, v{t0}, v{vKb}, s[{sM}:{sM+1}]
    v_mul_u32_u24 v{vKa}, 48, v{vKa}
    v_mul_u32_u24 v{vKb}, 48, v{vKb}
    v_lshl_add_u32 v{vKa}, v{t1}, 4, v{vKa}
    v_lshl_add_u32 v{vKb}, v{t1}, 4, v{vKb}
    v_mov_b32 v{t0}, 1008
    v_cndmask_b32 v{vKa}, v{vKa}, v{t0}, vcc
    v_cndmask_b32 v{vKb}, v{vKb}, v{t0}, vcc
    s_lshl_b32 s{sA}, s{sWH}, 14
    s_add_u32 s{sA}, s{sA}, {L_KV}
    v_add_u32 v{vKa}, s{sA}, v{vKa}
    v_add_u32 v{vKb}, s{sA}, v{vKb}
    v_bfe_u32 v{t0}, v{vl}, 2, 3
    v_lshrrev_b32 v{t1}, 5, v{vl}
    v_mul_u32_u24 v{t1}, 2560, v{t1}
    v_mul_u32_u24 v{t0}, 160, v{t0}
    v_add_u32 v{vW}, v{t1}, v{t0}
    v_and_b32 v{t0}, 3, v{vl}
    v_lshl_add_u32 v{vW}, v{t0}, 3, v{vW}
    s_mul_i32 s{sA}, s{sWH}, 51200
    v_add_u32 v{vW}, s{sA}, v{vW}
    s_mul_i32 s{sA}, s{sW3}, 5120
    s_add_u32 s{sA}, s{sA}, {L_X2}
    v_lshlrev_b32 v{vX}, 4, v{vl}
    v_add_u32 v{vX}, s{sA}, v{vX}
    v_lshlrev_b32 v{vW2}, 4, v0
    v_lshlrev_b32 v{t2}, 3, v0
    v_add_u32 v{t2}, {L_KV}, v{t2}
    s_waitcnt vmcnt(0)
    s_barrier
    """)
    k.stamp_c("p1_e3")
    srdX, srdP = srd2, srd1
    set_srd(k, srdX, ptr['x'], S_ * D_ * 2)
    set_srd(k, srdP, ptr['ws'], S_ * 1536, WS_PQ)
    k.e(f"""
    s_lshl_b32 s{sA}, s{sRB}, 2
    s_add_u32 s{sA}, s{sA}, s{sW3}
    s_lshl_b32 s{sA}, s{sA}, 1
    s_add_u32 s{sA}, s{sA}, s{sWH}
    s_mul_i32 s{sA}, s{sA}, {16 * 768}
    s_barrier
    """)
    k.stamp_c("p2_q")
    for h in range(16):
        if h % 5 == 0 and h:
            k.e(f"s_add_u32 s{sA}, s{sA}, {5 * 768}")
        k.e(f"buffer_load_dwordx4 {vr(PQ + 4*h, 4)}, v{vPq}, s[{srdP}:{srdP+3}], s{sA} offen offset:{(h % 5) * 768} sc1")
    k.e(f"buffer_load_dwordx4 {vr(xr[0],4)}, v{vO}, s[{srdX}:{srdX+3}], 0 offen")
    k.e(f"buffer_load_dwordx4 {vr(xr[1],4)}, v{vO}, s[{srdX}:{srdX+3}], 0 offen offset:64")
    k.e(f"buffer_load_dwordx2 {vr(xr[2],2)}, v{vO2}, s[{srdX}:{srdX+3}], 0 offen offset:128")
    k.e("s_barrier")
    k.stamp_c("p2_k")
    for i in range(8):
        k.e(f"s_mov_b32 s{sA}, {i * 8192}")
        k.e(f"buffer_load_dwordx4 {vr(big + 4*i, 4)}, v{vW2}, s[{srdK}:{srdK+3}], s{sA} offen sc1")
    for i in range(8):
        r = big + 4 * i
        k.e(f"s_waitcnt vmcnt({7 - i})")
        k.e(f"v_cvt_pk_bf16_f32 v{r}, v{r}, v{r+1}")
        k.e(f"v_cvt_pk_bf16_f32 v{r+1}, v{r+2}, v{r+3}")
        k.e(f"ds_write_b64 v{t2}, {vr(r,2)} offset:{i*4096}")
    k.e("s_waitcnt lgkmcnt(0)")
    k.e("s_barrier")
    k.stamp_c("p2_c")
    fka = [[big + 0, big + 4], [big + 8, big + 12]]
    fkb = [[big + 16, big + 20], [big + 24, big + 28]]
    Da = [[big + 32, big + 36], [big + 40, big + 44]]
    Db = [[big + 48, big + 52], [big + 56, big + 60]]

    def rd(p_):
        b = p_ % 2
        for i in range(2):
            h = 2 * p_ + i
            k.e(f"ds_read_b128 {vr(fkb[b][i],4)}, v{vKb} offset:{h*1024}")
            k.e(f"ds_read_b128 {vr(fka[b][i],4)}, v{vKa} offset:{h*1024}")

    def mm(p_):
        b = p_ % 2
        for i in range(2):
            h = 2 * p_ + i
            k.e(f"v_mfma_f32_16x16x32_bf16 {vr(Db[b][i],4)}, {vr(fkb[b][i],4)}, {vr(PQ + 4*h,4)}, 0")
            k.e(f"v_mfma_f32_16x16x32_bf16 {vr(Da[b][i],4)}, {vr(fka[b][i],4)}, {vr(PQ + 4*h,4)}, 0")

    def fin(p_):
        b = p_ % 2
        for i in range(2):
            k.e(f"v_add_f32 v{Db[b][i]+1}, s{sEps}, v{Db[b][i]+1}")
        for i in range(2):
            k.e(f"v_rcp_f32 v{Db[b][i]+1}, v{Db[b][i]+1}")
        k.e("s_nop 0")
        vals = []
        for i in range(2):
            a, d = Da[b][i], Db[b][i]
            k.e(f"v_pk_mul_f32 {vr(a,2)}, {vr(a,2)}, {vr(d,2)} op_sel:[0,1]")
            k.e(f"v_pk_mul_f32 {vr(a+2,2)}, {vr(a+2,2)}, {vr(d,2)} op_sel:[0,1]")
            k.e(f"v_mul_f32 v{d}, v{d}, v{d+1}")
            vals += [a, a + 1, a + 2, a + 3, d]
        for d in range(5):
            k.e(f"v_cvt_pk_bf16_f32 v{O + 5*p_ + d}, v{vals[2*d]}, v{vals[2*d+1]}")
    rd(0)
    rd(1)
    k.e("s_waitcnt lgkmcnt(4)")
    mm(0)
    for p_ in range(8):
        if p_ + 2 < 8:
            rd(p_ + 2)
        if p_ + 1 < 8:
            k.e(f"s_waitcnt lgkmcnt({4 if p_ + 2 < 8 else 0})")
            mm(p_ + 1)
            k.e("s_nop 1")
        else:
            k.e("s_nop 7")
        fin(p_)
    k.stamp_c("p2_o")
    acc = [big + 40 + 4 * i for i in range(5)]
    fw = [[big + 4 * i for i in range(5)], [big + 20 + 4 * i for i in range(5)]]

    def wrd(s):
        return [f"ds_read_b64_tr_b16 {vr(fw[s & 1][nt] + 2*h, 2)}, v{vW} offset:{s * 5120 + h * 1280 + nt * 32}" for nt in range(5) for h in range(2)]

    def wmm(s):
        return [f"v_mfma_f32_16x16x32_bf16 {vr(acc[nt],4)}, {vr(fw[s & 1][nt],4)}, {vr(O + 4*s,4)}, " + ("0" if s == 0 else vr(acc[nt], 4)) for nt in range(5)]
    k.emit_list(wrd(0))
    for s in range(10):
        r = wrd(s + 1) if s + 1 < 10 else []
        ms = wmm(s)
        out = []
        issued = 0
        for nt in range(5):
            out.append(f"s_waitcnt lgkmcnt({8 - 2*nt + issued})")
            out.append(ms[nt])
            for x in r[2*nt:2*nt+2]:
                out.append(x); issued += 1
        k.emit_list(out)
    Lh1, Lp2e = k.label("p2h1"), k.label("p2e")
    k.e("s_nop 7")
    k.stamp_c("p2_g")
    k.e(f"s_cmp_eq_u32 s{sWH}, 0")
    k.e(f"s_cbranch_scc1 {Lh1}")
    for nt in range(5):
        k.e(f"ds_write_b128 v{vX}, {vr(acc[nt],4)} offset:{nt*1024}")
    k.e("s_waitcnt lgkmcnt(0)")
    k.e("s_barrier")
    k.e(f"s_branch {Lp2e}")
    k.place(Lh1)
    srdH, srdS = srd1, srd2
    set_srd(k, srdH, ptr['ws'], S_ * D_ * 2, WS_H)
    set_srd(k, srdS, ptr['ws'], S_ * 64, WS_ST2)
    k.e("s_barrier")
    for nt in range(5):
        k.e(f"ds_read_b128 {vr(fw[0][nt],4)}, v{vX} offset:{nt*1024}")
    vs_, u = big + 20, big + 24
    vq_ = big + 22
    k.e(f"v_mov_b64 {vr(vs_,2)}, 0")
    k.e(f"v_mov_b64 {vr(vq_,2)}, 0")
    pk = [big + 28, big + 32, big + 36]
    for nt in range(5):
        a = acc[nt]
        k.e(f"s_waitcnt lgkmcnt({4 - nt})")
        k.e(f"v_pk_add_f32 {vr(a,2)}, {vr(a,2)}, {vr(fw[0][nt],2)}")
        k.e(f"v_pk_add_f32 {vr(a+2,2)}, {vr(a+2,2)}, {vr(fw[0][nt]+2,2)}")
        d = pk[nt // 2] + 2 * (nt & 1)
        k.e(f"v_cvt_pk_bf16_f32 v{d}, v{a}, v{a+1}")
        k.e(f"v_cvt_pk_bf16_f32 v{d+1}, v{a+2}, v{a+3}")
    for pr in range(2):
        k.e(f"v_permlane16_swap_b32 v{pk[pr]}, v{pk[pr]+2}")
        k.e(f"v_permlane16_swap_b32 v{pk[pr]+1}, v{pk[pr]+3}")
    for pr in range(3):
        for d in range(4 if pr < 2 else 2):
            r, x = pk[pr] + d, xr[pr] + d
            k.e(f"""
            v_lshlrev_b32 v{u}, 16, v{r}
            v_and_b32 v{u+1}, 0xffff0000, v{r}
            v_lshlrev_b32 v{u+2}, 16, v{x}
            v_and_b32 v{u+3}, 0xffff0000, v{x}
            v_pk_add_f32 {vr(u,2)}, {vr(u,2)}, {vr(u+2,2)}
            v_cvt_pk_bf16_f32 v{r}, v{u}, v{u+1}
            v_lshlrev_b32 v{u}, 16, v{r}
            v_and_b32 v{u+1}, 0xffff0000, v{r}
            v_pk_add_f32 {vr(vs_,2)}, {vr(vs_,2)}, {vr(u,2)}
            v_pk_fma_f32 {vr(vq_,2)}, {vr(u,2)}, {vr(u,2)}, {vr(vq_,2)}
            """)
        if pr < 2:
            k.e(f"buffer_store_dwordx4 {vr(pk[pr],4)}, v{vO}, s[{srdH}:{srdH+3}], 0 offen offset:{pr*64} sc1")
        else:
            k.e(f"buffer_store_dwordx2 {vr(pk[pr],2)}, v{vO2}, s[{srdH}:{srdH+3}], 0 offen offset:128 sc1")
    k.e(f"v_add_f32 v{vs_}, v{vs_}, v{vs_+1}")
    k.e(f"v_add_f32 v{vs_+1}, v{vq_}, v{vq_+1}")
    allreduce4_multi(k, [vs_, vs_ + 1], [t0, t1])
    k.e(f"""
    v_lshlrev_b32 v{vrow}, 6, v{vrow}
    s_lshl_b32 s{sA}, s{sCT}, 3
    s_mov_b64 exec, 0xffff
    buffer_store_dwordx2 {vr(vs_,2)}, v{vrow}, s[{srdS}:{srdS+3}], s{sA} offen sc1
    s_mov_b64 exec, -1
    """)
    k.place(Lp2e)
    k.stamp_c("p2_st")
    k.release(mC)
    Lp4c = k.label("p4c")
    sRB, sCT = dec3()
    c = c3
    vO, vSt, t0, t1 = k.v(), k.v(), k.v(), k.v()
    st = [k.v(4) for _ in range(2)]
    sR0 = k.s()
    k.e(f"""
    s_lshl_b32 s{sA}, s{sW3}, 5
    s_lshl_b32 s{sR0}, s{sRB}, 7
    s_add_u32 s{sR0}, s{sR0}, s{sA}
    v_and_b32 v{t0}, 15, v{vl}
    v_lshrrev_b32 v{t1}, 4, v{vl}
    v_lshlrev_b32 v{t1}, 4, v{t1}
    v_lshl_add_u32 v{vSt}, v{t0}, 6, v{t1}
    s_lshl_b32 s{sA}, s{sR0}, 6
    v_add_u32 v{vSt}, s{sA}, v{vSt}
    v_mul_u32_u24 v{vO}, {2*F_}, v{t0}
    v_bfe_u32 v{t0}, v{vl}, 4, 1
    v_lshl_add_u32 v{vO}, v{t0}, 5, v{vO}
    v_lshrrev_b32 v{t0}, 5, v{vl}
    v_lshl_add_u32 v{vO}, v{t0}, 4, v{vO}
    s_mul_i32 s{sA}, s{sR0}, {2*F_}
    s_lshl_b32 s{sB}, s{sCT}, 8
    s_add_u32 s{sA}, s{sA}, s{sB}
    s_lshl_b32 s{sB}, s{sWH}, 7
    s_add_u32 s{sA}, s{sA}, s{sB}
    v_add_u32 v{vO}, s{sA}, v{vO}
    s_lshl_b32 s{sA}, s{sWH}, 9
    s_add_u32 s{sA}, s{sA}, {P3_SCR}
    v_add_u32 v{t1}, s{sA}, v{t1}
    s_lshl_b32 s{sA}, s{sW3}, 7
    v_add_u32 v{t0}, s{sA}, v{t1}
    """)
    o = consumer_setup(k, c, sW3, sWH, vl)
    k.e("s_waitcnt vmcnt(0)")
    k.e("s_barrier")
    k.stamp_c("p2_e")
    k.e(f"s_cmp_ge_u32 s{sJ}, 28")
    k.e(f"s_cbranch_scc1 {Lp4c}")
    srdS, srdO = srd2, srd1
    set_srd(k, srdS, ptr['ws'], S_ * 64, WS_ST2)
    set_srd(k, srdO, ptr['ws'], S_ * F_ * 2, WS_HH)

    def st_loads():
        for mt in range(2):
            k.e(f"buffer_load_dwordx4 {vr(st[mt],4)}, v{vSt}, s[{srdS}:{srdS+3}], 0 offen offset:{mt*1024} sc1")
    consumer_loop(k, o, sW3, after_b0=st_loads, tag="p3")
    ca = [k.v(4) for _ in range(4)]
    cb = [k.v(4) for _ in range(4)]
    for i in range(2):
        k.e(f"ds_write_b128 v{t0}, {vr(o.cs[i],4)} offset:{i*64}")
    k.e(f"s_mov_b32 s{sA}, {f32bits(1.0/640)}")
    k.e(f"s_mov_b32 s{sB}, {f32bits(1e-5)}")
    k.e("s_waitcnt vmcnt(0)")
    for mt in range(2):
        k.e(f"v_pk_add_f32 {vr(st[mt],2)}, {vr(st[mt],2)}, {vr(st[mt]+2,2)}")
    k.e("s_waitcnt lgkmcnt(0)")
    k.e("s_barrier")
    for nt in range(4):
        k.e(f"ds_read_b128 {vr(ca[nt],4)}, v{t1} offset:{nt*64}")
        k.e(f"ds_read_b128 {vr(cb[nt],4)}, v{t1} offset:{256 + nt*64}")
    vm = [st[mt] for mt in range(2)]
    vs = [st[mt] + 1 for mt in range(2)]
    allreduce4_multi(k, vm + vs, [st[mt] + 2 for mt in range(2)] + [st[mt] + 3 for mt in range(2)])
    for mt in range(2):
        k.e(f"""
        v_mul_f32 v{vm[mt]}, s{sA}, v{vm[mt]}
        v_mul_f32 v{vs[mt]}, s{sA}, v{vs[mt]}
        v_fma_f32 v{vs[mt]}, -v{vm[mt]}, v{vm[mt]}, v{vs[mt]}
        v_max_f32 v{vs[mt]}, 0, v{vs[mt]}
        """)
    ln_finalize_multi(k, vm, vs, sB)
    k.e("s_waitcnt lgkmcnt(0)")
    for nt in range(4):
        for j in range(2):
            k.e(f"v_pk_add_f32 {vr(ca[nt]+2*j,2)}, {vr(ca[nt]+2*j,2)}, {vr(cb[nt]+2*j,2)}")
    Lns = k.label("p3ns")
    k.e(f"""
    s_lshl_b32 s{sB}, s{sCT}, 1
    s_add_u32 s{sA}, s{sWH}, s{sB}
    s_cmp_ge_u32 s{sA}, 27
    s_cbranch_scc1 {Lns}
    """)
    for mt in range(2):
        k.e(f"s_mov_b32 s{sB}, {mt * 16 * 2 * F_}")
        for pr in range(2):
            a0, a1 = o.acc[mt][2*pr], o.acc[mt][2*pr+1]
            for a, nt in ((a0, 2*pr), (a1, 2*pr+1)):
                for j in range(2):
                    k.e(f"v_pk_fma_f32 {vr(a+2*j,2)}, {vr(ca[nt]+2*j,2)}, {vr(st[mt],2)}, {vr(a+2*j,2)} op_sel_hi:[1,0,1] neg_lo:[0,1,0] neg_hi:[0,1,0]")
                for j in range(2):
                    k.e(f"v_pk_mul_f32 {vr(a+2*j,2)}, {vr(a+2*j,2)}, {vr(st[mt],2)} op_sel:[0,1]")
            pk = cb[2 * mt + pr]
            k.e(f"""
            v_cvt_pk_bf16_f32 v{pk}, v{a0}, v{a0+1}
            v_cvt_pk_bf16_f32 v{pk+2}, v{a1}, v{a1+1}
            v_cvt_pk_bf16_f32 v{pk+1}, v{a0+2}, v{a0+3}
            v_cvt_pk_bf16_f32 v{pk+3}, v{a1+2}, v{a1+3}
            v_permlane16_swap_b32 v{pk}, v{pk+2}
            s_nop 0
            v_permlane16_swap_b32 v{pk+1}, v{pk+3}
            v_pk_max_i16 v{pk}, v{pk}, 0
            v_pk_max_i16 v{pk+2}, v{pk+2}, 0
            v_pk_max_i16 v{pk+1}, v{pk+1}, 0
            v_pk_max_i16 v{pk+3}, v{pk+3}, 0
            buffer_store_dwordx4 {vr(pk,4)}, v{vO}, s[{srdO}:{srdO+3}], s{sB} offen offset:{pr*64} sc1
            """)
    k.place(Lns)
    k.stamp_c("p3_st")
    k.e("s_waitcnt vmcnt(0)")
    k.e("s_barrier")
    k.stamp_c("p3_e")
    k.place(Lp4c)
    k.release(mC)
    Lcend = k.label("cend")
    sRB, sCT = dec4(Lcend)
    k.e(f"s_cmp_eq_u32 s{sWH}, 1")
    k.e(f"s_cbranch_scc1 {Lcend}")
    c = c4
    sWM, sWN = k.s(), k.s()
    srdH, srdO = srd1, srd2
    set_srd(k, srdH, ptr['ws'], S_ * D_ * 2, WS_H)
    set_srd(k, srdO, ptr['out'], S_ * D_ * 2)
    vO, t0 = k.v(), k.v()
    hreg = [k.v(4) for _ in range(c.MT)]
    k.e(f"""
    s_lshr_b32 s{sWM}, s{sW3}, 1
    s_and_b32 s{sWN}, s{sW3}, 1
    v_and_b32 v{t0}, 15, v{vl}
    v_mul_u32_u24 v{vO}, {2*D_}, v{t0}
    v_bfe_u32 v{t0}, v{vl}, 4, 1
    v_lshl_add_u32 v{vO}, v{t0}, 5, v{vO}
    v_lshrrev_b32 v{t0}, 5, v{vl}
    v_lshl_add_u32 v{vO}, v{t0}, 4, v{vO}
    s_mul_i32 s{sA}, s{sWM}, 48
    s_mul_i32 s{sB}, s{sRB}, 96
    s_add_u32 s{sA}, s{sA}, s{sB}
    s_mul_i32 s{sA}, s{sA}, {2*D_}
    s_lshl_b32 s{sB}, s{sCT}, 7
    s_add_u32 s{sA}, s{sA}, s{sB}
    s_lshl_b32 s{sB}, s{sWN}, 6
    s_add_u32 s{sA}, s{sA}, s{sB}
    v_add_u32 v{vO}, s{sA}, v{vO}
    """)
    o = consumer_setup(k, c, sWM, sWN, vl)

    def h_loads():
        for mt in range(c.MT):
            k.e(f"s_mov_b32 s{sB}, {mt * 16 * 2 * D_}")
            k.e(f"buffer_load_dwordx4 {vr(hreg[mt],4)}, v{vO}, s[{srdH}:{srdH+3}], s{sB} offen sc1")
    consumer_loop(k, o, None, after_b0=h_loads, tag="p4")
    pk = [k.v(4) for _ in range(c.MT)]
    u = k.v(4)
    for mt in range(c.MT):
        a0, a1 = o.acc[mt][0], o.acc[mt][1]
        p_ = pk[mt]
        k.e(f"""
        v_cvt_pk_bf16_f32 v{p_}, v{a0}, v{a0+1}
        v_cvt_pk_bf16_f32 v{p_+1}, v{a0+2}, v{a0+3}
        v_cvt_pk_bf16_f32 v{p_+2}, v{a1}, v{a1+1}
        v_cvt_pk_bf16_f32 v{p_+3}, v{a1+2}, v{a1+3}
        """)
    k.e("s_waitcnt vmcnt(0)")
    for mt in range(c.MT):
        p_ = pk[mt]
        k.e(f"v_permlane16_swap_b32 v{p_}, v{p_+2}")
        k.e(f"v_permlane16_swap_b32 v{p_+1}, v{p_+3}")
    for mt in range(c.MT):
        p_, h, a1 = pk[mt], hreg[mt], o.acc[mt][1]
        for d in range(4):
            k.e(f"""
            v_lshlrev_b32 v{u}, 16, v{p_+d}
            v_and_b32 v{u+1}, 0xffff0000, v{p_+d}
            v_lshlrev_b32 v{u+2}, 16, v{h+d}
            v_and_b32 v{u+3}, 0xffff0000, v{h+d}
            v_pk_add_f32 {vr(u,2)}, {vr(u,2)}, {vr(u+2,2)}
            v_cvt_pk_bf16_f32 v{a1+d}, v{u}, v{u+1}
            """)
        k.e(f"s_mov_b32 s{sB}, {mt * 16 * 2 * D_}")
        k.e(f"buffer_store_dwordx4 {vr(a1,4)}, v{vO}, s[{srdO}:{srdO+3}], s{sB} offen")
    k.stamp_c("p4_st")
    k.place(Lcend)
    endwave()
    k.place(k.end)
    k.e("s_endpgm")
    return k


def write(k, path, header=""):
    out = header + f"; @launch grid=(256,1,1) block=(640,1,1) lds={LDS_TOTAL}\n"
    out += '.amdgcn_target "amdgcn-amd-amdhsa--gfx950"\n.text\n' + k.text() + '.section .rodata,"a"\n' + k.descriptor()
    open(path, "w").write(out)
    if k.prof3:
        json.dump(k.stamps, open(path + ".json", "w"))


if __name__ == "__main__":
    ref = open('sequential_preLN__linear_attn_block__dense_activation_relu__prompt.s.ref').read()
    hdr = "".join(l + "\n" for l in ref.splitlines()[:10])
    write(gen(False), 'k3.s', hdr)
    write(gen(True), 'k3_prof.s', hdr)
```

```python
class Kern:
    def __init__(self, name):
        self.name = name
        self.lines = []
        self.vtop = 1
        self.stop = 4
        self.vmax = 1
        self.smax = 4
        self.nlabel = 0
        self.slimit, self.vlimit = 75, 256
        self.stamps = {}
        self.prof = None

    def v(self, n=1, align=None):
        if align is None:
            align = 1 if n == 1 else (2 if n < 4 else 4)
        b = (self.vtop + align - 1) // align * align
        self.vtop = b + n
        self.vmax = max(self.vmax, self.vtop)
        assert self.vtop <= self.vlimit, f"{self.name}: out of VGPRs"
        return b

    def s(self, n=1, align=None):
        if align is None:
            align = 1 if n == 1 else (2 if n < 4 else 4)
        b = (self.stop + align - 1) // align * align
        self.stop = b + n
        self.smax = max(self.smax, self.stop)
        assert self.stop <= self.slimit, f"{self.name}: out of SGPRs"
        return b

    def mark(self):
        return (self.vtop, self.stop)

    def release(self, m):
        self.vtop, self.stop = m

    def e(self, txt):
        for ln in txt.split("\n"):
            ln = ln.strip()
            if ln:
                self.lines.append("    " + ln)

    def emit_list(self, lst):
        for x in lst:
            self.e(x)

    def label(self, hint="L"):
        self.nlabel += 1
        return f"{self.name}_{hint}{self.nlabel}"

    def place(self, lab):
        self.lines.append(f"{lab}:")

    def comment(self, t):
        self.lines.append(f"    ; {t}")

    def srd(self, ptr_s, nbytes, off=0):
        d = self.s(4)
        if off:
            self.e(f"s_add_u32 s{d}, s{ptr_s}, {off}")
            self.e(f"s_addc_u32 s{d+1}, s{ptr_s+1}, 0")
        else:
            self.e(f"s_mov_b32 s{d}, s{ptr_s}")
            self.e(f"s_mov_b32 s{d+1}, s{ptr_s+1}")
        self.e(f"s_mov_b32 s{d+2}, {nbytes}")
        self.e(f"s_mov_b32 s{d+3}, 0x20000")
        return d

    def stamp(self, i, real=False):
        if self.prof is None:
            return
        assert i < 10
        self.e(f"{'s_memrealtime' if real else 's_memtime'} s[{80+2*i}:{81+2*i}]")
        self.e("s_waitcnt lgkmcnt(0)")

    def dump(self, ws, sWave, drain=True):
        if self.prof is None:
            return
        self.smax = 100
        if drain:
            self.e("s_waitcnt vmcnt(0)")
        self.stamp(8)
        self.stamp(9, real=True)
        self.e(f"""
        s_mov_b64 exec, 1
        s_add_u32 s76, s{ws}, 0x2000000
        s_addc_u32 s77, s{ws+1}, 0
        s_mov_b32 s78, 0x100000
        s_mov_b32 s79, 0x20000
        s_add_u32 s75, s2, {self.prof * 256}
        s_lshl_b32 s75, s75, 3
        s_add_u32 s75, s75, s{sWave}
        s_lshl_b32 s75, s75, 6
        v_mov_b32 v1, 0
        """)
        for i in range(10):
            self.e(f"v_mov_b32 v2, s{80+2*i}")
            self.e(f"buffer_store_dword v2, v1, s[76:79], s75 offen offset:{4*i}")

    def stamp_c(self, name, ns="c"):
        if not getattr(self, 'prof3', False):
            return
        d = self.stamps.setdefault(ns, {"start": 0, "end": 1})
        if name not in d:
            d[name] = len(d)
        i = d[name]
        assert i < 26
        self.e("s_memtime s[96:97]")
        self.e("s_waitcnt lgkmcnt(0)")
        self.e(f"s_mov_b32 s{68+i}, s96")

    def stamp_l(self, name):
        self.stamp_c(name, "l")

    def dump3(self, ws, sWave):
        if not getattr(self, 'prof3', False):
            return
        self.smax = 100
        self.e("s_waitcnt vmcnt(0)")
        self.stamp_c("end")
        self.e("s_memrealtime s[96:97]")
        self.e("s_waitcnt lgkmcnt(0)")
        self.e("s_mov_b32 s95, s96")
        self.e(f"""
        s_mov_b64 exec, 1
        s_add_u32 s96, s{ws}, 0x2000000
        s_addc_u32 s97, s{ws+1}, 0
        s_mov_b32 s98, 0x100000
        s_mov_b32 s99, 0x20000
        s_lshl_b32 s3, s2, 4
        s_add_u32 s3, s3, s{sWave}
        s_lshl_b32 s3, s3, 7
        v_mov_b32 v1, 0
        """)
        for i in list(range(26)) + [30, 31]:
            self.e(f"v_mov_b32 v2, s{68+i if i < 26 else 64+i}")
            self.e(f"buffer_store_dword v2, v1, s[96:99], s3 offen offset:{4*i}")

    def text(self):
        hdr = [f".globl {self.name}", ".p2align 8", f".type {self.name},@function", f"{self.name}:"]
        return "\n".join(hdr + self.lines) + "\n"

    def descriptor(self):
        vg = (self.vmax + 3) // 4 * 4
        return (f".p2align 6\n.amdhsa_kernel {self.name}\n"
                f"  .amdhsa_next_free_vgpr {vg}\n"
                f"  .amdhsa_next_free_sgpr {max(self.smax, 16)}\n"
                f"  .amdhsa_accum_offset {vg}\n"
                "  .amdhsa_group_segment_fixed_size 0\n"
                "  .amdhsa_kernarg_size 72\n"
                "  .amdhsa_user_sgpr_count 2\n"
                "  .amdhsa_user_sgpr_kernarg_segment_ptr 1\n"
                "  .amdhsa_system_sgpr_workgroup_id_x 1\n"
                "  .amdhsa_float_denorm_mode_32 3\n"
                ".end_amdhsa_kernel\n")


def vr(b, n):
    return f"v[{b}:{b+n-1}]" if n > 1 else f"v{b}"


def sr(b, n):
    return f"s[{b}:{b+n-1}]" if n > 1 else f"s{b}"


def interleave(main, fill, per=2, start=0):
    out = []
    fi = 0
    for i, m in enumerate(main):
        out.append(m)
        if i >= start:
            for _ in range(per):
                if fi < len(fill):
                    out.append(fill[fi]); fi += 1
    out.extend(fill[fi:])
    return out
```

```python
from asmlib import *

OOB = 0x7FF00000
BIAS = 4096
DBG = dict(nodma=False, nomma=False)


class Cfg:
    def __init__(self, BM, NS, lda, ldw, wl, SA, SW, baseA, baseW, WM, WN, transposed, colsum, H, nseg=1, segd=0,
                 wait_span=4, read_frac=90, mixed=False, rel=2, lean=True, H0=None, wlead=None, wraps=(), smap=None, afterA=None, afterW=None, vmwait=False, wfirst=0):
        self.__dict__.update(locals())
        self.abytes = BM * 128
        if wl == 'odd':
            self.r16b = 5120
            self.BN = 160
            self.w_r16_instr = 5 if nseg == 2 else 3
        elif wl == 'lin':
            self.r16b = 2560
            self.BN = 80
            self.w_r16_instr = 2.5
        elif wl == 'x16':
            self.r16b = 4096
            self.BN = 128
            self.w_r16_instr = 4
        else:
            self.r16b = 2048
            self.BN = 64
            self.w_r16_instr = 2
        self.wbytes = 4 * self.r16b
        self.MT = BM // 16 // WM
        self.NT = self.BN // 16 // WN
        if wl == 'lin' and WN == 2:
            self.NT = 3
        self.nA = BM // 16
        self.nW = int(2 * self.w_r16_instr)
        self.wstage = self.wbytes if wl == 'lin' else 64 * ldw
        self.smap = smap or (lambda j: j)
        self.afterA = afterA or (lambda j: -99)
        self.afterW = afterW or (lambda j: -99)
        self.endA = baseA + SA * self.abytes
        self.endW = baseW + SW * self.wbytes


class Loader:
    def __init__(self, k, c, vl, sLW):
        self.k, self.c, self.vl, self.sLW = k, c, vl, sLW
        self.issued = 0
        self.out = 0

    def patterns(self, between=None):
        k, c, vl = self.k, self.c, self.vl
        t0, t1, t2 = k.v(), k.v(), k.v()
        self.sT = sT = k.s()
        self.vA = vA = k.v()
        k.e(f"""
        v_lshrrev_b32 v{t0}, 3, v{vl}
        v_and_b32 v{t1}, 6, v{t0}
        v_and_b32 v{t2}, 7, v{vl}
        v_xor_b32 v{t1}, v{t1}, v{t2}
        v_lshlrev_b32 v{t1}, 4, v{t1}
        s_mov_b32 s{sT}, {c.lda}
        v_mad_u32_u24 v{vA}, v{t0}, s{sT}, v{t1}
        """)
        if c.lean:
            self.vAs = [vA] + [k.v() for _ in range(c.nA - 1)]
            for i in range(c.nA - 1, -1, -1):
                k.e(f"v_add_u32 v{self.vAs[i]}, {i * 8 * c.lda + BIAS - (i % 4) * 1024}, v{vA}")
            self.sT2 = k.s()
        if between:
            between()
        k.e(f"s_mov_b32 s{self.sT2 if c.lean else sT}, {c.ldw}")
        if c.lean:
            sT = self.sT2
        wins = []
        if c.wl == 'lin':
            self.vLin = k.v()
            k.e(f"v_lshlrev_b32 v{self.vLin}, 4, v{vl}")
            self.wins = []
            return
        if c.wl == 'odd':
            tot = 160 * c.nseg
            for mI in range(c.w_r16_instr):
                vW = k.v()
                k.e(f"""
                v_add_u32 v{t0}, {64*mI}, v{vl}
                v_mul_u32_u24 v{t1}, 205, v{t0}
                v_lshrrev_b32 v{t1}, 11, v{t1}
                v_mul_u32_u24 v{t2}, 10, v{t1}
                v_sub_u32 v{t2}, v{t0}, v{t2}
                v_lshlrev_b32 v{vW}, 4, v{t2}
                """)
                if c.nseg == 2:
                    k.e(f"""
                    v_lshrrev_b32 v{t2}, 4, v{t1}
                    v_mul_u32_u24 v{t2}, {c.segd}, v{t2}
                    v_add_u32 v{vW}, v{vW}, v{t2}
                    """)
                k.e(f"""
                v_and_b32 v{t2}, 3, v{t1}
                v_and_b32 v{t0}, 4, v{t1}
                v_lshl_or_b32 v{t2}, v{t0}, 1, v{t2}
                v_and_b32 v{t0}, 8, v{t1}
                v_lshrrev_b32 v{t0}, 1, v{t0}
                v_or_b32 v{t2}, v{t2}, v{t0}
                v_mad_u32_u24 v{vW}, v{t2}, s{sT}, v{vW}
                """)
                if 64 * (mI + 1) > tot:
                    k.e(f"""
                    v_cmp_gt_u32 vcc, {tot - 64*mI}, v{vl}
                    v_mov_b32 v{t0}, {OOB}
                    s_nop 0
                    v_cndmask_b32 v{vW}, v{t0}, v{vW}, vcc
                    """)
                wins.append((vW, 0, mI * 1024))
        elif c.wl == 'x16':
            pats = []
            for par in range(2):
                vW = k.v()
                k.e(f"""
                v_lshrrev_b32 v{t0}, 4, v{vl}
                v_bfe_u32 v{t1}, v{vl}, 1, 3
                v_xor_b32 v{t1}, v{t1}, v{t0}
                v_xor_b32 v{t1}, {4*par}, v{t1}
                v_and_b32 v{t2}, 1, v{vl}
                v_lshl_or_b32 v{t1}, v{t1}, 1, v{t2}
                v_lshlrev_b32 v{t1}, 4, v{t1}
                v_mad_u32_u24 v{vW}, v{t0}, s{sT}, v{t1}
                """)
                pats.append(vW)
            for mI in range(4):
                wins.append((pats[mI & 1], 8 * (mI & 1) + 4 * (mI >> 1), mI * 1024))
        else:
            vW = k.v()
            k.e(f"""
            v_bfe_u32 v{t1}, v{vl}, 1, 2
            v_lshrrev_b32 v{t0}, 4, v{vl}
            v_xor_b32 v{t1}, v{t1}, v{t0}
            v_and_b32 v{t2}, 1, v{vl}
            v_lshl_or_b32 v{t1}, v{t1}, 1, v{t2}
            v_lshlrev_b32 v{t1}, 4, v{t1}
            v_lshrrev_b32 v{t0}, 5, v{vl}
            v_bfe_u32 v{t2}, v{vl}, 3, 2
            v_lshl_or_b32 v{t0}, v{t0}, 3, v{t2}
            v_mad_u32_u24 v{vW}, v{t0}, s{sT}, v{t1}
            """)
            for mI in range(2):
                wins.append((vW, 4 * mI, mI * 1024))
        self.wins = wins
        if c.lean:
            self.vWs = []
            n = 0
            for r in range(2):
                for (vW, ro, lo) in wins:
                    x = k.v()
                    k.e(f"v_add_u32 v{x}, {(r * 16 + ro) * c.ldw + BIAS - ((r * c.r16b + lo) // 1024 % 4) * 1024}, v{vW}")
                    self.vWs.append(x)

    def bases(self, sRow, sCol):
        k, c, sLW, sT = self.k, self.c, self.sLW, self.sT
        self.sKA, self.sKW, self.sLA, self.sLWd = k.s(), k.s(), k.s(), k.s()
        k.e(f"""
        s_mul_i32 s{sT}, s{sLW}, {c.nA * 8 * c.lda}
        s_add_u32 s{self.sKA}, s{sRow}, s{sT}
        s_mul_i32 s{sT}, s{sLW}, {c.wstage // 2}
        s_add_u32 s{self.sKW}, s{sCol}, s{sT}
        s_mul_i32 s{self.sLA}, s{sLW}, {c.nA * 1024}
        s_mul_i32 s{self.sLWd}, s{sLW}, {2 * c.r16b}
        """)

    def rotate(self, sWrap):
        k, c = self.k, self.c
        self.sWrap = sWrap
        k.e(f"""
        s_sub_u32 s{self.sT}, {c.NS}, s{sWrap}
        s_lshl_b32 s{self.sT2}, s{self.sT}, 7
        s_add_u32 s{self.sKA}, s{self.sKA}, s{self.sT2}
        s_mul_i32 s{self.sT2}, s{self.sT}, {c.wstage}
        s_add_u32 s{self.sKW}, s{self.sKW}, s{self.sT2}
        """)

    def _A(self, j, srd, flags):
        c = self.c
        if c.lean:
            out = []
            for i in range(c.nA):
                pre = []
                if i == 0:
                    if j in c.wraps:
                        pre += [f"s_cmp_eq_u32 s{self.sWrap}, {j}", f"s_cselect_b32 s{self.sT}, {c.NS * 128}, 0", f"s_sub_u32 s{self.sKA}, s{self.sKA}, s{self.sT}"]
                    pre.append(f"s_add_u32 s{self.sT}, s{self.sKA}, {c.smap(j) * 128}")
                if i % 4 == 0:
                    pre.append(f"s_add_u32 m0, s{self.sLA}, {c.baseA + (j % c.SA) * c.abytes + i * 1024}")
                    pre.append("s_nop 0")
                out.append((pre + [f"buffer_load_dwordx4 v{self.vAs[i]}, s[{srd}:{srd+3}], s{self.sT} offen offset:{(i % 4) * 1024} {flags} lds"], j, max(j - c.SA + c.rel, c.afterA(j))))
            return out
        return [([f"s_add_u32 m0, s{self.sLA}, {c.baseA + (j % c.SA) * c.abytes + i * 1024}",
                  f"s_add_u32 s{self.sT}, s{self.sKA}, {i * 8 * c.lda + j * 128}",
                  f"buffer_load_dwordx4 v{self.vA}, s[{srd}:{srd+3}], s{self.sT} offen {flags} lds"], j, j - c.SA + c.rel)
                for i in range(c.nA)]

    def _W(self, m, srd, coff=0):
        c = self.c
        if c.wl == 'lin':
            out = []
            for n in range(5):
                pre = []
                if n == 0 and m in c.wraps:
                    pre += [f"s_cmp_eq_u32 s{self.sWrap}, {m}", f"s_cselect_b32 s{self.sT2}, {c.NS * c.wstage}, 0", f"s_sub_u32 s{self.sKW}, s{self.sKW}, s{self.sT2}"]
                if n % 4 == 0:
                    pre.append(f"s_add_u32 m0, s{self.sLWd}, {c.baseW + (m % c.SW) * c.wbytes + n * 1024}")
                    pre.append(f"s_add_u32 s{self.sT2}, s{self.sKW}, {c.smap(m) * c.wstage + n * 1024}")
                out.append((pre + [f"buffer_load_dwordx4 v{self.vLin}, s[{srd}:{srd+3}], s{self.sT2} offen offset:{(n % 4) * 1024} sc1 lds"], m, max(m - c.SW + c.rel, c.afterW(m))))
            return out
        if c.lean:
            out = []
            n = 0
            last = None
            for r in range(2):
                for (vW, ro, lo) in self.wins:
                    q = (r * c.r16b + lo) // 1024
                    pre = []
                    if n == 0:
                        if m in c.wraps:
                            pre += [f"s_cmp_eq_u32 s{self.sWrap}, {m}", f"s_cselect_b32 s{self.sT2}, {c.NS * 64 * c.ldw}, 0", f"s_sub_u32 s{self.sKW}, s{self.sKW}, s{self.sT2}"]
                        pre.append(f"s_add_u32 s{self.sT2}, s{self.sKW}, {m * 64 * c.ldw + coff}")
                    if q // 4 != last:
                        last = q // 4
                        pre.append(f"s_add_u32 m0, s{self.sLWd}, {c.baseW + (m % c.SW) * c.wbytes + (q // 4) * 4096}")
                        pre.append("s_nop 0")
                    out.append((pre + [f"buffer_load_dwordx4 v{self.vWs[n]}, s[{srd}:{srd+3}], s{self.sT2} offen offset:{(q % 4) * 1024} lds"], m, m - c.SW + c.rel))
                    n += 1
            return out
        return [([f"s_add_u32 m0, s{self.sLWd}, {c.baseW + (m % c.SW) * c.wbytes + r * c.r16b + lo}",
                  f"s_add_u32 s{self.sT}, s{self.sKW}, {(m * 64 + r * 16 + ro) * c.ldw}",
                  f"buffer_load_dwordx4 v{vW}, s[{srd}:{srd+3}], s{self.sT} offen lds"], m, m - c.SW + c.rel)
                for r in range(2) for (vW, ro, lo) in self.wins]

    def emit_op(self, op):
        ins = op[0][:-1] if DBG['nodma'] else op[0]
        self.k.emit_list(ins)
        self.issued += 1

    def early_a(self, srdA, flags=""):
        for op in self._A(0, srdA, flags):
            self.emit_op(op)
        self.preA = self.c.nA

    def prefill_w(self, srdW, n):
        for m in range(n):
            for op in self._W(m, srdW):
                self.emit_op(op)
        self.pw = n

    def stream(self, srdA, srdW, aflags="", hooks=None, last=None, tag="", inject=None):
        k, c = self.k, self.c
        pw = getattr(self, 'pw', 0)
        ops = []
        nextw = pw
        for j in range(c.NS):
            if pw == 0:
                ops += self._A(j, srdA, aflags) + self._W(j, srdW)
            else:
                ops += self._A(j, srdA, aflags)
                while nextw < c.NS and max(nextw - c.SW + c.rel, c.afterW(nextw)) <= j - 1 and (c.wlead is None or nextw - c.wlead <= j) and j >= c.wfirst:
                    ops += self._W(nextw, srdW); nextw += 1
        assert pw == 0 or nextw == c.NS
        pos = getattr(self, 'preA', 0)
        extras = []
        done_last = False
        for i in range(c.NS):
            end = max([n + 1 for n, op in enumerate(ops) if op[1] == i] + [0])
            end = max(end, 0)
            limit = len(ops)
            for n in range(pos, len(ops)):
                if ops[n][2] >= i:
                    limit = n
                    break
            assert limit >= end, (i, limit, end)
            Hi = c.H0 if (c.H0 is not None and i == 0) else c.H
            p = max(pos, min(end + Hi, limit))
            for n in range(pos, p):
                self.emit_op(ops[n])
                if inject and n == inject[0]:
                    inject[1]()
            pos = p
            if pos == len(ops) and not done_last:
                done_last = True
                k.stamp_l(tag + "_last")
                if last:
                    extras += [pos] * last()
            cnt = pos - end + sum(1 for x in extras if x >= end)
            assert cnt <= 63
            k.e(f"s_waitcnt vmcnt({cnt})")
            if DBG.get('bstamp') == tag and i < 10:
                k.stamp_l(f"W{i}")
            k.e("s_barrier")
            if hooks and i in hooks:
                extras += [pos] * hooks[i]()
        assert pos == len(ops)
        k.e("s_barrier")


class Cons:
    pass


def consumer_setup(k, c, sWM, sWN, vl):
    o = Cons()
    o.c = c
    MT, NT = c.MT, c.NT
    o.acc = [[k.v(4) for _ in range(NT)] for _ in range(MT)]
    o.ncs = (NT + 1) // 2 if c.WM == 4 else NT
    if c.colsum:
        o.cs = [k.v(4) for _ in range(o.ncs)]
        o.ones = k.v(4)
    o.mark = k.mark()
    o.fa = [[k.v(4) for _ in range(MT)] for _ in range(2)]
    o.fw = [[k.v(4) for _ in range(NT)] for _ in range(2)]
    t0, t1, t2 = k.v(), k.v(), k.v()
    o.sT, o.sT2, o.sI, o.sA, o.sW, o.sWrA, o.sWrW = (k.s() for _ in range(7))
    sT = o.sT
    o.vA0, o.vA1 = vA0, vA1 = k.v(), k.v()
    k.e(f"""
    s_mov_b32 s{o.sWrA}, {(-(c.SA - 1) * c.abytes) & 0xffffffff}
    s_mov_b32 s{o.sWrW}, {(-(c.SW - 1) * c.wbytes) & 0xffffffff}
    v_and_b32 v{t0}, 15, v{vl}
    v_lshrrev_b32 v{t1}, 4, v{vl}
    v_and_b32 v{t2}, 6, v{t0}
    v_xor_b32 v{t2}, v{t2}, v{t1}
    v_lshlrev_b32 v{t2}, 4, v{t2}
    v_lshl_add_u32 v{vA0}, v{t0}, 7, v{t2}
    s_mul_i32 s{sT}, s{sWM}, {MT * 16 * 128}
    s_add_u32 s{sT}, s{sT}, {c.baseA}
    v_add_u32 v{vA0}, s{sT}, v{vA0}
    v_xor_b32 v{vA1}, 64, v{vA0}
    """)
    pitch = {'odd': 160, 'lin': 160, 'x16': 256, 'x8': 128}[c.wl]
    vB = k.v()
    k.e(f"""
    v_bfe_u32 v{t0}, v{vl}, 2, 3
    v_lshrrev_b32 v{t1}, 5, v{vl}
    v_mul_u32_u24 v{t1}, {c.r16b}, v{t1}
    v_mul_u32_u24 v{t2}, {pitch}, v{t0}
    v_add_u32 v{vB}, v{t1}, v{t2}
    v_and_b32 v{t2}, 3, v{vl}
    v_lshl_add_u32 v{vB}, v{t2}, 3, v{vB}
    v_add_u32 v{vB}, {c.baseW}, v{vB}
    """)
    if c.wl == 'odd' and c.mixed:
        vB2 = k.v()
        k.e(f"s_mul_i32 s{sT}, s{sWN}, 2560")
        k.e(f"v_add_u32 v{vB2}, s{sT}, v{vB}")
        k.e(f"s_mul_i32 s{sT}, s{sWN}, 96")
        k.e(f"v_add_u32 v{vB}, s{sT}, v{vB}")
        o.vW = [vB, vB2]
        so = [0, 32, 64, 2560, 2592]
        o.waddr = lambda nt, t, h: (vB2 if nt == 2 else vB, t * 2 * c.r16b + h * 8 * 160 + so[nt])
    elif c.wl in ('odd', 'lin'):
        if sWN is not None:
            k.e(f"s_mul_i32 s{sT}, s{sWN}, {64 if c.wl == 'lin' else 2560}")
            k.e(f"v_add_u32 v{vB}, s{sT}, v{vB}")
        o.vW = [vB]
        o.waddr = lambda nt, t, h: (vB, t * 2 * c.r16b + h * 8 * 160 + nt * 32)
    else:
        o.vW = vW = [vB] + [k.v() for _ in range(NT - 1)]
        if c.wl == 'x8':
            k.e(f"v_lshrrev_b32 v{t0}, 1, v{t0}")
        k.e(f"s_mul_i32 s{sT}, s{sWN}, {NT}")
        k.e(f"v_xor_b32 v{t0}, s{sT}, v{t0}")
        for j in range(NT - 1, -1, -1):
            k.e(f"v_xor_b32 v{t1}, {j}, v{t0}")
            k.e(f"v_lshl_add_u32 v{vW[j]}, v{t1}, 5, v{vB}")
        o.waddr = lambda nt, t, h: (vW[nt], t * 2 * c.r16b + h * 8 * pitch)
    for mt in range(MT):
        for nt in range(NT):
            for j in range(2):
                k.e(f"v_mov_b64 {vr(o.acc[mt][nt]+2*j, 2)}, 0")
    if c.colsum:
        for r in o.cs:
            for j in range(2):
                k.e(f"v_mov_b64 {vr(r+2*j, 2)}, 0")
        for j in range(4):
            k.e(f"v_mov_b32 v{o.ones+j}, 0x3f803f80")
    k.e(f"s_mov_b32 s{o.sI}, 0")
    k.e(f"s_mov_b32 s{o.sA}, 0")
    k.e(f"s_mov_b32 s{o.sW}, 0")
    return o


def consumer_loop(k, o, sVar, after_b0=None, tag="", at_end=None):
    c = o.c
    MT, NT = c.MT, c.NT
    fa, fw = o.fa, o.fw

    def reads(t):
        va = o.vA1 if t else o.vA0
        ar = [f"ds_read_b128 {vr(fa[t][mt], 4)}, v{va} offset:{mt * 2048}" for mt in range(MT)]
        wr = []
        for nt in range(NT):
            for h in range(2):
                vv, off = o.waddr(nt, t, h)
                wr.append(f"ds_read_b64_tr_b16 {vr(fw[t][nt] + 2 * h, 2)}, v{vv} offset:{off}")
        if DBG['nomma']:
            return ["s_nop 0"] * 3
        return ar + wr

    def mf(d, a, w):
        if c.transposed:
            return f"v_mfma_f32_16x16x32_bf16 {vr(d,4)}, {vr(w,4)}, {vr(a,4)}, {vr(d,4)}"
        return f"v_mfma_f32_16x16x32_bf16 {vr(d,4)}, {vr(a,4)}, {vr(w,4)}, {vr(d,4)}"

    def block(t, csl, pre_instr):
        rd = reads(1 - t)
        nR = len(rd)
        ml = []
        for nt in range(NT):
            for mt in range(MT):
                ml.append((mf(o.acc[mt][nt], fa[t][mt], fw[t][nt]), MT + 2 * nt + 1))
            for (cr, cn) in csl:
                if cn == nt:
                    ml.append((mf(cr, o.ones, fw[t][nt]), MT + 2 * nt + 1))
        if DBG['nomma']:
            ml = []
        n = len(ml)
        out = list(pre_instr)
        lead = 1
        out += rd[:lead]
        issued = lead
        guar = -1
        for j, (txt, need) in enumerate(ml):
            if need > guar:
                tgt = max(x[1] for x in ml[j:j + c.wait_span])
                allowed = (nR - 1 - tgt) + issued
                N = min(15, allowed)
                out.append(f"s_waitcnt lgkmcnt({N})")
                guar = nR - 1 - (N - issued) if N >= issued else nR - 1
            out.append(txt)
            want = min(nR, lead + -(-(j + 1) * (nR - lead) * 100 // (n * c.read_frac)))
            while issued < want:
                out.append(rd[issued]); issued += 1
        out += rd[issued:]
        return out

    def cs_lists(w):
        if not c.colsum:
            return [], []
        if c.WM == 4:
            t, hf = w >> 1, w & 1
            tiles = list(range(hf * o.ncs, min(NT, (hf + 1) * o.ncs)))
        else:
            t, tiles = w, list(range(NT))
        l = [(o.cs[i], nt) for i, nt in enumerate(tiles)]
        return (l, []) if t == 0 else ([], l)

    nvar = c.WM if c.colsum else 1
    k.stamp_c(tag + "_pre")
    k.e("s_barrier")
    k.stamp_c(tag + "_b0")
    k.emit_list(reads(0))
    if after_b0:
        after_b0()
    labs = [k.label("mm") for _ in range(nvar)]
    Ld = k.label("mmdone")
    for w in range(1, nvar):
        k.e(f"s_cmp_eq_u32 s{sVar}, {w}")
        k.e(f"s_cbranch_scc1 {labs[w]}")
    for w in range(nvar):
        c0, c1 = cs_lists(w)
        k.place(labs[w])
        adv = [f"s_add_u32 s{o.sA}, s{o.sA}, 1",
               f"s_cmp_eq_u32 s{o.sA}, {c.SA}",
               f"s_cselect_b32 s{o.sT}, s{o.sWrA}, {c.abytes}",
               f"s_cselect_b32 s{o.sA}, 0, s{o.sA}",
               f"v_add_u32 v{o.vA0}, s{o.sT}, v{o.vA0}"]
        adv2 = [f"s_add_u32 s{o.sW}, s{o.sW}, 1",
                f"s_cmp_eq_u32 s{o.sW}, {c.SW}",
                f"s_cselect_b32 s{o.sT2}, s{o.sWrW}, {c.wbytes}",
                f"s_cselect_b32 s{o.sW}, 0, s{o.sW}"]
        X = block(0, c0, [])
        a, b = len(X) // 3, 2 * len(X) // 3
        X = X[:a] + adv + X[a:b] + adv2 + X[b:]
        k.emit_list(X)
        if c.rel == 1:
            k.e("s_waitcnt lgkmcnt(0)")
        if c.vmwait:
            k.e("s_waitcnt vmcnt(0)")
        k.e("s_barrier")
        Y = block(1, c1, [f"v_add_u32 v{x}, s{o.sT2}, v{x}" for x in o.vW])
        a = len(Y) // 2
        Y = Y[:a] + [f"v_add_u32 v{o.vA1}, s{o.sT}, v{o.vA1}", f"s_add_u32 s{o.sI}, s{o.sI}, 1", f"s_cmp_lt_u32 s{o.sI}, {c.NS}"] + Y[a:]
        k.emit_list(Y)
        k.e(f"s_cbranch_scc1 {labs[w]}")
        if w < nvar - 1:
            k.e(f"s_branch {Ld}")
    k.place(Ld)
    if at_end:
        k.e("s_waitcnt lgkmcnt(6)")
        at_end()
    k.e("s_waitcnt lgkmcnt(0)")
    k.e("s_nop 7")
    k.stamp_c(tag + "_loop")
    k.release(o.mark)


def idle_barriers(k, n):
    if n <= 4:
        for _ in range(n):
            k.e("s_barrier")
        return
    s = k.s()
    L = k.label("idle")
    k.e(f"s_mov_b32 s{s}, {n}")
    k.place(L)
    k.e(f"""
    s_barrier
    s_sub_u32 s{s}, s{s}, 1
    s_cmp_lg_u32 s{s}, 0
    s_cbranch_scc1 {L}
    """)
```

```python
from asmlib import *
from g3 import *
import g3
import struct, json

S_, D_, F_ = 2048, 640, 1728
WS_PQ = 0x0
WS_H = 0x400000
WS_HH = 0x800000
WS_KV = 0x1000000
KV_BYTES = 65536
WS_FL = 0x1100000
FS = 4224
FL_BYTES = 128 * FS
FL_Q, FL_2, FL_3, FL_C, FL_G, FL_S, FL_R = 0, 16 * FS, 32 * FS, 48 * FS, 64 * FS, 96 * FS, 112 * FS
NREP = 16
WS_ST1 = 0x1020000
WS_CS1 = 0x1024000
WS_CS3 = 0x102C000
WS_W2P = 0x1200000
W2P_CT = 27 * 10240
WS_ST2 = 0x1040000
LOG2E = 1.4426950408889634
NAME = "sequential_preLN__linear_attn_block__dense_activation_relu__prompt_kernel"
OPT = dict(kvH=16, qH=11, p3H=16, p4H=16, touch1=True, touch1b=True, twarm=True, pretouch=True, e2pos=12, early3=False, psleep=8, w2a=6, w1at={'w2a': [0], 'c': [1], 'g': [2]}, tdist=1, hW=3, hX=10, jrot=8, diag=False, wf4=5, p4H0=24, pf1=2, m1at=3, rf3=70, hb=11, svwo=True, inj=10, p4SA=8, p4SW=9, secs=('head', 'ltail', 'svc', 'cons', 'cons2'), p4early=False, dupst=False, dupfl='', accinit=True, svw2=0, svT1=1, kvH0=4, hW0=32, svw1=0, p4rot=True, selft=False, p4wl=4, pqlead=16, catom=True, pqtouch=False, rel=1, rf=65, rel4=2, rf4=90, lean=True, lprio=0, outsc1=False, w2early=True, pqq=10, codewarm=True)
LDS_TOTAL = 163840


def f32bits(x):
    return struct.unpack("<I", struct.pack("<f", x))[0]


def bf16_round_f32(k, v):
    k.e(f"v_cvt_pk_bf16_f32 v{v}, v{v}, v{v}")
    k.e(f"v_lshlrev_b32 v{v}, 16, v{v}")


def allreduce4_multi(k, xs, ts):
    for sw in ("v_permlane16_swap_b32", "v_permlane32_swap_b32"):
        for x, t in zip(xs, ts):
            k.e(f"v_mov_b32 v{t}, v{x}")
        k.e("s_nop 1" if len(xs) < 2 else "s_nop 0")
        for x, t in zip(xs, ts):
            k.e(f"{sw} v{x}, v{t}")
        k.e("s_nop 1" if len(xs) < 2 else "s_nop 0")
        for x, t in zip(xs, ts):
            k.e(f"v_add_f32 v{x}, v{x}, v{t}")


def ln_finalize_multi(k, vms, vvs, sEps):
    for vm in vms:
        bf16_round_f32(k, vm)
    for vv in vvs:
        bf16_round_f32(k, vv)
        k.e(f"v_add_f32 v{vv}, s{sEps}, v{vv}")
        bf16_round_f32(k, vv)
    for vv in vvs:
        k.e(f"v_sqrt_f32 v{vv}, v{vv}")
    k.e("s_nop 0")
    for vv in vvs:
        bf16_round_f32(k, vv)
    for vv in vvs:
        k.e(f"v_rcp_f32 v{vv}, v{vv}")
    k.e("s_nop 0")


def dpp_rowsum(k, x):
    for r in (8, 4, 2, 1):
        k.e("s_nop 1")
        k.e(f"v_add_f32_dpp v{x}, v{x}, v{x} row_ror:{r} row_mask:0xf bank_mask:0xf")


def set_srd(k, d, p, nbytes, off=0, bias=False):
    if bias and OPT['lean']:
        off -= BIAS
        nbytes += BIAS
    if off < 0:
        k.e(f"s_sub_u32 s{d}, s{p}, {-off}")
        k.e(f"s_subb_u32 s{d+1}, s{p+1}, 0")
    elif off:
        k.e(f"s_add_u32 s{d}, s{p}, {off}")
        k.e(f"s_addc_u32 s{d+1}, s{p+1}, 0")
    else:
        k.e(f"s_mov_b64 s[{d}:{d+1}], s[{p}:{p+1}]")
    k.e(f"s_mov_b32 s{d+2}, {nbytes}")
    k.e(f"s_mov_b32 s{d+3}, 0x20000")


class Touch:
    def __init__(self, k, vl, ncl, ld, seg5=False, share=None):
        self.k, self.ld = k, ld
        self.R = 64 // ncl
        self.vo = k.v()
        self.sO = share.sO if share else k.s()
        self.sB = share.sB if share else k.s(2, 2)
        t0, t1 = k.v(), k.v()
        magic = (1024 + ncl - 1) // ncl
        for l in range(64):
            assert (l * magic) >> 10 == l // ncl
        k.e(f"""
        v_min_u32 v{t1}, {self.R * ncl - 1}, v{vl}
        v_mul_u32_u24 v{t0}, {magic}, v{t1}
        v_lshrrev_b32 v{t0}, 10, v{t0}
        v_mul_u32_u24 v{self.vo}, {ncl}, v{t0}
        v_sub_u32 v{t1}, v{t1}, v{self.vo}
        v_mul_u32_u24 v{t0}, {ld}, v{t0}
        v_lshl_add_u32 v{self.vo}, v{t1}, 7, v{t0}
        """)
        if seg5:
            k.e(f"""
            v_mul_u32_u24 v{t0}, 205, v{t1}
            v_lshrrev_b32 v{t0}, 10, v{t0}
            v_mul_u32_u24 v{t0}, 640, v{t0}
            v_add_u32 v{self.vo}, v{self.vo}, v{t0}
            """)

    def unit(self, p, sOff, sU, add, nrows, skip=False):
        k = self.k
        le = k.label("tsk")
        k.e(f"""
        s_add_u32 s{self.sO}, s{sU}, {add}
        s_mul_i32 s{self.sO}, s{self.sO}, {self.R}
        """)
        if skip:
            k.e(f"s_cmp_ge_u32 s{self.sO}, {nrows}")
            k.e(f"s_cbranch_scc1 {le}")
        k.e(f"""
        s_min_u32 s{self.sO}, s{self.sO}, {nrows - self.R}
        s_mul_i32 s{self.sO}, s{self.sO}, {self.ld}
        s_add_u32 s{self.sO}, s{self.sO}, s{sOff}
        s_add_u32 s{self.sB}, s{p}, s{self.sO}
        s_addc_u32 s{self.sB+1}, s{p+1}, 0
        global_load_dword v{k.vdummy}, v{self.vo}, s[{self.sB}:{self.sB+1}]
        """)
        k.place(le)


def phi_pair(k, a, vrs, vr2, sEps2, t):
    k.e(f"v_pk_mul_f32 {vr(t,2)}, {vr(a,2)}, {vr(vr2,2)}")
    k.e(f"v_pk_fma_f32 {vr(a,2)}, {vr(a,2)}, {vr(vrs,2)}, 1.0 op_sel_hi:[1,1,0]")
    k.e(f"v_exp_f32_e64 v{t}, v{t} clamp")
    k.e(f"v_exp_f32_e64 v{t+1}, v{t+1} clamp")
    k.e(f"v_max_f32 v{a}, v{a}, v{t}")
    k.e(f"v_max_f32 v{a+1}, v{a+1}, v{t+1}")
    k.e(f"v_pk_add_f32 {vr(a,2)}, {vr(a,2)}, s[{sEps2}:{sEps2+1}]")


def gen(prof=False):
    k = Kern(NAME)
    k.prof3 = prof
    k.slimit, k.vlimit = 68, 256
    ckv = Cfg(BM=128, NS=10, lda=2 * D_, ldw=6 * D_, wl='odd', SA=4, SW=4, baseA=0, baseW=65536, WM=2, WN=2,
              transposed=False, colsum=False, H=OPT['kvH'], nseg=2, segd=None, mixed=True, rel=OPT['rel'], read_frac=OPT['rf'], lean=True, H0=OPT['kvH0'])
    P1_ST = ckv.endW
    P1_AT = P1_ST + 2048
    c3 = Cfg(BM=128, NS=10, lda=2 * D_, ldw=2 * F_, wl='x8', SA=4, SW=10, baseA=81920, baseW=0, WM=4, WN=1,
             transposed=True, colsum=False, H=OPT['p3H'], rel=1, lean=True)
    P3_SCR = c3.endA
    HB = OPT['hb']
    c4 = Cfg(BM=64, NS=27, lda=2 * F_, ldw=160, wl='lin', SA=10, SW=8, baseA=0, baseW=81920, WM=2, WN=2,
             transposed=True, colsum=False, H=OPT['p4H'], rel=2, read_frac=OPT['rf4'], lean=True, wlead=OPT['p4wl'],
             smap=lambda j: 2 * j if j < 14 else 2 * (j - 14) + 1, afterA=lambda j: HB if j >= 14 else -99,
             afterW=lambda m: 0 if m >= 6 else -99, vmwait=True, wfirst=OPT['wf4'], H0=OPT['p4H0'])
    assert c4.endW <= LDS_TOTAL and c4.endA <= c4.baseW and P3_SCR + 2048 <= LDS_TOTAL and P1_ST + 1024 <= LDS_TOTAL
    L_W2, L_KV, L_X2 = 40960, 0, 143360

    F0V = '0x00010001' if OPT['diag'] else 1
    k.end = k.label("end")
    if prof:
        for i in range(28):
            k.e(f"s_mov_b32 s{68+i}, 0")
        k.stamp_c("start")
        k.e("s_memrealtime s[96:97]")
        k.e("s_waitcnt lgkmcnt(0)")
        k.e("s_mov_b32 s94, s96")
    k.e("s_cmp_ge_u32 s2, 256")
    k.e(f"s_cbranch_scc1 {k.end}")
    p = k.s(16, 4)
    pws = k.s(2, 2)
    k.e(f"s_load_dwordx16 s[{p}:{p+15}], s[0:1], 0")
    k.e(f"s_load_dwordx2 s[{pws}:{pws+1}], s[0:1], 64")
    ptr = dict(x=p, wqkv=p + 2, wo=p + 4, w1=p + 8, w2=p + 10, out=p + 12, dbg=p + 14, ws=pws)
    sWave, sJ, sRQ, sCH, sJ1 = k.s(), k.s(), k.s(), k.s(), k.s()
    vl = k.v()
    k.vdummy = k.v()
    k.e(f"""
    v_lshrrev_b32 v{vl}, 6, v0
    s_lshr_b32 s{sJ}, s2, 3
    v_readfirstlane_b32 s{sWave}, v{vl}
    v_and_b32 v{vl}, 63, v0
    s_bfe_u32 s{sRQ}, s2, 0x20001
    s_and_b32 s{sCH}, s2, 1
    s_sub_u32 s{sJ1}, s{sJ}, {OPT['jrot']}
    s_and_b32 s{sJ1}, s{sJ1}, 31
    """)

    def endwave():
        k.dump3(pws, sWave)
        k.e("s_endpgm")

    def dec1():
        sG, sC, sTy = k.s(), k.s(), k.s()
        k.e(f"""
        s_and_b32 s{sG}, s{sJ1}, 3
        s_lshl_b32 s3, s{sRQ}, 2
        s_add_u32 s{sG}, s{sG}, s3
        s_lshr_b32 s{sTy}, s{sJ1}, 3
        s_sub_u32 s{sTy}, s{sTy}, 1
        s_max_i32 s{sTy}, s{sTy}, 0
        s_lshr_b32 s{sC}, s{sJ1}, 2
        s_lshl_b32 s3, s{sCH}, 2
        s_add_u32 s{sC}, s{sC}, s3
        s_lshl_b32 s3, s{sCH}, 1
        s_add_u32 s3, s3, 4
        s_cmp_eq_u32 s{sTy}, 1
        s_cselect_b32 s3, s3, 0
        s_sub_u32 s{sC}, s{sC}, s3
        s_and_b32 s3, s{sJ1}, 7
        s_cmp_eq_u32 s{sTy}, 2
        s_cselect_b32 s{sC}, s3, s{sC}
        """)
        return sG, sC, sTy

    def dec2():
        sRB, sCT = k.s(), k.s()
        k.e(f"""
        s_and_b32 s{sRB}, s{sJ}, 7
        s_lshl_b32 s3, s{sRQ}, 3
        s_add_u32 s{sRB}, s{sRB}, s3
        s_lshr_b32 s{sCT}, s{sJ}, 3
        s_lshl_b32 s3, s{sCH}, 2
        s_add_u32 s{sCT}, s{sCT}, s3
        """)
        return sRB, sCT

    def dec3():
        sRB, sCT = k.s(), k.s()
        k.e(f"""
        s_and_b32 s{sRB}, s{sJ}, 3
        s_lshl_b32 s3, s{sRQ}, 2
        s_add_u32 s{sRB}, s{sRB}, s3
        s_lshr_b32 s{sCT}, s{sJ}, 2
        s_mul_i32 s3, s{sCH}, 7
        s_add_u32 s{sCT}, s{sCT}, s3
        """)
        return sRB, sCT

    def dec4():
        sRB, sCT, sId = k.s(), k.s(), k.s()
        k.e(f"""
        s_mul_i32 s{sRB}, s{sJ}, 205
        s_lshr_b32 s{sRB}, s{sRB}, 10
        s_mul_i32 s3, s{sRB}, 5
        s_sub_u32 s{sCT}, s{sJ}, s3
        s_mul_i32 s3, s{sCH}, 5
        s_add_u32 s{sCT}, s{sCT}, s3
        s_cmp_ge_u32 s{sRB}, 6
        s_cselect_b32 s{sId}, 1, 0
        s_mul_i32 s{sRB}, s{sRB}, 96
        s_lshl_b32 s3, s{sRQ}, 9
        s_add_u32 s{sRB}, s{sRB}, s3
        """)
        return sRB, sCT, sId

    Lc, Lh, Lsvc, Lrole = k.label("cons"), k.label("help"), k.label("svc"), k.label("role")
    sSvc = k.s()
    k.e(f"s_mov_b32 s{sSvc}, 0")
    k.e(f"s_cmp_ge_u32 s{sJ1}, 24")
    k.e(f"s_cbranch_scc1 {Lsvc}")
    k.e(f"s_cmp_lt_u32 s{sWave}, 6")
    k.e(f"s_cbranch_scc1 {Lrole}")
    mH = k.mark()
    sRo, sA = k.s(), k.s()
    Lh1 = k.label("h1")
    k.e(f"s_cmp_eq_u32 s{sWave}, 7")
    k.e(f"s_cbranch_scc1 {Lh1}")
    k.e(f"s_mul_i32 s{sRo}, s{sCH}, 640")
    TW = Touch(k, vl, 15, 6 * D_, seg5=True)
    k.e("s_waitcnt lgkmcnt(0)")
    for it in range(OPT['hW']):
        TW.unit(ptr['wqkv'], sRo, sJ1, 24 * it, 640)
    k.e("s_endpgm")
    k.place(Lh1)
    if OPT['codewarm']:
        va_ = k.v(2)
        sPC = k.s(2, 2)
        k.e(f"""
        s_getpc_b64 s[{sPC}:{sPC+1}]
        {k.name}_pc:
        s_sub_u32 s{sPC}, s{sPC}, {k.name}_pc-{k.name}
        s_subb_u32 s{sPC+1}, s{sPC+1}, 0
        s_lshl_b32 s{sA}, s{sJ1}, 11
        v_lshlrev_b32 v{va_}, 7, v{vl}
        v_add_u32 v{va_}, s{sA}, v{va_}
        v_min_u32 v{va_}, {k.name}_last-{k.name}, v{va_}
        v_mov_b32 v{va_+1}, s{sPC+1}
        v_add_co_u32 v{va_}, vcc, s{sPC}, v{va_}
        s_nop 1
        v_addc_co_u32 v{va_+1}, vcc, 0, v{va_+1}, vcc
        s_mov_b64 exec, 0xffff
        global_load_dword v{k.vdummy}, {vr(va_,2)}, off
        s_mov_b64 exec, -1
        """)
    if OPT['hX'] == 10:
        k.e(f"s_and_b32 s{sRo}, s2, 7")
        k.e(f"s_xor_b32 s{sRo}, s{sRo}, 1")
        k.e(f"s_mul_i32 s{sRo}, s{sRo}, {256 * 2 * D_}")
        TX = Touch(k, vl, 16, 2048, share=TW)
        k.e("s_waitcnt lgkmcnt(0)")
        TX.unit(ptr['x'], sRo, sJ1, 0, 160)
        lx = k.label("hx")
        k.e(f"s_cmp_ge_u32 s{sJ1}, 16")
        k.e(f"s_cbranch_scc1 {lx}")
        TX.unit(ptr['x'], sRo, sJ1, 24, 160)
        k.place(lx)
    else:
        k.e(f"s_mul_i32 s{sRo}, s{sRQ}, {512 * 2 * D_}")
        TX = Touch(k, vl, OPT['hX'], 2 * D_, share=TW)
        k.e("s_waitcnt lgkmcnt(0)")
        for it in range(-(-500 // (24 * TX.R))):
            TX.unit(ptr['x'], sRo, sJ1, 24 * it, 512)
    k.e("s_endpgm")
    k.release(mH)
    k.place(Lrole)
    k.e(f"s_cmp_lt_u32 s{sWave}, 4")
    k.e(f"s_cbranch_scc1 {Lc}")
    k.e(f"s_cmp_ge_u32 s{sWave}, 6")
    k.e(f"s_cbranch_scc1 {k.end}")
    mL = k.mark()
    sLW, sRow, sCol, sSpin, sP, sU, sEx = (k.s() for _ in range(7))
    srdA, srdW, srdF = k.s(4), k.s(4), k.s(4)
    vf, vfa, vone = k.v(4), k.v(), k.v()
    c3r = k.v(4)
    vfb = k.v()
    sAct = k.s()
    k.e(f"s_sub_u32 s{sLW}, s{sWave}, 4")
    if OPT['lprio']:
        k.e(f"s_setprio {OPT['lprio']}")

    def poll(srd, expect, first_issued=False, tag="", wide=False, drain1=True, extra=None, younger=0, both=False):
        lp, lo = k.label("poll"), k.label("pollok")
        ldi = (f"buffer_load_dwordx3 {vr(vf,3)}, v{vfa}, s[{srd}:{srd+3}], 0 offen sc1" if wide
               else f"buffer_load_dword v{vf}, v{vfa}, s[{srd}:{srd+3}], 0 offen sc1")
        if extra is not None:
            ldi += f"\nbuffer_load_dword v{vf+3}, v{extra}, s[{srd}:{srd+3}], 0 offen sc1"
        if not both:
            k.e(f"s_cmp_eq_u32 s{sLW}, 1")
            k.e(f"s_cbranch_scc1 {lo}")
        k.e(f"s_mov_b32 s{sSpin}, 0")
        if not first_issued:
            k.e(ldi)
        if younger:
            k.e(f"s_waitcnt vmcnt({younger})")
            k.e(f"s_branch {lp}_c")
        k.place(lp)
        k.e("s_waitcnt vmcnt(0)")
        k.place(lp + "_c")
        if wide:
            k.e(f"v_and_b32 v{vf}, v{vf}, v{vf+2}")
        if extra is not None:
            k.e(f"v_and_b32 v{vf}, v{vf}, v{vf+3}")
        k.e(f"""
        v_cmp_ne_u32 vcc, {expect}, v{vf}
        s_add_u32 s{sSpin}, s{sSpin}, 1
        s_nop 3
        s_cbranch_vccz {lo}
        s_cmp_gt_u32 s{sSpin}, 0x40000
        s_cbranch_scc1 {k.end}
        s_sleep {OPT['psleep']}
        {ldi}
        s_branch {lp}
        """)
        k.place(lo)
        if drain1:
            k.e("s_waitcnt vmcnt(0)")
        k.stamp_l(tag)

    def set_flag(sOff, base, sExec=None):
        l0 = k.label("fl")
        k.e(f"""
        s_cmp_eq_u32 s{sLW}, 1
        s_cbranch_scc0 {l0}
        v_mov_b32 v{vfa}, {base}
        s_mov_b64 exec, 1
        buffer_store_dword v{vone}, v{vfa}, s[{srdF}:{srdF+3}], s{sOff} offen sc1
        s_mov_b64 exec, -1
        """)
        k.place(l0)

    def warm(pw, ldw, ncl, colbytes, clampc, nrows, rounds):
        if not OPT['twarm'] or not rounds:
            return 0
        mm_ = k.mark()
        sCo = k.s()
        k.e(f"s_mul_i32 s{sCo}, s{sCH}, {colbytes}")
        if clampc is not None:
            k.e(f"s_min_u32 s{sCo}, s{sCo}, {clampc}")
        T = Touch(k, vl, ncl, ldw)
        for it in rounds:
            T.unit(pw, sCo, sU, 64 * it, nrows)
        k.release(mm_)
        return len(rounds)

    def w1warm(where):
        r = OPT['w1at'].get(where, [])
        return warm(ptr['w1'], 2 * F_, 14, 7 * 256, 13 * 128, 640, r) if r else 0

    m = k.mark()
    sG, sC, sTy = dec1()
    srdD = k.s(4)
    k.e(f"""
    s_mul_i32 s{sRow}, s{sG}, {128 * 2 * D_}
    s_mul_i32 s{sCol}, s{sC}, 160
    s_add_u32 s3, s{sCol}, {2 * D_}
    s_lshl_b32 s{sCol}, s{sCol}, 1
    s_cmp_eq_u32 s{sTy}, 0
    s_cselect_b32 s{sCol}, s3, s{sCol}
    s_movk_i32 s{sEx}, 160
    s_cselect_b32 s{sEx}, {2 * D_}, s{sEx}
    """)
    Llq, Ltail = k.label("ldq"), k.label("ldtail")
    pat = [[k.v() for _ in range(5)] for _ in range(5)]
    q0, q1, q2, vi_, vb_, vcs = (k.v() for _ in range(6))
    csr = [k.v(4) for _ in range(4)]
    rp = [k.v() for _ in range(6)]
    rpd = [k.v(4) for _ in range(6)]
    sRp, sRc, sRv = k.s(), k.s(), k.s()
    vLtop = k.vtop

    def p2_pat(mI):
        def f():
            k.e(f"""
            s_and_b32 s3, s{sWave}, 1
            s_lshl_b32 s3, s3, 3
            v_add_u32 v{q0}, {64*mI}, v{vl}
            v_mul_u32_u24 v{q1}, 205, v{q0}
            v_lshrrev_b32 v{q1}, 11, v{q1}
            v_mul_u32_u24 v{q2}, 10, v{q1}
            v_sub_u32 v{q2}, v{q0}, v{q2}
            v_lshlrev_b32 v{vb_}, 4, v{q2}
            v_and_b32 v{vi_}, 3, v{q1}
            v_bfe_u32 v{q0}, v{q1}, 3, 1
            v_lshl_or_b32 v{vi_}, v{q0}, 2, v{vi_}
            v_add_u32 v{vi_}, s3, v{vi_}
            v_bfe_u32 v{q0}, v{q1}, 2, 1
            v_lshrrev_b32 v{q2}, 4, v{q1}
            v_lshl_or_b32 v{q0}, v{q2}, 1, v{q0}
            v_mul_u32_u24 v{q0}, {5 * 1280}, v{q0}
            v_add_u32 v{vb_}, v{vb_}, v{q0}
            s_movk_i32 s3, 1280
            """)
            for u in range(5):
                k.e(f"""
                v_add_u32 v{q0}, {16*u}, v{vi_}
                v_mul_u32_u24 v{q1}, 205, v{q0}
                v_lshrrev_b32 v{q1}, 10, v{q1}
                v_mad_u32_u24 v{q0}, v{q1}, 15, v{q0}
                v_mad_u32_u24 v{pat[u][mI]}, v{q0}, s3, v{vb_}
                """)
            return 0
        return f

    def rp_pat():
        mm_ = k.mark()
        sN, sH, sL = k.s(), k.s(), k.s()
        k.e(f"""
        s_lshl_b32 s{sRv}, s{sJ1}, 3
        s_and_b32 s3, s2, 7
        s_add_u32 s{sRv}, s{sRv}, s3
        s_lshl_b32 s{sRv}, s{sRv}, 1
        s_add_u32 s{sRv}, s{sRv}, s{sLW}
        s_min_u32 s{sRp}, s{sRv}, 359
        s_mul_i32 s{sRc}, s{sRp}, 1457
        s_lshr_b32 s{sRc}, s{sRc}, 16
        s_mul_i32 s3, s{sRc}, 45
        s_sub_u32 s{sN}, s{sRp}, s3
        s_mul_i32 s{sN}, s{sN}, 6
        s_mul_i32 s{sRp}, s{sRp}, 6144
        s_movk_i32 s{sL}, {2 * D_}
        """)
        for i in range(6):
            k.e(f"""
            s_mul_i32 s{sH}, s{sN}, 13108
            s_lshr_b32 s{sH}, s{sH}, 16
            s_mul_i32 s3, s{sH}, 5
            s_sub_u32 s3, s{sN}, s3
            s_lshl_b32 s3, s3, 6
            v_add_u32 v{q0}, s3, v{vl}
            s_mul_i32 s{sH}, s{sH}, {32 * 2 * D_}
            s_mul_i32 s3, s{sRc}, 160
            s_add_u32 s{sH}, s{sH}, s3
            v_mul_u32_u24 v{q1}, 205, v{q0}
            v_lshrrev_b32 v{q1}, 11, v{q1}
            v_mul_u32_u24 v{q2}, 10, v{q1}
            v_sub_u32 v{q2}, v{q0}, v{q2}
            v_lshl_add_u32 v{rp[i]}, v{q2}, 4, s{sH}
            v_and_b32 v{q2}, 19, v{q1}
            v_and_b32 v{q0}, 4, v{q1}
            v_lshl_or_b32 v{q2}, v{q0}, 1, v{q2}
            v_and_b32 v{q0}, 8, v{q1}
            v_lshrrev_b32 v{q0}, 1, v{q0}
            v_or_b32 v{q2}, v{q2}, v{q0}
            v_mad_u32_u24 v{rp[i]}, v{q2}, s{sL}, v{rp[i]}
            s_add_u32 s{sN}, s{sN}, 1
            """)
        k.release(mm_)

    def p1_srds():
        k.e("s_waitcnt lgkmcnt(0)")
        set_srd(k, srdA, ptr['x'], S_ * D_ * 2, bias=True)
        set_srd(k, srdW, ptr['wqkv'], 3 * D_ * D_ * 2, bias=True)
        k.stamp_l("ld_first")

    def p1_late():
        set_srd(k, srdF, ptr['ws'], FL_BYTES, WS_FL)
        k.e(f"""
        v_mov_b32 v{vone}, 1
        s_lshl_b32 s{sU}, s{sJ}, 1
        s_add_u32 s{sU}, s{sU}, s{sLW}
        s_mul_i32 s{sP}, s{sG}, {FS}
        s_lshl_b32 s3, s{sC}, 2
        s_add_u32 s{sP}, s{sP}, s3
        """)
        k.e(f"""
        s_and_b32 s3, s{sC}, 3
        s_mul_i32 s3, s3, 320
        s_add_u32 s3, s3, 1280
        s_and_b32 s{sSpin}, s{sC}, 1
        s_mul_i32 s{sSpin}, s{sSpin}, 640
        s_cmp_eq_u32 s{sTy}, 0
        s_cselect_b32 s3, s3, s{sSpin}
        s_cselect_b32 s{sSpin}, 960, 0
        v_lshlrev_b32 v{vcs}, 4, v{vl}
        v_add_u32 v{vcs}, s3, v{vcs}
        v_cmp_lt_u32 vcc, 19, v{vl}
        v_mov_b32 v{q0}, s{sSpin}
        s_lshl_b32 s3, s{sCH}, 12
        v_cndmask_b32 v{q0}, 0, v{q0}, vcc
        s_add_u32 s3, s3, {WS_CS1 - WS_ST1}
        v_add3_u32 v{vcs}, v{vcs}, v{q0}, s3
        v_cmp_gt_u32 vcc, 40, v{vl}
        v_mov_b32 v{q0}, {OOB}
        s_nop 0
        v_cndmask_b32 v{vcs}, v{q0}, v{vcs}, vcc
        """)
        return 0

    def p1_last():
        set_srd(k, srdD, ptr['dbg'], 256)
        k.e(f"""
        v_lshlrev_b32 v{vfa}, 2, v{vl}
        v_or_b32 v{vfa}, {128 if OPT['diag'] else 0}, v{vfa}
        s_lshl_b32 s3, s{sLW}, 12
        buffer_load_dword v{vf}, v{vfa}, s[{srdD}:{srdD+3}], s3 offen sc1
        """)
        nwo = 0
        if not OPT['svwo']:
            mm_ = k.mark()
            sCo, sV = sRow, sCol
            k.e(f"s_mul_i32 s{sCo}, s{sCH}, 640")
            k.e(f"s_lshl_b32 s{sV}, s{sJ1}, 1")
            k.e(f"s_add_u32 s{sV}, s{sV}, s{sLW}")
            T = Touch(k, vl, 5, 2 * D_)
            T.unit(ptr['wo'], sCo, sV, 0, 640)
            k.release(mm_)
            nwo = 1
        set_srd(k, srdA, ptr['w2'], F_ * D_ * 2)
        for mI in range(6):
            k.e(f"buffer_load_dwordx4 {vr(rpd[mI],4)}, v{rp[mI]}, s[{srdA}:{srdA+3}], 0 offen")
        return 7 + nwo
    hooks = {}
    k.e(f"s_cmp_eq_u32 s{sSvc}, 1")
    k.e(f"s_cbranch_scc1 {Llq}")
    m2 = k.mark()
    ckv.segd = f"s{sEx}"
    ld = Loader(k, ckv, vl, sLW)

    def first():
        ld.bases(sRow, sCol)
        p1_srds()
        ld.early_a(srdA)
    ld.patterns(between=first)

    def f0_part():
        poll(srdD, F0V, first_issued=True, tag="f0ok", drain1=False, younger=6 if OPT['svwo'] else 7)
        set_srd(k, srdA, ptr['ws'], WS_CS3 - WS_ST1, WS_ST1)
        lsd = k.label("std")
        k.e(f"""
        s_cmp_eq_u32 s{sLW}, 1
        s_cbranch_scc1 {lsd}
        s_mov_b32 m0, {P1_ST}
        s_lshl_b32 s3, s{sG}, 10
        v_lshlrev_b32 v{vfa}, 4, v{vl}
        buffer_load_dwordx4 v{vfa}, s[{srdA}:{srdA+3}], s3 offen sc1 lds
        s_movk_i32 s3, 8192
        buffer_load_dwordx4 {vr(csr[0],4)}, v{vcs}, s[{srdA}:{srdA+3}], 0 offen sc1
        buffer_load_dwordx4 {vr(csr[1],4)}, v{vcs}, s[{srdA}:{srdA+3}], s3 offen sc1
        s_movk_i32 s3, 16384
        buffer_load_dwordx4 {vr(csr[2],4)}, v{vcs}, s[{srdA}:{srdA+3}], s3 offen sc1
        s_movk_i32 s3, 24576
        buffer_load_dwordx4 {vr(csr[3],4)}, v{vcs}, s[{srdA}:{srdA+3}], s3 offen sc1
        v_add_u32 v{vfa}, {P1_ST + 1024}, v{vfa}
        """)
        k.place(lsd)
        return 0

    def early_valu():
        p1_late()
        for i in range(5):
            p2_pat(i)()
        rp_pat()
    ld.stream(srdA, srdW, last=p1_last, tag="p1", inject=(OPT['inj'], early_valu), hooks={9: f0_part})
    k.e(f"s_branch {Ltail}")
    k.release(m2)
    k.place(Llq)
    p1_late()
    k.e(f"s_movk_i32 s{sRv}, 1000")
    k.e(f"s_mov_b32 s{sRp}, 0")
    k.e(f"s_mov_b32 s{sRc}, 0")
    k.e(f"""
    s_lshl_b32 s{sP}, s{sCH}, 3
    s_add_u32 s{sP}, s{sP}, s{sC}
    s_mul_i32 s{sP}, s{sP}, {FS}
    s_lshl_b32 s3, s{sRQ}, 2
    s_add_u32 s{sP}, s{sP}, s3
    s_add_u32 s{sP}, s{sP}, {FL_S - FL_Q}
    """)
    set_srd(k, srdD, ptr['dbg'], 256)
    k.e(f"s_branch {Ltail}_s")
    k.lines.append('; @SEC ltail')
    k.place(Ltail)
    lsd = k.label("std")
    k.e(f"s_cmp_eq_u32 s{sLW}, 1")
    k.e(f"s_cbranch_scc1 {lsd}")
    k.e(f"""
    s_waitcnt vmcnt(2)
    v_pk_add_f32 {vr(csr[0],2)}, {vr(csr[0],2)}, {vr(csr[1],2)}
    v_pk_add_f32 {vr(csr[0]+2,2)}, {vr(csr[0]+2,2)}, {vr(csr[1]+2,2)}
    s_waitcnt vmcnt(0)
    v_pk_add_f32 {vr(csr[2],2)}, {vr(csr[2],2)}, {vr(csr[3],2)}
    v_pk_add_f32 {vr(csr[2]+2,2)}, {vr(csr[2]+2,2)}, {vr(csr[3]+2,2)}
    v_pk_add_f32 {vr(csr[0],2)}, {vr(csr[0],2)}, {vr(csr[2],2)}
    v_pk_add_f32 {vr(csr[0]+2,2)}, {vr(csr[0]+2,2)}, {vr(csr[2]+2,2)}
    ds_write_b128 v{vfa}, {vr(csr[0],4)}
    s_waitcnt lgkmcnt(0)
    """)
    k.place(lsd)
    k.place(Ltail + "_s")
    sRB2, sCT2 = dec2()
    set_srd(k, srdW, ptr['wo'], D_ * D_ * 2)
    sT, sKW, sLWd = k.s(), k.s(), k.s()
    k.e(f"""
    s_mul_i32 s{sKW}, s{sCT2}, 160
    s_mul_i32 s{sLWd}, s{sLW}, 5120
    """)
    nx = w1warm('stats')
    k.e(f"s_waitcnt vmcnt({nx})")
    k.e("s_barrier")
    lrp = k.label("rp")
    set_srd(k, srdA, ptr['ws'], 8 * W2P_CT, WS_W2P)
    k.e(f"""
    s_cmp_ge_u32 s{sRv}, 360
    s_cbranch_scc1 {lrp}
    v_lshlrev_b32 v{rp[0]}, 4, v{vl}
    s_add_u32 s3, s{sRp}, 4096
    """)
    for mI in range(6):
        k.e(f"buffer_store_dwordx4 {vr(rpd[mI],4)}, v{rp[0]}, s[{srdA}:{srdA+3}], {'s%d' % sRp if mI < 4 else 's3'} offen offset:{(mI % 4) * 1024} sc1")
    k.place(lrp)

    def w2_steps(lst):
        for s in lst:
            u = (s % 10) // 2
            k.e(f"s_add_u32 s{sT}, s{sKW}, {(s // 10) * 320 * 1280}")
            for mI in range(5):
                k.e(f"s_add_u32 m0, s{sLWd}, {L_W2 + s * 5120 + mI * 1024}")
                k.e("s_nop 0")
                if not g3.DBG['nodma']:
                    k.e(f"buffer_load_dwordx4 v{pat[u][mI]}, s[{srdW}:{srdW+3}], s{sT} offen lds")
    order = [0, 10, 2, 12, 4, 14, 6, 16, 8, 18]
    w2_steps(order[:OPT['w2a']])
    lsv = k.label("svp")
    k.e(f"s_cmp_eq_u32 s{sSvc}, 0")
    k.e(f"s_cbranch_scc1 {lsv}")
    k.e(f"v_lshlrev_b32 v{vfa}, 2, v{vl}")
    k.e(f"v_or_b32 v{vfa}, {128 if OPT['diag'] else 0}, v{vfa}")
    poll(srdD, F0V, tag="f0ok", drain1=False)
    k.place(lsv)
    w1warm('w2a')
    k.stamp_l("w2iss")
    k.e("s_barrier")
    k.e("s_barrier")
    lkv, lfd = k.label("f1kv"), k.label("f1d")
    k.e(f"s_cmp_eq_u32 s{sTy}, 0")
    k.e(f"s_cbranch_scc1 {lkv}")
    set_flag(sP, FL_Q)
    k.e(f"s_branch {lfd}")
    k.place(lkv)
    k.e(f"""
    s_cmp_eq_u32 s{sLW}, 1
    s_cbranch_scc0 {lfd}
    s_mul_i32 s3, s{sC}, {FS}
    v_mov_b32 v{vfa}, {FL_C}
    v_mov_b32 v{vf}, 1
    s_mov_b64 exec, 1
    buffer_atomic_add v{vf}, v{vfa}, s[{srdF}:{srdF+3}], s3 offen sc0 sc1
    s_waitcnt vmcnt(0)
    v_readfirstlane_b32 s{sSpin}, v{vf}
    s_mov_b64 exec, -1
    s_cmp_eq_u32 s{sSpin}, 15
    s_cbranch_scc0 {lfd}
    v_mul_u32_u24 v{vfa}, {FS}, v{vl}
    v_add_u32 v{vfa}, {FL_G}, v{vfa}
    s_lshl_b32 s3, s{sC}, 2
    s_mov_b64 exec, {hex((1 << NREP) - 1)}
    buffer_store_dword v{vone}, v{vfa}, s[{srdF}:{srdF+3}], s3 offen sc1
    s_mov_b64 exec, -1
    """)
    k.place(lfd)
    k.stamp_l("f1set")
    if OPT['w2early']:
        w2_steps(order[OPT['w2a']:])
    k.e(f"""
    s_lshr_b32 s3, s{sRB2}, 1
    s_mul_i32 s3, s3, {FS}
    v_and_b32 v{q0}, 7, v{vl}
    v_lshlrev_b32 v{q0}, 2, v{q0}
    v_and_b32 v{vfa}, 12, v{q0}
    v_add_u32 v{vfa}, s3, v{vfa}
    """)
    poll(srdF, 1, tag="f1q", drain1=False)
    if OPT['pqtouch']:
        lpt = k.label("pqt")
        set_srd(k, srdA, ptr['ws'], S_ * 1536, WS_PQ)
        k.e(f"""
        s_cmp_eq_u32 s{sLW}, 1
        s_cbranch_scc1 {lpt}
        s_lshl_b32 s3, s{sRB2}, 2
        s_lshr_b32 s{sSpin}, s{sJ}, 3
        s_add_u32 s3, s3, s{sSpin}
        s_mul_i32 s3, s3, {32 * 768}
        v_lshlrev_b32 v{vfa}, 7, v{vl}
        buffer_load_dword v{k.vdummy}, v{vfa}, s[{srdA}:{srdA+3}], s3 offen sc1
        s_add_u32 s3, s3, 8192
        buffer_load_dword v{k.vdummy}, v{vfa}, s[{srdA}:{srdA+3}], s3 offen sc1
        s_add_u32 s3, s3, 8192
        buffer_load_dword v{k.vdummy}, v{vfa}, s[{srdA}:{srdA+3}], s3 offen sc1
        """)
        k.place(lpt)
    k.e(f"""
    s_and_b32 s3, s2, {NREP - 1}
    s_mul_i32 s3, s3, {FS}
    s_add_u32 s3, s3, {FL_G}
    v_add_u32 v{vfa}, s3, v{q0}
    """)
    k.e(f"s_cmp_eq_u32 s{sLW}, 1")
    lq1 = k.label("q1")
    k.e(f"s_cbranch_scc1 {lq1}")
    k.e(f"buffer_load_dword v{vf}, v{vfa}, s[{srdF}:{srdF+3}], 0 offen sc1")
    k.place(lq1)
    k.e("s_barrier")
    poll(srdF, 1, tag="f1k", drain1=False, first_issued=True)
    k.e("s_barrier")
    k.e(f"""
    s_lshr_b32 s{sP}, s{sRB2}, 1
    s_mul_i32 s{sP}, s{sP}, {FS}
    s_and_b32 s3, s{sRB2}, 1
    s_lshl_b32 s3, s3, 5
    s_add_u32 s{sP}, s{sP}, s3
    s_lshl_b32 s3, s{sCT2}, 2
    s_add_u32 s{sP}, s{sP}, s3
    s_barrier
    """)
    lrp = k.label("rp")
    k.e(f"""
    s_cmp_ge_u32 s{sRv}, 360
    s_cbranch_scc1 {lrp}
    s_mul_i32 s3, s{sRc}, {FS}
    v_mov_b32 v{rp[0]}, {FL_R}
    s_waitcnt vmcnt(0)
    s_mov_b64 exec, 1
    buffer_atomic_add v{vone}, v{rp[0]}, s[{srdF}:{srdF+3}], s3 offen sc1
    s_mov_b64 exec, -1
    """)
    k.place(lrp)
    if not OPT['w2early']:
        w2_steps(order[OPT['w2a']:])
    set_srd(k, srdA, ptr['ws'], S_ * D_ * 2, WS_H, bias=True)
    k.e(f"""
    s_mul_i32 s{sRow}, s{sRB2}, {64 * 2 * D_}
    s_add_u32 s{sRow}, s{sRow}, {BIAS if OPT['lean'] else 0}
    s_add_u32 s{sRow}, s{sRow}, s{sKW}
    s_mul_i32 s3, s{sLW}, 156
    s_add_u32 s{sRow}, s{sRow}, s3
    v_mul_u32_u24 v{vfa}, {2 * D_}, v{vl}
    """)
    k.release(m)
    mS = k.mark()
    Lskip3 = k.label("ldskip3")
    sRB3, sCT3 = dec3()
    ld = Loader(k, c3, vl, sLW)
    nx = 0
    if OPT['pretouch']:
        k.e(f"buffer_load_dword v{k.vdummy}, v{vfa}, s[{srdA}:{srdA+3}], s{sRow} offen")
        nx += 1
    nx += w1warm('c')
    k.e(f"s_waitcnt vmcnt({nx})")
    k.e("s_barrier")
    k.e(f"""
    s_lshl_b32 s3, s{sCH}, 3
    s_lshr_b32 s{sSpin}, s{sJ}, 2
    s_add_u32 s3, s3, s{sSpin}
    s_mul_i32 s3, s3, {FS}
    s_add_u32 s3, s3, {FL_S}
    v_and_b32 v{vfa}, 3, v{vl}
    v_lshlrev_b32 v{vfa}, 2, v{vfa}
    v_add_u32 v{vfa}, s3, v{vfa}
    """)
    poll(srdF, 1, tag="fsok", drain1=False)
    set_srd(k, srdW, ptr['ws'], 32768, WS_CS3)
    csr = [k.v(4) for _ in range(4)]
    k.e(f"""
    s_lshl_b32 s3, s{sCH}, 12
    s_lshr_b32 s{sSpin}, s{sJ}, 2
    s_lshl_b32 s{sSpin}, s{sSpin}, 9
    s_add_u32 s3, s3, s{sSpin}
    s_lshl_b32 s{sSpin}, s{sLW}, 20
    s_add_u32 s3, s3, s{sSpin}
    v_and_b32 v{vfa}, 31, v{vl}
    v_lshlrev_b32 v{vfa}, 4, v{vfa}
    """)
    for q_ in range(4):
        k.e(f"buffer_load_dwordx4 {vr(csr[q_],4)}, v{vfa}, s[{srdW}:{srdW+3}], s3 offen sc1")
        k.e("s_add_u32 s3, s3, 8192")
    ng = w1warm('g')
    ld.patterns()
    k.e(f"s_mul_i32 s{sRow}, s{sRB3}, {128 * 2 * D_}")
    k.e(f"s_lshl_b32 s{sCol}, s{sCT3}, 8")
    ld.bases(sRow, sCol)
    set_srd(k, srdW, ptr['w1'], F_ * D_ * 2, bias=True)
    k.e("s_barrier")
    k.e(f"s_waitcnt vmcnt({ng})")
    for j in range(2):
        k.e(f"v_pk_add_f32 {vr(csr[0]+2*j,2)}, {vr(csr[0]+2*j,2)}, {vr(csr[1]+2*j,2)}")
        k.e(f"v_pk_add_f32 {vr(csr[2]+2*j,2)}, {vr(csr[2]+2*j,2)}, {vr(csr[3]+2*j,2)}")
        k.e(f"v_pk_add_f32 {vr(c3r+2*j,2)}, {vr(csr[0]+2*j,2)}, {vr(csr[2]+2*j,2)}")
    k.e("s_barrier")
    set_flag(sP, FL_2)
    k.stamp_l("f2set")
    Lidle3 = k.label("ldidle3")
    k.e(f"s_cmp_ge_u32 s{sJ}, 28")
    k.e(f"s_cbranch_scc1 {Lidle3}")
    ld.prefill_w(srdW, c3.SW)
    srdS2 = k.s(4)
    set_srd(k, srdS2, ptr['ws'], S_ * 64, WS_ST2)
    sp = [k.v(2) for _ in range(8)]
    vs2, vl2 = k.v(), k.v()
    sE5 = k.s()
    k.e(f"""
    v_and_b32 v{vl2}, 31, v{vl}
    v_lshlrev_b32 v{vl2}, 4, v{vl2}
    s_lshl_b32 s3, s{sLW}, 9
    s_add_u32 s3, s3, {P3_SCR + 1024}
    v_add_u32 v{vl2}, s3, v{vl2}
    ds_write_b128 v{vl2}, {vr(c3r,4)}
    s_lshl_b32 s3, s{sRB3}, 1
    s_add_u32 s3, s3, s{sLW}
    s_lshl_b32 s3, s3, 9
    v_lshlrev_b32 v{vl2}, 3, v{vl}
    v_add_u32 v{vs2}, s3, v{vl2}
    s_lshl_b32 s3, s{sLW}, 9
    s_add_u32 s3, s3, {P3_SCR}
    v_add_u32 v{vl2}, s3, v{vl2}
    """)

    def st2_load():
        k.e("s_mov_b32 s3, 0")
        for ct in range(8):
            k.e(f"buffer_load_dwordx2 {vr(sp[ct],2)}, v{vs2}, s[{srdS2}:{srdS2+3}], s3 offen sc1")
            k.e("s_add_u32 s3, s3, 16384")
        return 8

    def st2_fin():
        for ct in range(1, 8):
            k.e(f"v_pk_add_f32 {vr(sp[0],2)}, {vr(sp[0],2)}, {vr(sp[ct],2)}")
        k.e(f"""
        s_mov_b32 s3, {f32bits(1.0/640)}
        s_mov_b32 s{sE5}, {f32bits(1e-5)}
        v_mul_f32 v{sp[0]}, s3, v{sp[0]}
        v_mul_f32 v{sp[0]+1}, s3, v{sp[0]+1}
        v_fma_f32 v{sp[0]+1}, -v{sp[0]}, v{sp[0]}, v{sp[0]+1}
        v_max_f32 v{sp[0]+1}, 0, v{sp[0]+1}
        """)
        ln_finalize_multi(k, [sp[0]], [sp[0] + 1], sE5)
        k.e(f"ds_write_b64 v{vl2}, {vr(sp[0],2)}")
        k.e("s_waitcnt lgkmcnt(0)")
        return 0
    k.e(f"""
    s_mul_i32 s3, s{sRB3}, {FS}
    s_add_u32 s3, s3, {FL_2}
    v_and_b32 v{vfa}, 15, v{vl}
    v_lshlrev_b32 v{vfa}, 2, v{vfa}
    v_add_u32 v{vfa}, s3, v{vfa}
    """)
    def r_check():
        lp, lo = k.label("rchk"), k.label("rok")
        k.e(f"""
        s_mul_i32 s3, s{sCH}, {4 * FS}
        s_add_u32 s3, s3, {FL_R}
        v_and_b32 v{vfa}, 3, v{vl}
        v_mul_u32_u24 v{vfa}, {FS}, v{vfa}
        v_add_u32 v{vfa}, s3, v{vfa}
        s_mov_b32 s{sEx}, 0
        """)
        k.place(lp)
        k.e(f"""
        buffer_load_dword v{vf}, v{vfa}, s[{srdF}:{srdF+3}], 0 offen sc1
        s_waitcnt vmcnt(0)
        v_cmp_ne_u32 vcc, 45, v{vf}
        s_add_u32 s{sEx}, s{sEx}, 1
        s_nop 3
        s_cbranch_vccz {lo}
        s_cmp_gt_u32 s{sEx}, 0x40000
        s_cbranch_scc1 {k.end}
        s_sleep 16
        s_branch {lp}
        """)
        k.place(lo)

    poll(srdF, 1, tag="f2ok", drain1=False)
    lrc = k.label("rc")
    k.e(f"s_cmp_eq_u32 s{sLW}, 0")
    k.e(f"s_cbranch_scc1 {lrc}")
    r_check()
    k.place(lrc)
    k.e("s_barrier")

    def idle_warm():
        mm_ = k.mark()
        sCo = k.s()
        k.e(f"""
        s_lshl_b32 s{sCo}, s{sCH}, 2
        s_add_u32 s{sCo}, s{sCo}, s{sJ}
        s_sub_u32 s{sCo}, s{sCo}, 28
        s_mul_i32 s{sCo}, s{sCo}, {W2P_CT}
        s_add_u32 s{sCo}, s{sCo}, {WS_W2P}
        """)
        T = Touch(k, vl, 16, 2048)
        for it in range(17):
            T.unit(ptr['ws'], sCo, sLW, 2 * it, 135)
        k.release(mm_)

    def w1p(lst):
        def f():
            n = 0
            assert ld.issued >= 40 + 80
            for m in lst:
                for op in ld._W(m, srdW, coff=128):
                    ld.emit_op(op); n += 1
            return n
        return f
    ld.stream(srdA, srdW, aflags="sc1", tag="p3", hooks={0: st2_load, 5: st2_fin, 7: w1p([0, 1, 2]), 8: w1p([3, 4, 5]), 9: w1p([6, 7, 8])})
    w1p([9])()
    k.e(f"""
    s_mul_i32 s{sP}, s{sRB3}, {FS}
    s_lshl_b32 s3, s{sCT3}, 2
    s_add_u32 s{sP}, s{sP}, s3
    s_add_u32 s{sP}, s{sP}, {FL_3}
    s_mov_b32 s{sAct}, 1
    s_waitcnt vmcnt(20)
    s_barrier
    s_branch {Lskip3}
    """)
    k.place(Lidle3)
    k.e(f"s_mov_b32 s{sAct}, 0")
    k.release(mS)
    r_check()
    idle_warm()
    k.place(Lskip3)
    Lend, Lno3, Lno4 = k.label("ldend"), k.label("ldno3"), k.label("ldno4")
    sRB4, sCT4 = dec2()
    ld = Loader(k, c4, vl, sLW)
    ld.patterns()
    k.e(f"s_mul_i32 s{sRow}, s{sRB4}, {64 * 2 * F_}")
    k.e(f"s_mul_i32 s{sCol}, s{sCT4}, {W2P_CT}")
    ld.bases(sRow, sCol)
    set_srd(k, srdA, ptr['ws'], S_ * F_ * 2, WS_HH, bias=True)
    set_srd(k, srdW, ptr['ws'], 8 * W2P_CT, WS_W2P)
    ld.prefill_w(srdW, OPT['pf1'])
    k.e(f"""
    s_cmp_eq_u32 s{sAct}, 0
    s_cbranch_scc1 {Lno3}
    s_waitcnt vmcnt({5 * OPT['pf1']})
    s_barrier
    """)
    set_flag(sP, 0)
    k.stamp_l("f3set")
    k.place(Lno3)
    for m_ in range(OPT['pf1'], 6):
        for op in ld._W(m_, srdW):
            ld.emit_op(op)
    ld.pw = 6
    k.e(f"""
    s_cmp_eq_u32 s{sAct}, 0
    s_cbranch_scc1 {Lno4}
    s_barrier
    """)
    k.place(Lno4)
    k.e(f"""
    s_lshr_b32 s3, s{sRB4}, 1
    s_mul_i32 s3, s3, {FS}
    s_add_u32 s3, s3, {FL_3}
    v_and_b32 v{vfa}, 15, v{vl}
    v_min_u32 v{vfb}, 12, v{vfa}
    v_min_u32 v{vfa}, 13, v{vfa}
    v_lshlrev_b32 v{vfa}, 2, v{vfa}
    v_add_u32 v{vfa}, s3, v{vfa}
    v_lshlrev_b32 v{vfb}, 2, v{vfb}
    v_add_u32 v{vfb}, s3, v{vfb}
    v_add_u32 v{vfb}, 64, v{vfb}
    """)
    poll(srdF, 1, tag="f3ok", drain1=False, both=True)
    mk = {}

    def f3b_set():
        k.e(f"""
        s_and_b32 s3, s{sAct}, s{sLW}
        s_cmp_eq_u32 s3, 1
        s_cselect_b32 s3, 64, {OOB}
        v_mov_b32 v{vfa}, s3
        s_mov_b64 exec, 1
        buffer_store_dword v{vone}, v{vfa}, s[{srdF}:{srdF+3}], s{sP} offen sc1
        s_mov_b64 exec, -1
        """)
        return 1

    def f3b_issue():
        k.e(f"buffer_load_dword v{vf}, v{vfb}, s[{srdF}:{srdF+3}], 0 offen sc1")
        mk['n'] = ld.issued
        return 1

    def f3b_check():
        k.e(f"v_mov_b32 v{vfa}, v{vfb}")
        poll(srdF, 1, tag="f3bok", drain1=False, both=True, first_issued=True, younger=max(1, ld.issued - mk['n']) if ld.issued > mk['n'] else 0)
        return 0
    ld.stream(srdA, srdW, aflags="sc1", tag="p4", hooks={1: f3b_set, HB - 2: f3b_issue, HB: f3b_check})
    k.place(Lend)
    endwave()
    k.release(mL)

    k.lines.append('; @SEC svc')
    k.place(Lsvc)
    mV = k.mark()
    k.vtop = vLtop
    sS, sA, sB, sX8, sPi = (k.s() for _ in range(5))
    srdX, srdS, srdK, srdW_ = k.s(4), k.s(4), k.s(4), k.s(4)
    xr = [k.v(4) for _ in range(5)]
    ux = [k.v(2) for _ in range(20)]
    t0, t1, vs_, vq_ = k.v(), k.v(), k.v(2), k.v(2)
    z4 = k.v(4)
    k.e(f"""
    s_and_b32 s{sS}, s{sJ1}, 7
    s_and_b32 s{sX8}, s2, 7
    s_lshl_b32 s{sPi}, s{sX8}, 3
    s_add_u32 s{sPi}, s{sPi}, s{sS}
    s_lshl_b32 s{sA}, s{sPi}, 3
    s_add_u32 s{sA}, s{sA}, s{sWave}
    s_lshl_b32 s{sA}, s{sA}, 2
    v_lshrrev_b32 v{t0}, 4, v{vl}
    v_add_u32 v{t0}, s{sA}, v{t0}
    v_mul_u32_u24 v{t1}, {2*D_}, v{t0}
    v_and_b32 v{vs_}, 15, v{vl}
    v_lshl_add_u32 v{t1}, v{vs_}, 4, v{t1}
    s_waitcnt lgkmcnt(0)
    """)
    set_srd(k, srdX, ptr['x'], S_ * D_ * 2)
    for i in range(5):
        k.e(f"buffer_load_dwordx4 {vr(xr[i],4)}, v{t1}, s[{srdX}:{srdX+3}], 0 offen offset:{i*256}")
    set_srd(k, srdS, ptr['ws'], WS_FL - WS_ST1 + FL_BYTES, WS_ST1)
    set_srd(k, srdK, ptr['ws'], KV_BYTES, WS_KV)
    set_srd(k, srdW_, ptr['wqkv'], 3 * D_ * D_ * 2)
    k.e(f"""
    v_mov_b64 {vr(z4,2)}, 0
    v_mov_b64 {vr(z4+2,2)}, 0
    s_lshl_b32 s{sB}, s{sA}, 5
    v_lshlrev_b32 v{t1}, 4, v{vl}
    s_mov_b64 exec, 0xff
    buffer_store_dwordx4 {vr(z4,4)}, v{t1}, s[{srdK}:{srdK+3}], s{sB} offen sc1
    s_mov_b64 exec, 3
    s_lshr_b32 s{sB}, s{sA}, 4
    s_mul_i32 s{sB}, s{sB}, {FS}
    s_and_b32 s3, s{sWave}, 3
    s_lshl_b32 s3, s3, 5
    s_add_u32 s{sB}, s{sB}, s3
    s_add_u32 s{sB}, s{sB}, {WS_FL - WS_ST1}
    buffer_store_dwordx4 {vr(z4,4)}, v{t1}, s[{srdS}:{srdS+3}], s{sB} offen sc1
    s_mov_b64 exec, -1
    v_mov_b64 {vr(vs_,2)}, 0
    v_mov_b64 {vr(vq_,2)}, 0
    """)
    NB = 10
    wb = [k.v(4) for _ in range(NB)]
    ca = [[k.v(2) for _ in range(4)] for _ in range(2)]
    cu = k.v(2)
    vw, vw1, vlw, vlr, t2 = (k.v() for _ in range(5))
    sO, sO1 = k.s(), k.s()
    srdW1 = k.s(4)
    set_srd(k, srdW1, ptr['w1'], F_ * D_ * 2)
    k.e(f"""
    s_lshl_b32 s3, s{sS}, 1
    v_bfe_u32 v{t2}, v{vl}, 3, 1
    v_add_u32 v{t2}, s3, v{t2}
    v_min_u32 v{t2}, 14, v{t2}
    v_mul_u32_u24 v{vw}, 205, v{t2}
    v_lshrrev_b32 v{vw}, 10, v{vw}
    v_mul_u32_u24 v{vw}, 640, v{vw}
    v_lshl_add_u32 v{vw}, v{t2}, 7, v{vw}
    v_and_b32 v{t2}, 7, v{vl}
    v_lshl_add_u32 v{vw}, v{t2}, 4, v{vw}
    v_lshrrev_b32 v{t2}, 4, v{vl}
    v_mul_u32_u24 v{vw1}, {6 * D_}, v{t2}
    v_add_u32 v{vw}, v{vw}, v{vw1}
    s_mul_i32 s{sB}, s{sRQ}, 40
    s_add_u32 s{sB}, s{sB}, s{sWave}
    s_mul_i32 s{sO}, s{sB}, {4 * 6 * D_}
    s_mul_i32 s3, s{sCH}, 640
    s_add_u32 s{sO}, s{sO}, s3
    """)
    for it in range(5):
        k.e(f"buffer_load_dwordx4 {vr(wb[it],4)}, v{vw}, s[{srdW_}:{srdW_+3}], s{sO} offen")
        k.e(f"s_add_u32 s{sO}, s{sO}, {32 * 6 * D_}")
    k.e(f"""
    v_mul_u32_u24 v{vw1}, {2 * F_}, v{t2}
    v_and_b32 v{t2}, 15, v{vl}
    v_lshl_add_u32 v{vw1}, v{t2}, 4, v{vw1}
    s_mul_i32 s{sO1}, s{sB}, {4 * 2 * F_}
    s_min_u32 s3, s{sS}, 6
    s_mul_i32 s{sB}, s{sCH}, 7
    s_add_u32 s3, s3, s{sB}
    s_lshl_b32 s3, s3, 8
    s_add_u32 s{sO1}, s{sO1}, s3
    """)
    k.e(f"""
    v_lshlrev_b32 v{vlw}, 5, v{t2}
    s_lshl_b32 s3, s{sWave}, 9
    v_add_u32 v{vlw}, s3, v{vlw}
    v_lshlrev_b32 v{vlr}, 4, v{vl}
    """)
    sUv, sCo = k.s(), k.s()
    k.e(f"""
    s_lshl_b32 s{sUv}, s{sWave}, 3
    s_add_u32 s{sUv}, s{sUv}, s{sS}
    s_mul_i32 s{sCo}, s{sCH}, 640
    """)
    TWs = Touch(k, vl, 15, 6 * D_, seg5=True)
    u0 = 24 * OPT['hW']
    nX = 0
    if OPT['hX'] != 10:
        sRo2 = k.s()
        k.e(f"""
        s_xor_b32 s{sRo2}, s{sX8}, 1
        s_mul_i32 s{sRo2}, s{sRo2}, {256 * 2 * D_}
        """)
        TXs = Touch(k, vl, 16, 2048, share=TWs)
        TXs.unit(ptr['x'], sRo2, sUv, 0, 160)
        nX = 1
    nT = OPT['svT1']
    for it in range(nT):
        TWs.unit(ptr['wqkv'], sCo, sUv, u0 + 64 * it, 640)
    NB = 5 + nX + nT
    for i in range(5):
        p2_pat(i)()
    for i in range(5):
        k.e(f"s_waitcnt vmcnt({6 - i + NB})")
        for d in range(4):
            k.e(f"v_lshlrev_b32 v{ux[4*i+d]}, 16, v{xr[i]+d}")
            k.e(f"v_and_b32 v{ux[4*i+d]+1}, 0xffff0000, v{xr[i]+d}")
            k.e(f"v_pk_add_f32 {vr(vs_,2)}, {vr(vs_,2)}, {vr(ux[4*i+d],2)}")
    k.e(f"v_add_f32 v{vs_}, v{vs_}, v{vs_+1}")
    dpp_rowsum(k, vs_)
    k.e(f"s_mov_b32 s{sB}, {f32bits(1.0/640)}")
    k.e(f"v_mul_f32 v{vs_}, s{sB}, v{vs_}")
    for i in range(20):
        k.e(f"v_pk_add_f32 {vr(ux[i],2)}, {vr(ux[i],2)}, {vr(vs_,2)} op_sel_hi:[1,0] neg_lo:[0,1] neg_hi:[0,1]")
        k.e(f"v_pk_fma_f32 {vr(vq_,2)}, {vr(ux[i],2)}, {vr(ux[i],2)}, {vr(vq_,2)}")
    k.e(f"v_add_f32 v{vq_}, v{vq_}, v{vq_+1}")
    dpp_rowsum(k, vq_)
    k.e(f"v_mul_f32 v{vq_}, s{sB}, v{vq_}")
    k.e(f"s_mov_b32 s{sB}, {f32bits(1e-5)}")
    ln_finalize_multi(k, [vs_], [vq_], sB)
    k.e(f"""
    v_lshrrev_b32 v{t1}, 7, v{t0}
    v_and_b32 v{t0}, 127, v{t0}
    v_lshlrev_b32 v{t0}, 2, v{t0}
    v_lshl_add_u32 v{t0}, v{t1}, 10, v{t0}
    s_mov_b32 exec_lo, 0x00010001
    s_mov_b32 exec_hi, 0x00010001
    buffer_store_dword v{vs_}, v{t0}, s[{srdS}:{srdS+3}], 0 offen sc1
    buffer_store_dword v{vq_}, v{t0}, s[{srdS}:{srdS+3}], 0 offen offset:512 sc1
    s_mov_b64 exec, -1
    """)

    def cs_sum(younger, nowait=False):
        for a in ca[0]:
            k.e(f"v_mov_b64 {vr(a,2)}, 0")
        if nowait:
            l_ = k.label("csw")
            k.e(f"s_and_b32 s3, s{sWave}, 6")
            k.e(f"s_cmp_eq_u32 s3, 4")
            k.e(f"s_cbranch_scc1 {l_}")
            k.e("s_waitcnt vmcnt(0)")
            k.place(l_)
        for it in range(5):
            if not nowait:
                k.e(f"s_waitcnt vmcnt({4 - it + younger})")
            for d in range(4):
                k.e(f"v_lshlrev_b32 v{cu}, 16, v{wb[it] + d}")
                k.e(f"v_and_b32 v{cu+1}, 0xffff0000, v{wb[it] + d}")
                k.e(f"v_pk_add_f32 {vr(ca[0][d],2)}, {vr(ca[0][d],2)}, {vr(cu,2)}")

    def cs_pub(off_ws, lds_off):
        vals = [a + i for a in ca[0] for i in range(2)]
        allreduce4_multi(k, vals, [wb[i // 4] + i % 4 for i in range(8)])
        for h in range(4):
            k.e(f"ds_write_b64 v{vlw}, {vr(ca[0][h],2)} offset:{lds_off + 8*h}")
        k.e("s_waitcnt lgkmcnt(0)")
        k.e("s_barrier")
        lsk = k.label("csk")
        k.e(f"s_cmp_lg_u32 s{sWave}, 0")
        k.e(f"s_cbranch_scc1 {lsk}")
        for w in range(8):
            k.e(f"ds_read_b128 {vr(wb[w],4)}, v{vlr} offset:{lds_off + 512*w}")
        k.e(f"""
        s_lshl_b32 s3, s{sPi}, 9
        s_add_u32 s3, s3, {off_ws - WS_ST1}
        s_waitcnt lgkmcnt(0)
        """)
        for w in range(1, 8):
            for j in range(2):
                k.e(f"v_pk_add_f32 {vr(wb[0]+2*j,2)}, {vr(wb[0]+2*j,2)}, {vr(wb[w]+2*j,2)}")
        k.e("s_mov_b32 exec_hi, 0")
        k.e(f"buffer_store_dwordx4 {vr(wb[0],4)}, v{vlr}, s[{srdS}:{srdS+3}], s3 offen sc1")
        k.e("s_mov_b64 exec, -1")
        k.e("s_nop 1")
        k.place(lsk)
    cs_sum(nT + nX + 2)
    k.stamp_c("p1_pre")
    cs_pub(WS_CS1, 0)
    set_srd(k, srdX, ptr['dbg'], 256)
    k.e("s_waitcnt vmcnt(0)")
    k.e("s_barrier")
    lf = k.label("svf")
    k.e(f"""
    s_cmp_eq_u32 s{sWave}, 7
    s_cbranch_scc0 {lf}
    s_lshl_b32 s3, s{sPi}, {1 if OPT['diag'] else 2}
    v_mov_b32 v{t0}, s3
    v_mov_b32 v{t1}, 1
    s_mov_b64 exec, 1
    {'buffer_store_short' if OPT['diag'] else 'buffer_store_dword'} v{t1}, v{t0}, s[{srdX}:{srdX+3}], 0 offen {'offset:128' if OPT['diag'] else ''} sc1
    s_mov_b64 exec, -1
    """)
    k.place(lf)
    k.stamp_c("p1_b0")
    k.e("s_barrier")
    n2 = 0
    while u0 + 64 * (nT + n2) < 160:
        TWs.unit(ptr['wqkv'], sCo, sUv, u0 + 64 * (nT + n2), 640, skip=True); n2 += 1
    T5 = Touch(k, vl, 5, 2 * D_, share=TWs)
    if OPT['svwo']:
        T5.unit(ptr['wo'], sCo, sUv, 0, 640, skip=True)
    else:
        T5.unit(ptr['wo'], sCo, sUv, 48, 640, skip=True)
    for it in range(5):
        k.e(f"buffer_load_dwordx4 {vr(wb[it],4)}, v{vw1}, s[{srdW1}:{srdW1+3}], s{sO1} offen")
        k.e(f"s_add_u32 s{sO1}, s{sO1}, {32 * 2 * F_}")
    T14 = Touch(k, vl, 14, 2 * F_, share=TWs)
    k.e(f"s_mul_i32 s{sB}, s{sCH}, {13 * 128}")
    for it in range(OPT['svw1']):
        T14.unit(ptr['w1'], sB, sUv, 64 * it, 640)
    cs_sum(OPT['svw1'])
    cs_pub(WS_CS3, 4096)
    for it in range(OPT['svw2']):
        T5.unit(ptr['w2'], sCo, sUv, 64 * it, 1728)
    k.e("s_waitcnt vmcnt(0)")
    k.stamp_c("p1_loop")
    k.e(f"s_mov_b32 s{sSvc}, 1")
    k.e(f"s_branch {Lrole}")
    k.release(mV)

    k.lines.append('; @SEC cons')
    k.place(Lc)
    sW0, sW1 = k.s(), k.s()
    sA = k.s(2, 2)
    sB = sA + 1
    sEps = k.s(2, 2)
    srd0, srd1, srd2 = k.s(4), k.s(4), k.s(4)
    k.e(f"""
    s_and_b32 s{sW0}, s{sWave}, 1
    s_lshr_b32 s{sW1}, s{sWave}, 1
    s_mov_b32 s{sEps}, {f32bits(1e-6)}
    s_mov_b32 s{sEps+1}, {f32bits(1e-6)}
    """)
    mC = k.mark()
    sG, sC, sTy = dec1()
    Lq, Lp1done, Lqs, Lsj, Lsv2 = (k.label(x) for x in ("consq", "p1done", "qset", "setj", "sv2"))
    srdK = srd0
    k.e("s_waitcnt lgkmcnt(0)")
    set_srd(k, srdK, ptr['ws'], KV_BYTES, WS_KV)
    k.e(f"s_cmp_eq_u32 s{sTy}, 2")
    k.e(f"s_cbranch_scc1 {Lsv2}")
    mP1 = k.mark()
    ar = [k.v() for _ in range(11)]
    va = {(vi, ki): ar[2 * vi + ki] for vi in range(2) for ki in range(2)}
    vz, vrd, vat = ar[4:6], ar[6], ar[7:11]
    ad, vso = [[ar[2 * hh], ar[2 * hh + 1]] for hh in range(4)], ar[8]
    m1 = k.mark()
    sB2 = k.s()
    vd, ve = [k.v(), k.v()], [k.v(), k.v()]
    voob, t1 = k.v(), k.v()
    sM = k.s(2)
    k.e(f"s_cmp_eq_u32 s{sTy}, 1")
    k.e(f"s_cbranch_scc1 {Lqs}")
    k.e(f"""
    s_movk_i32 s{sB2}, 504
    s_lshl_b32 s{sA}, s{sWave}, 2
    v_and_b32 v{t1}, 15, v{vl}
    v_subrev_u32 v{vd[0]}, s{sA}, v{t1}
    v_add_u32 v{vd[1]}, 16, v{vd[0]}
    v_lshrrev_b32 v{t1}, 4, v{vl}
    v_lshlrev_b32 v{t1}, 2, v{t1}
    v_subrev_u32 v{ve[0]}, s{sA}, v{t1}
    v_add_u32 v{ve[1]}, 16, v{ve[0]}
    v_mov_b32 v{voob}, 2048
    """)
    for vi in range(2):
        for ki in range(2):
            k.e(f"""
            v_mul_u32_u24 v{t1}, 24, v{ve[vi]}
            v_add_lshl_u32 v{t1}, v{t1}, v{vd[ki]}, 2
            v_cmp_gt_u32 vcc, 20, v{ve[vi]}
            v_cmp_gt_u32 s[{sM}:{sM+1}], 20, v{vd[ki]}
            s_nop 1
            s_and_b64 vcc, vcc, s[{sM}:{sM+1}]
            s_nop 1
            v_cndmask_b32 v{va[(vi,ki)]}, v{voob}, v{t1}, vcc
            """)
    for ki in range(2):
        k.e(f"""
        v_lshlrev_b32 v{t1}, 2, v{vd[ki]}
        v_add_u32 v{t1}, {20*96}, v{t1}
        v_cmp_gt_u32 vcc, 16, v{vl}
        v_cmp_gt_u32 s[{sM}:{sM+1}], 20, v{vd[ki]}
        s_nop 1
        s_and_b64 vcc, vcc, s[{sM}:{sM+1}]
        s_nop 1
        v_cndmask_b32 v{vz[ki]}, v{voob}, v{t1}, vcc
        """)
    assert P1_AT + 4 * 2560 <= LDS_TOTAL
    k.e(f"s_mul_i32 s{sA}, s{sWave}, 2560")
    k.e(f"s_add_u32 s{sA}, s{sA}, {P1_AT}")
    for x in list(va.values()) + vz:
        k.e(f"v_add_u32 v{x}, s{sA}, v{x}")
    k.e(f"v_lshl_add_u32 v{vrd}, v{vl}, 2, s{sA}")
    k.e(f"v_mov_b32 v{voob}, {OOB}")
    for n, base in enumerate((0, 64, 128, 448)):
        k.e(f"""
        v_add_u32 v{t1}, {base}, v{vl}
        v_mul_u32_u24 v{vd[0]}, 2731, v{t1}
        v_lshrrev_b32 v{vd[0]}, 16, v{vd[0]}
        v_mul_u32_u24 v{vd[0]}, 24, v{vd[0]}
        v_sub_u32 v{vd[0]}, v{t1}, v{vd[0]}
        v_cmp_gt_u32 vcc, 20, v{vd[0]}
        v_cmp_gt_u32 s[{sM}:{sM+1}], s{sB2}, v{t1}
        v_lshlrev_b32 v{t1}, 2, v{t1}
        s_nop 0
        s_and_b64 vcc, vcc, s[{sM}:{sM+1}]
        s_nop 1
        v_cndmask_b32 v{vat[n]}, v{voob}, v{t1}, vcc
        """)
    k.e(f"s_branch {Lsj}")
    k.place(Lqs)

    vb, vc, t0 = vd[0], vd[1], ve[0]
    k.e(f"""
    s_mul_i32 s{sA}, s{sWave}, 10240
    v_lshlrev_b32 v{vso}, 4, v{vl}
    v_mov_b32 v{ar[9]}, {OOB}
    v_mov_b32 v{ar[10]}, {OOB}
    v_and_b32 v{vb}, 3, v{vl}
    v_lshlrev_b32 v{vb}, 8, v{vb}
    v_add_u32 v{vb}, s{sA}, v{vb}
    v_lshrrev_b32 v{t0}, 4, v{vl}
    v_min_u32 v{t0}, 2, v{t0}
    v_bfe_u32 v{vc}, v{vl}, 2, 2
    v_lshl_add_u32 v{vc}, v{t0}, 3, v{vc}
    v_cmp_gt_u32 vcc, 2, v{t0}
    s_nop 1
    v_cndmask_b32 v{t1}, 0, 4, vcc
    """)
    for hh in range(4):
        for hf in range(2):
            a = ad[hh][hf]
            k.e(f"v_add_u32 v{t0}, {20*hh}, v{vc}")
            if hf:
                k.e(f"v_add_u32 v{t0}, v{t0}, v{t1}")
            k.e(f"""
            v_lshrrev_b32 v{a}, 4, v{t0}
            v_lshl_add_u32 v{a}, v{a}, 10, v{vb}
            v_and_b32 v{t0}, 15, v{t0}
            v_lshl_add_u32 v{a}, v{t0}, 4, v{a}
            """)
    k.place(Lsj)
    k.release(m1)
    vc0, vc2, vst, vx0, vx2, vxr = (k.v() for _ in range(6))
    ones = k.v(4)
    k.e(f"""
    v_and_b32 v{vc0}, 15, v{vl}
    v_lshlrev_b32 v{vc0}, 2, v{vc0}
    s_mul_i32 s{sA}, s{sW0}, 320
    s_add_u32 s{sA}, s{sA}, {P1_ST + 1024}
    v_add_u32 v{vc2}, s{sA}, v{vc0}
    s_mul_i32 s{sA}, s{sW0}, 192
    s_add_u32 s{sA}, s{sA}, {P1_ST + 1024}
    v_add_u32 v{vc0}, s{sA}, v{vc0}
    v_lshrrev_b32 v{vst}, 4, v{vl}
    v_lshlrev_b32 v{vst}, 4, v{vst}
    s_lshl_b32 s{sA}, s{sW1}, 8
    s_add_u32 s{sA}, s{sA}, {P1_ST}
    v_add_u32 v{vst}, s{sA}, v{vst}
    v_lshlrev_b32 v{vxr}, 4, v{vl}
    s_mul_i32 s{sA}, s{sW1}, 20480
    s_mul_i32 s{sB}, s{sW0}, 3072
    s_add_u32 s{sB}, s{sB}, s{sA}
    v_add_u32 v{vx0}, s{sB}, v{vxr}
    s_mul_i32 s{sB}, s{sW0}, 5120
    s_add_u32 s{sB}, s{sB}, s{sA}
    v_add_u32 v{vx2}, s{sB}, v{vxr}
    s_lshl_b32 s{sA}, s{sWave}, 10
    v_add_u32 v{vxr}, s{sA}, v{vxr}
    """)
    for j in range(4):
        k.e(f"v_mov_b32 v{ones+j}, 0x3f803f80")
    o = consumer_setup(k, ckv, sW1, sW0, vl)
    k.e(f"s_mov_b32 s{sA}, {f32bits(LOG2E)}")
    k.e(f"s_mov_b32 s{sB}, {f32bits(LOG2E)}")
    consumer_loop(k, o, None, tag="p1")
    tp = k.v(2)
    cs = [k.v(2) for _ in range(5)]
    stm = [k.v(4) for _ in range(4)]
    str_ = [k.v(4) for _ in range(4)]
    r2 = [k.v(4) for _ in range(4)]
    fr = [k.v(4), k.v(4)]
    Dz = [k.v(4), k.v(4)]
    k.e("s_barrier")
    k.stamp_c("p1_e1")
    co = [0, 64, 128, 320, 384]
    for nt in range(5):
        k.e(f"ds_read_b32 v{cs[nt]}, v{vc2 if nt == 2 else vc0} offset:{co[nt]}")
    for mt in range(4):
        k.e(f"ds_read_b128 {vr(stm[mt],4)}, v{vst} offset:{mt*64}")
    for mt in range(4):
        k.e(f"ds_read_b128 {vr(str_[mt],4)}, v{vst} offset:{512 + mt*64}")
    for mt in range(4):
        k.e(f"s_waitcnt lgkmcnt({7 - mt})")
        for nt in range(5):
            a = o.acc[mt][nt]
            for j in range(2):
                k.e(f"v_pk_fma_f32 {vr(a+2*j,2)}, {vr(stm[mt]+2*j,2)}, {vr(cs[nt],2)}, {vr(a+2*j,2)} op_sel_hi:[1,0,1] neg_lo:[1,0,0] neg_hi:[1,0,0]")
    k.e("s_waitcnt lgkmcnt(0)")
    assert sB == sA + 1 and sA % 2 == 0
    for mt in range(4):
        for j in range(2):
            k.e(f"v_pk_mul_f32 {vr(r2[mt]+2*j,2)}, {vr(str_[mt]+2*j,2)}, s[{sA}:{sA+1}]")
    xo = [0, 1, 2, 5, 6]

    def fin_tile(nt, is_k):
        for tg in range(2):
            for mt in (2 * tg, 2 * tg + 1):
                for j in range(2):
                    a = o.acc[mt][nt] + 2 * j
                    if is_k:
                        phi_pair(k, a, str_[mt] + 2 * j, r2[mt] + 2 * j, sEps, tp)
                    else:
                        k.e(f"v_pk_mul_f32 {vr(a,2)}, {vr(a,2)}, {vr(str_[mt]+2*j,2)}")
            f = fr[tg]
            for i, mt in enumerate((2 * tg, 2 * tg + 1)):
                a = o.acc[mt][nt]
                k.e(f"v_cvt_pk_bf16_f32 v{f + 2*i}, v{a}, v{a+1}")
                k.e(f"v_cvt_pk_bf16_f32 v{f + 2*i + 1}, v{a+2}, v{a+3}")
            k.e(f"ds_write_b128 v{vx2 if nt == 2 else vx0}, {vr(f,4)} offset:{tg*10240 + xo[nt]*1024}")
    for nt in (0, 1):
        fin_tile(nt, True)
    Lv, Lj, Lk2 = k.label("vpath"), k.label("vjoin"), k.label("k2")
    k.e(f"s_cmp_eq_u32 s{sTy}, 1")
    k.e(f"s_cbranch_scc1 {Lq}")
    for nt in (3, 4):
        fin_tile(nt, False)
    k.e(f"s_cmp_eq_u32 s{sW0}, 1")
    k.e(f"s_cbranch_scc1 {Lv}")
    fin_tile(2, True)
    k.e(f"s_branch {Lj}")
    k.place(Lv)
    fin_tile(2, False)
    k.place(Lj)
    k.e(f"""
    s_lshl_b32 s{sA}, s{sC}, 2
    s_add_u32 s{sA}, s{sA}, s{sWave}
    s_lshl_b32 s{sA}, s{sA}, 11
    s_waitcnt lgkmcnt(0)
    s_barrier
    """)
    k.stamp_c("p1_e2")
    accs = [o.acc[mt][nt] for mt in range(4) for nt in range(5)]
    F = {}
    idx = 0
    for tg in range(4):
        for nm, off in (("k0", 0), ("k1", 1), ("v0", 5), ("v1", 6)):
            F[(tg, nm)] = accs[idx]; idx += 1
            if idx == 16:
                k.e("s_waitcnt lgkmcnt(11)")
            k.e(f"ds_read_b128 {vr(F[(tg, nm)],4)}, v{vxr} offset:{tg*10240 + off*1024}")
    Dk = {(vi, ki): accs[16 + 2 * vi + ki] for vi in range(2) for ki in range(2)}
    for tg in range(4):
        k.e(f"s_waitcnt lgkmcnt({12 - 4*tg})")
        for vi in range(2):
            for ki in range(2):
                d = Dk[(vi, ki)]
                k.e(f"v_mfma_f32_16x16x32_bf16 {vr(d,4)}, {vr(F[(tg, f'v{vi}')],4)}, {vr(F[(tg, f'k{ki}')],4)}, " + ("0" if tg == 0 else vr(d, 4)))
        for ki in range(2):
            d = Dz[ki]
            k.e(f"v_mfma_f32_16x16x32_bf16 {vr(d,4)}, {vr(ones,4)}, {vr(F[(tg, f'k{ki}')],4)}, " + ("0" if tg == 0 else vr(d, 4)))
    k.e("s_nop 3")
    for vi in range(2):
        for ki in range(2):
            for j in range(4):
                k.e(f"ds_write_b32 v{va[(vi,ki)]}, v{Dk[(vi,ki)]+j} offset:{j*96}")
            if (vi, ki) == (1, 0):
                k.e("s_waitcnt lgkmcnt(6)")
    for ki in range(2):
        k.e(f"ds_write_b32 v{vz[ki]}, v{Dz[ki]}")
    k.e("s_waitcnt lgkmcnt(0)")
    for n in range(8):
        k.e(f"ds_read_b32 v{accs[n // 4] + n % 4}, v{vrd} offset:{n*256}")
    for n in range(8):
        k.e(f"s_waitcnt lgkmcnt({7 - n})")
        k.e(f"buffer_atomic_add_f32 v{accs[n // 4] + n % 4}, v{vat[n % 3] if n < 7 else vat[3]}, s[{srdK}:{srdK+3}], s{sA} offen offset:{(n // 3) * 768 if n < 7 else 0}")
    k.e(f"s_branch {Lp1done}")
    k.place(Lq)
    for nt in (2, 3, 4):
        fin_tile(nt, True)
    srdP = srd1
    set_srd(k, srdP, ptr['ws'], S_ * 1536, WS_PQ)
    k.e(f"""
    s_lshl_b32 s{sA}, s{sG}, 2
    s_add_u32 s{sA}, s{sA}, s{sWave}
    s_lshl_b32 s{sA}, s{sA}, 3
    s_add_u32 s{sA}, s{sA}, s{sC}
    s_mul_i32 s{sA}, s{sA}, {8 * 768}
    s_waitcnt lgkmcnt(0)
    s_barrier
    """)
    k.stamp_c("p1_e2")
    for grp in range(4):
        mt, sg = grp // 2, grp % 2
        for hh in range(4):
            for hf in range(2):
                k.e(f"ds_read_b64_tr_b16 {vr(accs[4*grp+hh] + 2*hf, 2)}, v{ad[hh][hf]} offset:{8*mt + 5120*sg}")
        if grp % 2 == 1 or grp == 0:
            pass
        if grp >= 1:
            k.e("s_waitcnt lgkmcnt(8)")
    k.e("s_waitcnt lgkmcnt(0)")
    k.e("s_mov_b32 exec_hi, 0xffff")
    for grp in range(4):
        mt, sg = grp // 2, grp % 2
        k.e(f"s_add_u32 s{sB}, s{sA}, {mt * 32 * 768 + sg * 4 * 768}")
        for hh in range(4):
            k.e(f"buffer_store_dwordx4 {vr(accs[4*grp+hh],4)}, v{vso}, s[{srdP}:{srdP+3}], s{sB} offen offset:{hh*768} sc1")
    k.e("s_mov_b64 exec, -1")
    k.e(f"s_branch {Lp1done}")
    k.release(mP1)
    k.place(Lsv2)
    k.e("s_barrier")
    k.e("s_barrier")
    k.e(f"s_branch {Lp1done}")
    k.lines.append('; @SEC cons2')
    k.place(Lp1done)
    k.stamp_c("p1_st")
    k.release(mC)
    sRB, sCT = dec2()
    PQ = [k.v(64, 4), k.v(64, 4)]
    big = k.v(80, 4)
    xr = [k.v(4), k.v(4), k.v(2)]
    cE = k.v(4)
    vO, vO2, vrow, vPq, vKa, vKb, vW, vW2, vXw, vXr, t0, t1, t2 = (k.v() for _ in range(13))
    sM = k.s(2)
    k.e(f"""
    s_lshl_b32 s{sA}, s{sRB}, 6
    s_lshl_b32 s{sB}, s{sW0}, 5
    s_add_u32 s{sA}, s{sA}, s{sB}
    s_lshl_b32 s{sB}, s{sW1}, 4
    s_add_u32 s{sA}, s{sA}, s{sB}
    v_and_b32 v{t2}, 15, v{vl}
    v_add_u32 v{vrow}, s{sA}, v{t2}
    v_mul_u32_u24 v{vO}, {2*D_}, v{vrow}
    s_mul_i32 s{sA}, s{sCT}, 160
    v_add_u32 v{vO}, s{sA}, v{vO}
    v_lshrrev_b32 v{t1}, 4, v{vl}
    v_lshl_add_u32 v{vO2}, v{t1}, 3, v{vO}
    v_bfe_u32 v{t0}, v{vl}, 4, 1
    v_lshl_add_u32 v{vO}, v{t0}, 5, v{vO}
    v_lshrrev_b32 v{t0}, 5, v{vl}
    v_lshl_add_u32 v{vO}, v{t0}, 4, v{vO}
    v_cmp_eq_u32 vcc, 3, v{t1}
    v_lshrrev_b32 v{t0}, 2, v{t2}
    v_add_u32 v{vKa}, v{t0}, v{t2}
    v_cndmask_b32 v{vPq}, v{t1}, 1, vcc
    v_lshlrev_b32 v{vPq}, 8, v{vPq}
    v_lshl_add_u32 v{vPq}, v{t2}, 4, v{vPq}
    v_mul_u32_u24 v{vKb}, 5, v{t0}
    v_add_u32 v{vKb}, 4, v{vKb}
    v_and_b32 v{t0}, 3, v{t2}
    v_cmp_eq_u32 s[{sM}:{sM+1}], 0, v{t0}
    v_mov_b32 v{t0}, 20
    s_nop 0
    v_cndmask_b32 v{vKb}, v{t0}, v{vKb}, s[{sM}:{sM+1}]
    v_mul_u32_u24 v{vKa}, 48, v{vKa}
    v_mul_u32_u24 v{vKb}, 48, v{vKb}
    v_lshl_add_u32 v{vKa}, v{t1}, 4, v{vKa}
    v_lshl_add_u32 v{vKb}, v{t1}, 4, v{vKb}
    v_mov_b32 v{t0}, 1008
    v_cndmask_b32 v{vKa}, v{vKa}, v{t0}, vcc
    v_cndmask_b32 v{vKb}, v{vKb}, v{t0}, vcc
    s_lshl_b32 s{sA}, s{sW1}, 14
    s_add_u32 s{sA}, s{sA}, {L_KV}
    v_add_u32 v{vKa}, s{sA}, v{vKa}
    v_add_u32 v{vKb}, s{sA}, v{vKb}
    v_bfe_u32 v{t0}, v{vl}, 2, 3
    v_lshrrev_b32 v{t1}, 5, v{vl}
    v_mul_u32_u24 v{t1}, 2560, v{t1}
    v_mul_u32_u24 v{t0}, 160, v{t0}
    v_add_u32 v{vW}, v{t1}, v{t0}
    v_and_b32 v{t0}, 3, v{vl}
    v_lshl_add_u32 v{vW}, v{t0}, 3, v{vW}
    s_mul_i32 s{sA}, s{sW1}, 51200
    s_add_u32 s{sA}, s{sA}, {L_W2}
    v_add_u32 v{vW}, s{sA}, v{vW}
    s_mul_i32 s{sA}, s{sWave}, 5120
    s_add_u32 s{sA}, s{sA}, {L_X2}
    v_lshlrev_b32 v{t0}, 4, v{vl}
    v_add_u32 v{vXw}, s{sA}, v{t0}
    s_xor_b32 s{sA}, s{sWave}, 2
    s_mul_i32 s{sA}, s{sA}, 5120
    s_add_u32 s{sA}, s{sA}, {L_X2}
    v_add_u32 v{vXr}, s{sA}, v{t0}
    v_lshlrev_b32 v{vW2}, 4, v0
    v_lshlrev_b32 v{t2}, 3, v0
    s_lshl_b32 s{sA}, s{sJ}, 11
    v_add_u32 v{t2}, s{sA}, v{t2}
    v_and_b32 v{t2}, 0x7fff, v{t2}
    v_mov_b32 v{cE}, 0
    v_mov_b32 v{cE+1}, s{sEps}
    v_mov_b64 {vr(cE+2,2)}, 0
    """)
    srdX, srdP = srd2, srd1
    set_srd(k, srdX, ptr['x'], S_ * D_ * 2)
    set_srd(k, srdP, ptr['ws'], S_ * 1536, WS_PQ)
    k.e(f"buffer_load_dwordx4 {vr(xr[0],4)}, v{vO}, s[{srdX}:{srdX+3}], 0 offen")
    k.e(f"buffer_load_dwordx4 {vr(xr[1],4)}, v{vO}, s[{srdX}:{srdX+3}], 0 offen offset:64")
    k.e(f"buffer_load_dwordx2 {vr(xr[2],2)}, v{vO2}, s[{srdX}:{srdX+3}], 0 offen offset:128")
    k.e(f"""
    s_lshl_b32 s{sA}, s{sRB}, 2
    s_lshl_b32 s{sB}, s{sW0}, 1
    s_add_u32 s{sA}, s{sA}, s{sB}
    s_add_u32 s{sA}, s{sA}, s{sW1}
    s_xor_b32 s{sB}, s{sA}, 1
    s_lshl_b32 s{sA}, s{sA}, 1
    s_add_u32 s{sA}, s{sA}, s{sW1}
    s_mul_i32 s{sA}, s{sA}, {16 * 768}
    s_lshl_b32 s{sB}, s{sB}, 1
    s_add_u32 s{sB}, s{sB}, s{sW1}
    s_mul_i32 s{sB}, s{sB}, {16 * 768}
    s_waitcnt vmcnt(3)
    s_barrier
    """)
    k.stamp_c("p1_e3")
    sKo = k.s()
    pql = []
    for h in range(16):
        pre = []
        if h % 5 == 0 and h:
            pre = [f"s_add_u32 s{sA}, s{sA}, {5 * 768}", f"s_add_u32 s{sB}, s{sB}, {5 * 768}"]
        for i, sx in enumerate((sA, sB)):
            pql.append(pre + [f"buffer_load_dwordx4 {vr(PQ[i] + 4*h, 4)}, v{vPq}, s[{srdP}:{srdP+3}], s{sx} offen offset:{(h % 5) * 768} sc1"])
            pre = []
    k.e("s_barrier")
    k.stamp_c("p2_q")
    lead = OPT['pqq']
    for x in pql[:lead]:
        k.emit_list(x)
    k.e("s_barrier")
    k.stamp_c("p2_k")
    k.e(f"s_lshl_b32 s{sKo}, s{sJ}, 12")
    for i in range(16):
        k.e(f"s_and_b32 s{sKo}, s{sKo}, 0xffff")
        k.e(f"buffer_load_dwordx4 {vr(big + 4*i, 4)}, v{vW2}, s[{srdK}:{srdK+3}], s{sKo} offen sc1")
        k.e(f"s_add_u32 s{sKo}, s{sKo}, 4096")
    npq = 0
    for i in range(16):
        r = big + 4 * i
        k.e(f"s_waitcnt vmcnt({15 - i + npq})")
        k.e(f"v_cvt_pk_bf16_f32 v{r}, v{r}, v{r+1}")
        k.e(f"v_cvt_pk_bf16_f32 v{r+1}, v{r+2}, v{r+3}")
        k.e(f"ds_write_b64 v{t2}, {vr(r,2)}")
        k.e(f"v_add_u32 v{t2}, 2048, v{t2}")
        k.e(f"v_and_b32 v{t2}, 0x7fff, v{t2}")
        if i == 7:
            k.e("s_waitcnt lgkmcnt(4)")
        if i >= 8 and lead < 32:
            k.emit_list(pql[lead]); lead += 1; npq += 1
    k.e("s_waitcnt lgkmcnt(0)")
    k.e("s_barrier")
    k.stamp_c("p2_c")
    for x in pql[lead:]:
        k.emit_list(x)
    fka = [[big + 0, big + 4], [big + 8, big + 12]]
    fkb = [[big + 16, big + 20], [big + 24, big + 28]]
    Da = [[big + 32, big + 36], [big + 40, big + 44]]
    Db = [[big + 48, big + 52], [big + 56, big + 60]]

    def rd(p_):
        b = p_ % 2
        for i in range(2):
            h = 2 * p_ + i
            k.e(f"ds_read_b128 {vr(fkb[b][i],4)}, v{vKb} offset:{h*1024}")
            k.e(f"ds_read_b128 {vr(fka[b][i],4)}, v{vKa} offset:{h*1024}")

    def mm(u):
        p_, ti = u // 2, u % 2
        b = p_ % 2
        if ti == 0:
            k.e(f"s_waitcnt vmcnt({31 - (4 * p_ + 3)})")
        for i in range(2):
            h = 2 * p_ + i
            k.e(f"v_mfma_f32_16x16x32_bf16 {vr(Db[ti][i],4)}, {vr(fkb[b][i],4)}, {vr(PQ[ti] + 4*h,4)}, {vr(cE,4)}")
            k.e(f"v_mfma_f32_16x16x32_bf16 {vr(Da[ti][i],4)}, {vr(fka[b][i],4)}, {vr(PQ[ti] + 4*h,4)}, 0")

    def fin(u):
        p_, ti = u // 2, u % 2
        for i in range(2):
            k.e(f"v_rcp_f32 v{Db[ti][i]+1}, v{Db[ti][i]+1}")
        vals = []
        for i in range(2):
            a, d = Da[ti][i], Db[ti][i]
            k.e(f"v_pk_mul_f32 {vr(a,2)}, {vr(a,2)}, {vr(d,2)} op_sel:[0,1]")
            k.e(f"v_pk_mul_f32 {vr(a+2,2)}, {vr(a+2,2)}, {vr(d,2)} op_sel:[0,1]")
            k.e(f"v_mul_f32 v{d}, v{d}, v{d+1}")
            vals += [a, a + 1, a + 2, a + 3, d]
        for d in range(5):
            k.e(f"v_cvt_pk_bf16_f32 v{PQ[ti] + 5*p_ + d}, v{vals[2*d]}, v{vals[2*d+1]}")
    rd(0)
    rd(1)
    k.e("s_waitcnt lgkmcnt(4)")
    mm(0)
    for u in range(16):
        if u + 1 < 16:
            if (u + 1) % 2 == 0:
                k.e(f"s_waitcnt lgkmcnt({4 if (u + 1) // 2 + 1 < 8 else 0})")
            mm(u + 1)
            if (u + 1) % 2 == 1 and (u + 1) // 2 + 2 < 8:
                rd((u + 1) // 2 + 2)
            else:
                k.e("s_nop 3")
        else:
            k.e("s_nop 3")
        fin(u)
    k.stamp_c("p2_o")
    k.e("s_barrier")
    acc = [[big + 40 + 20 * ti + 4 * i for i in range(5)] for ti in range(2)]
    fw = [[big + 4 * i for i in range(5)], [big + 20 + 4 * i for i in range(5)]]

    def wrd(s):
        return [f"ds_read_b64_tr_b16 {vr(fw[s & 1][nt] + 2*h, 2)}, v{vW} offset:{s * 5120 + h * 1280 + nt * 32}" for nt in range(5) for h in range(2)]
    k.emit_list(wrd(0))
    for s in range(10):
        r = wrd(s + 1) if s + 1 < 10 else []
        issued = 0
        for nt in range(5):
            k.e(f"s_waitcnt lgkmcnt({8 - 2*nt + issued})")
            for ti in range(2):
                k.e(f"v_mfma_f32_16x16x32_bf16 {vr(acc[ti][nt],4)}, {vr(fw[s & 1][nt],4)}, {vr(PQ[ti] + 4*s,4)}, " + ("0" if s == 0 else vr(acc[ti][nt], 4)))
                if r:
                    k.e(r[2 * nt + ti]); issued += 1
    srdH, srdS = srd1, srd2
    set_srd(k, srdH, ptr['ws'], S_ * D_ * 2, WS_H)
    set_srd(k, srdS, ptr['ws'], S_ * 64, WS_ST2)
    k.stamp_c("p2_g")
    for nt in range(5):
        k.e(f"ds_write_b128 v{vXw}, {vr(acc[1][nt],4)} offset:{nt*1024}")
    vs_, vq_, u = big + 20, big + 22, big + 24
    k.e(f"v_mov_b64 {vr(vs_,2)}, 0")
    k.e(f"v_mov_b64 {vr(vq_,2)}, 0")
    k.e("s_waitcnt lgkmcnt(0)")
    k.e("s_barrier")
    for nt in range(5):
        k.e(f"ds_read_b128 {vr(fw[0][nt],4)}, v{vXr} offset:{nt*1024}")
    pk = [big + 28, big + 32, big + 36]
    for nt in range(5):
        a = acc[0][nt]
        k.e(f"s_waitcnt lgkmcnt({4 - nt})")
        k.e(f"v_pk_add_f32 {vr(a,2)}, {vr(a,2)}, {vr(fw[0][nt],2)}")
        k.e(f"v_pk_add_f32 {vr(a+2,2)}, {vr(a+2,2)}, {vr(fw[0][nt]+2,2)}")
        d = pk[nt // 2] + 2 * (nt & 1)
        k.e(f"v_cvt_pk_bf16_f32 v{d}, v{a}, v{a+1}")
        k.e(f"v_cvt_pk_bf16_f32 v{d+1}, v{a+2}, v{a+3}")
    for pr in range(2):
        k.e(f"v_permlane16_swap_b32 v{pk[pr]}, v{pk[pr]+2}")
        k.e(f"v_permlane16_swap_b32 v{pk[pr]+1}, v{pk[pr]+3}")
    for pr in range(3):
        for d in range(4 if pr < 2 else 2):
            r, x = pk[pr] + d, xr[pr] + d
            k.e(f"""
            v_lshlrev_b32 v{u}, 16, v{r}
            v_and_b32 v{u+1}, 0xffff0000, v{r}
            v_lshlrev_b32 v{u+2}, 16, v{x}
            v_and_b32 v{u+3}, 0xffff0000, v{x}
            v_pk_add_f32 {vr(u,2)}, {vr(u,2)}, {vr(u+2,2)}
            v_cvt_pk_bf16_f32 v{r}, v{u}, v{u+1}
            """)
        if pr < 2:
            k.e(f"buffer_store_dwordx4 {vr(pk[pr],4)}, v{vO}, s[{srdH}:{srdH+3}], 0 offen offset:{pr*64} sc1")
        else:
            k.e(f"buffer_store_dwordx2 {vr(pk[pr],2)}, v{vO2}, s[{srdH}:{srdH+3}], 0 offen offset:128 sc1")
    for pr in range(3):
        for d in range(4 if pr < 2 else 2):
            r = pk[pr] + d
            k.e(f"""
            v_lshlrev_b32 v{u}, 16, v{r}
            v_and_b32 v{u+1}, 0xffff0000, v{r}
            v_pk_add_f32 {vr(vs_,2)}, {vr(vs_,2)}, {vr(u,2)}
            v_pk_fma_f32 {vr(vq_,2)}, {vr(u,2)}, {vr(u,2)}, {vr(vq_,2)}
            """)
    k.e(f"v_add_f32 v{vs_}, v{vs_}, v{vs_+1}")
    k.e(f"v_add_f32 v{vs_+1}, v{vq_}, v{vq_+1}")
    allreduce4_multi(k, [vs_, vs_ + 1], [t0, t1])
    k.e(f"""
    v_lshlrev_b32 v{vrow}, 3, v{vrow}
    s_lshl_b32 s{sA}, s{sCT}, 14
    s_mov_b64 exec, 0xffff
    buffer_store_dwordx2 {vr(vs_,2)}, v{vrow}, s[{srdS}:{srdS+3}], s{sA} offen sc1
    s_mov_b64 exec, -1
    """)
    k.stamp_c("p2_st")
    k.release(mC)
    Lp4c = k.label("p4c")
    sRB, sCT = dec3()
    c = c3
    vO, vSt, vCs, vA0, vA1, t0, t1, t2 = (k.v() for _ in range(8))
    vW = [k.v() for _ in range(4)]
    st = [k.v(2) for _ in range(2)]
    acc = [[k.v(4) for _ in range(4)] for _ in range(2)]
    fw = [[k.v(4) for _ in range(4)] for _ in range(2)]
    AR = [[k.v(4) for _ in range(2)] for _ in range(20)]
    k.e("s_waitcnt vmcnt(0)")
    k.e("s_barrier")
    k.stamp_c("p2_e")
    k.e(f"s_cmp_ge_u32 s{sJ}, 28")
    k.e(f"s_cbranch_scc1 {Lp4c}")
    srdO = srd1
    set_srd(k, srdO, ptr['ws'], S_ * F_ * 2, WS_HH)
    k.e(f"""
    v_and_b32 v{t0}, 15, v{vl}
    v_lshrrev_b32 v{t1}, 4, v{vl}
    v_lshlrev_b32 v{vSt}, 3, v{t0}
    s_lshl_b32 s{sA}, s{sWave}, 8
    s_add_u32 s{sA}, s{sA}, {P3_SCR}
    v_add_u32 v{vSt}, s{sA}, v{vSt}
    v_lshlrev_b32 v{vCs}, 4, v{t1}
    v_add_u32 v{vCs}, {P3_SCR + 1024}, v{vCs}
    v_and_b32 v{t2}, 6, v{t0}
    v_xor_b32 v{t2}, v{t2}, v{t1}
    v_lshlrev_b32 v{t2}, 4, v{t2}
    v_lshl_add_u32 v{vA0}, v{t0}, 7, v{t2}
    s_lshl_b32 s{sA}, s{sWave}, 12
    s_add_u32 s{sA}, s{sA}, {c.baseA}
    v_add_u32 v{vA0}, s{sA}, v{vA0}
    v_xor_b32 v{vA1}, 64, v{vA0}
    v_mul_u32_u24 v{vO}, {2*F_}, v{t0}
    v_bfe_u32 v{t0}, v{vl}, 4, 1
    v_lshl_add_u32 v{vO}, v{t0}, 5, v{vO}
    v_lshrrev_b32 v{t0}, 5, v{vl}
    v_lshl_add_u32 v{vO}, v{t0}, 4, v{vO}
    s_lshl_b32 s{sA}, s{sRB}, 7
    s_lshl_b32 s{sB}, s{sWave}, 5
    s_add_u32 s{sA}, s{sA}, s{sB}
    s_mul_i32 s{sA}, s{sA}, {2*F_}
    s_lshl_b32 s{sB}, s{sCT}, 8
    s_add_u32 s{sA}, s{sA}, s{sB}
    v_add_u32 v{vO}, s{sA}, v{vO}
    v_bfe_u32 v{t1}, v{vl}, 2, 3
    v_mul_u32_u24 v{t0}, {c.r16b}, v{t0}
    v_lshl_add_u32 v{t0}, v{t1}, 7, v{t0}
    v_and_b32 v{t2}, 3, v{vl}
    v_lshl_add_u32 v{t0}, v{t2}, 3, v{t0}
    v_lshrrev_b32 v{t1}, 1, v{t1}
    s_mov_b32 s{sB}, {16 * 2 * F_}
    """)
    for j in range(4):
        k.e(f"v_xor_b32 v{t2}, {j}, v{t1}")
        k.e(f"v_lshl_add_u32 v{vW[j]}, v{t2}, 5, v{t0}")
    wbase = [0]

    def rds(n):
        ps, s_, t = n // 20, (n % 20) // 2, n & 1
        out = []
        want = 40960 if s_ >= 5 else 0
        if want != wbase[0]:
            d = want - wbase[0]
            out += [f"v_add_u32 v{x}, {d & 0xffffffff}, v{x}" for x in vW]
            wbase[0] = want
        npre = len(out)
        if ps == 0:
            out += [f"ds_read_b128 {vr(AR[n][mt],4)}, v{vA1 if t else vA0} offset:{(s_ % 4) * 16384 + mt * 2048}" for mt in range(2)]
        for nt in range(4):
            for h in range(2):
                out.append(f"ds_read_b64_tr_b16 {vr(fw[n & 1][nt] + 2*h, 2)}, v{vW[nt]} offset:{s_ * 8192 - want + t * 4096 + h * 1024}")
        return out[:npre], out[npre:]

    def blk(n, nxt):
        na = 2 if n < 20 else 0
        nprev = na + 8
        pre, rd = rds(nxt) if nxt is not None else ([], [])
        k.emit_list(pre)
        issued = 0
        j = 0
        for nt in range(4):
            k.e(f"s_waitcnt lgkmcnt({nprev - (na + 2*nt + 2) + issued})")
            for mt in range(2):
                a = acc[mt][nt]
                k.e(f"v_mfma_f32_16x16x32_bf16 {vr(a,4)}, {vr(fw[n & 1][nt],4)}, {vr(AR[n % 20][mt],4)}, " + ("0" if n % 20 == 0 else vr(a, 4)))
                j += 1
                want = min(len(rd), -(-j * len(rd) * 100 // (8 * OPT['rf3'])))
                while issued < want:
                    k.e(rd[issued]); issued += 1

    def epi(ps):
        cs3 = fw[0]
        for mt in range(2):
            k.e(f"ds_read_b64 {vr(st[mt],2)}, v{vSt} offset:{mt*128}")
        k.e("s_nop 2")
        for nt in range(4):
            k.e(f"ds_read_b128 {vr(cs3[nt],4)}, v{vCs} offset:{ps*256 + nt*64}")
        k.e("s_waitcnt lgkmcnt(0)")
        Lns = k.label("p3ns")
        if ps == 1:
            k.e(f"s_cmp_eq_u32 s{sCT}, 13")
            k.e(f"s_cbranch_scc1 {Lns}")
        for mt in range(2):
            for pr in range(2):
                a0, a1 = acc[mt][2*pr], acc[mt][2*pr+1]
                for a, nt in ((a0, 2*pr), (a1, 2*pr+1)):
                    for j in range(2):
                        k.e(f"v_pk_fma_f32 {vr(a+2*j,2)}, {vr(cs3[nt]+2*j,2)}, {vr(st[mt],2)}, {vr(a+2*j,2)} op_sel_hi:[1,0,1] neg_lo:[0,1,0] neg_hi:[0,1,0]")
                    for j in range(2):
                        k.e(f"v_pk_mul_f32 {vr(a+2*j,2)}, {vr(a+2*j,2)}, {vr(st[mt],2)} op_sel:[0,1]")
                pk = fw[1][2 * mt + pr]
                k.e(f"""
                v_cvt_pk_bf16_f32 v{pk}, v{a0}, v{a0+1}
                v_cvt_pk_bf16_f32 v{pk+2}, v{a1}, v{a1+1}
                v_cvt_pk_bf16_f32 v{pk+1}, v{a0+2}, v{a0+3}
                v_cvt_pk_bf16_f32 v{pk+3}, v{a1+2}, v{a1+3}
                v_permlane16_swap_b32 v{pk}, v{pk+2}
                s_nop 0
                v_permlane16_swap_b32 v{pk+1}, v{pk+3}
                v_pk_max_i16 v{pk}, v{pk}, 0
                v_pk_max_i16 v{pk+2}, v{pk+2}, 0
                v_pk_max_i16 v{pk+1}, v{pk+1}, 0
                v_pk_max_i16 v{pk+3}, v{pk+3}, 0
                buffer_store_dwordx4 {vr(pk,4)}, v{vO}, s[{srdO}:{srdO+3}], {'s%d' % sB if mt else '0'} offen offset:{ps*128 + pr*64} sc1
                """)
        k.place(Lns)
    k.e("s_barrier")
    k.stamp_c("p3_pre")
    k.e("s_barrier")
    k.stamp_c("p3_b0")
    k.emit_list(rds(0)[1])
    for s_ in range(10):
        blk(2 * s_, 2 * s_ + 1)
        k.e("s_waitcnt lgkmcnt(0)")
        k.e("s_barrier")
        blk(2 * s_ + 1, 2 * s_ + 2 if s_ < 9 else None)
    k.stamp_c("p3_loop")
    epi(0)
    k.e("s_barrier")
    k.stamp_c("p3_st")
    fw3 = [AR[0][0], AR[0][1], AR[1][0], AR[1][1]]
    buf = {20: fw[0], 21: fw[1], 22: fw[0], 23: fw[1]}
    rot = [fw3, fw[0], fw[1]]
    for n in range(24, 40):
        buf[n] = rot[(n - 24) % 3]

    def rds1(n):
        s_, t = (n % 20) // 2, n & 1
        pre = []
        want = 40960 if s_ >= 5 else 0
        if want != wbase[0]:
            pre = [f"v_add_u32 v{x}, {(want - wbase[0]) & 0xffffffff}, v{x}" for x in vW]
            wbase[0] = want
        return pre + [f"ds_read_b64_tr_b16 {vr(buf[n][nt] + 2*h, 2)}, v{vW[nt]} offset:{s_ * 8192 - want + t * 4096 + h * 1024}" for nt in range(4) for h in range(2)]
    sched = {20: [], 21: [22], 22: [23, 24]}
    for n in range(23, 40):
        sched[n] = [n + 2] if n + 2 < 40 else []
    k.emit_list(rds1(20) + rds1(21))
    pend = [20] * 8 + [21] * 8
    for n in range(20, 40):
        if n == 20 + 2 * OPT['m1at'] + 1:
            k.e("s_waitcnt vmcnt(0)")
            k.e("s_barrier")
        if n == 38:
            k.e("s_waitcnt lgkmcnt(0)")
            k.e("s_barrier")
        rd = [(x, m_) for m_ in sched[n] for x in rds1(m_)]
        assert all((m_ % 20) // 2 <= 4 for _, m_ in rd) or n >= 20 + 2 * OPT['m1at'] + 1
        issued = 0
        j = 0
        for nt in range(4):
            idx = [i for i, x in enumerate(pend) if x == n]
            if idx:
                done = idx[min(len(idx) - 1, 2 * nt + 1 - (8 - len(idx)))] + 1 if 2 * nt + 1 - (8 - len(idx)) >= 0 else 0
                if done:
                    k.e(f"s_waitcnt lgkmcnt({min(15, len(pend) - done)})")
                    pend = pend[done:]
            for mt in range(2):
                a = acc[mt][nt]
                k.e(f"v_mfma_f32_16x16x32_bf16 {vr(a,4)}, {vr(buf[n][nt],4)}, {vr(AR[n % 20][mt],4)}, " + ("0" if n == 20 else vr(a, 4)))
                j += 1
                want = -(-j * len(rd) // 8)
                while issued < want:
                    k.e(rd[issued][0])
                    if rd[issued][0].startswith("ds_"):
                        pend.append(rd[issued][1])
                    issued += 1
    epi(1)
    k.stamp_c("p3_e")
    k.place(Lp4c)
    k.release(mC)
    Lcend = k.label("cend")
    sRB, sCT = dec2()
    c = c4
    srdH, srdO = srd1, srd2
    set_srd(k, srdH, ptr['ws'], S_ * D_ * 2, WS_H)
    set_srd(k, srdO, ptr['out'], S_ * D_ * 2)
    vO, vO2, t0, t1 = (k.v() for _ in range(4))
    hr = [[k.v(4), k.v(2)] for _ in range(2)]
    k.e(f"""
    s_lshl_b32 s{sA}, s{sRB}, 6
    s_lshl_b32 s{sB}, s{sW1}, 5
    s_add_u32 s{sA}, s{sA}, s{sB}
    v_and_b32 v{t0}, 15, v{vl}
    v_add_u32 v{t0}, s{sA}, v{t0}
    v_mul_u32_u24 v{vO}, {2*D_}, v{t0}
    s_mul_i32 s{sA}, s{sCT}, 160
    s_lshl_b32 s{sB}, s{sW0}, 6
    s_add_u32 s{sA}, s{sA}, s{sB}
    v_add_u32 v{vO}, s{sA}, v{vO}
    v_lshrrev_b32 v{t1}, 4, v{vl}
    v_lshl_add_u32 v{vO2}, v{t1}, 3, v{vO}
    v_bfe_u32 v{t0}, v{vl}, 4, 1
    v_lshl_add_u32 v{vO}, v{t0}, 5, v{vO}
    v_lshrrev_b32 v{t0}, 5, v{vl}
    v_lshl_add_u32 v{vO}, v{t0}, 4, v{vO}
    s_movk_i32 s{sB}, {16 * 2 * D_}
    """)

    def h_loads():
        for mt in range(2):
            so = f"s{sB}" if mt else "0"
            k.e(f"buffer_load_dwordx4 {vr(hr[mt][0],4)}, v{vO}, s[{srdH}:{srdH+3}], {so} offen sc1")
            k.e(f"buffer_load_dwordx2 {vr(hr[mt][1],2)}, v{vO2}, s[{srdH}:{srdH+3}], {so} offen offset:64 sc1")
    o = consumer_setup(k, c, sW1, sW0, vl)
    h_loads()
    consumer_loop(k, o, None, tag="p4")
    pk = [[k.v(4), k.v(2)] for _ in range(2)]
    u = k.v(4)
    for mt in range(2):
        for nt in range(3):
            a = o.acc[mt][nt]
            d = pk[mt][nt // 2] + 2 * (nt & 1)
            k.e(f"v_cvt_pk_bf16_f32 v{d}, v{a}, v{a+1}")
            k.e(f"v_cvt_pk_bf16_f32 v{d+1}, v{a+2}, v{a+3}")
    k.e("s_waitcnt vmcnt(0)")
    for mt in range(2):
        k.e(f"v_permlane16_swap_b32 v{pk[mt][0]}, v{pk[mt][0]+2}")
        k.e(f"v_permlane16_swap_b32 v{pk[mt][0]+1}, v{pk[mt][0]+3}")
    fl = 'sc1' if OPT['outsc1'] else ''
    Lno = k.label("p4n")
    for pr in range(2):
        if pr == 1:
            k.e(f"s_cmp_eq_u32 s{sW0}, 0")
            k.e(f"s_cbranch_scc1 {Lno}")
        for mt in range(2):
            so = f"s{sB}" if mt else "0"
            for d in range(4 if pr == 0 else 2):
                r, x = pk[mt][pr] + d, hr[mt][pr] + d
                k.e(f"""
                v_lshlrev_b32 v{u}, 16, v{r}
                v_and_b32 v{u+1}, 0xffff0000, v{r}
                v_lshlrev_b32 v{u+2}, 16, v{x}
                v_and_b32 v{u+3}, 0xffff0000, v{x}
                v_pk_add_f32 {vr(u,2)}, {vr(u,2)}, {vr(u+2,2)}
                v_cvt_pk_bf16_f32 v{r}, v{u}, v{u+1}
                """)
            if pr == 0:
                k.e(f"buffer_store_dwordx4 {vr(pk[mt][0],4)}, v{vO}, s[{srdO}:{srdO+3}], {so} offen {fl}")
            else:
                k.e(f"buffer_store_dwordx2 {vr(pk[mt][1],2)}, v{vO2}, s[{srdO}:{srdO+3}], {so} offen offset:64 {fl}")
    k.place(Lno)
    k.stamp_c("p4_st")
    if OPT['diag']:
        ld_ = k.label("dg")
        names = ["p1_pre", "p1_b0", "p1_loop", "p1_e1", "p1_e2", "p1_e3", "p2_q", "p2_k", "p2_c", "p2_g", "p2_e", "p3_b0", "p3_loop", "p3_e", "p4_b0", "p4_loop"]
        set_srd(k, srd0, ptr['dbg'], 256)
        k.e(f"s_cmp_eq_u32 s2, {OPT['diag']}")
        k.e(f"s_cbranch_scc0 {ld_}")
        k.e(f"s_cmp_eq_u32 s{sWave}, 0")
        k.e(f"s_cbranch_scc0 {ld_}")
        k.e("s_mov_b64 exec, 1")
        k.e("v_mov_b32 v1, 0")
        for i, n in enumerate(names):
            k.e(f"s_sub_u32 s3, s{68 + k.stamps['c'][n]}, s68")
            k.e("v_mov_b32 v2, s3")
            k.e(f"buffer_store_dword v2, v1, s[{srd0}:{srd0+3}], 0 offen offset:{4*i}")
        k.e("s_mov_b64 exec, -1")
        k.place(ld_)
    k.place(Lcend)
    endwave()
    k.place(k.end)
    k.place(k.name + "_last")
    k.e("s_endpgm")
    secs, cur = {"head": []}, "head"
    for ln in k.lines:
        if ln.startswith("; @SEC "):
            cur = ln.split()[-1]; secs[cur] = []
        else:
            secs[cur].append(ln)
    k.lines = [ln for n in OPT['secs'] for ln in secs[n]]
    return k


def write(k, path, header=""):
    out = header + f"; @launch grid=(256,1,1) block=(512,1,1) lds={LDS_TOTAL}\n"
    out += '.amdgcn_target "amdgcn-amd-amdhsa--gfx950"\n.text\n' + k.text() + '.section .rodata,"a"\n' + k.descriptor()
    open(path, "w").write(out)
    if k.prof3:
        json.dump(k.stamps, open(path + ".json", "w"))


def hdr():
    ref = open('sequential_preLN__linear_attn_block__dense_activation_relu__prompt.s.ref').read()
    return "".join(l + "\n" for l in ref.splitlines()[:10])


if __name__ == "__main__":
    write(gen(False), 'k7.s', hdr())
    write(gen(True), 'k7_prof.s', hdr())
    g3.DBG.update(nodma=True)
    write(gen(True), 'k7_nodma.s', hdr())
    g3.DBG.update(nodma=False, nomma=True)
    write(gen(True), 'k7_nomma.s', hdr())
```

```python
from asmlib import *

OOB = 0x7FF00000
BIAS = 4096
DBG = dict(nodma=False, nomma=False)


class Cfg:
    def __init__(self, BM, NS, lda, ldw, wl, SA, SW, baseA, baseW, WM, WN, transposed, colsum, H, nseg=1, segd=0,
                 wait_span=4, read_frac=90, mixed=False, rel=2, lean=True, H0=None, wlead=None, wraps=(), smap=None, afterA=None, afterW=None, vmwait=False, wfirst=0):
        self.__dict__.update(locals())
        self.abytes = BM * 128
        if wl == 'odd':
            self.r16b = 5120
            self.BN = 160
            self.w_r16_instr = 5 if nseg == 2 else 3
        elif wl == 'lin':
            self.r16b = 2560
            self.BN = 80
            self.w_r16_instr = 2.5
        elif wl == 'x16':
            self.r16b = 4096
            self.BN = 128
            self.w_r16_instr = 4
        else:
            self.r16b = 2048
            self.BN = 64
            self.w_r16_instr = 2
        self.wbytes = 4 * self.r16b
        self.MT = BM // 16 // WM
        self.NT = self.BN // 16 // WN
        if wl == 'lin' and WN == 2:
            self.NT = 3
        self.nA = BM // 16
        self.nW = int(2 * self.w_r16_instr)
        self.wstage = self.wbytes if wl == 'lin' else 64 * ldw
        self.smap = smap or (lambda j: j)
        self.afterA = afterA or (lambda j: -99)
        self.afterW = afterW or (lambda j: -99)
        self.endA = baseA + SA * self.abytes
        self.endW = baseW + SW * self.wbytes


class Loader:
    def __init__(self, k, c, vl, sLW):
        self.k, self.c, self.vl, self.sLW = k, c, vl, sLW
        self.issued = 0
        self.out = 0

    def patterns(self, between=None):
        k, c, vl = self.k, self.c, self.vl
        t0, t1, t2 = k.v(), k.v(), k.v()
        self.sT = sT = k.s()
        self.vA = vA = k.v()
        k.e(f"""
        v_lshrrev_b32 v{t0}, 3, v{vl}
        v_and_b32 v{t1}, 6, v{t0}
        v_and_b32 v{t2}, 7, v{vl}
        v_xor_b32 v{t1}, v{t1}, v{t2}
        v_lshlrev_b32 v{t1}, 4, v{t1}
        s_mov_b32 s{sT}, {c.lda}
        v_mad_u32_u24 v{vA}, v{t0}, s{sT}, v{t1}
        """)
        if c.lean:
            self.vAs = [vA] + [k.v() for _ in range(c.nA - 1)]
            for i in range(c.nA - 1, -1, -1):
                k.e(f"v_add_u32 v{self.vAs[i]}, {i * 8 * c.lda + BIAS - (i % 4) * 1024}, v{vA}")
            self.sT2 = k.s()
        if between:
            between()
        k.e(f"s_mov_b32 s{self.sT2 if c.lean else sT}, {c.ldw}")
        if c.lean:
            sT = self.sT2
        wins = []
        if c.wl == 'lin':
            self.vLin = k.v()
            k.e(f"v_lshlrev_b32 v{self.vLin}, 4, v{vl}")
            self.wins = []
            return
        if c.wl == 'odd':
            tot = 160 * c.nseg
            for mI in range(c.w_r16_instr):
                vW = k.v()
                k.e(f"""
                v_add_u32 v{t0}, {64*mI}, v{vl}
                v_mul_u32_u24 v{t1}, 205, v{t0}
                v_lshrrev_b32 v{t1}, 11, v{t1}
                v_mul_u32_u24 v{t2}, 10, v{t1}
                v_sub_u32 v{t2}, v{t0}, v{t2}
                v_lshlrev_b32 v{vW}, 4, v{t2}
                """)
                if c.nseg == 2:
                    k.e(f"""
                    v_lshrrev_b32 v{t2}, 4, v{t1}
                    v_mul_u32_u24 v{t2}, {c.segd}, v{t2}
                    v_add_u32 v{vW}, v{vW}, v{t2}
                    """)
                k.e(f"""
                v_and_b32 v{t2}, 3, v{t1}
                v_and_b32 v{t0}, 4, v{t1}
                v_lshl_or_b32 v{t2}, v{t0}, 1, v{t2}
                v_and_b32 v{t0}, 8, v{t1}
                v_lshrrev_b32 v{t0}, 1, v{t0}
                v_or_b32 v{t2}, v{t2}, v{t0}
                v_mad_u32_u24 v{vW}, v{t2}, s{sT}, v{vW}
                """)
                if 64 * (mI + 1) > tot:
                    k.e(f"""
                    v_cmp_gt_u32 vcc, {tot - 64*mI}, v{vl}
                    v_mov_b32 v{t0}, {OOB}
                    s_nop 0
                    v_cndmask_b32 v{vW}, v{t0}, v{vW}, vcc
                    """)
                wins.append((vW, 0, mI * 1024))
        elif c.wl == 'x16':
            pats = []
            for par in range(2):
                vW = k.v()
                k.e(f"""
                v_lshrrev_b32 v{t0}, 4, v{vl}
                v_bfe_u32 v{t1}, v{vl}, 1, 3
                v_xor_b32 v{t1}, v{t1}, v{t0}
                v_xor_b32 v{t1}, {4*par}, v{t1}
                v_and_b32 v{t2}, 1, v{vl}
                v_lshl_or_b32 v{t1}, v{t1}, 1, v{t2}
                v_lshlrev_b32 v{t1}, 4, v{t1}
                v_mad_u32_u24 v{vW}, v{t0}, s{sT}, v{t1}
                """)
                pats.append(vW)
            for mI in range(4):
                wins.append((pats[mI & 1], 8 * (mI & 1) + 4 * (mI >> 1), mI * 1024))
        else:
            vW = k.v()
            k.e(f"""
            v_bfe_u32 v{t1}, v{vl}, 1, 2
            v_lshrrev_b32 v{t0}, 4, v{vl}
            v_xor_b32 v{t1}, v{t1}, v{t0}
            v_and_b32 v{t2}, 1, v{vl}
            v_lshl_or_b32 v{t1}, v{t1}, 1, v{t2}
            v_lshlrev_b32 v{t1}, 4, v{t1}
            v_lshrrev_b32 v{t0}, 5, v{vl}
            v_bfe_u32 v{t2}, v{vl}, 3, 2
            v_lshl_or_b32 v{t0}, v{t0}, 3, v{t2}
            v_mad_u32_u24 v{vW}, v{t0}, s{sT}, v{t1}
            """)
            for mI in range(2):
                wins.append((vW, 4 * mI, mI * 1024))
        self.wins = wins
        if c.lean:
            self.vWs = []
            n = 0
            for r in range(2):
                for (vW, ro, lo) in wins:
                    x = k.v()
                    k.e(f"v_add_u32 v{x}, {(r * 16 + ro) * c.ldw + BIAS - ((r * c.r16b + lo) // 1024 % 4) * 1024}, v{vW}")
                    self.vWs.append(x)

    def bases(self, sRow, sCol):
        k, c, sLW, sT = self.k, self.c, self.sLW, self.sT
        self.sKA, self.sKW, self.sLA, self.sLWd = k.s(), k.s(), k.s(), k.s()
        k.e(f"""
        s_mul_i32 s{sT}, s{sLW}, {c.nA * 8 * c.lda}
        s_add_u32 s{self.sKA}, s{sRow}, s{sT}
        s_mul_i32 s{sT}, s{sLW}, {c.wstage // 2}
        s_add_u32 s{self.sKW}, s{sCol}, s{sT}
        s_mul_i32 s{self.sLA}, s{sLW}, {c.nA * 1024}
        s_mul_i32 s{self.sLWd}, s{sLW}, {2 * c.r16b}
        """)

    def rotate(self, sWrap):
        k, c = self.k, self.c
        self.sWrap = sWrap
        k.e(f"""
        s_sub_u32 s{self.sT}, {c.NS}, s{sWrap}
        s_lshl_b32 s{self.sT2}, s{self.sT}, 7
        s_add_u32 s{self.sKA}, s{self.sKA}, s{self.sT2}
        s_mul_i32 s{self.sT2}, s{self.sT}, {c.wstage}
        s_add_u32 s{self.sKW}, s{self.sKW}, s{self.sT2}
        """)

    def _A(self, j, srd, flags):
        c = self.c
        if c.lean:
            out = []
            for i in range(c.nA):
                pre = []
                if i == 0:
                    if j in c.wraps:
                        pre += [f"s_cmp_eq_u32 s{self.sWrap}, {j}", f"s_cselect_b32 s{self.sT}, {c.NS * 128}, 0", f"s_sub_u32 s{self.sKA}, s{self.sKA}, s{self.sT}"]
                    pre.append(f"s_add_u32 s{self.sT}, s{self.sKA}, {c.smap(j) * 128}")
                if i % 4 == 0:
                    pre.append(f"s_add_u32 m0, s{self.sLA}, {c.baseA + (j % c.SA) * c.abytes + i * 1024}")
                    pre.append("s_nop 0")
                out.append((pre + [f"buffer_load_dwordx4 v{self.vAs[i]}, s[{srd}:{srd+3}], s{self.sT} offen offset:{(i % 4) * 1024} {flags} lds"], j, max(j - c.SA + c.rel, c.afterA(j))))
            return out
        return [([f"s_add_u32 m0, s{self.sLA}, {c.baseA + (j % c.SA) * c.abytes + i * 1024}",
                  f"s_add_u32 s{self.sT}, s{self.sKA}, {i * 8 * c.lda + j * 128}",
                  f"buffer_load_dwordx4 v{self.vA}, s[{srd}:{srd+3}], s{self.sT} offen {flags} lds"], j, j - c.SA + c.rel)
                for i in range(c.nA)]

    def _W(self, m, srd, coff=0):
        c = self.c
        if c.wl == 'lin':
            out = []
            for n in range(5):
                pre = []
                if n == 0 and m in c.wraps:
                    pre += [f"s_cmp_eq_u32 s{self.sWrap}, {m}", f"s_cselect_b32 s{self.sT2}, {c.NS * c.wstage}, 0", f"s_sub_u32 s{self.sKW}, s{self.sKW}, s{self.sT2}"]
                if n % 4 == 0:
                    pre.append(f"s_add_u32 m0, s{self.sLWd}, {c.baseW + (m % c.SW) * c.wbytes + n * 1024}")
                    pre.append(f"s_add_u32 s{self.sT2}, s{self.sKW}, {c.smap(m) * c.wstage + n * 1024}")
                out.append((pre + [f"buffer_load_dwordx4 v{self.vLin}, s[{srd}:{srd+3}], s{self.sT2} offen offset:{(n % 4) * 1024} sc1 lds"], m, max(m - c.SW + c.rel, c.afterW(m))))
            return out
        if c.lean:
            out = []
            n = 0
            last = None
            for r in range(2):
                for (vW, ro, lo) in self.wins:
                    q = (r * c.r16b + lo) // 1024
                    pre = []
                    if n == 0:
                        if m in c.wraps:
                            pre += [f"s_cmp_eq_u32 s{self.sWrap}, {m}", f"s_cselect_b32 s{self.sT2}, {c.NS * 64 * c.ldw}, 0", f"s_sub_u32 s{self.sKW}, s{self.sKW}, s{self.sT2}"]
                        pre.append(f"s_add_u32 s{self.sT2}, s{self.sKW}, {m * 64 * c.ldw + coff}")
                    if q // 4 != last:
                        last = q // 4
                        pre.append(f"s_add_u32 m0, s{self.sLWd}, {c.baseW + (m % c.SW) * c.wbytes + (q // 4) * 4096}")
                        pre.append("s_nop 0")
                    out.append((pre + [f"buffer_load_dwordx4 v{self.vWs[n]}, s[{srd}:{srd+3}], s{self.sT2} offen offset:{(q % 4) * 1024} lds"], m, m - c.SW + c.rel))
                    n += 1
            return out
        return [([f"s_add_u32 m0, s{self.sLWd}, {c.baseW + (m % c.SW) * c.wbytes + r * c.r16b + lo}",
                  f"s_add_u32 s{self.sT}, s{self.sKW}, {(m * 64 + r * 16 + ro) * c.ldw}",
                  f"buffer_load_dwordx4 v{vW}, s[{srd}:{srd+3}], s{self.sT} offen lds"], m, m - c.SW + c.rel)
                for r in range(2) for (vW, ro, lo) in self.wins]

    def emit_op(self, op):
        ins = op[0][:-1] if DBG['nodma'] else op[0]
        self.k.emit_list(ins)
        self.issued += 1

    def early_a(self, srdA, flags=""):
        for op in self._A(0, srdA, flags):
            self.emit_op(op)
        self.preA = self.c.nA

    def prefill_w(self, srdW, n):
        for m in range(n):
            for op in self._W(m, srdW):
                self.emit_op(op)
        self.pw = n

    def stream(self, srdA, srdW, aflags="", hooks=None, last=None, tag="", inject=None):
        k, c = self.k, self.c
        pw = getattr(self, 'pw', 0)
        ops = []
        nextw = pw
        for j in range(c.NS):
            if pw == 0:
                ops += self._A(j, srdA, aflags) + self._W(j, srdW)
            else:
                ops += self._A(j, srdA, aflags)
                while nextw < c.NS and max(nextw - c.SW + c.rel, c.afterW(nextw)) <= j - 1 and (c.wlead is None or nextw - c.wlead <= j) and j >= c.wfirst:
                    ops += self._W(nextw, srdW); nextw += 1
        assert pw == 0 or nextw == c.NS
        pos = getattr(self, 'preA', 0)
        extras = []
        done_last = False
        for i in range(c.NS):
            end = max([n + 1 for n, op in enumerate(ops) if op[1] == i] + [0])
            end = max(end, 0)
            limit = len(ops)
            for n in range(pos, len(ops)):
                if ops[n][2] >= i:
                    limit = n
                    break
            assert limit >= end, (i, limit, end)
            Hi = c.H0 if (c.H0 is not None and i == 0) else c.H
            p = max(pos, min(end + Hi, limit))
            for n in range(pos, p):
                self.emit_op(ops[n])
                if inject and n == inject[0]:
                    inject[1]()
            pos = p
            if pos == len(ops) and not done_last:
                done_last = True
                k.stamp_l(tag + "_last")
                if last:
                    extras += [pos] * last()
            cnt = pos - end + sum(1 for x in extras if x >= end)
            assert cnt <= 63
            k.e(f"s_waitcnt vmcnt({cnt})")
            if DBG.get('bstamp') == tag and i < 9:
                k.stamp_l(f"W{i}")
            k.e("s_barrier")
            if hooks and i in hooks:
                extras += [pos] * hooks[i]()
        assert pos == len(ops)
        k.e("s_barrier")


class Cons:
    pass


def consumer_setup(k, c, sWM, sWN, vl):
    o = Cons()
    o.c = c
    MT, NT = c.MT, c.NT
    o.acc = [[k.v(4) for _ in range(NT)] for _ in range(MT)]
    o.ncs = (NT + 1) // 2 if c.WM == 4 else NT
    if c.colsum:
        o.cs = [k.v(4) for _ in range(o.ncs)]
        o.ones = k.v(4)
    o.mark = k.mark()
    o.fa = [[k.v(4) for _ in range(MT)] for _ in range(2)]
    o.fw = [[k.v(4) for _ in range(NT)] for _ in range(2)]
    t0, t1, t2 = k.v(), k.v(), k.v()
    o.sT, o.sT2, o.sI, o.sA, o.sW, o.sWrA, o.sWrW = (k.s() for _ in range(7))
    sT = o.sT
    o.vA0, o.vA1 = vA0, vA1 = k.v(), k.v()
    k.e(f"""
    s_mov_b32 s{o.sWrA}, {(-(c.SA - 1) * c.abytes) & 0xffffffff}
    s_mov_b32 s{o.sWrW}, {(-(c.SW - 1) * c.wbytes) & 0xffffffff}
    v_and_b32 v{t0}, 15, v{vl}
    v_lshrrev_b32 v{t1}, 4, v{vl}
    v_and_b32 v{t2}, 6, v{t0}
    v_xor_b32 v{t2}, v{t2}, v{t1}
    v_lshlrev_b32 v{t2}, 4, v{t2}
    v_lshl_add_u32 v{vA0}, v{t0}, 7, v{t2}
    s_mul_i32 s{sT}, s{sWM}, {MT * 16 * 128}
    s_add_u32 s{sT}, s{sT}, {c.baseA}
    v_add_u32 v{vA0}, s{sT}, v{vA0}
    v_xor_b32 v{vA1}, 64, v{vA0}
    """)
    pitch = {'odd': 160, 'lin': 160, 'x16': 256, 'x8': 128}[c.wl]
    vB = k.v()
    k.e(f"""
    v_bfe_u32 v{t0}, v{vl}, 2, 3
    v_lshrrev_b32 v{t1}, 5, v{vl}
    v_mul_u32_u24 v{t1}, {c.r16b}, v{t1}
    v_mul_u32_u24 v{t2}, {pitch}, v{t0}
    v_add_u32 v{vB}, v{t1}, v{t2}
    v_and_b32 v{t2}, 3, v{vl}
    v_lshl_add_u32 v{vB}, v{t2}, 3, v{vB}
    v_add_u32 v{vB}, {c.baseW}, v{vB}
    """)
    if c.wl == 'odd' and c.mixed:
        vB2, vB3 = k.v(), k.v()
        k.e(f"s_mul_i32 s{sT}, s{sWN}, 2560")
        k.e(f"v_add_u32 v{vB2}, s{sT}, v{vB}")
        k.e(f"v_add_u32 v{vB3}, s{c.mixed[1]}, v{vB}")
        k.e(f"v_add_u32 v{vB}, s{c.mixed[0]}, v{vB}")
        o.vW = [vB, vB2, vB3]
        so = [0, 32, 64, 0, 32]
        o.waddr = lambda nt, t, h: ([vB, vB, vB2, vB3, vB3][nt], t * 2 * c.r16b + h * 8 * 160 + so[nt])
    elif c.wl in ('odd', 'lin'):
        if sWN is not None:
            k.e(f"s_mul_i32 s{sT}, s{sWN}, {64 if c.wl == 'lin' else 2560}")
            k.e(f"v_add_u32 v{vB}, s{sT}, v{vB}")
        o.vW = [vB]
        o.waddr = lambda nt, t, h: (vB, t * 2 * c.r16b + h * 8 * 160 + nt * 32)
    else:
        o.vW = vW = [vB] + [k.v() for _ in range(NT - 1)]
        if c.wl == 'x8':
            k.e(f"v_lshrrev_b32 v{t0}, 1, v{t0}")
        k.e(f"s_mul_i32 s{sT}, s{sWN}, {NT}")
        k.e(f"v_xor_b32 v{t0}, s{sT}, v{t0}")
        for j in range(NT - 1, -1, -1):
            k.e(f"v_xor_b32 v{t1}, {j}, v{t0}")
            k.e(f"v_lshl_add_u32 v{vW[j]}, v{t1}, 5, v{vB}")
        o.waddr = lambda nt, t, h: (vW[nt], t * 2 * c.r16b + h * 8 * pitch)
    for mt in range(MT):
        for nt in range(NT):
            for j in range(2):
                k.e(f"v_mov_b64 {vr(o.acc[mt][nt]+2*j, 2)}, 0")
    if c.colsum:
        for r in o.cs:
            for j in range(2):
                k.e(f"v_mov_b64 {vr(r+2*j, 2)}, 0")
        for j in range(4):
            k.e(f"v_mov_b32 v{o.ones+j}, 0x3f803f80")
    k.e(f"s_mov_b32 s{o.sI}, 0")
    k.e(f"s_mov_b32 s{o.sA}, 0")
    k.e(f"s_mov_b32 s{o.sW}, 0")
    return o


def consumer_loop(k, o, sVar, after_b0=None, tag="", at_end=None):
    c = o.c
    MT, NT = c.MT, c.NT
    fa, fw = o.fa, o.fw

    def reads(t):
        va = o.vA1 if t else o.vA0
        ar = [f"ds_read_b128 {vr(fa[t][mt], 4)}, v{va} offset:{mt * 2048}" for mt in range(MT)]
        wr = []
        for nt in range(NT):
            for h in range(2):
                vv, off = o.waddr(nt, t, h)
                wr.append(f"ds_read_b64_tr_b16 {vr(fw[t][nt] + 2 * h, 2)}, v{vv} offset:{off}")
        if DBG['nomma']:
            return ["s_nop 0"] * 3
        return ar + wr

    def mf(d, a, w):
        if c.transposed:
            return f"v_mfma_f32_16x16x32_bf16 {vr(d,4)}, {vr(w,4)}, {vr(a,4)}, {vr(d,4)}"
        return f"v_mfma_f32_16x16x32_bf16 {vr(d,4)}, {vr(a,4)}, {vr(w,4)}, {vr(d,4)}"

    def block(t, csl, pre_instr):
        rd = reads(1 - t)
        nR = len(rd)
        ml = []
        for nt in range(NT):
            for mt in range(MT):
                ml.append((mf(o.acc[mt][nt], fa[t][mt], fw[t][nt]), MT + 2 * nt + 1))
            for (cr, cn) in csl:
                if cn == nt:
                    ml.append((mf(cr, o.ones, fw[t][nt]), MT + 2 * nt + 1))
        if DBG['nomma']:
            ml = []
        n = len(ml)
        out = list(pre_instr)
        lead = 1
        out += rd[:lead]
        issued = lead
        guar = -1
        for j, (txt, need) in enumerate(ml):
            if need > guar:
                tgt = max(x[1] for x in ml[j:j + c.wait_span])
                allowed = (nR - 1 - tgt) + issued
                N = min(15, allowed)
                out.append(f"s_waitcnt lgkmcnt({N})")
                guar = nR - 1 - (N - issued) if N >= issued else nR - 1
            out.append(txt)
            want = min(nR, lead + -(-(j + 1) * (nR - lead) * 100 // (n * c.read_frac)))
            while issued < want:
                out.append(rd[issued]); issued += 1
        out += rd[issued:]
        return out

    def cs_lists(w):
        if not c.colsum:
            return [], []
        if c.WM == 4:
            t, hf = w >> 1, w & 1
            tiles = list(range(hf * o.ncs, min(NT, (hf + 1) * o.ncs)))
        else:
            t, tiles = w, list(range(NT))
        l = [(o.cs[i], nt) for i, nt in enumerate(tiles)]
        return (l, []) if t == 0 else ([], l)

    nvar = c.WM if c.colsum else 1
    k.stamp_c(tag + "_pre")
    k.e("s_barrier")
    k.stamp_c(tag + "_b0")
    k.emit_list(reads(0))
    if after_b0:
        after_b0()
    labs = [k.label("mm") for _ in range(nvar)]
    Ld = k.label("mmdone")
    for w in range(1, nvar):
        k.e(f"s_cmp_eq_u32 s{sVar}, {w}")
        k.e(f"s_cbranch_scc1 {labs[w]}")
    for w in range(nvar):
        c0, c1 = cs_lists(w)
        k.place(labs[w])
        adv = [f"s_add_u32 s{o.sA}, s{o.sA}, 1",
               f"s_cmp_eq_u32 s{o.sA}, {c.SA}",
               f"s_cselect_b32 s{o.sT}, s{o.sWrA}, {c.abytes}",
               f"s_cselect_b32 s{o.sA}, 0, s{o.sA}",
               f"v_add_u32 v{o.vA0}, s{o.sT}, v{o.vA0}"]
        adv2 = [f"s_add_u32 s{o.sW}, s{o.sW}, 1",
                f"s_cmp_eq_u32 s{o.sW}, {c.SW}",
                f"s_cselect_b32 s{o.sT2}, s{o.sWrW}, {c.wbytes}",
                f"s_cselect_b32 s{o.sW}, 0, s{o.sW}"]
        X = block(0, c0, [])
        a, b = len(X) // 3, 2 * len(X) // 3
        X = X[:a] + adv + X[a:b] + adv2 + X[b:]
        k.emit_list(X)
        if c.rel == 1:
            k.e("s_waitcnt lgkmcnt(0)")
        if c.vmwait:
            k.e("s_waitcnt vmcnt(0)")
        k.e("s_barrier")
        Y = block(1, c1, [f"v_add_u32 v{x}, s{o.sT2}, v{x}" for x in o.vW])
        a = len(Y) // 2
        Y = Y[:a] + [f"v_add_u32 v{o.vA1}, s{o.sT}, v{o.vA1}", f"s_add_u32 s{o.sI}, s{o.sI}, 1", f"s_cmp_lt_u32 s{o.sI}, {c.NS}"] + Y[a:]
        k.emit_list(Y)
        k.e(f"s_cbranch_scc1 {labs[w]}")
        if w < nvar - 1:
            k.e(f"s_branch {Ld}")
    k.place(Ld)
    if at_end:
        k.e("s_waitcnt lgkmcnt(6)")
        at_end()
    k.e("s_waitcnt lgkmcnt(0)")
    k.e("s_nop 7")
    k.stamp_c(tag + "_loop")
    k.release(o.mark)


def idle_barriers(k, n):
    if n <= 4:
        for _ in range(n):
            k.e("s_barrier")
        return
    s = k.s()
    L = k.label("idle")
    k.e(f"s_mov_b32 s{s}, {n}")
    k.place(L)
    k.e(f"""
    s_barrier
    s_sub_u32 s{s}, s{s}, 1
    s_cmp_lg_u32 s{s}, 0
    s_cbranch_scc1 {L}
    """)
```

```python
from asmlib import *
from g3 import *
import g3
import struct, json

S_, D_, F_ = 2048, 640, 1728
WS_PQ = 0x0
WS_H = 0x400000
WS_HH = 0x800000
WS_KV = 0x1000000
KV_BYTES = 65536
WS_FL = 0x1100000
FS = 4224
FL_BYTES = 128 * FS
FL_Q, FL_2, FL_3, FL_C, FL_G, FL_S, FL_R = 0, 16 * FS, 32 * FS, 48 * FS, 64 * FS, 96 * FS, 112 * FS
NREP = 16
WS_ST1 = 0x1020000
WS_CS1 = 0x1024000
WS_CS3 = 0x102C000
WS_W2P = 0x1200000
W2P_CT = 27 * 10240
WS_ST2 = 0x1040000
LOG2E = 1.4426950408889634
NAME = "sequential_preLN__linear_attn_block__dense_activation_relu__prompt_kernel"
OPT = dict(kvH=16, qH=11, p3H=16, p4H=24, touch1=True, touch1b=True, twarm=True, pretouch=True, e2pos=12, early3=False, psleep=8, w2a=6, w1at={'w2a': [0], 'c': [1], 'g': [2]}, tdist=1, hW=3, hX=10, jrot=8, hfirst=True, diag=False, wf4=5, p4H0=24, pf1=2, m1at=3, rf3=70, hb=11, svwo=True, inj=10, p4SA=8, p4SW=9, secs=('head', 'ltail', 'svc', 'cons', 'cons2'), p4early=False, dupst=False, dupfl='', accinit=True, svw2=0, svT1=1, kvH0=4, hW0=32, svw1=0, p4rot=True, selft=False, p4wl=4, pqlead=16, catom=True, pqtouch=False, rel=1, rf=65, rel4=2, rf4=90, lean=True, lprio=0, outsc1=False, w2early=True, pqq=10, codewarm=True)
LDS_TOTAL = 163840


def f32bits(x):
    return struct.unpack("<I", struct.pack("<f", x))[0]


def bf16_round_f32(k, v):
    k.e(f"v_cvt_pk_bf16_f32 v{v}, v{v}, v{v}")
    k.e(f"v_lshlrev_b32 v{v}, 16, v{v}")


def allreduce4_multi(k, xs, ts):
    for sw in ("v_permlane16_swap_b32", "v_permlane32_swap_b32"):
        for x, t in zip(xs, ts):
            k.e(f"v_mov_b32 v{t}, v{x}")
        k.e("s_nop 1" if len(xs) < 2 else "s_nop 0")
        for x, t in zip(xs, ts):
            k.e(f"{sw} v{x}, v{t}")
        k.e("s_nop 1" if len(xs) < 2 else "s_nop 0")
        for x, t in zip(xs, ts):
            k.e(f"v_add_f32 v{x}, v{x}, v{t}")


def ln_finalize_multi(k, vms, vvs, sEps):
    for vm in vms:
        bf16_round_f32(k, vm)
    for vv in vvs:
        bf16_round_f32(k, vv)
        k.e(f"v_add_f32 v{vv}, s{sEps}, v{vv}")
        bf16_round_f32(k, vv)
    for vv in vvs:
        k.e(f"v_sqrt_f32 v{vv}, v{vv}")
    k.e("s_nop 0")
    for vv in vvs:
        bf16_round_f32(k, vv)
    for vv in vvs:
        k.e(f"v_rcp_f32 v{vv}, v{vv}")
    k.e("s_nop 0")


def dpp_rowsum(k, x):
    for r in (8, 4, 2, 1):
        k.e("s_nop 1")
        k.e(f"v_add_f32_dpp v{x}, v{x}, v{x} row_ror:{r} row_mask:0xf bank_mask:0xf")


def set_srd(k, d, p, nbytes, off=0, bias=False):
    if bias and OPT['lean']:
        off -= BIAS
        nbytes += BIAS
    if off < 0:
        k.e(f"s_sub_u32 s{d}, s{p}, {-off}")
        k.e(f"s_subb_u32 s{d+1}, s{p+1}, 0")
    elif off:
        k.e(f"s_add_u32 s{d}, s{p}, {off}")
        k.e(f"s_addc_u32 s{d+1}, s{p+1}, 0")
    else:
        k.e(f"s_mov_b64 s[{d}:{d+1}], s[{p}:{p+1}]")
    k.e(f"s_mov_b32 s{d+2}, {nbytes}")
    k.e(f"s_mov_b32 s{d+3}, 0x20000")


class Touch:
    def __init__(self, k, vl, ncl, ld, seg5=False, share=None):
        self.k, self.ld = k, ld
        self.R = 64 // ncl
        self.vo = k.v()
        self.sO = share.sO if share else k.s()
        self.sB = share.sB if share else k.s(2, 2)
        t0, t1 = k.v(), k.v()
        magic = (1024 + ncl - 1) // ncl
        for l in range(64):
            assert (l * magic) >> 10 == l // ncl
        k.e(f"""
        v_min_u32 v{t1}, {self.R * ncl - 1}, v{vl}
        v_mul_u32_u24 v{t0}, {magic}, v{t1}
        v_lshrrev_b32 v{t0}, 10, v{t0}
        v_mul_u32_u24 v{self.vo}, {ncl}, v{t0}
        v_sub_u32 v{t1}, v{t1}, v{self.vo}
        v_mul_u32_u24 v{t0}, {ld}, v{t0}
        v_lshl_add_u32 v{self.vo}, v{t1}, 7, v{t0}
        """)
        if seg5:
            k.e(f"""
            v_mul_u32_u24 v{t0}, 205, v{t1}
            v_lshrrev_b32 v{t0}, 10, v{t0}
            v_mul_u32_u24 v{t0}, 640, v{t0}
            v_add_u32 v{self.vo}, v{self.vo}, v{t0}
            """)

    def unit(self, p, sOff, sU, add, nrows, skip=False):
        k = self.k
        le = k.label("tsk")
        k.e(f"""
        s_add_u32 s{self.sO}, s{sU}, {add}
        s_mul_i32 s{self.sO}, s{self.sO}, {self.R}
        """)
        if skip:
            k.e(f"s_cmp_ge_u32 s{self.sO}, {nrows}")
            k.e(f"s_cbranch_scc1 {le}")
        k.e(f"""
        s_min_u32 s{self.sO}, s{self.sO}, {nrows - self.R}
        s_mul_i32 s{self.sO}, s{self.sO}, {self.ld}
        s_add_u32 s{self.sO}, s{self.sO}, s{sOff}
        s_add_u32 s{self.sB}, s{p}, s{self.sO}
        s_addc_u32 s{self.sB+1}, s{p+1}, 0
        global_load_dword v{k.vdummy}, v{self.vo}, s[{self.sB}:{self.sB+1}]
        """)
        k.place(le)


def phi_pair(k, a, vrs, vr2, sEps2, t):
    k.e(f"v_pk_mul_f32 {vr(t,2)}, {vr(a,2)}, {vr(vr2,2)}")
    k.e(f"v_pk_fma_f32 {vr(a,2)}, {vr(a,2)}, {vr(vrs,2)}, 1.0 op_sel_hi:[1,1,0]")
    k.e(f"v_exp_f32_e64 v{t}, v{t} clamp")
    k.e(f"v_exp_f32_e64 v{t+1}, v{t+1} clamp")
    k.e(f"v_max_f32 v{a}, v{a}, v{t}")
    k.e(f"v_max_f32 v{a+1}, v{a+1}, v{t+1}")
    k.e(f"v_pk_add_f32 {vr(a,2)}, {vr(a,2)}, s[{sEps2}:{sEps2+1}]")


def gen(prof=False):
    k = Kern(NAME)
    k.prof3 = prof
    k.slimit, k.vlimit = 68, 256
    ckv = Cfg(BM=128, NS=10, lda=2 * D_, ldw=6 * D_, wl='odd', SA=4, SW=4, baseA=0, baseW=65536, WM=2, WN=2,
              transposed=False, colsum=False, H=OPT['kvH'], nseg=2, segd=None, mixed=True, rel=OPT['rel'], read_frac=OPT['rf'], lean=True, H0=OPT['kvH0'])
    P1_ST = ckv.endW
    P1_AT = P1_ST + 2048
    c3 = Cfg(BM=128, NS=10, lda=2 * D_, ldw=2 * F_, wl='x8', SA=4, SW=10, baseA=81920, baseW=0, WM=4, WN=1,
             transposed=True, colsum=False, H=OPT['p3H'], rel=1, lean=True)
    P3_SCR = c3.endA
    HB = OPT['hb']
    c4 = Cfg(BM=64, NS=27, lda=2 * F_, ldw=160, wl='lin', SA=10, SW=8, baseA=0, baseW=81920, WM=2, WN=2,
             transposed=True, colsum=False, H=OPT['p4H'], rel=2, read_frac=OPT['rf4'], lean=True, wlead=OPT['p4wl'],
             smap=lambda j: 2 * j if j < 14 else 2 * (j - 14) + 1, afterA=lambda j: HB if j >= 14 else -99,
             afterW=lambda m: 0 if m >= 6 else -99, vmwait=True, wfirst=OPT['wf4'], H0=OPT['p4H0'])
    assert c4.endW <= LDS_TOTAL and c4.endA <= c4.baseW and P3_SCR + 2048 <= LDS_TOTAL and P1_ST + 1024 <= LDS_TOTAL
    L_W2, L_KV, L_X2 = 40960, 0, 143360

    F0V = '0x00010001' if OPT['diag'] else 1
    k.end = k.label("end")
    if prof:
        for i in range(28):
            k.e(f"s_mov_b32 s{68+i}, 0")
        k.stamp_c("start")
        k.e("s_memrealtime s[96:97]")
        k.e("s_waitcnt lgkmcnt(0)")
        k.e("s_mov_b32 s94, s96")
    k.e("s_cmp_ge_u32 s2, 256")
    k.e(f"s_cbranch_scc1 {k.end}")
    p = k.s(16, 4)
    pws = k.s(2, 2)
    k.e(f"s_load_dwordx16 s[{p}:{p+15}], s[0:1], 0")
    k.e(f"s_load_dwordx2 s[{pws}:{pws+1}], s[0:1], 64")
    ptr = dict(x=p, wqkv=p + 2, wo=p + 4, w1=p + 8, w2=p + 10, out=p + 12, dbg=p + 14, ws=pws)
    sWave, sJ, sRQ, sCH, sJ1 = k.s(), k.s(), k.s(), k.s(), k.s()
    vl = k.v()
    k.vdummy = k.v()
    k.e(f"""
    v_lshrrev_b32 v{vl}, 6, v0
    s_lshr_b32 s{sJ}, s2, 3
    v_readfirstlane_b32 s{sWave}, v{vl}
    v_and_b32 v{vl}, 63, v0
    s_bfe_u32 s{sRQ}, s2, 0x20001
    s_and_b32 s{sCH}, s2, 1
    s_sub_u32 s{sJ1}, s{sJ}, {OPT['jrot']}
    s_and_b32 s{sJ1}, s{sJ1}, 31
    """)

    def endwave():
        k.dump3(pws, sWave)
        k.e("s_endpgm")

    def dec1():
        sG, sC, sTy = k.s(), k.s(), k.s()
        k.e(f"""
        s_and_b32 s{sG}, s{sJ1}, 3
        s_lshl_b32 s3, s{sRQ}, 2
        s_add_u32 s{sG}, s{sG}, s3
        s_lshr_b32 s{sTy}, s{sJ1}, 3
        s_sub_u32 s{sTy}, s{sTy}, 1
        s_max_i32 s{sTy}, s{sTy}, 0
        s_lshr_b32 s{sC}, s{sJ1}, 2
        s_lshl_b32 s3, s{sCH}, 2
        s_add_u32 s{sC}, s{sC}, s3
        s_lshl_b32 s3, s{sCH}, 1
        s_add_u32 s3, s3, 4
        s_cmp_eq_u32 s{sTy}, 1
        s_cselect_b32 s3, s3, 0
        s_sub_u32 s{sC}, s{sC}, s3
        s_and_b32 s3, s{sJ1}, 7
        s_cmp_eq_u32 s{sTy}, 2
        s_cselect_b32 s{sC}, s3, s{sC}
        """)
        return sG, sC, sTy

    def dec2():
        sRB, sCT = k.s(), k.s()
        k.e(f"""
        s_and_b32 s{sRB}, s{sJ}, 7
        s_lshl_b32 s3, s{sRQ}, 3
        s_add_u32 s{sRB}, s{sRB}, s3
        s_lshr_b32 s{sCT}, s{sJ}, 3
        s_lshl_b32 s3, s{sCH}, 2
        s_add_u32 s{sCT}, s{sCT}, s3
        """)
        return sRB, sCT

    def dec3():
        sRB, sCT = k.s(), k.s()
        k.e(f"""
        s_and_b32 s{sRB}, s{sJ}, 3
        s_lshl_b32 s3, s{sRQ}, 2
        s_add_u32 s{sRB}, s{sRB}, s3
        s_lshr_b32 s{sCT}, s{sJ}, 2
        s_mul_i32 s3, s{sCH}, 7
        s_add_u32 s{sCT}, s{sCT}, s3
        """)
        return sRB, sCT

    def dec4():
        sRB, sCT, sId = k.s(), k.s(), k.s()
        k.e(f"""
        s_mul_i32 s{sRB}, s{sJ}, 205
        s_lshr_b32 s{sRB}, s{sRB}, 10
        s_mul_i32 s3, s{sRB}, 5
        s_sub_u32 s{sCT}, s{sJ}, s3
        s_mul_i32 s3, s{sCH}, 5
        s_add_u32 s{sCT}, s{sCT}, s3
        s_cmp_ge_u32 s{sRB}, 6
        s_cselect_b32 s{sId}, 1, 0
        s_mul_i32 s{sRB}, s{sRB}, 96
        s_lshl_b32 s3, s{sRQ}, 9
        s_add_u32 s{sRB}, s{sRB}, s3
        """)
        return sRB, sCT, sId

    Lc, Lh, Lsvc, Lrole = k.label("cons"), k.label("help"), k.label("svc"), k.label("role")
    sSvc = k.s()
    k.e(f"s_mov_b32 s{sSvc}, 0")
    k.e(f"s_cmp_ge_u32 s{sJ1}, 24")
    k.e(f"s_cbranch_scc1 {Lsvc}")
    if OPT['hfirst']:
        k.e(f"s_cmp_lt_u32 s{sWave}, 6")
        k.e(f"s_cbranch_scc1 {Lrole}")
    else:
        k.e(f"s_cmp_ge_u32 s{sWave}, 6")
        k.e(f"s_cbranch_scc1 {Lh}")
        k.lines.append('; @SEC help')
        k.place(Lh)
    mH = k.mark()
    sRo, sA = k.s(), k.s()
    Lh1 = k.label("h1")
    k.e(f"s_cmp_eq_u32 s{sWave}, 7")
    k.e(f"s_cbranch_scc1 {Lh1}")
    k.e(f"s_mul_i32 s{sRo}, s{sCH}, 640")
    TW = Touch(k, vl, 15, 6 * D_, seg5=True)
    k.e("s_waitcnt lgkmcnt(0)")
    for it in range(OPT['hW']):
        TW.unit(ptr['wqkv'], sRo, sJ1, 24 * it, 640)
    k.e("s_endpgm")
    k.place(Lh1)
    if OPT['codewarm']:
        va_ = k.v(2)
        sPC = k.s(2, 2)
        k.e(f"""
        s_getpc_b64 s[{sPC}:{sPC+1}]
        {k.name}_pc:
        s_sub_u32 s{sPC}, s{sPC}, {k.name}_pc-{k.name}
        s_subb_u32 s{sPC+1}, s{sPC+1}, 0
        s_lshl_b32 s{sA}, s{sJ1}, 11
        v_lshlrev_b32 v{va_}, 7, v{vl}
        v_add_u32 v{va_}, s{sA}, v{va_}
        v_min_u32 v{va_}, {k.name}_last-{k.name}, v{va_}
        v_mov_b32 v{va_+1}, s{sPC+1}
        v_add_co_u32 v{va_}, vcc, s{sPC}, v{va_}
        s_nop 1
        v_addc_co_u32 v{va_+1}, vcc, 0, v{va_+1}, vcc
        s_mov_b64 exec, 0xffff
        global_load_dword v{k.vdummy}, {vr(va_,2)}, off
        s_mov_b64 exec, -1
        """)
    if OPT['hX'] == 10:
        k.e(f"s_and_b32 s{sRo}, s2, 7")
        k.e(f"s_xor_b32 s{sRo}, s{sRo}, 1")
        k.e(f"s_mul_i32 s{sRo}, s{sRo}, {256 * 2 * D_}")
        TX = Touch(k, vl, 16, 2048, share=TW)
        k.e("s_waitcnt lgkmcnt(0)")
        TX.unit(ptr['x'], sRo, sJ1, 0, 160)
        lx = k.label("hx")
        k.e(f"s_cmp_ge_u32 s{sJ1}, 16")
        k.e(f"s_cbranch_scc1 {lx}")
        TX.unit(ptr['x'], sRo, sJ1, 24, 160)
        k.place(lx)
    else:
        k.e(f"s_mul_i32 s{sRo}, s{sRQ}, {512 * 2 * D_}")
        TX = Touch(k, vl, OPT['hX'], 2 * D_, share=TW)
        k.e("s_waitcnt lgkmcnt(0)")
        for it in range(-(-500 // (24 * TX.R))):
            TX.unit(ptr['x'], sRo, sJ1, 24 * it, 512)
    k.e("s_endpgm")
    k.release(mH)
    if not OPT['hfirst']:
        k.lines.append('; @SEC head2')
    k.place(Lrole)
    k.e(f"s_cmp_lt_u32 s{sWave}, 4")
    k.e(f"s_cbranch_scc1 {Lc}")
    k.e(f"s_cmp_ge_u32 s{sWave}, 6")
    k.e(f"s_cbranch_scc1 {k.end}")
    mL = k.mark()
    sLW, sRow, sCol, sSpin, sP, sU, sEx = (k.s() for _ in range(7))
    srdA, srdW, srdF = k.s(4), k.s(4), k.s(4)
    vf, vfa, vone = k.v(4), k.v(), k.v()
    c3r = k.v(4)
    vfb = k.v()
    sAct = k.s()
    k.e(f"s_sub_u32 s{sLW}, s{sWave}, 4")
    if OPT['lprio']:
        k.e(f"s_setprio {OPT['lprio']}")

    def poll(srd, expect, first_issued=False, tag="", wide=False, drain1=True, extra=None, younger=0, both=False):
        lp, lo = k.label("poll"), k.label("pollok")
        ldi = (f"buffer_load_dwordx3 {vr(vf,3)}, v{vfa}, s[{srd}:{srd+3}], 0 offen sc1" if wide
               else f"buffer_load_dword v{vf}, v{vfa}, s[{srd}:{srd+3}], 0 offen sc1")
        if extra is not None:
            ldi += f"\nbuffer_load_dword v{vf+3}, v{extra}, s[{srd}:{srd+3}], 0 offen sc1"
        if not both:
            k.e(f"s_cmp_eq_u32 s{sLW}, 1")
            k.e(f"s_cbranch_scc1 {lo}")
        k.e(f"s_mov_b32 s{sSpin}, 0")
        if not first_issued:
            k.e(ldi)
        if younger:
            k.e(f"s_waitcnt vmcnt({younger})")
            k.e(f"s_branch {lp}_c")
        k.place(lp)
        k.e("s_waitcnt vmcnt(0)")
        k.place(lp + "_c")
        if wide:
            k.e(f"v_and_b32 v{vf}, v{vf}, v{vf+2}")
        if extra is not None:
            k.e(f"v_and_b32 v{vf}, v{vf}, v{vf+3}")
        k.e(f"""
        v_cmp_ne_u32 vcc, {expect}, v{vf}
        s_add_u32 s{sSpin}, s{sSpin}, 1
        s_nop 3
        s_cbranch_vccz {lo}
        s_cmp_gt_u32 s{sSpin}, 0x40000
        s_cbranch_scc1 {k.end}
        s_sleep {OPT['psleep']}
        {ldi}
        s_branch {lp}
        """)
        k.place(lo)
        if drain1:
            k.e("s_waitcnt vmcnt(0)")
        k.stamp_l(tag)

    def set_flag(sOff, base, sExec=None):
        l0 = k.label("fl")
        k.e(f"""
        s_cmp_eq_u32 s{sLW}, 1
        s_cbranch_scc0 {l0}
        v_mov_b32 v{vfa}, {base}
        s_mov_b64 exec, 1
        buffer_store_dword v{vone}, v{vfa}, s[{srdF}:{srdF+3}], s{sOff} offen sc1
        s_mov_b64 exec, -1
        """)
        k.place(l0)

    def warm(pw, ldw, ncl, colbytes, clampc, nrows, rounds):
        if not OPT['twarm'] or not rounds:
            return 0
        mm_ = k.mark()
        sCo = k.s()
        k.e(f"s_mul_i32 s{sCo}, s{sCH}, {colbytes}")
        if clampc is not None:
            k.e(f"s_min_u32 s{sCo}, s{sCo}, {clampc}")
        T = Touch(k, vl, ncl, ldw)
        for it in rounds:
            T.unit(pw, sCo, sU, 64 * it, nrows)
        k.release(mm_)
        return len(rounds)

    def w1warm(where):
        r = OPT['w1at'].get(where, [])
        return warm(ptr['w1'], 2 * F_, 14, 7 * 256, 13 * 128, 640, r) if r else 0

    m = k.mark()
    sG, sC, sTy = dec1()
    srdD = k.s(4)
    k.e(f"""
    s_mul_i32 s{sRow}, s{sG}, {128 * 2 * D_}
    s_mul_i32 s{sCol}, s{sC}, 160
    s_add_u32 s3, s{sCol}, {2 * D_}
    s_lshl_b32 s{sCol}, s{sCol}, 1
    s_cmp_eq_u32 s{sTy}, 0
    s_cselect_b32 s{sCol}, s3, s{sCol}
    s_movk_i32 s{sEx}, 160
    s_cselect_b32 s{sEx}, {2 * D_}, s{sEx}
    """)
    Llq, Ltail = k.label("ldq"), k.label("ldtail")
    pat = [[k.v() for _ in range(5)] for _ in range(5)]
    q0, q1, q2, vcs = (k.v() for _ in range(4))
    pvi, pvb = [k.v() for _ in range(5)], [k.v() for _ in range(5)]
    csr = [k.v(4) for _ in range(4)]
    rp = [k.v() for _ in range(6)]
    rpd = [k.v(4) for _ in range(6)]
    sRp, sRc, sRv = k.s(), k.s(), k.s()
    vLtop = k.vtop

    def p2_pat(mI):
        def f():
            vi_, vb_ = pvi[mI], pvb[mI]
            k.e(f"""
            s_and_b32 s3, s{sWave}, 1
            s_lshl_b32 s3, s3, 3
            v_add_u32 v{q0}, {64*mI}, v{vl}
            v_mul_u32_u24 v{q1}, 205, v{q0}
            v_lshrrev_b32 v{q1}, 11, v{q1}
            v_mul_u32_u24 v{q2}, 10, v{q1}
            v_sub_u32 v{q2}, v{q0}, v{q2}
            v_lshlrev_b32 v{vb_}, 4, v{q2}
            v_and_b32 v{vi_}, 3, v{q1}
            v_bfe_u32 v{q0}, v{q1}, 3, 1
            v_lshl_or_b32 v{vi_}, v{q0}, 2, v{vi_}
            v_add_u32 v{vi_}, s3, v{vi_}
            v_bfe_u32 v{q0}, v{q1}, 2, 1
            v_lshrrev_b32 v{q2}, 4, v{q1}
            v_lshl_or_b32 v{q0}, v{q2}, 1, v{q0}
            v_mul_u32_u24 v{q0}, {5 * 1280}, v{q0}
            v_add_u32 v{vb_}, v{vb_}, v{q0}
            """)
            return 0
        return f

    pdone = set()

    def p2_lazy(u, mI):
        if (u, mI) in pdone:
            return
        pdone.add((u, mI))
        k.e(f"""
        v_add_u32 v{q0}, {16*u}, v{pvi[mI]}
        v_mul_u32_u24 v{q1}, 205, v{q0}
        v_lshrrev_b32 v{q1}, 10, v{q1}
        v_mad_u32_u24 v{q0}, v{q1}, 15, v{q0}
        v_mad_u32_u24 v{pat[u][mI]}, v{q0}, s{sEx}, v{pvb[mI]}
        """)

    def rp_pat():
        mm_ = k.mark()
        sN, sH, sL = k.s(), k.s(), k.s()
        k.e(f"""
        s_lshl_b32 s{sRv}, s{sJ1}, 3
        s_and_b32 s3, s2, 7
        s_add_u32 s{sRv}, s{sRv}, s3
        s_lshl_b32 s{sRv}, s{sRv}, 1
        s_add_u32 s{sRv}, s{sRv}, s{sLW}
        s_min_u32 s{sRp}, s{sRv}, 359
        s_mul_i32 s{sRc}, s{sRp}, 1457
        s_lshr_b32 s{sRc}, s{sRc}, 16
        s_mul_i32 s3, s{sRc}, 45
        s_sub_u32 s{sN}, s{sRp}, s3
        s_mul_i32 s{sN}, s{sN}, 6
        s_mul_i32 s{sRp}, s{sRp}, 6144
        s_movk_i32 s{sL}, {2 * D_}
        """)
        for i in range(6):
            k.e(f"""
            s_mul_i32 s{sH}, s{sN}, 13108
            s_lshr_b32 s{sH}, s{sH}, 16
            s_mul_i32 s3, s{sH}, 5
            s_sub_u32 s3, s{sN}, s3
            s_lshl_b32 s3, s3, 6
            v_add_u32 v{q0}, s3, v{vl}
            s_mul_i32 s{sH}, s{sH}, {32 * 2 * D_}
            s_mul_i32 s3, s{sRc}, 160
            s_add_u32 s{sH}, s{sH}, s3
            v_mul_u32_u24 v{q1}, 205, v{q0}
            v_lshrrev_b32 v{q1}, 11, v{q1}
            v_mul_u32_u24 v{q2}, 10, v{q1}
            v_sub_u32 v{q2}, v{q0}, v{q2}
            v_lshl_add_u32 v{rp[i]}, v{q2}, 4, s{sH}
            v_and_b32 v{q2}, 19, v{q1}
            v_and_b32 v{q0}, 4, v{q1}
            v_lshl_or_b32 v{q2}, v{q0}, 1, v{q2}
            v_and_b32 v{q0}, 8, v{q1}
            v_lshrrev_b32 v{q0}, 1, v{q0}
            v_or_b32 v{q2}, v{q2}, v{q0}
            v_mad_u32_u24 v{rp[i]}, v{q2}, s{sL}, v{rp[i]}
            s_add_u32 s{sN}, s{sN}, 1
            """)
        k.release(mm_)

    def p1_srds():
        k.e("s_waitcnt lgkmcnt(0)")
        set_srd(k, srdA, ptr['x'], S_ * D_ * 2, bias=True)
        set_srd(k, srdW, ptr['wqkv'], 3 * D_ * D_ * 2, bias=True)
        k.stamp_l("ld_first")

    def p1_late():
        set_srd(k, srdF, ptr['ws'], FL_BYTES, WS_FL)
        k.e(f"""
        v_mov_b32 v{vone}, 1
        s_lshl_b32 s{sU}, s{sJ}, 1
        s_add_u32 s{sU}, s{sU}, s{sLW}
        s_mul_i32 s{sP}, s{sG}, {FS}
        s_lshl_b32 s3, s{sC}, 2
        s_add_u32 s{sP}, s{sP}, s3
        """)
        k.e(f"""
        s_and_b32 s3, s{sC}, 3
        s_mul_i32 s3, s3, 320
        s_add_u32 s3, s3, 1280
        s_and_b32 s{sSpin}, s{sC}, 1
        s_mul_i32 s{sSpin}, s{sSpin}, 640
        s_cmp_eq_u32 s{sTy}, 0
        s_cselect_b32 s3, s3, s{sSpin}
        s_cselect_b32 s{sSpin}, 960, 0
        v_lshlrev_b32 v{vcs}, 4, v{vl}
        v_add_u32 v{vcs}, s3, v{vcs}
        v_cmp_lt_u32 vcc, 19, v{vl}
        v_mov_b32 v{q0}, s{sSpin}
        s_lshl_b32 s3, s{sCH}, 12
        v_cndmask_b32 v{q0}, 0, v{q0}, vcc
        s_add_u32 s3, s3, {WS_CS1 - WS_ST1}
        v_add3_u32 v{vcs}, v{vcs}, v{q0}, s3
        v_cmp_gt_u32 vcc, 40, v{vl}
        v_mov_b32 v{q0}, {OOB}
        s_nop 0
        v_cndmask_b32 v{vcs}, v{q0}, v{vcs}, vcc
        """)
        return 0

    def p1_last():
        set_srd(k, srdD, ptr['dbg'], 256)
        k.e(f"""
        v_lshlrev_b32 v{vfa}, 2, v{vl}
        v_or_b32 v{vfa}, {128 if OPT['diag'] else 0}, v{vfa}
        s_lshl_b32 s3, s{sLW}, 12
        buffer_load_dword v{vf}, v{vfa}, s[{srdD}:{srdD+3}], s3 offen sc1
        """)
        nwo = 0
        if not OPT['svwo']:
            mm_ = k.mark()
            sCo, sV = sRow, sCol
            k.e(f"s_mul_i32 s{sCo}, s{sCH}, 640")
            k.e(f"s_lshl_b32 s{sV}, s{sJ1}, 1")
            k.e(f"s_add_u32 s{sV}, s{sV}, s{sLW}")
            T = Touch(k, vl, 5, 2 * D_)
            T.unit(ptr['wo'], sCo, sV, 0, 640)
            k.release(mm_)
            nwo = 1
        set_srd(k, srdA, ptr['w2'], F_ * D_ * 2)
        for mI in range(6):
            k.e(f"buffer_load_dwordx4 {vr(rpd[mI],4)}, v{rp[mI]}, s[{srdA}:{srdA+3}], 0 offen")
        return 7 + nwo
    hooks = {}
    k.e(f"s_cmp_eq_u32 s{sSvc}, 1")
    k.e(f"s_cbranch_scc1 {Llq}")
    m2 = k.mark()
    ckv.segd = f"s{sEx}"
    ld = Loader(k, ckv, vl, sLW)

    def first():
        ld.bases(sRow, sCol)
        p1_srds()
        ld.early_a(srdA)
        if not OPT['hfirst']:
            lj_ = k.label("hj")
            k.e(f"s_branch {lj_}")
            k.lines.append('; @SEC head3')
            k.place(lj_)
    ld.patterns(between=first)

    def f0_part():
        poll(srdD, F0V, first_issued=True, tag="f0ok", drain1=False, younger=6 if OPT['svwo'] else 7)
        set_srd(k, srdA, ptr['ws'], WS_CS3 - WS_ST1, WS_ST1)
        lsd = k.label("std")
        k.e(f"""
        s_cmp_eq_u32 s{sLW}, 1
        s_cbranch_scc1 {lsd}
        s_mov_b32 m0, {P1_ST}
        s_lshl_b32 s3, s{sG}, 10
        v_lshlrev_b32 v{vfa}, 4, v{vl}
        buffer_load_dwordx4 v{vfa}, s[{srdA}:{srdA+3}], s3 offen sc1 lds
        s_movk_i32 s3, 8192
        buffer_load_dwordx4 {vr(csr[0],4)}, v{vcs}, s[{srdA}:{srdA+3}], 0 offen sc1
        buffer_load_dwordx4 {vr(csr[1],4)}, v{vcs}, s[{srdA}:{srdA+3}], s3 offen sc1
        s_movk_i32 s3, 16384
        buffer_load_dwordx4 {vr(csr[2],4)}, v{vcs}, s[{srdA}:{srdA+3}], s3 offen sc1
        s_movk_i32 s3, 24576
        buffer_load_dwordx4 {vr(csr[3],4)}, v{vcs}, s[{srdA}:{srdA+3}], s3 offen sc1
        v_add_u32 v{vfa}, {P1_ST + 1024}, v{vfa}
        """)
        k.place(lsd)
        return 0

    def early_valu():
        p1_late()
        for i in range(5):
            p2_pat(i)()
        rp_pat()
    ld.stream(srdA, srdW, last=p1_last, tag="p1", inject=(OPT['inj'], early_valu), hooks={9: f0_part})
    k.e(f"s_branch {Ltail}")
    k.release(m2)
    k.place(Llq)
    p1_late()
    k.e(f"s_movk_i32 s{sRv}, 1000")
    k.e(f"s_mov_b32 s{sRp}, 0")
    k.e(f"s_mov_b32 s{sRc}, 0")
    k.e(f"""
    s_lshl_b32 s{sP}, s{sCH}, 3
    s_add_u32 s{sP}, s{sP}, s{sC}
    s_mul_i32 s{sP}, s{sP}, {FS}
    s_lshl_b32 s3, s{sRQ}, 2
    s_add_u32 s{sP}, s{sP}, s3
    s_add_u32 s{sP}, s{sP}, {FL_S - FL_Q}
    """)
    set_srd(k, srdD, ptr['dbg'], 256)
    k.e(f"s_branch {Ltail}_s")
    k.lines.append('; @SEC ltail')
    k.place(Ltail)
    lsd = k.label("std")
    k.e(f"s_cmp_eq_u32 s{sLW}, 1")
    k.e(f"s_cbranch_scc1 {lsd}")
    k.e(f"""
    s_waitcnt vmcnt(2)
    v_pk_add_f32 {vr(csr[0],2)}, {vr(csr[0],2)}, {vr(csr[1],2)}
    v_pk_add_f32 {vr(csr[0]+2,2)}, {vr(csr[0]+2,2)}, {vr(csr[1]+2,2)}
    s_waitcnt vmcnt(0)
    v_pk_add_f32 {vr(csr[2],2)}, {vr(csr[2],2)}, {vr(csr[3],2)}
    v_pk_add_f32 {vr(csr[2]+2,2)}, {vr(csr[2]+2,2)}, {vr(csr[3]+2,2)}
    v_pk_add_f32 {vr(csr[0],2)}, {vr(csr[0],2)}, {vr(csr[2],2)}
    v_pk_add_f32 {vr(csr[0]+2,2)}, {vr(csr[0]+2,2)}, {vr(csr[2]+2,2)}
    ds_write_b128 v{vfa}, {vr(csr[0],4)}
    s_waitcnt lgkmcnt(0)
    """)
    k.place(lsd)
    k.place(Ltail + "_s")
    sRB2, sCT2 = dec2()
    set_srd(k, srdW, ptr['wo'], D_ * D_ * 2)
    sT, sKW, sLWd = k.s(), k.s(), k.s()
    k.e(f"""
    s_mul_i32 s{sKW}, s{sCT2}, 160
    s_movk_i32 s{sEx}, 1280
    s_mul_i32 s{sLWd}, s{sLW}, 5120
    """)
    nx = w1warm('stats')
    k.e(f"s_waitcnt vmcnt({nx})")
    k.e("s_barrier")
    lrp = k.label("rp")
    set_srd(k, srdA, ptr['ws'], 8 * W2P_CT, WS_W2P)
    k.e(f"""
    s_cmp_ge_u32 s{sRv}, 360
    s_cbranch_scc1 {lrp}
    v_lshlrev_b32 v{rp[0]}, 4, v{vl}
    s_add_u32 s3, s{sRp}, 4096
    """)
    for mI in range(6):
        k.e(f"buffer_store_dwordx4 {vr(rpd[mI],4)}, v{rp[0]}, s[{srdA}:{srdA+3}], {'s%d' % sRp if mI < 4 else 's3'} offen offset:{(mI % 4) * 1024} sc1")
    k.place(lrp)

    def w2_steps(lst):
        for s in lst:
            u = (s % 10) // 2
            k.e(f"s_add_u32 s{sT}, s{sKW}, {(s // 10) * 320 * 1280}")
            for mI in range(5):
                p2_lazy(u, mI)
                k.e(f"s_add_u32 m0, s{sLWd}, {L_W2 + s * 5120 + mI * 1024}")
                k.e("s_nop 0")
                if not g3.DBG['nodma']:
                    k.e(f"buffer_load_dwordx4 v{pat[u][mI]}, s[{srdW}:{srdW+3}], s{sT} offen lds")
    order = [0, 10, 2, 12, 4, 14, 6, 16, 8, 18]
    w2_steps(order[:OPT['w2a']])
    lsv = k.label("svp")
    k.e(f"s_cmp_eq_u32 s{sSvc}, 0")
    k.e(f"s_cbranch_scc1 {lsv}")
    k.e(f"v_lshlrev_b32 v{vfa}, 2, v{vl}")
    k.e(f"v_or_b32 v{vfa}, {128 if OPT['diag'] else 0}, v{vfa}")
    poll(srdD, F0V, tag="f0ok", drain1=False)
    k.place(lsv)
    w1warm('w2a')
    k.stamp_l("w2iss")
    k.e("s_barrier")
    k.e("s_barrier")
    lkv, lfd = k.label("f1kv"), k.label("f1d")
    k.e(f"s_cmp_eq_u32 s{sTy}, 0")
    k.e(f"s_cbranch_scc1 {lkv}")
    set_flag(sP, FL_Q)
    k.e(f"s_branch {lfd}")
    k.place(lkv)
    k.e(f"""
    s_cmp_eq_u32 s{sLW}, 1
    s_cbranch_scc0 {lfd}
    s_mul_i32 s3, s{sC}, {FS}
    v_mov_b32 v{vfa}, {FL_C}
    v_mov_b32 v{vf}, 1
    s_mov_b64 exec, 1
    buffer_atomic_add v{vf}, v{vfa}, s[{srdF}:{srdF+3}], s3 offen sc0 sc1
    s_waitcnt vmcnt(0)
    v_readfirstlane_b32 s{sSpin}, v{vf}
    s_mov_b64 exec, -1
    s_cmp_eq_u32 s{sSpin}, 15
    s_cbranch_scc0 {lfd}
    v_mul_u32_u24 v{vfa}, {FS}, v{vl}
    v_add_u32 v{vfa}, {FL_G}, v{vfa}
    s_lshl_b32 s3, s{sC}, 2
    s_mov_b64 exec, {hex((1 << NREP) - 1)}
    buffer_store_dword v{vone}, v{vfa}, s[{srdF}:{srdF+3}], s3 offen sc1
    s_mov_b64 exec, -1
    """)
    k.place(lfd)
    k.stamp_l("f1set")
    if OPT['w2early']:
        w2_steps(order[OPT['w2a']:])
    k.e(f"""
    s_lshr_b32 s3, s{sRB2}, 1
    s_mul_i32 s3, s3, {FS}
    v_and_b32 v{q0}, 7, v{vl}
    v_lshlrev_b32 v{q0}, 2, v{q0}
    v_and_b32 v{vfa}, 12, v{q0}
    v_add_u32 v{vfa}, s3, v{vfa}
    """)
    poll(srdF, 1, tag="f1q", drain1=False)
    if OPT['pqtouch']:
        lpt = k.label("pqt")
        set_srd(k, srdA, ptr['ws'], S_ * 1536, WS_PQ)
        k.e(f"""
        s_cmp_eq_u32 s{sLW}, 1
        s_cbranch_scc1 {lpt}
        s_lshl_b32 s3, s{sRB2}, 2
        s_lshr_b32 s{sSpin}, s{sJ}, 3
        s_add_u32 s3, s3, s{sSpin}
        s_mul_i32 s3, s3, {32 * 768}
        v_lshlrev_b32 v{vfa}, 7, v{vl}
        buffer_load_dword v{k.vdummy}, v{vfa}, s[{srdA}:{srdA+3}], s3 offen sc1
        s_add_u32 s3, s3, 8192
        buffer_load_dword v{k.vdummy}, v{vfa}, s[{srdA}:{srdA+3}], s3 offen sc1
        s_add_u32 s3, s3, 8192
        buffer_load_dword v{k.vdummy}, v{vfa}, s[{srdA}:{srdA+3}], s3 offen sc1
        """)
        k.place(lpt)
    k.e(f"""
    s_and_b32 s3, s2, {NREP - 1}
    s_mul_i32 s3, s3, {FS}
    s_add_u32 s3, s3, {FL_G}
    v_add_u32 v{vfa}, s3, v{q0}
    """)
    k.e(f"s_cmp_eq_u32 s{sLW}, 1")
    lq1 = k.label("q1")
    k.e(f"s_cbranch_scc1 {lq1}")
    k.e(f"buffer_load_dword v{vf}, v{vfa}, s[{srdF}:{srdF+3}], 0 offen sc1")
    k.place(lq1)
    k.e("s_barrier")
    poll(srdF, 1, tag="f1k", drain1=False, first_issued=True)
    k.e("s_barrier")
    k.e(f"""
    s_lshr_b32 s{sP}, s{sRB2}, 1
    s_mul_i32 s{sP}, s{sP}, {FS}
    s_and_b32 s3, s{sRB2}, 1
    s_lshl_b32 s3, s3, 5
    s_add_u32 s{sP}, s{sP}, s3
    s_lshl_b32 s3, s{sCT2}, 2
    s_add_u32 s{sP}, s{sP}, s3
    s_barrier
    """)
    lrp = k.label("rp")
    k.e(f"""
    s_cmp_ge_u32 s{sRv}, 360
    s_cbranch_scc1 {lrp}
    s_mul_i32 s3, s{sRc}, {FS}
    v_mov_b32 v{rp[0]}, {FL_R}
    s_waitcnt vmcnt(0)
    s_mov_b64 exec, 1
    buffer_atomic_add v{vone}, v{rp[0]}, s[{srdF}:{srdF+3}], s3 offen sc1
    s_mov_b64 exec, -1
    """)
    k.place(lrp)
    if not OPT['w2early']:
        w2_steps(order[OPT['w2a']:])
    set_srd(k, srdA, ptr['ws'], S_ * D_ * 2, WS_H, bias=True)
    k.e(f"""
    s_mul_i32 s{sRow}, s{sRB2}, {64 * 2 * D_}
    s_add_u32 s{sRow}, s{sRow}, {BIAS if OPT['lean'] else 0}
    s_add_u32 s{sRow}, s{sRow}, s{sKW}
    s_mul_i32 s3, s{sLW}, 156
    s_add_u32 s{sRow}, s{sRow}, s3
    v_mul_u32_u24 v{vfa}, {2 * D_}, v{vl}
    """)
    k.release(m)
    mS = k.mark()
    Lskip3 = k.label("ldskip3")
    sRB3, sCT3 = dec3()
    ld = Loader(k, c3, vl, sLW)
    nx = 0
    if OPT['pretouch']:
        k.e(f"buffer_load_dword v{k.vdummy}, v{vfa}, s[{srdA}:{srdA+3}], s{sRow} offen sc1")
        nx += 1
    nx += w1warm('c')
    k.e(f"s_waitcnt vmcnt({nx})")
    k.e("s_barrier")
    k.e(f"""
    s_lshl_b32 s3, s{sCH}, 3
    s_lshr_b32 s{sSpin}, s{sJ}, 2
    s_add_u32 s3, s3, s{sSpin}
    s_mul_i32 s3, s3, {FS}
    s_add_u32 s3, s3, {FL_S}
    v_and_b32 v{vfa}, 3, v{vl}
    v_lshlrev_b32 v{vfa}, 2, v{vfa}
    v_add_u32 v{vfa}, s3, v{vfa}
    """)
    poll(srdF, 1, tag="fsok", drain1=False)
    set_srd(k, srdW, ptr['ws'], 32768, WS_CS3)
    csr = [k.v(4) for _ in range(4)]
    k.e(f"""
    s_lshl_b32 s3, s{sCH}, 12
    s_lshr_b32 s{sSpin}, s{sJ}, 2
    s_lshl_b32 s{sSpin}, s{sSpin}, 9
    s_add_u32 s3, s3, s{sSpin}
    s_lshl_b32 s{sSpin}, s{sLW}, 20
    s_add_u32 s3, s3, s{sSpin}
    v_and_b32 v{vfa}, 31, v{vl}
    v_lshlrev_b32 v{vfa}, 4, v{vfa}
    """)
    for q_ in range(4):
        k.e(f"buffer_load_dwordx4 {vr(csr[q_],4)}, v{vfa}, s[{srdW}:{srdW+3}], s3 offen sc1")
        k.e("s_add_u32 s3, s3, 8192")
    ng = w1warm('g')
    ld.patterns()
    k.e(f"s_mul_i32 s{sRow}, s{sRB3}, {128 * 2 * D_}")
    k.e(f"s_lshl_b32 s{sCol}, s{sCT3}, 8")
    ld.bases(sRow, sCol)
    set_srd(k, srdW, ptr['w1'], F_ * D_ * 2, bias=True)
    k.e("s_barrier")
    k.e(f"s_waitcnt vmcnt({ng})")
    for j in range(2):
        k.e(f"v_pk_add_f32 {vr(csr[0]+2*j,2)}, {vr(csr[0]+2*j,2)}, {vr(csr[1]+2*j,2)}")
        k.e(f"v_pk_add_f32 {vr(csr[2]+2*j,2)}, {vr(csr[2]+2*j,2)}, {vr(csr[3]+2*j,2)}")
        k.e(f"v_pk_add_f32 {vr(c3r+2*j,2)}, {vr(csr[0]+2*j,2)}, {vr(csr[2]+2*j,2)}")
    k.e("s_barrier")
    set_flag(sP, FL_2)
    k.stamp_l("f2set")
    Lidle3 = k.label("ldidle3")
    k.e(f"s_cmp_ge_u32 s{sJ}, 28")
    k.e(f"s_cbranch_scc1 {Lidle3}")
    ld.prefill_w(srdW, c3.SW)
    srdS2 = k.s(4)
    set_srd(k, srdS2, ptr['ws'], S_ * 64, WS_ST2)
    sp = [k.v(2) for _ in range(8)]
    vs2, vl2 = k.v(), k.v()
    sE5 = k.s()
    k.e(f"""
    v_and_b32 v{vl2}, 31, v{vl}
    v_lshlrev_b32 v{vl2}, 4, v{vl2}
    s_lshl_b32 s3, s{sLW}, 9
    s_add_u32 s3, s3, {P3_SCR + 1024}
    v_add_u32 v{vl2}, s3, v{vl2}
    ds_write_b128 v{vl2}, {vr(c3r,4)}
    s_lshl_b32 s3, s{sRB3}, 1
    s_add_u32 s3, s3, s{sLW}
    s_lshl_b32 s3, s3, 9
    v_lshlrev_b32 v{vl2}, 3, v{vl}
    v_add_u32 v{vs2}, s3, v{vl2}
    s_lshl_b32 s3, s{sLW}, 9
    s_add_u32 s3, s3, {P3_SCR}
    v_add_u32 v{vl2}, s3, v{vl2}
    """)

    def st2_load():
        k.e("s_mov_b32 s3, 0")
        for ct in range(8):
            k.e(f"buffer_load_dwordx2 {vr(sp[ct],2)}, v{vs2}, s[{srdS2}:{srdS2+3}], s3 offen sc1")
            k.e("s_add_u32 s3, s3, 16384")
        return 8

    def st2_fin():
        for ct in range(1, 8):
            k.e(f"v_pk_add_f32 {vr(sp[0],2)}, {vr(sp[0],2)}, {vr(sp[ct],2)}")
        k.e(f"""
        s_mov_b32 s3, {f32bits(1.0/640)}
        s_mov_b32 s{sE5}, {f32bits(1e-5)}
        v_mul_f32 v{sp[0]}, s3, v{sp[0]}
        v_mul_f32 v{sp[0]+1}, s3, v{sp[0]+1}
        v_fma_f32 v{sp[0]+1}, -v{sp[0]}, v{sp[0]}, v{sp[0]+1}
        v_max_f32 v{sp[0]+1}, 0, v{sp[0]+1}
        """)
        ln_finalize_multi(k, [sp[0]], [sp[0] + 1], sE5)
        k.e(f"ds_write_b64 v{vl2}, {vr(sp[0],2)}")
        k.e("s_waitcnt lgkmcnt(0)")
        return 0
    k.e(f"""
    s_mul_i32 s3, s{sRB3}, {FS}
    s_add_u32 s3, s3, {FL_2}
    v_and_b32 v{vfa}, 15, v{vl}
    v_lshlrev_b32 v{vfa}, 2, v{vfa}
    v_add_u32 v{vfa}, s3, v{vfa}
    """)
    def r_check():
        lp, lo = k.label("rchk"), k.label("rok")
        k.e(f"""
        s_mul_i32 s3, s{sCH}, {4 * FS}
        s_add_u32 s3, s3, {FL_R}
        v_and_b32 v{vfa}, 3, v{vl}
        v_mul_u32_u24 v{vfa}, {FS}, v{vfa}
        v_add_u32 v{vfa}, s3, v{vfa}
        s_mov_b32 s{sEx}, 0
        """)
        k.place(lp)
        k.e(f"""
        buffer_load_dword v{vf}, v{vfa}, s[{srdF}:{srdF+3}], 0 offen sc1
        s_waitcnt vmcnt(0)
        v_cmp_ne_u32 vcc, 45, v{vf}
        s_add_u32 s{sEx}, s{sEx}, 1
        s_nop 3
        s_cbranch_vccz {lo}
        s_cmp_gt_u32 s{sEx}, 0x40000
        s_cbranch_scc1 {k.end}
        s_sleep 16
        s_branch {lp}
        """)
        k.place(lo)

    poll(srdF, 1, tag="f2ok", drain1=False)
    lrc = k.label("rc")
    k.e(f"s_cmp_eq_u32 s{sLW}, 0")
    k.e(f"s_cbranch_scc1 {lrc}")
    r_check()
    k.place(lrc)
    k.e("s_barrier")

    def idle_warm():
        mm_ = k.mark()
        sCo = k.s()
        k.e(f"""
        s_lshl_b32 s{sCo}, s{sCH}, 2
        s_add_u32 s{sCo}, s{sCo}, s{sJ}
        s_sub_u32 s{sCo}, s{sCo}, 28
        s_mul_i32 s{sCo}, s{sCo}, {W2P_CT}
        s_add_u32 s{sCo}, s{sCo}, {WS_W2P}
        """)
        T = Touch(k, vl, 16, 2048)
        for it in range(17):
            T.unit(ptr['ws'], sCo, sLW, 2 * it, 135)
        k.release(mm_)

    def w1p(lst):
        def f():
            n = 0
            assert ld.issued >= 40 + 80
            for m in lst:
                for op in ld._W(m, srdW, coff=128):
                    ld.emit_op(op); n += 1
            return n
        return f
    ld.stream(srdA, srdW, aflags="sc1", tag="p3", hooks={0: st2_load, 5: st2_fin, 7: w1p([0, 1, 2]), 8: w1p([3, 4, 5]), 9: w1p([6, 7, 8])})
    w1p([9])()
    k.e(f"""
    s_mul_i32 s{sP}, s{sRB3}, {FS}
    s_lshl_b32 s3, s{sCT3}, 2
    s_add_u32 s{sP}, s{sP}, s3
    s_add_u32 s{sP}, s{sP}, {FL_3}
    s_mov_b32 s{sAct}, 1
    s_waitcnt vmcnt(20)
    s_barrier
    s_branch {Lskip3}
    """)
    k.place(Lidle3)
    k.e(f"s_mov_b32 s{sAct}, 0")
    k.release(mS)
    r_check()
    idle_warm()
    k.place(Lskip3)
    Lend, Lno3, Lno4 = k.label("ldend"), k.label("ldno3"), k.label("ldno4")
    sRB4, sCT4 = dec2()
    ld = Loader(k, c4, vl, sLW)
    ld.patterns()
    k.e(f"s_mul_i32 s{sRow}, s{sRB4}, {64 * 2 * F_}")
    k.e(f"s_mul_i32 s{sCol}, s{sCT4}, {W2P_CT}")
    ld.bases(sRow, sCol)
    set_srd(k, srdA, ptr['ws'], S_ * F_ * 2, WS_HH, bias=True)
    set_srd(k, srdW, ptr['ws'], 8 * W2P_CT, WS_W2P)
    ld.prefill_w(srdW, OPT['pf1'])
    k.e(f"""
    s_cmp_eq_u32 s{sAct}, 0
    s_cbranch_scc1 {Lno3}
    s_waitcnt vmcnt({5 * OPT['pf1']})
    s_barrier
    """)
    set_flag(sP, 0)
    k.stamp_l("f3set")
    k.place(Lno3)
    for m_ in range(OPT['pf1'], 6):
        for op in ld._W(m_, srdW):
            ld.emit_op(op)
    ld.pw = 6
    k.e(f"""
    s_cmp_eq_u32 s{sAct}, 0
    s_cbranch_scc1 {Lno4}
    s_barrier
    """)
    k.place(Lno4)
    k.e(f"""
    s_lshr_b32 s3, s{sRB4}, 1
    s_mul_i32 s3, s3, {FS}
    s_add_u32 s3, s3, {FL_3}
    v_and_b32 v{vfa}, 15, v{vl}
    v_min_u32 v{vfb}, 12, v{vfa}
    v_min_u32 v{vfa}, 13, v{vfa}
    v_lshlrev_b32 v{vfa}, 2, v{vfa}
    v_add_u32 v{vfa}, s3, v{vfa}
    v_lshlrev_b32 v{vfb}, 2, v{vfb}
    v_add_u32 v{vfb}, s3, v{vfb}
    v_add_u32 v{vfb}, 64, v{vfb}
    """)
    poll(srdF, 1, tag="f3ok", drain1=False, both=True)
    mk = {}

    def f3b_set():
        k.e(f"""
        s_and_b32 s3, s{sAct}, s{sLW}
        s_cmp_eq_u32 s3, 1
        s_cselect_b32 s3, 64, {OOB}
        v_mov_b32 v{vfa}, s3
        s_mov_b64 exec, 1
        buffer_store_dword v{vone}, v{vfa}, s[{srdF}:{srdF+3}], s{sP} offen sc1
        s_mov_b64 exec, -1
        """)
        return 1

    def f3b_issue():
        k.e(f"buffer_load_dword v{vf}, v{vfb}, s[{srdF}:{srdF+3}], 0 offen sc1")
        mk['n'] = ld.issued
        return 1

    def f3b_check():
        k.e(f"v_mov_b32 v{vfa}, v{vfb}")
        poll(srdF, 1, tag="f3bok", drain1=False, both=True, first_issued=True, younger=max(1, ld.issued - mk['n']) if ld.issued > mk['n'] else 0)
        return 0
    ld.stream(srdA, srdW, aflags="sc1", tag="p4", hooks={1: f3b_set, HB - 2: f3b_issue, HB: f3b_check})
    k.place(Lend)
    endwave()
    k.release(mL)

    k.lines.append('; @SEC svc')
    k.place(Lsvc)
    mV = k.mark()
    k.vtop = vLtop
    sS, sA, sB, sX8, sPi = (k.s() for _ in range(5))
    srdX, srdS, srdK, srdW_ = k.s(4), k.s(4), k.s(4), k.s(4)
    xr = [k.v(4) for _ in range(5)]
    ux = [k.v(2) for _ in range(20)]
    t0, t1, vs_, vq_ = k.v(), k.v(), k.v(2), k.v(2)
    z4 = k.v(4)
    k.e(f"""
    s_and_b32 s{sS}, s{sJ1}, 7
    s_and_b32 s{sX8}, s2, 7
    s_lshl_b32 s{sPi}, s{sX8}, 3
    s_add_u32 s{sPi}, s{sPi}, s{sS}
    s_lshl_b32 s{sA}, s{sPi}, 3
    s_add_u32 s{sA}, s{sA}, s{sWave}
    s_lshl_b32 s{sA}, s{sA}, 2
    v_lshrrev_b32 v{t0}, 4, v{vl}
    v_add_u32 v{t0}, s{sA}, v{t0}
    v_mul_u32_u24 v{t1}, {2*D_}, v{t0}
    v_and_b32 v{vs_}, 15, v{vl}
    v_lshl_add_u32 v{t1}, v{vs_}, 4, v{t1}
    s_waitcnt lgkmcnt(0)
    """)
    set_srd(k, srdX, ptr['x'], S_ * D_ * 2)
    for i in range(5):
        k.e(f"buffer_load_dwordx4 {vr(xr[i],4)}, v{t1}, s[{srdX}:{srdX+3}], 0 offen offset:{i*256}")
    set_srd(k, srdS, ptr['ws'], WS_FL - WS_ST1 + FL_BYTES, WS_ST1)
    set_srd(k, srdK, ptr['ws'], KV_BYTES, WS_KV)
    set_srd(k, srdW_, ptr['wqkv'], 3 * D_ * D_ * 2)
    k.e(f"""
    v_mov_b64 {vr(z4,2)}, 0
    v_mov_b64 {vr(z4+2,2)}, 0
    s_lshl_b32 s{sB}, s{sA}, 5
    v_lshlrev_b32 v{t1}, 4, v{vl}
    s_mov_b64 exec, 0xff
    buffer_store_dwordx4 {vr(z4,4)}, v{t1}, s[{srdK}:{srdK+3}], s{sB} offen sc1
    s_mov_b64 exec, 3
    s_lshr_b32 s{sB}, s{sA}, 4
    s_mul_i32 s{sB}, s{sB}, {FS}
    s_and_b32 s3, s{sWave}, 3
    s_lshl_b32 s3, s3, 5
    s_add_u32 s{sB}, s{sB}, s3
    s_add_u32 s{sB}, s{sB}, {WS_FL - WS_ST1}
    buffer_store_dwordx4 {vr(z4,4)}, v{t1}, s[{srdS}:{srdS+3}], s{sB} offen sc1
    s_mov_b64 exec, -1
    v_mov_b64 {vr(vs_,2)}, 0
    v_mov_b64 {vr(vq_,2)}, 0
    """)
    NB = 10
    wb = [k.v(4) for _ in range(NB)]
    ca = [[k.v(2) for _ in range(4)] for _ in range(2)]
    cu = k.v(2)
    vw, vw1, vlw, vlr, t2 = (k.v() for _ in range(5))
    sO, sO1 = k.s(), k.s()
    srdW1 = k.s(4)
    set_srd(k, srdW1, ptr['w1'], F_ * D_ * 2)
    k.e(f"""
    s_lshl_b32 s3, s{sS}, 1
    v_bfe_u32 v{t2}, v{vl}, 3, 1
    v_add_u32 v{t2}, s3, v{t2}
    v_min_u32 v{t2}, 14, v{t2}
    v_mul_u32_u24 v{vw}, 205, v{t2}
    v_lshrrev_b32 v{vw}, 10, v{vw}
    v_mul_u32_u24 v{vw}, 640, v{vw}
    v_lshl_add_u32 v{vw}, v{t2}, 7, v{vw}
    v_and_b32 v{t2}, 7, v{vl}
    v_lshl_add_u32 v{vw}, v{t2}, 4, v{vw}
    v_lshrrev_b32 v{t2}, 4, v{vl}
    v_mul_u32_u24 v{vw1}, {6 * D_}, v{t2}
    v_add_u32 v{vw}, v{vw}, v{vw1}
    s_mul_i32 s{sB}, s{sRQ}, 40
    s_add_u32 s{sB}, s{sB}, s{sWave}
    s_mul_i32 s{sO}, s{sB}, {4 * 6 * D_}
    s_mul_i32 s3, s{sCH}, 640
    s_add_u32 s{sO}, s{sO}, s3
    """)
    for it in range(5):
        k.e(f"buffer_load_dwordx4 {vr(wb[it],4)}, v{vw}, s[{srdW_}:{srdW_+3}], s{sO} offen")
        k.e(f"s_add_u32 s{sO}, s{sO}, {32 * 6 * D_}")
    k.e(f"""
    v_mul_u32_u24 v{vw1}, {2 * F_}, v{t2}
    v_and_b32 v{t2}, 15, v{vl}
    v_lshl_add_u32 v{vw1}, v{t2}, 4, v{vw1}
    s_mul_i32 s{sO1}, s{sB}, {4 * 2 * F_}
    s_min_u32 s3, s{sS}, 6
    s_mul_i32 s{sB}, s{sCH}, 7
    s_add_u32 s3, s3, s{sB}
    s_lshl_b32 s3, s3, 8
    s_add_u32 s{sO1}, s{sO1}, s3
    """)
    k.e(f"""
    v_lshlrev_b32 v{vlw}, 5, v{t2}
    s_lshl_b32 s3, s{sWave}, 9
    v_add_u32 v{vlw}, s3, v{vlw}
    v_lshlrev_b32 v{vlr}, 4, v{vl}
    """)
    sUv, sCo = k.s(), k.s()
    k.e(f"""
    s_lshl_b32 s{sUv}, s{sWave}, 3
    s_add_u32 s{sUv}, s{sUv}, s{sS}
    s_mul_i32 s{sCo}, s{sCH}, 640
    """)
    TWs = Touch(k, vl, 15, 6 * D_, seg5=True)
    u0 = 24 * OPT['hW']
    nX = 0
    if OPT['hX'] != 10:
        sRo2 = k.s()
        k.e(f"""
        s_xor_b32 s{sRo2}, s{sX8}, 1
        s_mul_i32 s{sRo2}, s{sRo2}, {256 * 2 * D_}
        """)
        TXs = Touch(k, vl, 16, 2048, share=TWs)
        TXs.unit(ptr['x'], sRo2, sUv, 0, 160)
        nX = 1
    nT = OPT['svT1']
    for it in range(nT):
        TWs.unit(ptr['wqkv'], sCo, sUv, u0 + 64 * it, 640)
    NB = 5 + nX + nT
    for i in range(5):
        p2_pat(i)()
    for i in range(5):
        k.e(f"s_waitcnt vmcnt({6 - i + NB})")
        for d in range(4):
            k.e(f"v_lshlrev_b32 v{ux[4*i+d]}, 16, v{xr[i]+d}")
            k.e(f"v_and_b32 v{ux[4*i+d]+1}, 0xffff0000, v{xr[i]+d}")
            k.e(f"v_pk_add_f32 {vr(vs_,2)}, {vr(vs_,2)}, {vr(ux[4*i+d],2)}")
    k.e(f"v_add_f32 v{vs_}, v{vs_}, v{vs_+1}")
    dpp_rowsum(k, vs_)
    k.e(f"s_mov_b32 s{sB}, {f32bits(1.0/640)}")
    k.e(f"v_mul_f32 v{vs_}, s{sB}, v{vs_}")
    for i in range(20):
        k.e(f"v_pk_add_f32 {vr(ux[i],2)}, {vr(ux[i],2)}, {vr(vs_,2)} op_sel_hi:[1,0] neg_lo:[0,1] neg_hi:[0,1]")
        k.e(f"v_pk_fma_f32 {vr(vq_,2)}, {vr(ux[i],2)}, {vr(ux[i],2)}, {vr(vq_,2)}")
    k.e(f"v_add_f32 v{vq_}, v{vq_}, v{vq_+1}")
    dpp_rowsum(k, vq_)
    k.e(f"v_mul_f32 v{vq_}, s{sB}, v{vq_}")
    k.e(f"s_mov_b32 s{sB}, {f32bits(1e-5)}")
    ln_finalize_multi(k, [vs_], [vq_], sB)
    k.e(f"""
    v_lshrrev_b32 v{t1}, 7, v{t0}
    v_and_b32 v{t0}, 127, v{t0}
    v_lshlrev_b32 v{t0}, 2, v{t0}
    v_lshl_add_u32 v{t0}, v{t1}, 10, v{t0}
    s_mov_b32 exec_lo, 0x00010001
    s_mov_b32 exec_hi, 0x00010001
    buffer_store_dword v{vs_}, v{t0}, s[{srdS}:{srdS+3}], 0 offen sc1
    buffer_store_dword v{vq_}, v{t0}, s[{srdS}:{srdS+3}], 0 offen offset:512 sc1
    s_mov_b64 exec, -1
    """)

    def cs_sum(younger, nowait=False):
        for a in ca[0]:
            k.e(f"v_mov_b64 {vr(a,2)}, 0")
        if nowait:
            l_ = k.label("csw")
            k.e(f"s_and_b32 s3, s{sWave}, 6")
            k.e(f"s_cmp_eq_u32 s3, 4")
            k.e(f"s_cbranch_scc1 {l_}")
            k.e("s_waitcnt vmcnt(0)")
            k.place(l_)
        for it in range(5):
            if not nowait:
                k.e(f"s_waitcnt vmcnt({4 - it + younger})")
            for d in range(4):
                k.e(f"v_lshlrev_b32 v{cu}, 16, v{wb[it] + d}")
                k.e(f"v_and_b32 v{cu+1}, 0xffff0000, v{wb[it] + d}")
                k.e(f"v_pk_add_f32 {vr(ca[0][d],2)}, {vr(ca[0][d],2)}, {vr(cu,2)}")

    def cs_pub(off_ws, lds_off):
        vals = [a + i for a in ca[0] for i in range(2)]
        allreduce4_multi(k, vals, [wb[i // 4] + i % 4 for i in range(8)])
        for h in range(4):
            k.e(f"ds_write_b64 v{vlw}, {vr(ca[0][h],2)} offset:{lds_off + 8*h}")
        k.e("s_waitcnt lgkmcnt(0)")
        k.e("s_barrier")
        lsk = k.label("csk")
        k.e(f"s_cmp_lg_u32 s{sWave}, 0")
        k.e(f"s_cbranch_scc1 {lsk}")
        for w in range(8):
            k.e(f"ds_read_b128 {vr(wb[w],4)}, v{vlr} offset:{lds_off + 512*w}")
        k.e(f"""
        s_lshl_b32 s3, s{sPi}, 9
        s_add_u32 s3, s3, {off_ws - WS_ST1}
        s_waitcnt lgkmcnt(0)
        """)
        for w in range(1, 8):
            for j in range(2):
                k.e(f"v_pk_add_f32 {vr(wb[0]+2*j,2)}, {vr(wb[0]+2*j,2)}, {vr(wb[w]+2*j,2)}")
        k.e("s_mov_b32 exec_hi, 0")
        k.e(f"buffer_store_dwordx4 {vr(wb[0],4)}, v{vlr}, s[{srdS}:{srdS+3}], s3 offen sc1")
        k.e("s_mov_b64 exec, -1")
        k.e("s_nop 1")
        k.place(lsk)
    cs_sum(nT + nX + 2)
    k.stamp_c("p1_pre")
    cs_pub(WS_CS1, 0)
    set_srd(k, srdX, ptr['dbg'], 256)
    k.e("s_waitcnt vmcnt(0)")
    k.e("s_barrier")
    lf = k.label("svf")
    k.e(f"""
    s_cmp_eq_u32 s{sWave}, 7
    s_cbranch_scc0 {lf}
    s_lshl_b32 s3, s{sPi}, {1 if OPT['diag'] else 2}
    v_mov_b32 v{t0}, s3
    v_mov_b32 v{t1}, 1
    s_mov_b64 exec, 1
    {'buffer_store_short' if OPT['diag'] else 'buffer_store_dword'} v{t1}, v{t0}, s[{srdX}:{srdX+3}], 0 offen {'offset:128' if OPT['diag'] else ''} sc1
    s_mov_b64 exec, -1
    """)
    k.place(lf)
    k.stamp_c("p1_b0")
    k.e("s_barrier")
    n2 = 0
    while u0 + 64 * (nT + n2) < 160:
        TWs.unit(ptr['wqkv'], sCo, sUv, u0 + 64 * (nT + n2), 640, skip=True); n2 += 1
    T5 = Touch(k, vl, 5, 2 * D_, share=TWs)
    if OPT['svwo']:
        T5.unit(ptr['wo'], sCo, sUv, 0, 640, skip=True)
    else:
        T5.unit(ptr['wo'], sCo, sUv, 48, 640, skip=True)
    for it in range(5):
        k.e(f"buffer_load_dwordx4 {vr(wb[it],4)}, v{vw1}, s[{srdW1}:{srdW1+3}], s{sO1} offen")
        k.e(f"s_add_u32 s{sO1}, s{sO1}, {32 * 2 * F_}")
    T14 = Touch(k, vl, 14, 2 * F_, share=TWs)
    k.e(f"s_mul_i32 s{sB}, s{sCH}, {13 * 128}")
    for it in range(OPT['svw1']):
        T14.unit(ptr['w1'], sB, sUv, 64 * it, 640)
    cs_sum(OPT['svw1'])
    cs_pub(WS_CS3, 4096)
    for it in range(OPT['svw2']):
        T5.unit(ptr['w2'], sCo, sUv, 64 * it, 1728)
    k.e("s_waitcnt vmcnt(0)")
    k.stamp_c("p1_loop")
    k.e(f"s_mov_b32 s{sSvc}, 1")
    k.e(f"s_branch {Lrole}")
    k.release(mV)

    k.lines.append('; @SEC cons')
    k.place(Lc)
    sW0, sW1 = k.s(), k.s()
    sA = k.s(2, 2)
    sB = sA + 1
    sEps = k.s(2, 2)
    srd0, srd1, srd2 = k.s(4), k.s(4), k.s(4)
    k.e(f"""
    s_and_b32 s{sW0}, s{sWave}, 1
    s_lshr_b32 s{sW1}, s{sWave}, 1
    s_mov_b32 s{sEps}, {f32bits(1e-6)}
    s_mov_b32 s{sEps+1}, {f32bits(1e-6)}
    """)
    mC = k.mark()
    sG, sC, sTy = dec1()
    Lq, Lp1done, Lqs, Lsj, Lsv2 = (k.label(x) for x in ("consq", "p1done", "qset", "setj", "sv2"))
    srdK = srd0
    k.e("s_waitcnt lgkmcnt(0)")
    set_srd(k, srdK, ptr['ws'], KV_BYTES, WS_KV)
    k.e(f"s_cmp_eq_u32 s{sTy}, 2")
    k.e(f"s_cbranch_scc1 {Lsv2}")
    mP1 = k.mark()
    ar = [k.v() for _ in range(11)]
    va = {(vi, ki): ar[2 * vi + ki] for vi in range(2) for ki in range(2)}
    vz, vrd, vat = ar[4:6], ar[6], ar[7:11]
    ad, vso = [[ar[2 * hh], ar[2 * hh + 1]] for hh in range(4)], ar[8]
    m1 = k.mark()
    sB2 = k.s()
    vd, ve = [k.v(), k.v()], [k.v(), k.v()]
    voob, t1 = k.v(), k.v()
    sM = k.s(2)
    k.e(f"s_cmp_eq_u32 s{sTy}, 1")
    k.e(f"s_cbranch_scc1 {Lqs}")
    k.e(f"""
    s_movk_i32 s{sB2}, 504
    s_lshl_b32 s{sA}, s{sWave}, 2
    v_and_b32 v{t1}, 15, v{vl}
    v_subrev_u32 v{vd[0]}, s{sA}, v{t1}
    v_add_u32 v{vd[1]}, 16, v{vd[0]}
    v_lshrrev_b32 v{t1}, 4, v{vl}
    v_lshlrev_b32 v{t1}, 2, v{t1}
    v_subrev_u32 v{ve[0]}, s{sA}, v{t1}
    v_add_u32 v{ve[1]}, 16, v{ve[0]}
    v_mov_b32 v{voob}, 2048
    """)
    for vi in range(2):
        for ki in range(2):
            k.e(f"""
            v_mul_u32_u24 v{t1}, 24, v{ve[vi]}
            v_add_lshl_u32 v{t1}, v{t1}, v{vd[ki]}, 2
            v_cmp_gt_u32 vcc, 20, v{ve[vi]}
            v_cmp_gt_u32 s[{sM}:{sM+1}], 20, v{vd[ki]}
            s_nop 1
            s_and_b64 vcc, vcc, s[{sM}:{sM+1}]
            s_nop 1
            v_cndmask_b32 v{va[(vi,ki)]}, v{voob}, v{t1}, vcc
            """)
    for ki in range(2):
        k.e(f"""
        v_lshlrev_b32 v{t1}, 2, v{vd[ki]}
        v_add_u32 v{t1}, {20*96}, v{t1}
        v_cmp_gt_u32 vcc, 16, v{vl}
        v_cmp_gt_u32 s[{sM}:{sM+1}], 20, v{vd[ki]}
        s_nop 1
        s_and_b64 vcc, vcc, s[{sM}:{sM+1}]
        s_nop 1
        v_cndmask_b32 v{vz[ki]}, v{voob}, v{t1}, vcc
        """)
    assert P1_AT + 4 * 2560 <= LDS_TOTAL
    k.e(f"s_mul_i32 s{sA}, s{sWave}, 2560")
    k.e(f"s_add_u32 s{sA}, s{sA}, {P1_AT}")
    for x in list(va.values()) + vz:
        k.e(f"v_add_u32 v{x}, s{sA}, v{x}")
    k.e(f"v_lshl_add_u32 v{vrd}, v{vl}, 2, s{sA}")
    k.e(f"v_mov_b32 v{voob}, {OOB}")
    for n, base in enumerate((0, 64, 128, 448)):
        k.e(f"""
        v_add_u32 v{t1}, {base}, v{vl}
        v_mul_u32_u24 v{vd[0]}, 2731, v{t1}
        v_lshrrev_b32 v{vd[0]}, 16, v{vd[0]}
        v_mul_u32_u24 v{vd[0]}, 24, v{vd[0]}
        v_sub_u32 v{vd[0]}, v{t1}, v{vd[0]}
        v_cmp_gt_u32 vcc, 20, v{vd[0]}
        v_cmp_gt_u32 s[{sM}:{sM+1}], s{sB2}, v{t1}
        v_lshlrev_b32 v{t1}, 2, v{t1}
        s_nop 0
        s_and_b64 vcc, vcc, s[{sM}:{sM+1}]
        s_nop 1
        v_cndmask_b32 v{vat[n]}, v{voob}, v{t1}, vcc
        """)
    k.e(f"s_branch {Lsj}")
    k.place(Lqs)

    vb, vc, t0 = vd[0], vd[1], ve[0]
    k.e(f"""
    s_mul_i32 s{sA}, s{sW1}, 20480
    s_mul_i32 s{sB}, s{sW0}, 5120
    s_add_u32 s{sA}, s{sA}, s{sB}
    v_lshlrev_b32 v{vso}, 4, v{vl}
    v_mov_b32 v{ar[9]}, {OOB}
    v_mov_b32 v{ar[10]}, {OOB}
    v_and_b32 v{vb}, 3, v{vl}
    v_lshlrev_b32 v{vb}, 8, v{vb}
    v_add_u32 v{vb}, s{sA}, v{vb}
    v_lshrrev_b32 v{t0}, 4, v{vl}
    v_min_u32 v{t0}, 2, v{t0}
    v_bfe_u32 v{vc}, v{vl}, 2, 2
    v_lshl_add_u32 v{vc}, v{t0}, 3, v{vc}
    v_cmp_gt_u32 vcc, 2, v{t0}
    s_nop 1
    v_cndmask_b32 v{t1}, 0, 4, vcc
    """)
    for hh in range(4):
        for hf in range(2):
            a = ad[hh][hf]
            k.e(f"v_add_u32 v{t0}, {20*hh}, v{vc}")
            if hf:
                k.e(f"v_add_u32 v{t0}, v{t0}, v{t1}")
            k.e(f"""
            v_lshrrev_b32 v{a}, 4, v{t0}
            v_lshl_add_u32 v{a}, v{a}, 10, v{vb}
            v_and_b32 v{t0}, 15, v{t0}
            v_lshl_add_u32 v{a}, v{t0}, 4, v{a}
            """)
    k.place(Lsj)
    k.release(m1)
    vc0, vc2, vc3, vst, vx0, vx2, vxr = (k.v() for _ in range(7))
    ones = k.v(4)
    sX0, sX3 = k.s(), k.s()
    k.e(f"""
    s_cmp_eq_u32 s{sTy}, 1
    s_cselect_b32 s{sX0}, 5, 3
    s_cselect_b32 s{sX3}, 3, 5
    s_mul_i32 s{sX0}, s{sX0}, s{sW0}
    s_add_u32 s{sX3}, s{sX3}, s{sX0}
    v_and_b32 v{vc0}, 15, v{vl}
    v_lshlrev_b32 v{vc0}, 2, v{vc0}
    v_add_u32 v{vc0}, {P1_ST + 1024}, v{vc0}
    s_mul_i32 s{sA}, s{sW0}, 320
    v_add_u32 v{vc2}, s{sA}, v{vc0}
    s_lshl_b32 s{sA}, s{sX3}, 6
    v_add_u32 v{vc3}, s{sA}, v{vc0}
    s_lshl_b32 s{sA}, s{sX0}, 6
    v_add_u32 v{vc0}, s{sA}, v{vc0}
    v_lshrrev_b32 v{vst}, 4, v{vl}
    v_lshlrev_b32 v{vst}, 4, v{vst}
    s_lshl_b32 s{sA}, s{sW1}, 8
    s_add_u32 s{sA}, s{sA}, {P1_ST}
    v_add_u32 v{vst}, s{sA}, v{vst}
    v_lshlrev_b32 v{vxr}, 4, v{vl}
    s_mul_i32 s{sA}, s{sW1}, 20480
    s_lshl_b32 s{sB}, s{sX0}, 10
    s_add_u32 s{sB}, s{sB}, s{sA}
    v_add_u32 v{vx0}, s{sB}, v{vxr}
    s_mul_i32 s{sB}, s{sW0}, 5120
    s_add_u32 s{sB}, s{sB}, s{sA}
    v_add_u32 v{vx2}, s{sB}, v{vxr}
    s_lshl_b32 s{sA}, s{sWave}, 10
    v_add_u32 v{vxr}, s{sA}, v{vxr}
    """)
    for x in (sX0, sX3):
        k.e(f"""
        s_cmp_ge_u32 s{x}, 5
        s_cselect_b32 s3, {2560 - 160}, 0
        s_lshl_b32 s{x}, s{x}, 5
        s_add_u32 s{x}, s{x}, s3
        """)
    ckv.mixed = (sX0, sX3)
    for j in range(4):
        k.e(f"v_mov_b32 v{ones+j}, 0x3f803f80")
    o = consumer_setup(k, ckv, sW1, sW0, vl)
    k.e(f"s_mov_b32 s{sA}, {f32bits(LOG2E)}")
    k.e(f"s_mov_b32 s{sB}, {f32bits(LOG2E)}")
    consumer_loop(k, o, None, tag="p1")
    tp = k.v(2)
    cs = [k.v(2) for _ in range(5)]
    stm = [k.v(4) for _ in range(4)]
    str_ = [k.v(4) for _ in range(4)]
    r2 = [k.v(4) for _ in range(4)]
    fr = [k.v(4), k.v(4)]
    Dz = [k.v(4), k.v(4)]
    k.e("s_barrier")
    k.stamp_c("p1_e1")
    co = [0, 64, 128, 0, 64]
    for nt in range(5):
        k.e(f"ds_read_b32 v{cs[nt]}, v{[vc0, vc0, vc2, vc3, vc3][nt]} offset:{co[nt]}")
    for mt in range(4):
        k.e(f"ds_read_b128 {vr(stm[mt],4)}, v{vst} offset:{mt*64}")
    for mt in range(4):
        k.e(f"ds_read_b128 {vr(str_[mt],4)}, v{vst} offset:{512 + mt*64}")
    for mt in range(4):
        k.e(f"s_waitcnt lgkmcnt({7 - mt})")
        for nt in range(5):
            a = o.acc[mt][nt]
            for j in range(2):
                k.e(f"v_pk_fma_f32 {vr(a+2*j,2)}, {vr(stm[mt]+2*j,2)}, {vr(cs[nt],2)}, {vr(a+2*j,2)} op_sel_hi:[1,0,1] neg_lo:[1,0,0] neg_hi:[1,0,0]")
    k.e("s_waitcnt lgkmcnt(0)")
    assert sB == sA + 1 and sA % 2 == 0
    for mt in range(4):
        for j in range(2):
            k.e(f"v_pk_mul_f32 {vr(r2[mt]+2*j,2)}, {vr(str_[mt]+2*j,2)}, s[{sA}:{sA+1}]")
    xo = [0, 1, 2, 5, 6]

    def fin_tile(nt, is_k, xo=xo):
        for tg in range(2):
            for mt in (2 * tg, 2 * tg + 1):
                for j in range(2):
                    a = o.acc[mt][nt] + 2 * j
                    if is_k:
                        phi_pair(k, a, str_[mt] + 2 * j, r2[mt] + 2 * j, sEps, tp)
                    else:
                        k.e(f"v_pk_mul_f32 {vr(a,2)}, {vr(a,2)}, {vr(str_[mt]+2*j,2)}")
            f = fr[tg]
            for i, mt in enumerate((2 * tg, 2 * tg + 1)):
                a = o.acc[mt][nt]
                k.e(f"v_cvt_pk_bf16_f32 v{f + 2*i}, v{a}, v{a+1}")
                k.e(f"v_cvt_pk_bf16_f32 v{f + 2*i + 1}, v{a+2}, v{a+3}")
            k.e(f"ds_write_b128 v{vx2 if nt == 2 else vx0}, {vr(f,4)} offset:{tg*10240 + xo[nt]*1024}")
    for nt in (0, 1):
        fin_tile(nt, True)
    Lv, Lj, Lk2 = k.label("vpath"), k.label("vjoin"), k.label("k2")
    k.e(f"s_cmp_eq_u32 s{sTy}, 1")
    k.e(f"s_cbranch_scc1 {Lq}")
    for nt in (3, 4):
        fin_tile(nt, False)
    k.e(f"s_cmp_eq_u32 s{sW0}, 1")
    k.e(f"s_cbranch_scc1 {Lv}")
    fin_tile(2, True)
    k.e(f"s_branch {Lj}")
    k.place(Lv)
    fin_tile(2, False)
    k.place(Lj)
    k.e(f"""
    s_lshl_b32 s{sA}, s{sC}, 2
    s_add_u32 s{sA}, s{sA}, s{sWave}
    s_lshl_b32 s{sA}, s{sA}, 11
    s_waitcnt lgkmcnt(0)
    s_barrier
    """)
    k.stamp_c("p1_e2")
    accs = [o.acc[mt][nt] for mt in range(4) for nt in range(5)]
    F = {}
    idx = 0
    for tg in range(4):
        for nm, off in (("k0", 0), ("k1", 1), ("v0", 5), ("v1", 6)):
            F[(tg, nm)] = accs[idx]; idx += 1
            if idx == 16:
                k.e("s_waitcnt lgkmcnt(11)")
            k.e(f"ds_read_b128 {vr(F[(tg, nm)],4)}, v{vxr} offset:{tg*10240 + off*1024}")
    Dk = {(vi, ki): accs[16 + 2 * vi + ki] for vi in range(2) for ki in range(2)}
    for tg in range(4):
        k.e(f"s_waitcnt lgkmcnt({12 - 4*tg})")
        for vi in range(2):
            for ki in range(2):
                d = Dk[(vi, ki)]
                k.e(f"v_mfma_f32_16x16x32_bf16 {vr(d,4)}, {vr(F[(tg, f'v{vi}')],4)}, {vr(F[(tg, f'k{ki}')],4)}, " + ("0" if tg == 0 else vr(d, 4)))
        for ki in range(2):
            d = Dz[ki]
            k.e(f"v_mfma_f32_16x16x32_bf16 {vr(d,4)}, {vr(ones,4)}, {vr(F[(tg, f'k{ki}')],4)}, " + ("0" if tg == 0 else vr(d, 4)))
    k.e("s_nop 3")
    for vi in range(2):
        for ki in range(2):
            for j in range(4):
                k.e(f"ds_write_b32 v{va[(vi,ki)]}, v{Dk[(vi,ki)]+j} offset:{j*96}")
            if (vi, ki) == (1, 0):
                k.e("s_waitcnt lgkmcnt(6)")
    for ki in range(2):
        k.e(f"ds_write_b32 v{vz[ki]}, v{Dz[ki]}")
    k.e("s_waitcnt lgkmcnt(0)")
    for n in range(8):
        k.e(f"ds_read_b32 v{accs[n // 4] + n % 4}, v{vrd} offset:{n*256}")
    for n in range(8):
        k.e(f"s_waitcnt lgkmcnt({7 - n})")
        k.e(f"buffer_atomic_add_f32 v{accs[n // 4] + n % 4}, v{vat[n % 3] if n < 7 else vat[3]}, s[{srdK}:{srdK+3}], s{sA} offen offset:{(n // 3) * 768 if n < 7 else 0}")
    k.e(f"s_branch {Lp1done}")
    k.place(Lq)
    srdP = srd1
    set_srd(k, srdP, ptr['ws'], S_ * 1536, WS_PQ)
    sQ = k.s()
    k.e(f"""
    s_lshl_b32 s{sQ}, s{sG}, 1
    s_add_u32 s{sQ}, s{sQ}, s{sW1}
    s_lshl_b32 s{sQ}, s{sQ}, 4
    s_add_u32 s{sQ}, s{sQ}, s{sC}
    s_lshl_b32 s{sQ}, s{sQ}, 1
    s_add_u32 s{sQ}, s{sQ}, s{sW0}
    s_mul_i32 s{sQ}, s{sQ}, {4 * 768}
    """)
    qb = [stm[0], stm[1], stm[2], stm[3]]

    def q_rd(hh):
        k.e("s_waitcnt lgkmcnt(0)")
        for i in range(4):
            for hf in range(2):
                k.e(f"ds_read_b64_tr_b16 {vr(o.acc[i][hh] + 2*hf, 2)}, v{ad[hh][hf]} offset:{(i // 2) * 10240 + 8 * (i % 2)}")

    def q_st(hh, pend):
        k.e(f"s_waitcnt lgkmcnt({pend})")
        k.e("s_mov_b32 exec_hi, 0xffff")
        for i in range(4):
            k.e(f"s_add_u32 s3, s{sQ}, {i * 32 * 768}")
            k.e(f"buffer_store_dwordx4 {vr(o.acc[i][hh],4)}, v{vso}, s[{srdP}:{srdP+3}], s3 offen offset:{hh*768} sc1")
        k.e("s_mov_b64 exec, -1")
    xq = [0, 1, 2, 3, 4]
    for hh in range(4):
        q_rd(hh)
        if hh < 3:
            fin_tile(hh + 2, True, xo=xq)
            q_st(hh, 2)
        else:
            q_st(hh, 0)
        if hh == 1:
            k.e("s_barrier")
    k.stamp_c("p1_e2")
    k.e(f"s_branch {Lp1done}")
    k.release(mP1)
    k.place(Lsv2)
    k.e("s_barrier")
    k.e("s_barrier")
    k.e(f"s_branch {Lp1done}")
    k.lines.append('; @SEC cons2')
    k.place(Lp1done)
    k.stamp_c("p1_st")
    k.release(mC)
    sRB, sCT = dec2()
    PQ = [k.v(64, 4), k.v(64, 4)]
    big = k.v(80, 4)
    xr = [k.v(4), k.v(4), k.v(2)]
    cE = k.v(4)
    vO, vO2, vrow, vPq, vKa, vKb, vW, vW2, vXw, vXr, t0, t1, t2 = (k.v() for _ in range(13))
    sM = k.s(2)
    k.e(f"""
    s_lshl_b32 s{sA}, s{sRB}, 6
    s_lshl_b32 s{sB}, s{sW0}, 5
    s_add_u32 s{sA}, s{sA}, s{sB}
    s_lshl_b32 s{sB}, s{sW1}, 4
    s_add_u32 s{sA}, s{sA}, s{sB}
    v_and_b32 v{t2}, 15, v{vl}
    v_add_u32 v{vrow}, s{sA}, v{t2}
    v_mul_u32_u24 v{vO}, {2*D_}, v{vrow}
    s_mul_i32 s{sA}, s{sCT}, 160
    v_add_u32 v{vO}, s{sA}, v{vO}
    v_lshrrev_b32 v{t1}, 4, v{vl}
    v_lshl_add_u32 v{vO2}, v{t1}, 3, v{vO}
    v_bfe_u32 v{t0}, v{vl}, 4, 1
    v_lshl_add_u32 v{vO}, v{t0}, 5, v{vO}
    v_lshrrev_b32 v{t0}, 5, v{vl}
    v_lshl_add_u32 v{vO}, v{t0}, 4, v{vO}
    v_cmp_eq_u32 vcc, 3, v{t1}
    v_lshrrev_b32 v{t0}, 2, v{t2}
    v_add_u32 v{vKa}, v{t0}, v{t2}
    v_cndmask_b32 v{vPq}, v{t1}, 1, vcc
    v_lshlrev_b32 v{vPq}, 8, v{vPq}
    v_lshl_add_u32 v{vPq}, v{t2}, 4, v{vPq}
    v_mul_u32_u24 v{vKb}, 5, v{t0}
    v_add_u32 v{vKb}, 4, v{vKb}
    v_and_b32 v{t0}, 3, v{t2}
    v_cmp_eq_u32 s[{sM}:{sM+1}], 0, v{t0}
    v_mov_b32 v{t0}, 20
    s_nop 0
    v_cndmask_b32 v{vKb}, v{t0}, v{vKb}, s[{sM}:{sM+1}]
    v_mul_u32_u24 v{vKa}, 48, v{vKa}
    v_mul_u32_u24 v{vKb}, 48, v{vKb}
    v_lshl_add_u32 v{vKa}, v{t1}, 4, v{vKa}
    v_lshl_add_u32 v{vKb}, v{t1}, 4, v{vKb}
    v_mov_b32 v{t0}, 1008
    v_cndmask_b32 v{vKa}, v{vKa}, v{t0}, vcc
    v_cndmask_b32 v{vKb}, v{vKb}, v{t0}, vcc
    s_lshl_b32 s{sA}, s{sW1}, 14
    s_add_u32 s{sA}, s{sA}, {L_KV}
    v_add_u32 v{vKa}, s{sA}, v{vKa}
    v_add_u32 v{vKb}, s{sA}, v{vKb}
    v_bfe_u32 v{t0}, v{vl}, 2, 3
    v_lshrrev_b32 v{t1}, 5, v{vl}
    v_mul_u32_u24 v{t1}, 2560, v{t1}
    v_mul_u32_u24 v{t0}, 160, v{t0}
    v_add_u32 v{vW}, v{t1}, v{t0}
    v_and_b32 v{t0}, 3, v{vl}
    v_lshl_add_u32 v{vW}, v{t0}, 3, v{vW}
    s_mul_i32 s{sA}, s{sW1}, 51200
    s_add_u32 s{sA}, s{sA}, {L_W2}
    v_add_u32 v{vW}, s{sA}, v{vW}
    s_mul_i32 s{sA}, s{sWave}, 5120
    s_add_u32 s{sA}, s{sA}, {L_X2}
    v_lshlrev_b32 v{t0}, 4, v{vl}
    v_add_u32 v{vXw}, s{sA}, v{t0}
    s_xor_b32 s{sA}, s{sWave}, 2
    s_mul_i32 s{sA}, s{sA}, 5120
    s_add_u32 s{sA}, s{sA}, {L_X2}
    v_add_u32 v{vXr}, s{sA}, v{t0}
    v_lshlrev_b32 v{vW2}, 4, v0
    v_lshlrev_b32 v{t2}, 3, v0
    s_lshl_b32 s{sA}, s{sJ}, 11
    v_add_u32 v{t2}, s{sA}, v{t2}
    v_and_b32 v{t2}, 0x7fff, v{t2}
    v_mov_b32 v{cE}, 0
    v_mov_b32 v{cE+1}, s{sEps}
    v_mov_b64 {vr(cE+2,2)}, 0
    """)
    srdX, srdP = srd2, srd1
    set_srd(k, srdX, ptr['x'], S_ * D_ * 2)
    set_srd(k, srdP, ptr['ws'], S_ * 1536, WS_PQ)
    k.e(f"buffer_load_dwordx4 {vr(xr[0],4)}, v{vO}, s[{srdX}:{srdX+3}], 0 offen")
    k.e(f"buffer_load_dwordx4 {vr(xr[1],4)}, v{vO}, s[{srdX}:{srdX+3}], 0 offen offset:64")
    k.e(f"buffer_load_dwordx2 {vr(xr[2],2)}, v{vO2}, s[{srdX}:{srdX+3}], 0 offen offset:128")
    k.e(f"""
    s_lshl_b32 s{sA}, s{sRB}, 2
    s_lshl_b32 s{sB}, s{sW0}, 1
    s_add_u32 s{sA}, s{sA}, s{sB}
    s_add_u32 s{sA}, s{sA}, s{sW1}
    s_xor_b32 s{sB}, s{sA}, 1
    s_lshl_b32 s{sA}, s{sA}, 1
    s_add_u32 s{sA}, s{sA}, s{sW1}
    s_mul_i32 s{sA}, s{sA}, {16 * 768}
    s_lshl_b32 s{sB}, s{sB}, 1
    s_add_u32 s{sB}, s{sB}, s{sW1}
    s_mul_i32 s{sB}, s{sB}, {16 * 768}
    s_waitcnt vmcnt(3)
    s_barrier
    """)
    k.stamp_c("p1_e3")
    sKo = k.s()
    pql = []
    for h in range(16):
        pre = []
        if h % 5 == 0 and h:
            pre = [f"s_add_u32 s{sA}, s{sA}, {5 * 768}", f"s_add_u32 s{sB}, s{sB}, {5 * 768}"]
        for i, sx in enumerate((sA, sB)):
            pql.append(pre + [f"buffer_load_dwordx4 {vr(PQ[i] + 4*h, 4)}, v{vPq}, s[{srdP}:{srdP+3}], s{sx} offen offset:{(h % 5) * 768} sc1"])
            pre = []
    k.e("s_barrier")
    k.stamp_c("p2_q")
    lead = OPT['pqq']
    for x in pql[:lead]:
        k.emit_list(x)
    k.e("s_barrier")
    k.stamp_c("p2_k")
    k.e(f"s_lshl_b32 s{sKo}, s{sJ}, 12")
    for i in range(16):
        k.e(f"s_and_b32 s{sKo}, s{sKo}, 0xffff")
        k.e(f"buffer_load_dwordx4 {vr(big + 4*i, 4)}, v{vW2}, s[{srdK}:{srdK+3}], s{sKo} offen sc1")
        k.e(f"s_add_u32 s{sKo}, s{sKo}, 4096")
    npq = 0
    for i in range(16):
        r = big + 4 * i
        k.e(f"s_waitcnt vmcnt({15 - i + npq})")
        k.e(f"v_cvt_pk_bf16_f32 v{r}, v{r}, v{r+1}")
        k.e(f"v_cvt_pk_bf16_f32 v{r+1}, v{r+2}, v{r+3}")
        k.e(f"ds_write_b64 v{t2}, {vr(r,2)}")
        k.e(f"v_add_u32 v{t2}, 2048, v{t2}")
        k.e(f"v_and_b32 v{t2}, 0x7fff, v{t2}")
        if i == 7:
            k.e("s_waitcnt lgkmcnt(4)")
        if i >= 8 and lead < 32:
            k.emit_list(pql[lead]); lead += 1; npq += 1
    k.e("s_waitcnt lgkmcnt(0)")
    k.e("s_barrier")
    k.stamp_c("p2_c")
    for x in pql[lead:]:
        k.emit_list(x)
    fka = [[big + 0, big + 4], [big + 8, big + 12]]
    fkb = [[big + 16, big + 20], [big + 24, big + 28]]
    Da = [[big + 32, big + 36], [big + 40, big + 44]]
    Db = [[big + 48, big + 52], [big + 56, big + 60]]

    def rd(p_):
        b = p_ % 2
        for i in range(2):
            h = 2 * p_ + i
            k.e(f"ds_read_b128 {vr(fkb[b][i],4)}, v{vKb} offset:{h*1024}")
            k.e(f"ds_read_b128 {vr(fka[b][i],4)}, v{vKa} offset:{h*1024}")

    def mm(u):
        p_, ti = u // 2, u % 2
        b = p_ % 2
        if ti == 0:
            k.e(f"s_waitcnt vmcnt({31 - (4 * p_ + 3)})")
        for i in range(2):
            h = 2 * p_ + i
            k.e(f"v_mfma_f32_16x16x32_bf16 {vr(Db[ti][i],4)}, {vr(fkb[b][i],4)}, {vr(PQ[ti] + 4*h,4)}, {vr(cE,4)}")
            k.e(f"v_mfma_f32_16x16x32_bf16 {vr(Da[ti][i],4)}, {vr(fka[b][i],4)}, {vr(PQ[ti] + 4*h,4)}, 0")

    def fin(u):
        p_, ti = u // 2, u % 2
        for i in range(2):
            k.e(f"v_rcp_f32 v{Db[ti][i]+1}, v{Db[ti][i]+1}")
        vals = []
        for i in range(2):
            a, d = Da[ti][i], Db[ti][i]
            k.e(f"v_pk_mul_f32 {vr(a,2)}, {vr(a,2)}, {vr(d,2)} op_sel:[0,1]")
            k.e(f"v_pk_mul_f32 {vr(a+2,2)}, {vr(a+2,2)}, {vr(d,2)} op_sel:[0,1]")
            k.e(f"v_mul_f32 v{d}, v{d}, v{d+1}")
            vals += [a, a + 1, a + 2, a + 3, d]
        for d in range(5):
            k.e(f"v_cvt_pk_bf16_f32 v{PQ[ti] + 5*p_ + d}, v{vals[2*d]}, v{vals[2*d+1]}")
    rd(0)
    rd(1)
    k.e("s_waitcnt lgkmcnt(4)")
    mm(0)
    for u in range(16):
        if u + 1 < 16:
            if (u + 1) % 2 == 0:
                k.e(f"s_waitcnt lgkmcnt({4 if (u + 1) // 2 + 1 < 8 else 0})")
            mm(u + 1)
            if (u + 1) % 2 == 1 and (u + 1) // 2 + 2 < 8:
                rd((u + 1) // 2 + 2)
            else:
                k.e("s_nop 3")
        else:
            k.e("s_nop 3")
        fin(u)
    k.stamp_c("p2_o")
    k.e("s_barrier")
    acc = [[big + 40 + 20 * ti + 4 * i for i in range(5)] for ti in range(2)]
    fw = [[big + 4 * i for i in range(5)], [big + 20 + 4 * i for i in range(5)]]

    def wrd(s):
        return [f"ds_read_b64_tr_b16 {vr(fw[s & 1][nt] + 2*h, 2)}, v{vW} offset:{s * 5120 + h * 1280 + nt * 32}" for nt in range(5) for h in range(2)]
    k.emit_list(wrd(0))
    for s in range(10):
        r = wrd(s + 1) if s + 1 < 10 else []
        issued = 0
        for nt in range(5):
            k.e(f"s_waitcnt lgkmcnt({8 - 2*nt + issued})")
            for ti in range(2):
                k.e(f"v_mfma_f32_16x16x32_bf16 {vr(acc[ti][nt],4)}, {vr(fw[s & 1][nt],4)}, {vr(PQ[ti] + 4*s,4)}, " + ("0" if s == 0 else vr(acc[ti][nt], 4)))
                if r:
                    k.e(r[2 * nt + ti]); issued += 1
    srdH, srdS = srd1, srd2
    set_srd(k, srdH, ptr['ws'], S_ * D_ * 2, WS_H)
    set_srd(k, srdS, ptr['ws'], S_ * 64, WS_ST2)
    k.stamp_c("p2_g")
    for nt in range(5):
        k.e(f"ds_write_b128 v{vXw}, {vr(acc[1][nt],4)} offset:{nt*1024}")
    vs_, vq_, u = big + 20, big + 22, big + 24
    k.e(f"v_mov_b64 {vr(vs_,2)}, 0")
    k.e(f"v_mov_b64 {vr(vq_,2)}, 0")
    k.e("s_waitcnt lgkmcnt(0)")
    k.e("s_barrier")
    for nt in range(5):
        k.e(f"ds_read_b128 {vr(fw[0][nt],4)}, v{vXr} offset:{nt*1024}")
    pk = [big + 28, big + 32, big + 36]
    for nt in range(5):
        a = acc[0][nt]
        k.e(f"s_waitcnt lgkmcnt({4 - nt})")
        k.e(f"v_pk_add_f32 {vr(a,2)}, {vr(a,2)}, {vr(fw[0][nt],2)}")
        k.e(f"v_pk_add_f32 {vr(a+2,2)}, {vr(a+2,2)}, {vr(fw[0][nt]+2,2)}")
        d = pk[nt // 2] + 2 * (nt & 1)
        k.e(f"v_cvt_pk_bf16_f32 v{d}, v{a}, v{a+1}")
        k.e(f"v_cvt_pk_bf16_f32 v{d+1}, v{a+2}, v{a+3}")
    for pr in range(2):
        k.e(f"v_permlane16_swap_b32 v{pk[pr]}, v{pk[pr]+2}")
        k.e(f"v_permlane16_swap_b32 v{pk[pr]+1}, v{pk[pr]+3}")
    for pr in range(3):
        for d in range(4 if pr < 2 else 2):
            r, x = pk[pr] + d, xr[pr] + d
            k.e(f"""
            v_lshlrev_b32 v{u}, 16, v{r}
            v_and_b32 v{u+1}, 0xffff0000, v{r}
            v_lshlrev_b32 v{u+2}, 16, v{x}
            v_and_b32 v{u+3}, 0xffff0000, v{x}
            v_pk_add_f32 {vr(u,2)}, {vr(u,2)}, {vr(u+2,2)}
            v_cvt_pk_bf16_f32 v{r}, v{u}, v{u+1}
            """)
        if pr < 2:
            k.e(f"buffer_store_dwordx4 {vr(pk[pr],4)}, v{vO}, s[{srdH}:{srdH+3}], 0 offen offset:{pr*64} sc1")
        else:
            k.e(f"buffer_store_dwordx2 {vr(pk[pr],2)}, v{vO2}, s[{srdH}:{srdH+3}], 0 offen offset:128 sc1")
    for pr in range(3):
        for d in range(4 if pr < 2 else 2):
            r = pk[pr] + d
            k.e(f"""
            v_lshlrev_b32 v{u}, 16, v{r}
            v_and_b32 v{u+1}, 0xffff0000, v{r}
            v_pk_add_f32 {vr(vs_,2)}, {vr(vs_,2)}, {vr(u,2)}
            v_pk_fma_f32 {vr(vq_,2)}, {vr(u,2)}, {vr(u,2)}, {vr(vq_,2)}
            """)
    k.e(f"v_add_f32 v{vs_}, v{vs_}, v{vs_+1}")
    k.e(f"v_add_f32 v{vs_+1}, v{vq_}, v{vq_+1}")
    allreduce4_multi(k, [vs_, vs_ + 1], [t0, t1])
    k.e(f"""
    v_lshlrev_b32 v{vrow}, 3, v{vrow}
    s_lshl_b32 s{sA}, s{sCT}, 14
    s_mov_b64 exec, 0xffff
    buffer_store_dwordx2 {vr(vs_,2)}, v{vrow}, s[{srdS}:{srdS+3}], s{sA} offen sc1
    s_mov_b64 exec, -1
    """)
    k.stamp_c("p2_st")
    k.release(mC)
    Lp4c = k.label("p4c")
    sRB, sCT = dec3()
    c = c3
    vO, vSt, vCs, vA0, vA1, t0, t1, t2 = (k.v() for _ in range(8))
    vW = [k.v() for _ in range(4)]
    st = [k.v(2) for _ in range(2)]
    acc = [[k.v(4) for _ in range(4)] for _ in range(2)]
    fw = [[k.v(4) for _ in range(4)] for _ in range(2)]
    AR = [[k.v(4) for _ in range(2)] for _ in range(20)]
    k.e("s_waitcnt vmcnt(0)")
    k.e("s_barrier")
    k.stamp_c("p2_e")
    k.e(f"s_cmp_ge_u32 s{sJ}, 28")
    k.e(f"s_cbranch_scc1 {Lp4c}")
    srdO = srd1
    set_srd(k, srdO, ptr['ws'], S_ * F_ * 2, WS_HH)
    k.e(f"""
    v_and_b32 v{t0}, 15, v{vl}
    v_lshrrev_b32 v{t1}, 4, v{vl}
    v_lshlrev_b32 v{vSt}, 3, v{t0}
    s_lshl_b32 s{sA}, s{sWave}, 8
    s_add_u32 s{sA}, s{sA}, {P3_SCR}
    v_add_u32 v{vSt}, s{sA}, v{vSt}
    v_lshlrev_b32 v{vCs}, 4, v{t1}
    v_add_u32 v{vCs}, {P3_SCR + 1024}, v{vCs}
    v_and_b32 v{t2}, 6, v{t0}
    v_xor_b32 v{t2}, v{t2}, v{t1}
    v_lshlrev_b32 v{t2}, 4, v{t2}
    v_lshl_add_u32 v{vA0}, v{t0}, 7, v{t2}
    s_lshl_b32 s{sA}, s{sWave}, 12
    s_add_u32 s{sA}, s{sA}, {c.baseA}
    v_add_u32 v{vA0}, s{sA}, v{vA0}
    v_xor_b32 v{vA1}, 64, v{vA0}
    v_mul_u32_u24 v{vO}, {2*F_}, v{t0}
    v_bfe_u32 v{t0}, v{vl}, 4, 1
    v_lshl_add_u32 v{vO}, v{t0}, 5, v{vO}
    v_lshrrev_b32 v{t0}, 5, v{vl}
    v_lshl_add_u32 v{vO}, v{t0}, 4, v{vO}
    s_lshl_b32 s{sA}, s{sRB}, 7
    s_lshl_b32 s{sB}, s{sWave}, 5
    s_add_u32 s{sA}, s{sA}, s{sB}
    s_mul_i32 s{sA}, s{sA}, {2*F_}
    s_lshl_b32 s{sB}, s{sCT}, 8
    s_add_u32 s{sA}, s{sA}, s{sB}
    v_add_u32 v{vO}, s{sA}, v{vO}
    v_bfe_u32 v{t1}, v{vl}, 2, 3
    v_mul_u32_u24 v{t0}, {c.r16b}, v{t0}
    v_lshl_add_u32 v{t0}, v{t1}, 7, v{t0}
    v_and_b32 v{t2}, 3, v{vl}
    v_lshl_add_u32 v{t0}, v{t2}, 3, v{t0}
    v_lshrrev_b32 v{t1}, 1, v{t1}
    s_mov_b32 s{sB}, {16 * 2 * F_}
    """)
    for j in range(4):
        k.e(f"v_xor_b32 v{t2}, {j}, v{t1}")
        k.e(f"v_lshl_add_u32 v{vW[j]}, v{t2}, 5, v{t0}")
    wbase = [0]

    def rds(n):
        ps, s_, t = n // 20, (n % 20) // 2, n & 1
        out = []
        want = 40960 if s_ >= 5 else 0
        if want != wbase[0]:
            d = want - wbase[0]
            out += [f"v_add_u32 v{x}, {d & 0xffffffff}, v{x}" for x in vW]
            wbase[0] = want
        npre = len(out)
        if ps == 0:
            out += [f"ds_read_b128 {vr(AR[n][mt],4)}, v{vA1 if t else vA0} offset:{(s_ % 4) * 16384 + mt * 2048}" for mt in range(2)]
        for nt in range(4):
            for h in range(2):
                out.append(f"ds_read_b64_tr_b16 {vr(fw[n & 1][nt] + 2*h, 2)}, v{vW[nt]} offset:{s_ * 8192 - want + t * 4096 + h * 1024}")
        return out[:npre], out[npre:]

    def blk(n, nxt):
        na = 2 if n < 20 else 0
        nprev = na + 8
        pre, rd = rds(nxt) if nxt is not None else ([], [])
        k.emit_list(pre)
        issued = 0
        j = 0
        for nt in range(4):
            k.e(f"s_waitcnt lgkmcnt({nprev - (na + 2*nt + 2) + issued})")
            for mt in range(2):
                a = acc[mt][nt]
                k.e(f"v_mfma_f32_16x16x32_bf16 {vr(a,4)}, {vr(fw[n & 1][nt],4)}, {vr(AR[n % 20][mt],4)}, " + ("0" if n % 20 == 0 else vr(a, 4)))
                j += 1
                want = min(len(rd), -(-j * len(rd) * 100 // (8 * OPT['rf3'])))
                while issued < want:
                    k.e(rd[issued]); issued += 1

    def epi(ps):
        cs3 = fw[0]
        for mt in range(2):
            k.e(f"ds_read_b64 {vr(st[mt],2)}, v{vSt} offset:{mt*128}")
        k.e("s_nop 2")
        for nt in range(4):
            k.e(f"ds_read_b128 {vr(cs3[nt],4)}, v{vCs} offset:{ps*256 + nt*64}")
        k.e("s_waitcnt lgkmcnt(0)")
        Lns = k.label("p3ns")
        if ps == 1:
            k.e(f"s_cmp_eq_u32 s{sCT}, 13")
            k.e(f"s_cbranch_scc1 {Lns}")
        for mt in range(2):
            for pr in range(2):
                a0, a1 = acc[mt][2*pr], acc[mt][2*pr+1]
                for a, nt in ((a0, 2*pr), (a1, 2*pr+1)):
                    for j in range(2):
                        k.e(f"v_pk_fma_f32 {vr(a+2*j,2)}, {vr(cs3[nt]+2*j,2)}, {vr(st[mt],2)}, {vr(a+2*j,2)} op_sel_hi:[1,0,1] neg_lo:[0,1,0] neg_hi:[0,1,0]")
                    for j in range(2):
                        k.e(f"v_pk_mul_f32 {vr(a+2*j,2)}, {vr(a+2*j,2)}, {vr(st[mt],2)} op_sel:[0,1]")
                pk = fw[1][2 * mt + pr]
                k.e(f"""
                v_cvt_pk_bf16_f32 v{pk}, v{a0}, v{a0+1}
                v_cvt_pk_bf16_f32 v{pk+2}, v{a1}, v{a1+1}
                v_cvt_pk_bf16_f32 v{pk+1}, v{a0+2}, v{a0+3}
                v_cvt_pk_bf16_f32 v{pk+3}, v{a1+2}, v{a1+3}
                v_permlane16_swap_b32 v{pk}, v{pk+2}
                s_nop 0
                v_permlane16_swap_b32 v{pk+1}, v{pk+3}
                v_pk_max_i16 v{pk}, v{pk}, 0
                v_pk_max_i16 v{pk+2}, v{pk+2}, 0
                v_pk_max_i16 v{pk+1}, v{pk+1}, 0
                v_pk_max_i16 v{pk+3}, v{pk+3}, 0
                buffer_store_dwordx4 {vr(pk,4)}, v{vO}, s[{srdO}:{srdO+3}], {'s%d' % sB if mt else '0'} offen offset:{ps*128 + pr*64} sc1
                """)
        k.place(Lns)
    k.e("s_barrier")
    k.stamp_c("p3_pre")
    k.e("s_barrier")
    k.stamp_c("p3_b0")
    k.emit_list(rds(0)[1])
    for s_ in range(10):
        blk(2 * s_, 2 * s_ + 1)
        k.e("s_waitcnt lgkmcnt(0)")
        k.e("s_barrier")
        blk(2 * s_ + 1, 2 * s_ + 2 if s_ < 9 else None)
    k.stamp_c("p3_loop")
    epi(0)
    k.e("s_barrier")
    k.stamp_c("p3_st")
    fw3 = [AR[0][0], AR[0][1], AR[1][0], AR[1][1]]
    buf = {20: fw[0], 21: fw[1], 22: fw[0], 23: fw[1]}
    rot = [fw3, fw[0], fw[1]]
    for n in range(24, 40):
        buf[n] = rot[(n - 24) % 3]

    def rds1(n):
        s_, t = (n % 20) // 2, n & 1
        pre = []
        want = 40960 if s_ >= 5 else 0
        if want != wbase[0]:
            pre = [f"v_add_u32 v{x}, {(want - wbase[0]) & 0xffffffff}, v{x}" for x in vW]
            wbase[0] = want
        return pre + [f"ds_read_b64_tr_b16 {vr(buf[n][nt] + 2*h, 2)}, v{vW[nt]} offset:{s_ * 8192 - want + t * 4096 + h * 1024}" for nt in range(4) for h in range(2)]
    sched = {20: [], 21: [22], 22: [23, 24]}
    for n in range(23, 40):
        sched[n] = [n + 2] if n + 2 < 40 else []
    k.emit_list(rds1(20) + rds1(21))
    pend = [20] * 8 + [21] * 8
    for n in range(20, 40):
        if n == 20 + 2 * OPT['m1at'] + 1:
            k.e("s_waitcnt vmcnt(0)")
            k.e("s_barrier")
        if n == 38:
            k.e("s_waitcnt lgkmcnt(0)")
            k.e("s_barrier")
        rd = [(x, m_) for m_ in sched[n] for x in rds1(m_)]
        assert all((m_ % 20) // 2 <= 4 for _, m_ in rd) or n >= 20 + 2 * OPT['m1at'] + 1
        issued = 0
        j = 0
        for nt in range(4):
            idx = [i for i, x in enumerate(pend) if x == n]
            if idx:
                done = idx[min(len(idx) - 1, 2 * nt + 1 - (8 - len(idx)))] + 1 if 2 * nt + 1 - (8 - len(idx)) >= 0 else 0
                if done:
                    k.e(f"s_waitcnt lgkmcnt({min(15, len(pend) - done)})")
                    pend = pend[done:]
            for mt in range(2):
                a = acc[mt][nt]
                k.e(f"v_mfma_f32_16x16x32_bf16 {vr(a,4)}, {vr(buf[n][nt],4)}, {vr(AR[n % 20][mt],4)}, " + ("0" if n == 20 else vr(a, 4)))
                j += 1
                want = -(-j * len(rd) // 8)
                while issued < want:
                    k.e(rd[issued][0])
                    if rd[issued][0].startswith("ds_"):
                        pend.append(rd[issued][1])
                    issued += 1
    epi(1)
    k.stamp_c("p3_e")
    k.place(Lp4c)
    k.release(mC)
    Lcend = k.label("cend")
    sRB, sCT = dec2()
    c = c4
    srdH, srdO = srd1, srd2
    set_srd(k, srdH, ptr['ws'], S_ * D_ * 2, WS_H)
    set_srd(k, srdO, ptr['out'], S_ * D_ * 2)
    vO, vO2, t0, t1 = (k.v() for _ in range(4))
    hr = [[k.v(4), k.v(2)] for _ in range(2)]
    k.e(f"""
    s_lshl_b32 s{sA}, s{sRB}, 6
    s_lshl_b32 s{sB}, s{sW1}, 5
    s_add_u32 s{sA}, s{sA}, s{sB}
    v_and_b32 v{t0}, 15, v{vl}
    v_add_u32 v{t0}, s{sA}, v{t0}
    v_mul_u32_u24 v{vO}, {2*D_}, v{t0}
    s_mul_i32 s{sA}, s{sCT}, 160
    s_lshl_b32 s{sB}, s{sW0}, 6
    s_add_u32 s{sA}, s{sA}, s{sB}
    v_add_u32 v{vO}, s{sA}, v{vO}
    v_lshrrev_b32 v{t1}, 4, v{vl}
    v_lshl_add_u32 v{vO2}, v{t1}, 3, v{vO}
    v_bfe_u32 v{t0}, v{vl}, 4, 1
    v_lshl_add_u32 v{vO}, v{t0}, 5, v{vO}
    v_lshrrev_b32 v{t0}, 5, v{vl}
    v_lshl_add_u32 v{vO}, v{t0}, 4, v{vO}
    s_movk_i32 s{sB}, {16 * 2 * D_}
    """)

    def h_loads():
        for mt in range(2):
            so = f"s{sB}" if mt else "0"
            k.e(f"buffer_load_dwordx4 {vr(hr[mt][0],4)}, v{vO}, s[{srdH}:{srdH+3}], {so} offen sc1")
            k.e(f"buffer_load_dwordx2 {vr(hr[mt][1],2)}, v{vO2}, s[{srdH}:{srdH+3}], {so} offen offset:64 sc1")
    o = consumer_setup(k, c, sW1, sW0, vl)
    h_loads()
    consumer_loop(k, o, None, tag="p4")
    pk = [[k.v(4), k.v(2)] for _ in range(2)]
    u = k.v(4)
    for mt in range(2):
        for nt in range(3):
            a = o.acc[mt][nt]
            d = pk[mt][nt // 2] + 2 * (nt & 1)
            k.e(f"v_cvt_pk_bf16_f32 v{d}, v{a}, v{a+1}")
            k.e(f"v_cvt_pk_bf16_f32 v{d+1}, v{a+2}, v{a+3}")
    k.e("s_waitcnt vmcnt(0)")
    for mt in range(2):
        k.e(f"v_permlane16_swap_b32 v{pk[mt][0]}, v{pk[mt][0]+2}")
        k.e(f"v_permlane16_swap_b32 v{pk[mt][0]+1}, v{pk[mt][0]+3}")
    fl = 'sc1' if OPT['outsc1'] else ''
    Lno = k.label("p4n")
    for pr in range(2):
        if pr == 1:
            k.e(f"s_cmp_eq_u32 s{sW0}, 0")
            k.e(f"s_cbranch_scc1 {Lno}")
        for mt in range(2):
            so = f"s{sB}" if mt else "0"
            for d in range(4 if pr == 0 else 2):
                r, x = pk[mt][pr] + d, hr[mt][pr] + d
                k.e(f"""
                v_lshlrev_b32 v{u}, 16, v{r}
                v_and_b32 v{u+1}, 0xffff0000, v{r}
                v_lshlrev_b32 v{u+2}, 16, v{x}
                v_and_b32 v{u+3}, 0xffff0000, v{x}
                v_pk_add_f32 {vr(u,2)}, {vr(u,2)}, {vr(u+2,2)}
                v_cvt_pk_bf16_f32 v{r}, v{u}, v{u+1}
                """)
            if pr == 0:
                k.e(f"buffer_store_dwordx4 {vr(pk[mt][0],4)}, v{vO}, s[{srdO}:{srdO+3}], {so} offen {fl}")
            else:
                k.e(f"buffer_store_dwordx2 {vr(pk[mt][1],2)}, v{vO2}, s[{srdO}:{srdO+3}], {so} offen offset:64 {fl}")
    k.place(Lno)
    k.stamp_c("p4_st")
    if OPT['diag']:
        ld_ = k.label("dg")
        names = ["p1_pre", "p1_b0", "p1_loop", "p1_e1", "p1_e2", "p1_e3", "p2_q", "p2_k", "p2_c", "p2_g", "p2_e", "p3_b0", "p3_loop", "p3_e", "p4_b0", "p4_loop"]
        set_srd(k, srd0, ptr['dbg'], 256)
        k.e(f"s_cmp_eq_u32 s2, {OPT['diag']}")
        k.e(f"s_cbranch_scc0 {ld_}")
        k.e(f"s_cmp_eq_u32 s{sWave}, 0")
        k.e(f"s_cbranch_scc0 {ld_}")
        k.e("s_mov_b64 exec, 1")
        k.e("v_mov_b32 v1, 0")
        for i, n in enumerate(names):
            k.e(f"s_sub_u32 s3, s{68 + k.stamps['c'][n]}, s68")
            k.e("v_mov_b32 v2, s3")
            k.e(f"buffer_store_dword v2, v1, s[{srd0}:{srd0+3}], 0 offen offset:{4*i}")
        k.e("s_mov_b64 exec, -1")
        k.place(ld_)
    k.place(Lcend)
    endwave()
    k.place(k.end)
    k.place(k.name + "_last")
    k.e("s_endpgm")
    secs, cur = {"head": []}, "head"
    for ln in k.lines:
        if ln.startswith("; @SEC "):
            cur = ln.split()[-1]; secs[cur] = []
        else:
            secs[cur].append(ln)
    order_ = list(OPT['secs'])
    if not OPT['hfirst']:
        order_ = ['head', 'head2', 'help', 'head3'] + order_[1:]
    k.lines = [ln for n in order_ for ln in secs[n]]
    return k


def write(k, path, header=""):
    out = header + f"; @launch grid=(256,1,1) block=(512,1,1) lds={LDS_TOTAL}\n"
    out += '.amdgcn_target "amdgcn-amd-amdhsa--gfx950"\n.text\n' + k.text() + '.section .rodata,"a"\n' + k.descriptor()
    open(path, "w").write(out)
    if k.prof3:
        json.dump(k.stamps, open(path + ".json", "w"))


def hdr():
    ref = open('sequential_preLN__linear_attn_block__dense_activation_relu__prompt.s.ref').read()
    return "".join(l + "\n" for l in ref.splitlines()[:10])


if __name__ == "__main__":
    write(gen(False), 'k7.s', hdr())
    write(gen(True), 'k7_prof.s', hdr())
    g3.DBG.update(nodma=True)
    write(gen(True), 'k7_nodma.s', hdr())
    g3.DBG.update(nodma=False, nomma=True)
    write(gen(True), 'k7_nomma.s', hdr())
```

```python
from asmlib import *

OOB = 0x7FF00000
BIAS = 4096
DBG = dict(nodma=False, nomma=False)


class Cfg:
    def __init__(self, BM, NS, lda, ldw, wl, SA, SW, baseA, baseW, WM, WN, transposed, colsum, H, nseg=1, segd=0,
                 wait_span=4, read_frac=90, mixed=False, rel=2, lean=True, H0=None, wlead=None, wraps=(), smap=None, afterA=None, afterW=None, vmwait=False, wfirst=0, dyn=None):
        self.__dict__.update(locals())
        self.abytes = BM * 128
        if wl == 'odd':
            self.r16b = 5120
            self.BN = 160
            self.w_r16_instr = 5 if nseg == 2 else 3
        elif wl == 'lin':
            self.r16b = 2560
            self.BN = 80
            self.w_r16_instr = 2.5
        elif wl == 'x16':
            self.r16b = 4096
            self.BN = 128
            self.w_r16_instr = 4
        else:
            self.r16b = 2048
            self.BN = 64
            self.w_r16_instr = 2
        self.wbytes = 4 * self.r16b
        self.MT = BM // 16 // WM
        self.NT = self.BN // 16 // WN
        if wl == 'lin' and WN == 2:
            self.NT = 3
        self.nA = BM // 16
        self.nW = int(2 * self.w_r16_instr)
        self.wstage = self.wbytes if wl == 'lin' else 64 * ldw
        self.smap = smap or (lambda j: j)
        self.afterA = afterA or (lambda j: -99)
        self.afterW = afterW or (lambda j: -99)
        self.endA = baseA + SA * self.abytes
        self.endW = baseW + SW * self.wbytes


class Loader:
    def __init__(self, k, c, vl, sLW):
        self.k, self.c, self.vl, self.sLW = k, c, vl, sLW
        self.issued = 0
        self.out = 0

    def patterns(self, between=None):
        k, c, vl = self.k, self.c, self.vl
        t0, t1, t2 = k.v(), k.v(), k.v()
        self.sT = sT = k.s()
        self.vA = vA = k.v()
        k.e(f"""
        v_lshrrev_b32 v{t0}, 3, v{vl}
        v_and_b32 v{t1}, 6, v{t0}
        v_and_b32 v{t2}, 7, v{vl}
        v_xor_b32 v{t1}, v{t1}, v{t2}
        v_lshlrev_b32 v{t1}, 4, v{t1}
        s_mov_b32 s{sT}, {c.lda}
        v_mad_u32_u24 v{vA}, v{t0}, s{sT}, v{t1}
        """)
        if c.lean:
            self.vAs = [vA] + [k.v() for _ in range(c.nA - 1)]
            for i in range(c.nA - 1, -1, -1):
                k.e(f"v_add_u32 v{self.vAs[i]}, {i * 8 * c.lda + BIAS - (i % 4) * 1024}, v{vA}")
            self.sT2 = k.s()
        if between:
            between()
        k.e(f"s_mov_b32 s{self.sT2 if c.lean else sT}, {c.ldw}")
        if c.lean:
            sT = self.sT2
        wins = []
        if c.wl == 'lin':
            self.vLin = k.v()
            k.e(f"v_lshlrev_b32 v{self.vLin}, 4, v{vl}")
            self.wins = []
            return
        if c.wl == 'odd':
            tot = 160 * c.nseg
            for mI in range(c.w_r16_instr):
                vW = k.v()
                k.e(f"""
                v_add_u32 v{t0}, {64*mI}, v{vl}
                v_mul_u32_u24 v{t1}, 205, v{t0}
                v_lshrrev_b32 v{t1}, 11, v{t1}
                v_mul_u32_u24 v{t2}, 10, v{t1}
                v_sub_u32 v{t2}, v{t0}, v{t2}
                v_lshlrev_b32 v{vW}, 4, v{t2}
                """)
                if c.nseg == 2:
                    k.e(f"""
                    v_lshrrev_b32 v{t2}, 4, v{t1}
                    v_mul_u32_u24 v{t2}, {c.segd}, v{t2}
                    v_add_u32 v{vW}, v{vW}, v{t2}
                    """)
                k.e(f"""
                v_and_b32 v{t2}, 3, v{t1}
                v_and_b32 v{t0}, 4, v{t1}
                v_lshl_or_b32 v{t2}, v{t0}, 1, v{t2}
                v_and_b32 v{t0}, 8, v{t1}
                v_lshrrev_b32 v{t0}, 1, v{t0}
                v_or_b32 v{t2}, v{t2}, v{t0}
                v_mad_u32_u24 v{vW}, v{t2}, s{sT}, v{vW}
                """)
                if 64 * (mI + 1) > tot:
                    k.e(f"""
                    v_cmp_gt_u32 vcc, {tot - 64*mI}, v{vl}
                    v_mov_b32 v{t0}, {OOB}
                    s_nop 0
                    v_cndmask_b32 v{vW}, v{t0}, v{vW}, vcc
                    """)
                wins.append((vW, 0, mI * 1024))
        elif c.wl == 'x16':
            pats = []
            for par in range(2):
                vW = k.v()
                k.e(f"""
                v_lshrrev_b32 v{t0}, 4, v{vl}
                v_bfe_u32 v{t1}, v{vl}, 1, 3
                v_xor_b32 v{t1}, v{t1}, v{t0}
                v_xor_b32 v{t1}, {4*par}, v{t1}
                v_and_b32 v{t2}, 1, v{vl}
                v_lshl_or_b32 v{t1}, v{t1}, 1, v{t2}
                v_lshlrev_b32 v{t1}, 4, v{t1}
                v_mad_u32_u24 v{vW}, v{t0}, s{sT}, v{t1}
                """)
                pats.append(vW)
            for mI in range(4):
                wins.append((pats[mI & 1], 8 * (mI & 1) + 4 * (mI >> 1), mI * 1024))
        else:
            vW = k.v()
            k.e(f"""
            v_bfe_u32 v{t1}, v{vl}, 1, 2
            v_lshrrev_b32 v{t0}, 4, v{vl}
            v_xor_b32 v{t1}, v{t1}, v{t0}
            v_and_b32 v{t2}, 1, v{vl}
            v_lshl_or_b32 v{t1}, v{t1}, 1, v{t2}
            v_lshlrev_b32 v{t1}, 4, v{t1}
            v_lshrrev_b32 v{t0}, 5, v{vl}
            v_bfe_u32 v{t2}, v{vl}, 3, 2
            v_lshl_or_b32 v{t0}, v{t0}, 3, v{t2}
            v_mad_u32_u24 v{vW}, v{t0}, s{sT}, v{t1}
            """)
            for mI in range(2):
                wins.append((vW, 4 * mI, mI * 1024))
        self.wins = wins
        if c.lean:
            self.vWs = []
            n = 0
            for r in range(2):
                for (vW, ro, lo) in wins:
                    x = k.v()
                    k.e(f"v_add_u32 v{x}, {(r * 16 + ro) * c.ldw + BIAS - ((r * c.r16b + lo) // 1024 % 4) * 1024}, v{vW}")
                    self.vWs.append(x)

    def bases(self, sRow, sCol):
        k, c, sLW, sT = self.k, self.c, self.sLW, self.sT
        self.sKA, self.sKW, self.sLA, self.sLWd = k.s(), k.s(), k.s(), k.s()
        k.e(f"""
        s_mul_i32 s{sT}, s{sLW}, {c.nA * 8 * c.lda}
        s_add_u32 s{self.sKA}, s{sRow}, s{sT}
        s_mul_i32 s{sT}, s{sLW}, {c.wstage // 2}
        s_add_u32 s{self.sKW}, s{sCol}, s{sT}
        s_mul_i32 s{self.sLA}, s{sLW}, {c.nA * 1024}
        s_mul_i32 s{self.sLWd}, s{sLW}, {2 * c.r16b}
        """)

    def rotate(self, sWrap):
        k, c = self.k, self.c
        self.sWrap = sWrap
        k.e(f"""
        s_sub_u32 s{self.sT}, {c.NS}, s{sWrap}
        s_lshl_b32 s{self.sT2}, s{self.sT}, 7
        s_add_u32 s{self.sKA}, s{self.sKA}, s{self.sT2}
        s_mul_i32 s{self.sT2}, s{self.sT}, {c.wstage}
        s_add_u32 s{self.sKW}, s{self.sKW}, s{self.sT2}
        """)

    def dyn_off(self, j, sDst, sBase, unit, extra=0):
        j0, n, mul, plus = self.c.dyn(j)
        return [f"s_add_u32 s{sDst}, s{self.sRot}, {j0}",
                f"s_cmp_ge_u32 s{sDst}, {n}",
                f"s_cselect_b32 s3, {n}, 0",
                f"s_sub_u32 s{sDst}, s{sDst}, s3",
                f"s_mul_i32 s{sDst}, s{sDst}, {mul * unit}",
                f"s_add_u32 s{sDst}, s{sDst}, s{sBase}"] + ([f"s_add_u32 s{sDst}, s{sDst}, {plus * unit + extra}"] if plus * unit + extra else [])

    def _A(self, j, srd, flags):
        c = self.c
        if c.lean:
            out = []
            for i in range(c.nA):
                pre = []
                if i == 0:
                    if j in c.wraps:
                        pre += [f"s_cmp_eq_u32 s{self.sWrap}, {j}", f"s_cselect_b32 s{self.sT}, {c.NS * 128}, 0", f"s_sub_u32 s{self.sKA}, s{self.sKA}, s{self.sT}"]
                    if c.dyn:
                        pre += self.dyn_off(j, self.sT, self.sKA, 128)
                    else:
                        pre.append(f"s_add_u32 s{self.sT}, s{self.sKA}, {c.smap(j) * 128}")
                if i % 4 == 0:
                    pre.append(f"s_add_u32 m0, s{self.sLA}, {c.baseA + (j % c.SA) * c.abytes + i * 1024}")
                    pre.append("s_nop 0")
                out.append((pre + [f"buffer_load_dwordx4 v{self.vAs[i]}, s[{srd}:{srd+3}], s{self.sT} offen offset:{(i % 4) * 1024} {flags} lds"], j, max(j - c.SA + c.rel, c.afterA(j))))
            return out
        return [([f"s_add_u32 m0, s{self.sLA}, {c.baseA + (j % c.SA) * c.abytes + i * 1024}",
                  f"s_add_u32 s{self.sT}, s{self.sKA}, {i * 8 * c.lda + j * 128}",
                  f"buffer_load_dwordx4 v{self.vA}, s[{srd}:{srd+3}], s{self.sT} offen {flags} lds"], j, j - c.SA + c.rel)
                for i in range(c.nA)]

    def _W(self, m, srd, coff=0):
        c = self.c
        if c.wl == 'lin':
            out = []
            for n in range(5):
                pre = []
                if n == 0 and m in c.wraps:
                    pre += [f"s_cmp_eq_u32 s{self.sWrap}, {m}", f"s_cselect_b32 s{self.sT2}, {c.NS * c.wstage}, 0", f"s_sub_u32 s{self.sKW}, s{self.sKW}, s{self.sT2}"]
                if n % 4 == 0:
                    pre.append(f"s_add_u32 m0, s{self.sLWd}, {c.baseW + (m % c.SW) * c.wbytes + n * 1024}")
                    if c.dyn and n == 0:
                        pre += self.dyn_off(m, self.sT2, self.sKW, c.wstage)
                    elif c.dyn:
                        pre.append(f"s_add_u32 s{self.sT2}, s{self.sT2}, {n * 1024}")
                    else:
                        pre.append(f"s_add_u32 s{self.sT2}, s{self.sKW}, {c.smap(m) * c.wstage + n * 1024}")
                out.append((pre + [f"buffer_load_dwordx4 v{self.vLin}, s[{srd}:{srd+3}], s{self.sT2} offen offset:{(n % 4) * 1024} sc1 lds"], m, max(m - c.SW + c.rel, c.afterW(m))))
            return out
        if c.lean:
            out = []
            n = 0
            last = None
            for r in range(2):
                for (vW, ro, lo) in self.wins:
                    q = (r * c.r16b + lo) // 1024
                    pre = []
                    if n == 0:
                        if m in c.wraps:
                            pre += [f"s_cmp_eq_u32 s{self.sWrap}, {m}", f"s_cselect_b32 s{self.sT2}, {c.NS * 64 * c.ldw}, 0", f"s_sub_u32 s{self.sKW}, s{self.sKW}, s{self.sT2}"]
                        if c.dyn:
                            pre += self.dyn_off(m, self.sT2, self.sKW, c.wstage, coff)
                        else:
                            pre.append(f"s_add_u32 s{self.sT2}, s{self.sKW}, {m * 64 * c.ldw + coff}")
                    if q // 4 != last:
                        last = q // 4
                        pre.append(f"s_add_u32 m0, s{self.sLWd}, {c.baseW + (m % c.SW) * c.wbytes + (q // 4) * 4096}")
                        pre.append("s_nop 0")
                    out.append((pre + [f"buffer_load_dwordx4 v{self.vWs[n]}, s[{srd}:{srd+3}], s{self.sT2} offen offset:{(q % 4) * 1024} lds"], m, m - c.SW + c.rel))
                    n += 1
            return out
        return [([f"s_add_u32 m0, s{self.sLWd}, {c.baseW + (m % c.SW) * c.wbytes + r * c.r16b + lo}",
                  f"s_add_u32 s{self.sT}, s{self.sKW}, {(m * 64 + r * 16 + ro) * c.ldw}",
                  f"buffer_load_dwordx4 v{vW}, s[{srd}:{srd+3}], s{self.sT} offen lds"], m, m - c.SW + c.rel)
                for r in range(2) for (vW, ro, lo) in self.wins]

    def emit_op(self, op):
        ins = op[0][:-1] if DBG['nodma'] else op[0]
        self.k.emit_list(ins)
        self.issued += 1

    def early_a(self, srdA, flags=""):
        for op in self._A(0, srdA, flags):
            self.emit_op(op)
        self.preA = self.c.nA

    def prefill_w(self, srdW, n):
        for m in range(n):
            for op in self._W(m, srdW):
                self.emit_op(op)
        self.pw = n

    def stream(self, srdA, srdW, aflags="", hooks=None, last=None, tag="", inject=None):
        k, c = self.k, self.c
        pw = getattr(self, 'pw', 0)
        ops = []
        nextw = pw
        for j in range(c.NS):
            if pw == 0:
                ops += self._A(j, srdA, aflags) + self._W(j, srdW)
            else:
                ops += self._A(j, srdA, aflags)
                while nextw < c.NS and max(nextw - c.SW + c.rel, c.afterW(nextw)) <= j - 1 and (c.wlead is None or nextw - c.wlead <= j) and j >= c.wfirst:
                    ops += self._W(nextw, srdW); nextw += 1
        assert pw == 0 or nextw == c.NS
        pos = getattr(self, 'preA', 0)
        extras = []
        done_last = False
        for i in range(c.NS):
            end = max([n + 1 for n, op in enumerate(ops) if op[1] == i] + [0])
            end = max(end, 0)
            limit = len(ops)
            for n in range(pos, len(ops)):
                if ops[n][2] >= i:
                    limit = n
                    break
            assert limit >= end, (i, limit, end)
            Hi = c.H0 if (c.H0 is not None and i == 0) else c.H
            p = max(pos, min(end + Hi, limit))
            for n in range(pos, p):
                self.emit_op(ops[n])
                if inject and n == inject[0]:
                    inject[1]()
            pos = p
            if pos == len(ops) and not done_last:
                done_last = True
                k.stamp_l(tag + "_last")
                if last:
                    extras += [pos] * last()
            cnt = pos - end + sum(1 for x in extras if x >= end)
            assert cnt <= 63
            k.e(f"s_waitcnt vmcnt({cnt})")
            if DBG.get('bstamp') == tag and i < 9:
                k.stamp_l(f"W{i}")
            k.e("s_barrier")
            if hooks and i in hooks:
                extras += [pos] * hooks[i]()
        assert pos == len(ops)
        k.e("s_barrier")


class Cons:
    pass


def consumer_setup(k, c, sWM, sWN, vl):
    o = Cons()
    o.c = c
    MT, NT = c.MT, c.NT
    o.acc = [[k.v(4) for _ in range(NT)] for _ in range(MT)]
    o.ncs = (NT + 1) // 2 if c.WM == 4 else NT
    if c.colsum:
        o.cs = [k.v(4) for _ in range(o.ncs)]
        o.ones = k.v(4)
    o.mark = k.mark()
    o.fa = [[k.v(4) for _ in range(MT)] for _ in range(2)]
    o.fw = [[k.v(4) for _ in range(NT)] for _ in range(2)]
    t0, t1, t2 = k.v(), k.v(), k.v()
    o.sT, o.sT2, o.sI, o.sA, o.sW, o.sWrA, o.sWrW = (k.s() for _ in range(7))
    sT = o.sT
    o.vA0, o.vA1 = vA0, vA1 = k.v(), k.v()
    k.e(f"""
    s_mov_b32 s{o.sWrA}, {(-(c.SA - 1) * c.abytes) & 0xffffffff}
    s_mov_b32 s{o.sWrW}, {(-(c.SW - 1) * c.wbytes) & 0xffffffff}
    v_and_b32 v{t0}, 15, v{vl}
    v_lshrrev_b32 v{t1}, 4, v{vl}
    v_and_b32 v{t2}, 6, v{t0}
    v_xor_b32 v{t2}, v{t2}, v{t1}
    v_lshlrev_b32 v{t2}, 4, v{t2}
    v_lshl_add_u32 v{vA0}, v{t0}, 7, v{t2}
    s_mul_i32 s{sT}, s{sWM}, {MT * 16 * 128}
    s_add_u32 s{sT}, s{sT}, {c.baseA}
    v_add_u32 v{vA0}, s{sT}, v{vA0}
    v_xor_b32 v{vA1}, 64, v{vA0}
    """)
    pitch = {'odd': 160, 'lin': 160, 'x16': 256, 'x8': 128}[c.wl]
    vB = k.v()
    k.e(f"""
    v_bfe_u32 v{t0}, v{vl}, 2, 3
    v_lshrrev_b32 v{t1}, 5, v{vl}
    v_mul_u32_u24 v{t1}, {c.r16b}, v{t1}
    v_mul_u32_u24 v{t2}, {pitch}, v{t0}
    v_add_u32 v{vB}, v{t1}, v{t2}
    v_and_b32 v{t2}, 3, v{vl}
    v_lshl_add_u32 v{vB}, v{t2}, 3, v{vB}
    v_add_u32 v{vB}, {c.baseW}, v{vB}
    """)
    if c.wl == 'odd' and c.mixed:
        vB2, vB3 = k.v(), k.v()
        k.e(f"s_mul_i32 s{sT}, s{sWN}, 2560")
        k.e(f"v_add_u32 v{vB2}, s{sT}, v{vB}")
        k.e(f"v_add_u32 v{vB3}, s{c.mixed[1]}, v{vB}")
        k.e(f"v_add_u32 v{vB}, s{c.mixed[0]}, v{vB}")
        o.vW = [vB, vB2, vB3]
        so = [0, 32, 64, 0, 32]
        o.waddr = lambda nt, t, h: ([vB, vB, vB2, vB3, vB3][nt], t * 2 * c.r16b + h * 8 * 160 + so[nt])
    elif c.wl in ('odd', 'lin'):
        if sWN is not None:
            k.e(f"s_mul_i32 s{sT}, s{sWN}, {64 if c.wl == 'lin' else 2560}")
            k.e(f"v_add_u32 v{vB}, s{sT}, v{vB}")
        o.vW = [vB]
        o.waddr = lambda nt, t, h: (vB, t * 2 * c.r16b + h * 8 * 160 + nt * 32)
    else:
        o.vW = vW = [vB] + [k.v() for _ in range(NT - 1)]
        if c.wl == 'x8':
            k.e(f"v_lshrrev_b32 v{t0}, 1, v{t0}")
        k.e(f"s_mul_i32 s{sT}, s{sWN}, {NT}")
        k.e(f"v_xor_b32 v{t0}, s{sT}, v{t0}")
        for j in range(NT - 1, -1, -1):
            k.e(f"v_xor_b32 v{t1}, {j}, v{t0}")
            k.e(f"v_lshl_add_u32 v{vW[j]}, v{t1}, 5, v{vB}")
        o.waddr = lambda nt, t, h: (vW[nt], t * 2 * c.r16b + h * 8 * pitch)
    for mt in range(MT):
        for nt in range(NT):
            for j in range(2):
                k.e(f"v_mov_b64 {vr(o.acc[mt][nt]+2*j, 2)}, 0")
    if c.colsum:
        for r in o.cs:
            for j in range(2):
                k.e(f"v_mov_b64 {vr(r+2*j, 2)}, 0")
        for j in range(4):
            k.e(f"v_mov_b32 v{o.ones+j}, 0x3f803f80")
    k.e(f"s_mov_b32 s{o.sI}, 0")
    k.e(f"s_mov_b32 s{o.sA}, 0")
    k.e(f"s_mov_b32 s{o.sW}, 0")
    return o


def consumer_loop(k, o, sVar, after_b0=None, tag="", at_end=None):
    c = o.c
    MT, NT = c.MT, c.NT
    fa, fw = o.fa, o.fw

    def reads(t):
        va = o.vA1 if t else o.vA0
        ar = [f"ds_read_b128 {vr(fa[t][mt], 4)}, v{va} offset:{mt * 2048}" for mt in range(MT)]
        wr = []
        for nt in range(NT):
            for h in range(2):
                vv, off = o.waddr(nt, t, h)
                wr.append(f"ds_read_b64_tr_b16 {vr(fw[t][nt] + 2 * h, 2)}, v{vv} offset:{off}")
        if DBG['nomma']:
            return ["s_nop 0"] * 3
        return ar + wr

    def mf(d, a, w):
        if c.transposed:
            return f"v_mfma_f32_16x16x32_bf16 {vr(d,4)}, {vr(w,4)}, {vr(a,4)}, {vr(d,4)}"
        return f"v_mfma_f32_16x16x32_bf16 {vr(d,4)}, {vr(a,4)}, {vr(w,4)}, {vr(d,4)}"

    def block(t, csl, pre_instr):
        rd = reads(1 - t)
        nR = len(rd)
        ml = []
        for nt in range(NT):
            for mt in range(MT):
                ml.append((mf(o.acc[mt][nt], fa[t][mt], fw[t][nt]), MT + 2 * nt + 1))
            for (cr, cn) in csl:
                if cn == nt:
                    ml.append((mf(cr, o.ones, fw[t][nt]), MT + 2 * nt + 1))
        if DBG['nomma']:
            ml = []
        n = len(ml)
        out = list(pre_instr)
        lead = 1
        out += rd[:lead]
        issued = lead
        guar = -1
        for j, (txt, need) in enumerate(ml):
            if need > guar:
                tgt = max(x[1] for x in ml[j:j + c.wait_span])
                allowed = (nR - 1 - tgt) + issued
                N = min(15, allowed)
                out.append(f"s_waitcnt lgkmcnt({N})")
                guar = nR - 1 - (N - issued) if N >= issued else nR - 1
            out.append(txt)
            want = min(nR, lead + -(-(j + 1) * (nR - lead) * 100 // (n * c.read_frac)))
            while issued < want:
                out.append(rd[issued]); issued += 1
        out += rd[issued:]
        return out

    def cs_lists(w):
        if not c.colsum:
            return [], []
        if c.WM == 4:
            t, hf = w >> 1, w & 1
            tiles = list(range(hf * o.ncs, min(NT, (hf + 1) * o.ncs)))
        else:
            t, tiles = w, list(range(NT))
        l = [(o.cs[i], nt) for i, nt in enumerate(tiles)]
        return (l, []) if t == 0 else ([], l)

    nvar = c.WM if c.colsum else 1
    k.stamp_c(tag + "_pre")
    k.e("s_barrier")
    k.stamp_c(tag + "_b0")
    k.emit_list(reads(0))
    if after_b0:
        after_b0()
    labs = [k.label("mm") for _ in range(nvar)]
    Ld = k.label("mmdone")
    for w in range(1, nvar):
        k.e(f"s_cmp_eq_u32 s{sVar}, {w}")
        k.e(f"s_cbranch_scc1 {labs[w]}")
    for w in range(nvar):
        c0, c1 = cs_lists(w)
        k.place(labs[w])
        adv = [f"s_add_u32 s{o.sA}, s{o.sA}, 1",
               f"s_cmp_eq_u32 s{o.sA}, {c.SA}",
               f"s_cselect_b32 s{o.sT}, s{o.sWrA}, {c.abytes}",
               f"s_cselect_b32 s{o.sA}, 0, s{o.sA}",
               f"v_add_u32 v{o.vA0}, s{o.sT}, v{o.vA0}"]
        adv2 = [f"s_add_u32 s{o.sW}, s{o.sW}, 1",
                f"s_cmp_eq_u32 s{o.sW}, {c.SW}",
                f"s_cselect_b32 s{o.sT2}, s{o.sWrW}, {c.wbytes}",
                f"s_cselect_b32 s{o.sW}, 0, s{o.sW}"]
        X = block(0, c0, [])
        a, b = len(X) // 3, 2 * len(X) // 3
        X = X[:a] + adv + X[a:b] + adv2 + X[b:]
        k.emit_list(X)
        if c.rel == 1:
            k.e("s_waitcnt lgkmcnt(0)")
        if c.vmwait:
            k.e("s_waitcnt vmcnt(0)")
        k.e("s_barrier")
        Y = block(1, c1, [f"v_add_u32 v{x}, s{o.sT2}, v{x}" for x in o.vW])
        a = len(Y) // 2
        Y = Y[:a] + [f"v_add_u32 v{o.vA1}, s{o.sT}, v{o.vA1}", f"s_add_u32 s{o.sI}, s{o.sI}, 1", f"s_cmp_lt_u32 s{o.sI}, {c.NS}"] + Y[a:]
        k.emit_list(Y)
        k.e(f"s_cbranch_scc1 {labs[w]}")
        if w < nvar - 1:
            k.e(f"s_branch {Ld}")
    k.place(Ld)
    if at_end:
        k.e("s_waitcnt lgkmcnt(6)")
        at_end()
    k.e("s_waitcnt lgkmcnt(0)")
    k.e("s_nop 7")
    k.stamp_c(tag + "_loop")
    k.release(o.mark)


def idle_barriers(k, n):
    if n <= 4:
        for _ in range(n):
            k.e("s_barrier")
        return
    s = k.s()
    L = k.label("idle")
    k.e(f"s_mov_b32 s{s}, {n}")
    k.place(L)
    k.e(f"""
    s_barrier
    s_sub_u32 s{s}, s{s}, 1
    s_cmp_lg_u32 s{s}, 0
    s_cbranch_scc1 {L}
    """)
```

```python
from asmlib import *
from g3 import *
import g3
import struct, json

S_, D_, F_ = 2048, 640, 1728
WS_PQ = 0x0
WS_H = 0x400000
WS_HH = 0x800000
WS_KV = 0x1000000
KV_BYTES = 65536
WS_FL = 0x1100000
FS = 4224
FL_BYTES = 128 * FS
FL_Q, FL_2, FL_3, FL_C, FL_G, FL_S, FL_R = 0, 16 * FS, 32 * FS, 48 * FS, 64 * FS, 96 * FS, 112 * FS
NREP = 16
WS_ST1 = 0x1020000
WS_CS1 = 0x1024000
WS_CS3 = 0x102C000
WS_W2P = 0x1200000
W2P_CT = 27 * 10240
WS_ST2 = 0x1040000
LOG2E = 1.4426950408889634
NAME = "sequential_preLN__linear_attn_block__dense_activation_relu__prompt_kernel"
OPT = dict(kvH=16, qH=11, p3H=16, p4H=24, touch1=True, touch1b=True, twarm=True, pretouch=True, e2pos=12, early3=False, psleep=8, w2a=6, w1at={'w2a': [0], 'c': [1], 'g': [2]}, tdist=1, hW=3, hX=10, jrot=8, p3H0=8, iw=17, iwser=False, rot3=True, rot4=False, otouch=False, hfirst=True, diag=False, wf4=5, p4H0=24, pf1=2, m1at=3, rf3=70, hb=11, svwo=True, inj=10, p4SA=8, p4SW=9, secs=('head', 'ltail', 'svc', 'cons', 'cons2'), p4early=False, dupst=False, dupfl='', accinit=True, svw2=0, svT1=1, kvH0=4, hW0=32, svw1=0, p4rot=True, selft=False, p4wl=4, pqlead=16, catom=True, pqtouch=False, rel=1, rf=65, rel4=2, rf4=90, lean=True, lprio=0, outsc1=False, w2early=True, pqq=10, codewarm=True)
LDS_TOTAL = 163840


def f32bits(x):
    return struct.unpack("<I", struct.pack("<f", x))[0]


def bf16_round_f32(k, v):
    k.e(f"v_cvt_pk_bf16_f32 v{v}, v{v}, v{v}")
    k.e(f"v_lshlrev_b32 v{v}, 16, v{v}")


def allreduce4_multi(k, xs, ts):
    for sw in ("v_permlane16_swap_b32", "v_permlane32_swap_b32"):
        for x, t in zip(xs, ts):
            k.e(f"v_mov_b32 v{t}, v{x}")
        k.e("s_nop 1" if len(xs) < 2 else "s_nop 0")
        for x, t in zip(xs, ts):
            k.e(f"{sw} v{x}, v{t}")
        k.e("s_nop 1" if len(xs) < 2 else "s_nop 0")
        for x, t in zip(xs, ts):
            k.e(f"v_add_f32 v{x}, v{x}, v{t}")


def ln_finalize_multi(k, vms, vvs, sEps):
    for vm in vms:
        bf16_round_f32(k, vm)
    for vv in vvs:
        bf16_round_f32(k, vv)
        k.e(f"v_add_f32 v{vv}, s{sEps}, v{vv}")
        bf16_round_f32(k, vv)
    for vv in vvs:
        k.e(f"v_sqrt_f32 v{vv}, v{vv}")
    k.e("s_nop 0")
    for vv in vvs:
        bf16_round_f32(k, vv)
    for vv in vvs:
        k.e(f"v_rcp_f32 v{vv}, v{vv}")
    k.e("s_nop 0")


def dpp_rowsum(k, x):
    for r in (8, 4, 2, 1):
        k.e("s_nop 1")
        k.e(f"v_add_f32_dpp v{x}, v{x}, v{x} row_ror:{r} row_mask:0xf bank_mask:0xf")


def set_srd(k, d, p, nbytes, off=0, bias=False):
    if bias and OPT['lean']:
        off -= BIAS
        nbytes += BIAS
    if off < 0:
        k.e(f"s_sub_u32 s{d}, s{p}, {-off}")
        k.e(f"s_subb_u32 s{d+1}, s{p+1}, 0")
    elif off:
        k.e(f"s_add_u32 s{d}, s{p}, {off}")
        k.e(f"s_addc_u32 s{d+1}, s{p+1}, 0")
    else:
        k.e(f"s_mov_b64 s[{d}:{d+1}], s[{p}:{p+1}]")
    k.e(f"s_mov_b32 s{d+2}, {nbytes}")
    k.e(f"s_mov_b32 s{d+3}, 0x20000")


class Touch:
    def __init__(self, k, vl, ncl, ld, seg5=False, share=None):
        self.k, self.ld = k, ld
        self.R = 64 // ncl
        self.vo = k.v()
        self.sO = share.sO if share else k.s()
        self.sB = share.sB if share else k.s(2, 2)
        t0, t1 = k.v(), k.v()
        magic = (1024 + ncl - 1) // ncl
        for l in range(64):
            assert (l * magic) >> 10 == l // ncl
        k.e(f"""
        v_min_u32 v{t1}, {self.R * ncl - 1}, v{vl}
        v_mul_u32_u24 v{t0}, {magic}, v{t1}
        v_lshrrev_b32 v{t0}, 10, v{t0}
        v_mul_u32_u24 v{self.vo}, {ncl}, v{t0}
        v_sub_u32 v{t1}, v{t1}, v{self.vo}
        v_mul_u32_u24 v{t0}, {ld}, v{t0}
        v_lshl_add_u32 v{self.vo}, v{t1}, 7, v{t0}
        """)
        if seg5:
            k.e(f"""
            v_mul_u32_u24 v{t0}, 205, v{t1}
            v_lshrrev_b32 v{t0}, 10, v{t0}
            v_mul_u32_u24 v{t0}, 640, v{t0}
            v_add_u32 v{self.vo}, v{self.vo}, v{t0}
            """)

    def unit(self, p, sOff, sU, add, nrows, skip=False):
        k = self.k
        le = k.label("tsk")
        k.e(f"""
        s_add_u32 s{self.sO}, s{sU}, {add}
        s_mul_i32 s{self.sO}, s{self.sO}, {self.R}
        """)
        if skip:
            k.e(f"s_cmp_ge_u32 s{self.sO}, {nrows}")
            k.e(f"s_cbranch_scc1 {le}")
        k.e(f"""
        s_min_u32 s{self.sO}, s{self.sO}, {nrows - self.R}
        s_mul_i32 s{self.sO}, s{self.sO}, {self.ld}
        s_add_u32 s{self.sO}, s{self.sO}, s{sOff}
        s_add_u32 s{self.sB}, s{p}, s{self.sO}
        s_addc_u32 s{self.sB+1}, s{p+1}, 0
        global_load_dword v{k.vdummy}, v{self.vo}, s[{self.sB}:{self.sB+1}]
        """)
        k.place(le)


def phi_pair(k, a, vrs, vr2, sEps2, t):
    k.e(f"v_pk_mul_f32 {vr(t,2)}, {vr(a,2)}, {vr(vr2,2)}")
    k.e(f"v_pk_fma_f32 {vr(a,2)}, {vr(a,2)}, {vr(vrs,2)}, 1.0 op_sel_hi:[1,1,0]")
    k.e(f"v_exp_f32_e64 v{t}, v{t} clamp")
    k.e(f"v_exp_f32_e64 v{t+1}, v{t+1} clamp")
    k.e(f"v_max_f32 v{a}, v{a}, v{t}")
    k.e(f"v_max_f32 v{a+1}, v{a+1}, v{t+1}")
    k.e(f"v_pk_add_f32 {vr(a,2)}, {vr(a,2)}, s[{sEps2}:{sEps2+1}]")


def gen(prof=False):
    k = Kern(NAME)
    k.prof3 = prof
    k.slimit, k.vlimit = 68, 256
    ckv = Cfg(BM=128, NS=10, lda=2 * D_, ldw=6 * D_, wl='odd', SA=4, SW=4, baseA=0, baseW=65536, WM=2, WN=2,
              transposed=False, colsum=False, H=OPT['kvH'], nseg=2, segd=None, mixed=True, rel=OPT['rel'], read_frac=OPT['rf'], lean=True, H0=OPT['kvH0'])
    P1_ST = ckv.endW
    P1_AT = P1_ST + 2048
    c3 = Cfg(BM=128, NS=10, lda=2 * D_, ldw=2 * F_, wl='x8', SA=4, SW=10, baseA=81920, baseW=0, WM=4, WN=1,
             transposed=True, colsum=False, H=OPT['p3H'], rel=1, lean=True, H0=OPT['p3H0'],
             dyn=(lambda j: (j, 10, 1, 0)) if OPT['rot3'] else None)
    P3_SCR = c3.endA
    HB = OPT['hb']
    c4 = Cfg(BM=64, NS=27, lda=2 * F_, ldw=160, wl='lin', SA=10, SW=8, baseA=0, baseW=81920, WM=2, WN=2,
             transposed=True, colsum=False, H=OPT['p4H'], rel=2, read_frac=OPT['rf4'], lean=True, wlead=OPT['p4wl'],
             smap=lambda j: 2 * j if j < 14 else 2 * (j - 14) + 1, afterA=lambda j: HB if j >= 14 else -99,
             afterW=lambda m: 0 if m >= 6 else -99, vmwait=True, wfirst=OPT['wf4'], H0=OPT['p4H0'],
             dyn=(lambda j: (j, 14, 2, 0) if j < 14 else (j - 14, 13, 2, 1)) if OPT['rot4'] else None)
    assert c4.endW <= LDS_TOTAL and c4.endA <= c4.baseW and P3_SCR + 2048 <= LDS_TOTAL and P1_ST + 1024 <= LDS_TOTAL
    L_W2, L_KV, L_X2 = 40960, 0, 143360

    F0V = '0x00010001' if OPT['diag'] else 1
    k.end = k.label("end")
    if prof:
        for i in range(28):
            k.e(f"s_mov_b32 s{68+i}, 0")
        k.stamp_c("start")
        k.e("s_memrealtime s[96:97]")
        k.e("s_waitcnt lgkmcnt(0)")
        k.e("s_mov_b32 s94, s96")
    k.e("s_cmp_ge_u32 s2, 256")
    k.e(f"s_cbranch_scc1 {k.end}")
    p = k.s(16, 4)
    pws = k.s(2, 2)
    k.e(f"s_load_dwordx16 s[{p}:{p+15}], s[0:1], 0")
    k.e(f"s_load_dwordx2 s[{pws}:{pws+1}], s[0:1], 64")
    ptr = dict(x=p, wqkv=p + 2, wo=p + 4, w1=p + 8, w2=p + 10, out=p + 12, dbg=p + 14, ws=pws)
    sWave, sJ, sRQ, sCH, sJ1 = k.s(), k.s(), k.s(), k.s(), k.s()
    vl = k.v()
    k.vdummy = k.v()
    k.e(f"""
    v_lshrrev_b32 v{vl}, 6, v0
    s_lshr_b32 s{sJ}, s2, 3
    v_readfirstlane_b32 s{sWave}, v{vl}
    v_and_b32 v{vl}, 63, v0
    s_bfe_u32 s{sRQ}, s2, 0x20001
    s_and_b32 s{sCH}, s2, 1
    s_sub_u32 s{sJ1}, s{sJ}, {OPT['jrot']}
    s_and_b32 s{sJ1}, s{sJ1}, 31
    """)

    def endwave():
        k.dump3(pws, sWave)
        k.e("s_endpgm")

    def dec1():
        sG, sC, sTy = k.s(), k.s(), k.s()
        k.e(f"""
        s_and_b32 s{sG}, s{sJ1}, 3
        s_lshl_b32 s3, s{sRQ}, 2
        s_add_u32 s{sG}, s{sG}, s3
        s_lshr_b32 s{sTy}, s{sJ1}, 3
        s_sub_u32 s{sTy}, s{sTy}, 1
        s_max_i32 s{sTy}, s{sTy}, 0
        s_lshr_b32 s{sC}, s{sJ1}, 2
        s_lshl_b32 s3, s{sCH}, 2
        s_add_u32 s{sC}, s{sC}, s3
        s_lshl_b32 s3, s{sCH}, 1
        s_add_u32 s3, s3, 4
        s_cmp_eq_u32 s{sTy}, 1
        s_cselect_b32 s3, s3, 0
        s_sub_u32 s{sC}, s{sC}, s3
        s_and_b32 s3, s{sJ1}, 7
        s_cmp_eq_u32 s{sTy}, 2
        s_cselect_b32 s{sC}, s3, s{sC}
        """)
        return sG, sC, sTy

    def dec2():
        sRB, sCT = k.s(), k.s()
        k.e(f"""
        s_and_b32 s{sRB}, s{sJ}, 7
        s_lshl_b32 s3, s{sRQ}, 3
        s_add_u32 s{sRB}, s{sRB}, s3
        s_lshr_b32 s{sCT}, s{sJ}, 3
        s_lshl_b32 s3, s{sCH}, 2
        s_add_u32 s{sCT}, s{sCT}, s3
        """)
        return sRB, sCT

    def dec3():
        sRB, sCT = k.s(), k.s()
        k.e(f"""
        s_and_b32 s{sRB}, s{sJ}, 3
        s_lshl_b32 s3, s{sRQ}, 2
        s_add_u32 s{sRB}, s{sRB}, s3
        s_lshr_b32 s{sCT}, s{sJ}, 2
        s_mul_i32 s3, s{sCH}, 7
        s_add_u32 s{sCT}, s{sCT}, s3
        """)
        return sRB, sCT

    def dec4():
        sRB, sCT, sId = k.s(), k.s(), k.s()
        k.e(f"""
        s_mul_i32 s{sRB}, s{sJ}, 205
        s_lshr_b32 s{sRB}, s{sRB}, 10
        s_mul_i32 s3, s{sRB}, 5
        s_sub_u32 s{sCT}, s{sJ}, s3
        s_mul_i32 s3, s{sCH}, 5
        s_add_u32 s{sCT}, s{sCT}, s3
        s_cmp_ge_u32 s{sRB}, 6
        s_cselect_b32 s{sId}, 1, 0
        s_mul_i32 s{sRB}, s{sRB}, 96
        s_lshl_b32 s3, s{sRQ}, 9
        s_add_u32 s{sRB}, s{sRB}, s3
        """)
        return sRB, sCT, sId

    Lc, Lh, Lsvc, Lrole = k.label("cons"), k.label("help"), k.label("svc"), k.label("role")
    sSvc = k.s()
    k.e(f"s_mov_b32 s{sSvc}, 0")
    k.e(f"s_cmp_ge_u32 s{sJ1}, 24")
    k.e(f"s_cbranch_scc1 {Lsvc}")
    if OPT['hfirst']:
        k.e(f"s_cmp_lt_u32 s{sWave}, 6")
        k.e(f"s_cbranch_scc1 {Lrole}")
    else:
        k.e(f"s_cmp_ge_u32 s{sWave}, 6")
        k.e(f"s_cbranch_scc1 {Lh}")
        k.lines.append('; @SEC help')
        k.place(Lh)
    mH = k.mark()
    sRo, sA = k.s(), k.s()
    Lh1 = k.label("h1")
    k.e(f"s_cmp_eq_u32 s{sWave}, 7")
    k.e(f"s_cbranch_scc1 {Lh1}")
    k.e(f"s_mul_i32 s{sRo}, s{sCH}, 640")
    TW = Touch(k, vl, 15, 6 * D_, seg5=True)
    k.e("s_waitcnt lgkmcnt(0)")
    for it in range(OPT['hW']):
        TW.unit(ptr['wqkv'], sRo, sJ1, 24 * it, 640)
    k.e("s_endpgm")
    k.place(Lh1)
    if OPT['codewarm']:
        va_ = k.v(2)
        sPC = k.s(2, 2)
        k.e(f"""
        s_getpc_b64 s[{sPC}:{sPC+1}]
        {k.name}_pc:
        s_sub_u32 s{sPC}, s{sPC}, {k.name}_pc-{k.name}
        s_subb_u32 s{sPC+1}, s{sPC+1}, 0
        s_lshl_b32 s{sA}, s{sJ1}, 11
        v_lshlrev_b32 v{va_}, 7, v{vl}
        v_add_u32 v{va_}, s{sA}, v{va_}
        v_min_u32 v{va_}, {k.name}_last-{k.name}, v{va_}
        v_mov_b32 v{va_+1}, s{sPC+1}
        v_add_co_u32 v{va_}, vcc, s{sPC}, v{va_}
        s_nop 1
        v_addc_co_u32 v{va_+1}, vcc, 0, v{va_+1}, vcc
        s_mov_b64 exec, 0xffff
        global_load_dword v{k.vdummy}, {vr(va_,2)}, off
        s_mov_b64 exec, -1
        """)
    if OPT['hX'] == 10:
        k.e(f"s_and_b32 s{sRo}, s2, 7")
        k.e(f"s_xor_b32 s{sRo}, s{sRo}, 1")
        k.e(f"s_mul_i32 s{sRo}, s{sRo}, {256 * 2 * D_}")
        TX = Touch(k, vl, 16, 2048, share=TW)
        k.e("s_waitcnt lgkmcnt(0)")
        TX.unit(ptr['x'], sRo, sJ1, 0, 160)
        lx = k.label("hx")
        k.e(f"s_cmp_ge_u32 s{sJ1}, 16")
        k.e(f"s_cbranch_scc1 {lx}")
        TX.unit(ptr['x'], sRo, sJ1, 24, 160)
        k.place(lx)
    else:
        k.e(f"s_mul_i32 s{sRo}, s{sRQ}, {512 * 2 * D_}")
        TX = Touch(k, vl, OPT['hX'], 2 * D_, share=TW)
        k.e("s_waitcnt lgkmcnt(0)")
        for it in range(-(-500 // (24 * TX.R))):
            TX.unit(ptr['x'], sRo, sJ1, 24 * it, 512)
    k.e("s_endpgm")
    k.release(mH)
    if not OPT['hfirst']:
        k.lines.append('; @SEC head2')
    k.place(Lrole)
    k.e(f"s_cmp_lt_u32 s{sWave}, 4")
    k.e(f"s_cbranch_scc1 {Lc}")
    k.e(f"s_cmp_ge_u32 s{sWave}, 6")
    k.e(f"s_cbranch_scc1 {k.end}")
    mL = k.mark()
    sLW, sRow, sCol, sSpin, sP, sU, sEx = (k.s() for _ in range(7))
    srdA, srdW, srdF = k.s(4), k.s(4), k.s(4)
    vf, vfa, vone = k.v(4), k.v(), k.v()
    c3r = k.v(4)
    vfb = k.v()
    sAct = k.s()
    sRotL = sEx
    k.e(f"s_sub_u32 s{sLW}, s{sWave}, 4")
    if OPT['lprio']:
        k.e(f"s_setprio {OPT['lprio']}")

    def poll(srd, expect, first_issued=False, tag="", wide=False, drain1=True, extra=None, younger=0, both=False):
        lp, lo = k.label("poll"), k.label("pollok")
        ldi = (f"buffer_load_dwordx3 {vr(vf,3)}, v{vfa}, s[{srd}:{srd+3}], 0 offen sc1" if wide
               else f"buffer_load_dword v{vf}, v{vfa}, s[{srd}:{srd+3}], 0 offen sc1")
        if extra is not None:
            ldi += f"\nbuffer_load_dword v{vf+3}, v{extra}, s[{srd}:{srd+3}], 0 offen sc1"
        if not both:
            k.e(f"s_cmp_eq_u32 s{sLW}, 1")
            k.e(f"s_cbranch_scc1 {lo}")
        k.e(f"s_mov_b32 s{sSpin}, 0")
        if not first_issued:
            k.e(ldi)
        if younger:
            k.e(f"s_waitcnt vmcnt({younger})")
            k.e(f"s_branch {lp}_c")
        k.place(lp)
        k.e("s_waitcnt vmcnt(0)")
        k.place(lp + "_c")
        if wide:
            k.e(f"v_and_b32 v{vf}, v{vf}, v{vf+2}")
        if extra is not None:
            k.e(f"v_and_b32 v{vf}, v{vf}, v{vf+3}")
        k.e(f"""
        v_cmp_ne_u32 vcc, {expect}, v{vf}
        s_add_u32 s{sSpin}, s{sSpin}, 1
        s_nop 3
        s_cbranch_vccz {lo}
        s_cmp_gt_u32 s{sSpin}, 0x40000
        s_cbranch_scc1 {k.end}
        s_sleep {OPT['psleep']}
        {ldi}
        s_branch {lp}
        """)
        k.place(lo)
        if drain1:
            k.e("s_waitcnt vmcnt(0)")
        k.stamp_l(tag)

    def set_flag(sOff, base, sExec=None):
        l0 = k.label("fl")
        k.e(f"""
        s_cmp_eq_u32 s{sLW}, 1
        s_cbranch_scc0 {l0}
        v_mov_b32 v{vfa}, {base}
        s_mov_b64 exec, 1
        buffer_store_dword v{vone}, v{vfa}, s[{srdF}:{srdF+3}], s{sOff} offen sc1
        s_mov_b64 exec, -1
        """)
        k.place(l0)

    def warm(pw, ldw, ncl, colbytes, clampc, nrows, rounds):
        if not OPT['twarm'] or not rounds:
            return 0
        mm_ = k.mark()
        sCo = k.s()
        k.e(f"s_mul_i32 s{sCo}, s{sCH}, {colbytes}")
        if clampc is not None:
            k.e(f"s_min_u32 s{sCo}, s{sCo}, {clampc}")
        T = Touch(k, vl, ncl, ldw)
        for it in rounds:
            T.unit(pw, sCo, sU, 64 * it, nrows)
        k.release(mm_)
        return len(rounds)

    def w1warm(where):
        r = OPT['w1at'].get(where, [])
        return warm(ptr['w1'], 2 * F_, 14, 7 * 256, 13 * 128, 640, r) if r else 0

    m = k.mark()
    sG, sC, sTy = dec1()
    srdD = k.s(4)
    k.e(f"""
    s_mul_i32 s{sRow}, s{sG}, {128 * 2 * D_}
    s_mul_i32 s{sCol}, s{sC}, 160
    s_add_u32 s3, s{sCol}, {2 * D_}
    s_lshl_b32 s{sCol}, s{sCol}, 1
    s_cmp_eq_u32 s{sTy}, 0
    s_cselect_b32 s{sCol}, s3, s{sCol}
    s_movk_i32 s{sEx}, 160
    s_cselect_b32 s{sEx}, {2 * D_}, s{sEx}
    """)
    Llq, Ltail = k.label("ldq"), k.label("ldtail")
    pat = [[k.v() for _ in range(5)] for _ in range(5)]
    q0, q1, q2, vcs = (k.v() for _ in range(4))
    pvi, pvb = [k.v() for _ in range(5)], [k.v() for _ in range(5)]
    csr = [k.v(4) for _ in range(4)]
    rp = [k.v() for _ in range(6)]
    rpd = [k.v(4) for _ in range(6)]
    sRp, sRc, sRv = k.s(), k.s(), k.s()
    vLtop = k.vtop

    def p2_pat(mI):
        def f():
            vi_, vb_ = pvi[mI], pvb[mI]
            k.e(f"""
            s_and_b32 s3, s{sWave}, 1
            s_lshl_b32 s3, s3, 3
            v_add_u32 v{q0}, {64*mI}, v{vl}
            v_mul_u32_u24 v{q1}, 205, v{q0}
            v_lshrrev_b32 v{q1}, 11, v{q1}
            v_mul_u32_u24 v{q2}, 10, v{q1}
            v_sub_u32 v{q2}, v{q0}, v{q2}
            v_lshlrev_b32 v{vb_}, 4, v{q2}
            v_and_b32 v{vi_}, 3, v{q1}
            v_bfe_u32 v{q0}, v{q1}, 3, 1
            v_lshl_or_b32 v{vi_}, v{q0}, 2, v{vi_}
            v_add_u32 v{vi_}, s3, v{vi_}
            v_bfe_u32 v{q0}, v{q1}, 2, 1
            v_lshrrev_b32 v{q2}, 4, v{q1}
            v_lshl_or_b32 v{q0}, v{q2}, 1, v{q0}
            v_mul_u32_u24 v{q0}, {5 * 1280}, v{q0}
            v_add_u32 v{vb_}, v{vb_}, v{q0}
            """)
            return 0
        return f

    pdone = set()

    def p2_lazy(u, mI):
        if (u, mI) in pdone:
            return
        pdone.add((u, mI))
        k.e(f"""
        v_add_u32 v{q0}, {16*u}, v{pvi[mI]}
        v_mul_u32_u24 v{q1}, 205, v{q0}
        v_lshrrev_b32 v{q1}, 10, v{q1}
        v_mad_u32_u24 v{q0}, v{q1}, 15, v{q0}
        v_mad_u32_u24 v{pat[u][mI]}, v{q0}, s{sEx}, v{pvb[mI]}
        """)

    def rp_pat():
        mm_ = k.mark()
        sN, sH, sL = k.s(), k.s(), k.s()
        k.e(f"""
        s_lshl_b32 s{sRv}, s{sJ1}, 3
        s_and_b32 s3, s2, 7
        s_add_u32 s{sRv}, s{sRv}, s3
        s_lshl_b32 s{sRv}, s{sRv}, 1
        s_add_u32 s{sRv}, s{sRv}, s{sLW}
        s_min_u32 s{sRp}, s{sRv}, 359
        s_mul_i32 s{sRc}, s{sRp}, 1457
        s_lshr_b32 s{sRc}, s{sRc}, 16
        s_mul_i32 s3, s{sRc}, 45
        s_sub_u32 s{sN}, s{sRp}, s3
        s_mul_i32 s{sN}, s{sN}, 6
        s_mul_i32 s{sRp}, s{sRp}, 6144
        s_movk_i32 s{sL}, {2 * D_}
        """)
        for i in range(6):
            k.e(f"""
            s_mul_i32 s{sH}, s{sN}, 13108
            s_lshr_b32 s{sH}, s{sH}, 16
            s_mul_i32 s3, s{sH}, 5
            s_sub_u32 s3, s{sN}, s3
            s_lshl_b32 s3, s3, 6
            v_add_u32 v{q0}, s3, v{vl}
            s_mul_i32 s{sH}, s{sH}, {32 * 2 * D_}
            s_mul_i32 s3, s{sRc}, 160
            s_add_u32 s{sH}, s{sH}, s3
            v_mul_u32_u24 v{q1}, 205, v{q0}
            v_lshrrev_b32 v{q1}, 11, v{q1}
            v_mul_u32_u24 v{q2}, 10, v{q1}
            v_sub_u32 v{q2}, v{q0}, v{q2}
            v_lshl_add_u32 v{rp[i]}, v{q2}, 4, s{sH}
            v_and_b32 v{q2}, 19, v{q1}
            v_and_b32 v{q0}, 4, v{q1}
            v_lshl_or_b32 v{q2}, v{q0}, 1, v{q2}
            v_and_b32 v{q0}, 8, v{q1}
            v_lshrrev_b32 v{q0}, 1, v{q0}
            v_or_b32 v{q2}, v{q2}, v{q0}
            v_mad_u32_u24 v{rp[i]}, v{q2}, s{sL}, v{rp[i]}
            s_add_u32 s{sN}, s{sN}, 1
            """)
        k.release(mm_)

    def p1_srds():
        k.e("s_waitcnt lgkmcnt(0)")
        set_srd(k, srdA, ptr['x'], S_ * D_ * 2, bias=True)
        set_srd(k, srdW, ptr['wqkv'], 3 * D_ * D_ * 2, bias=True)
        k.stamp_l("ld_first")

    def p1_late():
        set_srd(k, srdF, ptr['ws'], FL_BYTES, WS_FL)
        k.e(f"""
        v_mov_b32 v{vone}, 1
        s_lshl_b32 s{sU}, s{sJ}, 1
        s_add_u32 s{sU}, s{sU}, s{sLW}
        s_mul_i32 s{sP}, s{sG}, {FS}
        s_lshl_b32 s3, s{sC}, 2
        s_add_u32 s{sP}, s{sP}, s3
        """)
        k.e(f"""
        s_and_b32 s3, s{sC}, 3
        s_mul_i32 s3, s3, 320
        s_add_u32 s3, s3, 1280
        s_and_b32 s{sSpin}, s{sC}, 1
        s_mul_i32 s{sSpin}, s{sSpin}, 640
        s_cmp_eq_u32 s{sTy}, 0
        s_cselect_b32 s3, s3, s{sSpin}
        s_cselect_b32 s{sSpin}, 960, 0
        v_lshlrev_b32 v{vcs}, 4, v{vl}
        v_add_u32 v{vcs}, s3, v{vcs}
        v_cmp_lt_u32 vcc, 19, v{vl}
        v_mov_b32 v{q0}, s{sSpin}
        s_lshl_b32 s3, s{sCH}, 12
        v_cndmask_b32 v{q0}, 0, v{q0}, vcc
        s_add_u32 s3, s3, {WS_CS1 - WS_ST1}
        v_add3_u32 v{vcs}, v{vcs}, v{q0}, s3
        v_cmp_gt_u32 vcc, 40, v{vl}
        v_mov_b32 v{q0}, {OOB}
        s_nop 0
        v_cndmask_b32 v{vcs}, v{q0}, v{vcs}, vcc
        """)
        return 0

    def p1_last():
        set_srd(k, srdD, ptr['dbg'], 256)
        k.e(f"""
        v_lshlrev_b32 v{vfa}, 2, v{vl}
        v_or_b32 v{vfa}, {128 if OPT['diag'] else 0}, v{vfa}
        s_lshl_b32 s3, s{sLW}, 12
        buffer_load_dword v{vf}, v{vfa}, s[{srdD}:{srdD+3}], s3 offen sc1
        """)
        nwo = 0
        if not OPT['svwo']:
            mm_ = k.mark()
            sCo, sV = sRow, sCol
            k.e(f"s_mul_i32 s{sCo}, s{sCH}, 640")
            k.e(f"s_lshl_b32 s{sV}, s{sJ1}, 1")
            k.e(f"s_add_u32 s{sV}, s{sV}, s{sLW}")
            T = Touch(k, vl, 5, 2 * D_)
            T.unit(ptr['wo'], sCo, sV, 0, 640)
            k.release(mm_)
            nwo = 1
        set_srd(k, srdA, ptr['w2'], F_ * D_ * 2)
        for mI in range(6):
            k.e(f"buffer_load_dwordx4 {vr(rpd[mI],4)}, v{rp[mI]}, s[{srdA}:{srdA+3}], 0 offen")
        return 7 + nwo
    hooks = {}
    k.e(f"s_cmp_eq_u32 s{sSvc}, 1")
    k.e(f"s_cbranch_scc1 {Llq}")
    m2 = k.mark()
    ckv.segd = f"s{sEx}"
    ld = Loader(k, ckv, vl, sLW)

    def first():
        ld.bases(sRow, sCol)
        p1_srds()
        ld.early_a(srdA)
        if not OPT['hfirst']:
            lj_ = k.label("hj")
            k.e(f"s_branch {lj_}")
            k.lines.append('; @SEC head3')
            k.place(lj_)
    ld.patterns(between=first)

    def f0_part():
        poll(srdD, F0V, first_issued=True, tag="f0ok", drain1=False, younger=6 if OPT['svwo'] else 7)
        set_srd(k, srdA, ptr['ws'], WS_CS3 - WS_ST1, WS_ST1)
        lsd = k.label("std")
        k.e(f"""
        s_cmp_eq_u32 s{sLW}, 1
        s_cbranch_scc1 {lsd}
        s_mov_b32 m0, {P1_ST}
        s_lshl_b32 s3, s{sG}, 10
        v_lshlrev_b32 v{vfa}, 4, v{vl}
        buffer_load_dwordx4 v{vfa}, s[{srdA}:{srdA+3}], s3 offen sc1 lds
        s_movk_i32 s3, 8192
        buffer_load_dwordx4 {vr(csr[0],4)}, v{vcs}, s[{srdA}:{srdA+3}], 0 offen sc1
        buffer_load_dwordx4 {vr(csr[1],4)}, v{vcs}, s[{srdA}:{srdA+3}], s3 offen sc1
        s_movk_i32 s3, 16384
        buffer_load_dwordx4 {vr(csr[2],4)}, v{vcs}, s[{srdA}:{srdA+3}], s3 offen sc1
        s_movk_i32 s3, 24576
        buffer_load_dwordx4 {vr(csr[3],4)}, v{vcs}, s[{srdA}:{srdA+3}], s3 offen sc1
        v_add_u32 v{vfa}, {P1_ST + 1024}, v{vfa}
        """)
        k.place(lsd)
        return 0

    def early_valu():
        p1_late()
        for i in range(5):
            p2_pat(i)()
        rp_pat()
    ld.stream(srdA, srdW, last=p1_last, tag="p1", inject=(OPT['inj'], early_valu), hooks={9: f0_part})
    k.e(f"s_branch {Ltail}")
    k.release(m2)
    k.place(Llq)
    p1_late()
    k.e(f"s_movk_i32 s{sRv}, 1000")
    k.e(f"s_mov_b32 s{sRp}, 0")
    k.e(f"s_mov_b32 s{sRc}, 0")
    k.e(f"""
    s_lshl_b32 s{sP}, s{sCH}, 3
    s_add_u32 s{sP}, s{sP}, s{sC}
    s_mul_i32 s{sP}, s{sP}, {FS}
    s_lshl_b32 s3, s{sRQ}, 2
    s_add_u32 s{sP}, s{sP}, s3
    s_add_u32 s{sP}, s{sP}, {FL_S - FL_Q}
    """)
    set_srd(k, srdD, ptr['dbg'], 256)
    k.e(f"s_branch {Ltail}_s")
    k.lines.append('; @SEC ltail')
    k.place(Ltail)
    lsd = k.label("std")
    k.e(f"s_cmp_eq_u32 s{sLW}, 1")
    k.e(f"s_cbranch_scc1 {lsd}")
    k.e(f"""
    s_waitcnt vmcnt(2)
    v_pk_add_f32 {vr(csr[0],2)}, {vr(csr[0],2)}, {vr(csr[1],2)}
    v_pk_add_f32 {vr(csr[0]+2,2)}, {vr(csr[0]+2,2)}, {vr(csr[1]+2,2)}
    s_waitcnt vmcnt(0)
    v_pk_add_f32 {vr(csr[2],2)}, {vr(csr[2],2)}, {vr(csr[3],2)}
    v_pk_add_f32 {vr(csr[2]+2,2)}, {vr(csr[2]+2,2)}, {vr(csr[3]+2,2)}
    v_pk_add_f32 {vr(csr[0],2)}, {vr(csr[0],2)}, {vr(csr[2],2)}
    v_pk_add_f32 {vr(csr[0]+2,2)}, {vr(csr[0]+2,2)}, {vr(csr[2]+2,2)}
    ds_write_b128 v{vfa}, {vr(csr[0],4)}
    s_waitcnt lgkmcnt(0)
    """)
    k.place(lsd)
    k.place(Ltail + "_s")
    sRB2, sCT2 = dec2()
    set_srd(k, srdW, ptr['wo'], D_ * D_ * 2)
    sT, sKW, sLWd = k.s(), k.s(), k.s()
    k.e(f"""
    s_mul_i32 s{sKW}, s{sCT2}, 160
    s_movk_i32 s{sEx}, 1280
    s_mul_i32 s{sLWd}, s{sLW}, 5120
    """)
    nx = w1warm('stats')
    k.e(f"s_waitcnt vmcnt({nx})")
    k.e("s_barrier")
    lrp = k.label("rp")
    set_srd(k, srdA, ptr['ws'], 8 * W2P_CT, WS_W2P)
    k.e(f"""
    s_cmp_ge_u32 s{sRv}, 360
    s_cbranch_scc1 {lrp}
    v_lshlrev_b32 v{rp[0]}, 4, v{vl}
    s_add_u32 s3, s{sRp}, 4096
    """)
    for mI in range(6):
        k.e(f"buffer_store_dwordx4 {vr(rpd[mI],4)}, v{rp[0]}, s[{srdA}:{srdA+3}], {'s%d' % sRp if mI < 4 else 's3'} offen offset:{(mI % 4) * 1024} sc1")
    k.place(lrp)

    def w2_steps(lst):
        for s in lst:
            u = (s % 10) // 2
            k.e(f"s_add_u32 s{sT}, s{sKW}, {(s // 10) * 320 * 1280}")
            for mI in range(5):
                p2_lazy(u, mI)
                k.e(f"s_add_u32 m0, s{sLWd}, {L_W2 + s * 5120 + mI * 1024}")
                k.e("s_nop 0")
                if not g3.DBG['nodma']:
                    k.e(f"buffer_load_dwordx4 v{pat[u][mI]}, s[{srdW}:{srdW+3}], s{sT} offen lds")
    order = [0, 10, 2, 12, 4, 14, 6, 16, 8, 18]
    w2_steps(order[:OPT['w2a']])
    lsv = k.label("svp")
    k.e(f"s_cmp_eq_u32 s{sSvc}, 0")
    k.e(f"s_cbranch_scc1 {lsv}")
    k.e(f"v_lshlrev_b32 v{vfa}, 2, v{vl}")
    k.e(f"v_or_b32 v{vfa}, {128 if OPT['diag'] else 0}, v{vfa}")
    poll(srdD, F0V, tag="f0ok", drain1=False)
    k.place(lsv)
    w1warm('w2a')
    k.stamp_l("w2iss")
    k.e("s_barrier")
    k.e("s_barrier")
    lkv, lfd = k.label("f1kv"), k.label("f1d")
    k.e(f"s_cmp_eq_u32 s{sTy}, 0")
    k.e(f"s_cbranch_scc1 {lkv}")
    set_flag(sP, FL_Q)
    k.e(f"s_branch {lfd}")
    k.place(lkv)
    k.e(f"""
    s_cmp_eq_u32 s{sLW}, 1
    s_cbranch_scc0 {lfd}
    s_mul_i32 s3, s{sC}, {FS}
    v_mov_b32 v{vfa}, {FL_C}
    v_mov_b32 v{vf}, 1
    s_mov_b64 exec, 1
    buffer_atomic_add v{vf}, v{vfa}, s[{srdF}:{srdF+3}], s3 offen sc0 sc1
    s_waitcnt vmcnt(0)
    v_readfirstlane_b32 s{sSpin}, v{vf}
    s_mov_b64 exec, -1
    s_cmp_eq_u32 s{sSpin}, 15
    s_cbranch_scc0 {lfd}
    v_mul_u32_u24 v{vfa}, {FS}, v{vl}
    v_add_u32 v{vfa}, {FL_G}, v{vfa}
    s_lshl_b32 s3, s{sC}, 2
    s_mov_b64 exec, {hex((1 << NREP) - 1)}
    buffer_store_dword v{vone}, v{vfa}, s[{srdF}:{srdF+3}], s3 offen sc1
    s_mov_b64 exec, -1
    """)
    k.place(lfd)
    k.stamp_l("f1set")
    if OPT['w2early']:
        w2_steps(order[OPT['w2a']:])
    k.e(f"""
    s_lshr_b32 s3, s{sRB2}, 1
    s_mul_i32 s3, s3, {FS}
    v_and_b32 v{q0}, 7, v{vl}
    v_lshlrev_b32 v{q0}, 2, v{q0}
    v_and_b32 v{vfa}, 12, v{q0}
    v_add_u32 v{vfa}, s3, v{vfa}
    """)
    poll(srdF, 1, tag="f1q", drain1=False)
    if OPT['pqtouch']:
        lpt = k.label("pqt")
        set_srd(k, srdA, ptr['ws'], S_ * 1536, WS_PQ)
        k.e(f"""
        s_cmp_eq_u32 s{sLW}, 1
        s_cbranch_scc1 {lpt}
        s_lshl_b32 s3, s{sRB2}, 2
        s_lshr_b32 s{sSpin}, s{sJ}, 3
        s_add_u32 s3, s3, s{sSpin}
        s_mul_i32 s3, s3, {32 * 768}
        v_lshlrev_b32 v{vfa}, 7, v{vl}
        buffer_load_dword v{k.vdummy}, v{vfa}, s[{srdA}:{srdA+3}], s3 offen sc1
        s_add_u32 s3, s3, 8192
        buffer_load_dword v{k.vdummy}, v{vfa}, s[{srdA}:{srdA+3}], s3 offen sc1
        s_add_u32 s3, s3, 8192
        buffer_load_dword v{k.vdummy}, v{vfa}, s[{srdA}:{srdA+3}], s3 offen sc1
        """)
        k.place(lpt)
    k.e(f"""
    s_and_b32 s3, s2, {NREP - 1}
    s_mul_i32 s3, s3, {FS}
    s_add_u32 s3, s3, {FL_G}
    v_add_u32 v{vfa}, s3, v{q0}
    """)
    k.e(f"s_cmp_eq_u32 s{sLW}, 1")
    lq1 = k.label("q1")
    k.e(f"s_cbranch_scc1 {lq1}")
    k.e(f"buffer_load_dword v{vf}, v{vfa}, s[{srdF}:{srdF+3}], 0 offen sc1")
    k.place(lq1)
    k.e("s_barrier")
    poll(srdF, 1, tag="f1k", drain1=False, first_issued=True)
    k.e("s_barrier")
    k.e(f"""
    s_lshr_b32 s{sP}, s{sRB2}, 1
    s_mul_i32 s{sP}, s{sP}, {FS}
    s_and_b32 s3, s{sRB2}, 1
    s_lshl_b32 s3, s3, 5
    s_add_u32 s{sP}, s{sP}, s3
    s_lshl_b32 s3, s{sCT2}, 2
    s_add_u32 s{sP}, s{sP}, s3
    s_barrier
    """)
    lrp = k.label("rp")
    k.e(f"""
    s_cmp_ge_u32 s{sRv}, 360
    s_cbranch_scc1 {lrp}
    s_mul_i32 s3, s{sRc}, {FS}
    v_mov_b32 v{rp[0]}, {FL_R}
    s_waitcnt vmcnt(0)
    s_mov_b64 exec, 1
    buffer_atomic_add v{vone}, v{rp[0]}, s[{srdF}:{srdF+3}], s3 offen sc1
    s_mov_b64 exec, -1
    """)
    k.place(lrp)
    if not OPT['w2early']:
        w2_steps(order[OPT['w2a']:])
    set_srd(k, srdA, ptr['ws'], S_ * D_ * 2, WS_H, bias=True)
    k.e(f"""
    s_mul_i32 s{sRow}, s{sRB2}, {64 * 2 * D_}
    s_add_u32 s{sRow}, s{sRow}, {BIAS if OPT['lean'] else 0}
    s_add_u32 s{sRow}, s{sRow}, s{sKW}
    s_mul_i32 s3, s{sLW}, 156
    s_add_u32 s{sRow}, s{sRow}, s3
    v_mul_u32_u24 v{vfa}, {2 * D_}, v{vl}
    """)
    k.release(m)
    mS = k.mark()
    Lskip3 = k.label("ldskip3")
    sRB3, sCT3 = dec3()
    ld = Loader(k, c3, vl, sLW)
    nx = 0
    if OPT['pretouch']:
        k.e(f"buffer_load_dword v{k.vdummy}, v{vfa}, s[{srdA}:{srdA+3}], s{sRow} offen sc1")
        nx += 1
    nx += w1warm('c')
    k.e(f"s_waitcnt vmcnt({nx})")
    k.e("s_barrier")
    k.e(f"""
    s_lshl_b32 s3, s{sCH}, 3
    s_lshr_b32 s{sSpin}, s{sJ}, 2
    s_add_u32 s3, s3, s{sSpin}
    s_mul_i32 s3, s3, {FS}
    s_add_u32 s3, s3, {FL_S}
    v_and_b32 v{vfa}, 3, v{vl}
    v_lshlrev_b32 v{vfa}, 2, v{vfa}
    v_add_u32 v{vfa}, s3, v{vfa}
    """)
    poll(srdF, 1, tag="fsok", drain1=False)
    set_srd(k, srdW, ptr['ws'], 32768, WS_CS3)
    csr = [k.v(4) for _ in range(4)]
    k.e(f"""
    s_lshl_b32 s3, s{sCH}, 12
    s_lshr_b32 s{sSpin}, s{sJ}, 2
    s_lshl_b32 s{sSpin}, s{sSpin}, 9
    s_add_u32 s3, s3, s{sSpin}
    s_lshl_b32 s{sSpin}, s{sLW}, 20
    s_add_u32 s3, s3, s{sSpin}
    v_and_b32 v{vfa}, 31, v{vl}
    v_lshlrev_b32 v{vfa}, 4, v{vfa}
    """)
    for q_ in range(4):
        k.e(f"buffer_load_dwordx4 {vr(csr[q_],4)}, v{vfa}, s[{srdW}:{srdW+3}], s3 offen sc1")
        k.e("s_add_u32 s3, s3, 8192")
    ng = w1warm('g')
    ld.patterns()
    k.e(f"s_mul_i32 s{sRow}, s{sRB3}, {128 * 2 * D_}")
    k.e(f"s_lshl_b32 s{sCol}, s{sCT3}, 8")
    ld.bases(sRow, sCol)
    set_srd(k, srdW, ptr['w1'], F_ * D_ * 2, bias=True)
    ld.sRot = sRotL
    k.e(f"s_lshr_b32 s{sRotL}, s{sJ}, 2")
    k.e(f"s_mul_i32 s{sRotL}, s{sRotL}, 23")
    k.e(f"s_lshr_b32 s{sRotL}, s{sRotL}, 4")
    k.e(f"s_min_u32 s{sRotL}, s{sRotL}, 9")
    k.e("s_barrier")
    k.e(f"s_waitcnt vmcnt({ng})")
    for j in range(2):
        k.e(f"v_pk_add_f32 {vr(csr[0]+2*j,2)}, {vr(csr[0]+2*j,2)}, {vr(csr[1]+2*j,2)}")
        k.e(f"v_pk_add_f32 {vr(csr[2]+2*j,2)}, {vr(csr[2]+2*j,2)}, {vr(csr[3]+2*j,2)}")
        k.e(f"v_pk_add_f32 {vr(c3r+2*j,2)}, {vr(csr[0]+2*j,2)}, {vr(csr[2]+2*j,2)}")
    k.e("s_barrier")
    set_flag(sP, FL_2)
    k.stamp_l("f2set")
    Lidle3 = k.label("ldidle3")
    k.e(f"s_cmp_ge_u32 s{sJ}, 28")
    k.e(f"s_cbranch_scc1 {Lidle3}")
    ld.prefill_w(srdW, c3.SW)
    vl2 = k.v()
    k.e(f"""
    v_and_b32 v{vl2}, 31, v{vl}
    v_lshlrev_b32 v{vl2}, 4, v{vl2}
    s_lshl_b32 s3, s{sLW}, 9
    s_add_u32 s3, s3, {P3_SCR + 1024}
    v_add_u32 v{vl2}, s3, v{vl2}
    ds_write_b128 v{vl2}, {vr(c3r,4)}
    s_waitcnt lgkmcnt(0)
    """)
    k.e(f"""
    s_mul_i32 s3, s{sRB3}, {FS}
    s_add_u32 s3, s3, {FL_2}
    v_and_b32 v{vfa}, 15, v{vl}
    v_lshlrev_b32 v{vfa}, 2, v{vfa}
    v_add_u32 v{vfa}, s3, v{vfa}
    """)
    def r_check():
        lp, lo = k.label("rchk"), k.label("rok")
        k.e(f"""
        s_mul_i32 s3, s{sCH}, {4 * FS}
        s_add_u32 s3, s3, {FL_R}
        v_and_b32 v{vfa}, 3, v{vl}
        v_mul_u32_u24 v{vfa}, {FS}, v{vfa}
        v_add_u32 v{vfa}, s3, v{vfa}
        s_mov_b32 s{sSpin}, 0
        """)
        k.place(lp)
        k.e(f"""
        buffer_load_dword v{vf}, v{vfa}, s[{srdF}:{srdF+3}], 0 offen sc1
        s_waitcnt vmcnt(0)
        v_cmp_ne_u32 vcc, 45, v{vf}
        s_add_u32 s{sSpin}, s{sSpin}, 1
        s_nop 3
        s_cbranch_vccz {lo}
        s_cmp_gt_u32 s{sSpin}, 0x40000
        s_cbranch_scc1 {k.end}
        s_sleep 16
        s_branch {lp}
        """)
        k.place(lo)

    poll(srdF, 1, tag="f2ok", drain1=False)
    lrc = k.label("rc")
    k.e(f"s_cmp_eq_u32 s{sLW}, 0")
    k.e(f"s_cbranch_scc1 {lrc}")
    r_check()
    k.place(lrc)
    k.e("s_barrier")

    def idle_warm():
        mm_ = k.mark()
        sCo = k.s()
        k.e(f"""
        s_lshl_b32 s{sCo}, s{sCH}, 2
        s_add_u32 s{sCo}, s{sCo}, s{sJ}
        s_sub_u32 s{sCo}, s{sCo}, 28
        s_mul_i32 s{sCo}, s{sCo}, {W2P_CT}
        s_add_u32 s{sCo}, s{sCo}, {WS_W2P}
        """)
        T = Touch(k, vl, 16, 2048)
        for it in range(OPT['iw']):
            T.unit(ptr['ws'], sCo, sLW, 2 * it, 135)
            if OPT['iwser']:
                k.e('s_waitcnt vmcnt(0)')
        k.release(mm_)

    def w1p(lst):
        def f():
            n = 0
            assert ld.issued >= 40 + 80
            for m in lst:
                for op in ld._W(m, srdW, coff=128):
                    ld.emit_op(op); n += 1
            return n
        return f
    ld.stream(srdA, srdW, aflags="sc1", tag="p3", hooks={7: w1p([0, 1, 2]), 8: w1p([3, 4, 5]), 9: w1p([6, 7])})
    w1p([8])()
    k.e("s_barrier")
    w1p([9])()
    k.e(f"""
    s_mul_i32 s{sP}, s{sRB3}, {FS}
    s_lshl_b32 s3, s{sCT3}, 2
    s_add_u32 s{sP}, s{sP}, s3
    s_add_u32 s{sP}, s{sP}, {FL_3}
    s_mov_b32 s{sAct}, 1
    s_waitcnt vmcnt(20)
    s_barrier
    s_branch {Lskip3}
    """)
    k.place(Lidle3)
    k.e(f"s_mov_b32 s{sAct}, 0")
    k.release(mS)
    r_check()
    idle_warm()
    k.place(Lskip3)
    Lend, Lno3, Lno4 = k.label("ldend"), k.label("ldno3"), k.label("ldno4")
    sRB4, sCT4 = dec2()
    ld = Loader(k, c4, vl, sLW)
    ld.patterns()
    k.e(f"s_mul_i32 s{sRow}, s{sRB4}, {64 * 2 * F_}")
    k.e(f"s_mul_i32 s{sCol}, s{sCT4}, {W2P_CT}")
    ld.bases(sRow, sCol)
    set_srd(k, srdA, ptr['ws'], S_ * F_ * 2, WS_HH, bias=True)
    set_srd(k, srdW, ptr['ws'], 8 * W2P_CT, WS_W2P)
    ld.sRot = sRotL
    k.e(f"s_lshr_b32 s{sRotL}, s{sJ}, 3")
    k.e(f"s_mul_i32 s{sRotL}, s{sRotL}, 7")
    k.e(f"s_lshr_b32 s{sRotL}, s{sRotL}, 1")
    ld.prefill_w(srdW, OPT['pf1'])
    k.e(f"""
    s_cmp_eq_u32 s{sAct}, 0
    s_cbranch_scc1 {Lno3}
    s_waitcnt vmcnt({5 * OPT['pf1']})
    s_barrier
    """)
    set_flag(sP, 0)
    k.stamp_l("f3set")
    k.place(Lno3)
    for m_ in range(OPT['pf1'], 6):
        for op in ld._W(m_, srdW):
            ld.emit_op(op)
    ld.pw = 6
    k.e(f"""
    s_cmp_eq_u32 s{sAct}, 0
    s_cbranch_scc1 {Lno4}
    s_barrier
    """)
    k.place(Lno4)
    k.e(f"""
    s_lshr_b32 s3, s{sRB4}, 1
    s_mul_i32 s3, s3, {FS}
    s_add_u32 s3, s3, {FL_3}
    v_and_b32 v{vfa}, 15, v{vl}
    v_min_u32 v{vfb}, 12, v{vfa}
    v_min_u32 v{vfa}, 13, v{vfa}
    v_lshlrev_b32 v{vfa}, 2, v{vfa}
    v_add_u32 v{vfa}, s3, v{vfa}
    v_lshlrev_b32 v{vfb}, 2, v{vfb}
    v_add_u32 v{vfb}, s3, v{vfb}
    v_add_u32 v{vfb}, 64, v{vfb}
    """)
    poll(srdF, 1, tag="f3ok", drain1=False, both=True)
    mk = {}

    def f3b_set():
        k.e(f"""
        s_and_b32 s3, s{sAct}, s{sLW}
        s_cmp_eq_u32 s3, 1
        s_cselect_b32 s3, 64, {OOB}
        v_mov_b32 v{vfa}, s3
        s_mov_b64 exec, 1
        buffer_store_dword v{vone}, v{vfa}, s[{srdF}:{srdF+3}], s{sP} offen sc1
        s_mov_b64 exec, -1
        """)
        return 1

    def f3b_issue():
        k.e(f"buffer_load_dword v{vf}, v{vfb}, s[{srdF}:{srdF+3}], 0 offen sc1")
        mk['n'] = ld.issued
        return 1

    def f3b_check():
        k.e(f"v_mov_b32 v{vfa}, v{vfb}")
        poll(srdF, 1, tag="f3bok", drain1=False, both=True, first_issued=True, younger=max(1, ld.issued - mk['n']) if ld.issued > mk['n'] else 0)
        return 0

    def out_touch():
        set_srd(k, srdF, ptr['out'], S_ * D_ * 2)
        k.e(f"""
        s_mul_i32 s3, s{sRB4}, {64 * 2 * D_}
        s_mul_i32 s{sSpin}, s{sCT4}, 160
        s_add_u32 s3, s3, s{sSpin}
        s_mul_i32 s{sSpin}, s{sLW}, 156
        s_add_u32 s3, s3, s{sSpin}
        v_mul_u32_u24 v{vfa}, {2 * D_}, v{vl}
        buffer_load_dword v{k.vdummy}, v{vfa}, s[{srdF}:{srdF+3}], s3 offen
        """)
        return 1
    ld.stream(srdA, srdW, aflags="sc1", tag="p4", hooks={1: f3b_set, HB - 2: f3b_issue, HB: f3b_check},
              last=out_touch if OPT['otouch'] else None)
    k.place(Lend)
    endwave()
    k.release(mL)

    k.lines.append('; @SEC svc')
    k.place(Lsvc)
    mV = k.mark()
    k.vtop = vLtop
    sS, sA, sB, sX8, sPi = (k.s() for _ in range(5))
    srdX, srdS, srdK, srdW_ = k.s(4), k.s(4), k.s(4), k.s(4)
    xr = [k.v(4) for _ in range(5)]
    ux = [k.v(2) for _ in range(20)]
    t0, t1, vs_, vq_ = k.v(), k.v(), k.v(2), k.v(2)
    z4 = k.v(4)
    k.e(f"""
    s_and_b32 s{sS}, s{sJ1}, 7
    s_and_b32 s{sX8}, s2, 7
    s_lshl_b32 s{sPi}, s{sX8}, 3
    s_add_u32 s{sPi}, s{sPi}, s{sS}
    s_lshl_b32 s{sA}, s{sPi}, 3
    s_add_u32 s{sA}, s{sA}, s{sWave}
    s_lshl_b32 s{sA}, s{sA}, 2
    v_lshrrev_b32 v{t0}, 4, v{vl}
    v_add_u32 v{t0}, s{sA}, v{t0}
    v_mul_u32_u24 v{t1}, {2*D_}, v{t0}
    v_and_b32 v{vs_}, 15, v{vl}
    v_lshl_add_u32 v{t1}, v{vs_}, 4, v{t1}
    s_waitcnt lgkmcnt(0)
    """)
    set_srd(k, srdX, ptr['x'], S_ * D_ * 2)
    for i in range(5):
        k.e(f"buffer_load_dwordx4 {vr(xr[i],4)}, v{t1}, s[{srdX}:{srdX+3}], 0 offen offset:{i*256}")
    set_srd(k, srdS, ptr['ws'], WS_FL - WS_ST1 + FL_BYTES, WS_ST1)
    set_srd(k, srdK, ptr['ws'], KV_BYTES, WS_KV)
    set_srd(k, srdW_, ptr['wqkv'], 3 * D_ * D_ * 2)
    k.e(f"""
    v_mov_b64 {vr(z4,2)}, 0
    v_mov_b64 {vr(z4+2,2)}, 0
    s_lshl_b32 s{sB}, s{sA}, 5
    v_lshlrev_b32 v{t1}, 4, v{vl}
    s_mov_b64 exec, 0xff
    buffer_store_dwordx4 {vr(z4,4)}, v{t1}, s[{srdK}:{srdK+3}], s{sB} offen sc1
    s_mov_b64 exec, 3
    s_lshr_b32 s{sB}, s{sA}, 4
    s_mul_i32 s{sB}, s{sB}, {FS}
    s_and_b32 s3, s{sWave}, 3
    s_lshl_b32 s3, s3, 5
    s_add_u32 s{sB}, s{sB}, s3
    s_add_u32 s{sB}, s{sB}, {WS_FL - WS_ST1}
    buffer_store_dwordx4 {vr(z4,4)}, v{t1}, s[{srdS}:{srdS+3}], s{sB} offen sc1
    s_mov_b64 exec, -1
    v_mov_b64 {vr(vs_,2)}, 0
    v_mov_b64 {vr(vq_,2)}, 0
    """)
    NB = 10
    wb = [k.v(4) for _ in range(NB)]
    ca = [[k.v(2) for _ in range(4)] for _ in range(2)]
    cu = k.v(2)
    vw, vw1, vlw, vlr, t2 = (k.v() for _ in range(5))
    sO, sO1 = k.s(), k.s()
    srdW1 = k.s(4)
    set_srd(k, srdW1, ptr['w1'], F_ * D_ * 2)
    k.e(f"""
    s_lshl_b32 s3, s{sS}, 1
    v_bfe_u32 v{t2}, v{vl}, 3, 1
    v_add_u32 v{t2}, s3, v{t2}
    v_min_u32 v{t2}, 14, v{t2}
    v_mul_u32_u24 v{vw}, 205, v{t2}
    v_lshrrev_b32 v{vw}, 10, v{vw}
    v_mul_u32_u24 v{vw}, 640, v{vw}
    v_lshl_add_u32 v{vw}, v{t2}, 7, v{vw}
    v_and_b32 v{t2}, 7, v{vl}
    v_lshl_add_u32 v{vw}, v{t2}, 4, v{vw}
    v_lshrrev_b32 v{t2}, 4, v{vl}
    v_mul_u32_u24 v{vw1}, {6 * D_}, v{t2}
    v_add_u32 v{vw}, v{vw}, v{vw1}
    s_mul_i32 s{sB}, s{sRQ}, 40
    s_add_u32 s{sB}, s{sB}, s{sWave}
    s_mul_i32 s{sO}, s{sB}, {4 * 6 * D_}
    s_mul_i32 s3, s{sCH}, 640
    s_add_u32 s{sO}, s{sO}, s3
    """)
    for it in range(5):
        k.e(f"buffer_load_dwordx4 {vr(wb[it],4)}, v{vw}, s[{srdW_}:{srdW_+3}], s{sO} offen")
        k.e(f"s_add_u32 s{sO}, s{sO}, {32 * 6 * D_}")
    k.e(f"""
    v_mul_u32_u24 v{vw1}, {2 * F_}, v{t2}
    v_and_b32 v{t2}, 15, v{vl}
    v_lshl_add_u32 v{vw1}, v{t2}, 4, v{vw1}
    s_mul_i32 s{sO1}, s{sB}, {4 * 2 * F_}
    s_min_u32 s3, s{sS}, 6
    s_mul_i32 s{sB}, s{sCH}, 7
    s_add_u32 s3, s3, s{sB}
    s_lshl_b32 s3, s3, 8
    s_add_u32 s{sO1}, s{sO1}, s3
    """)
    k.e(f"""
    v_lshlrev_b32 v{vlw}, 5, v{t2}
    s_lshl_b32 s3, s{sWave}, 9
    v_add_u32 v{vlw}, s3, v{vlw}
    v_lshlrev_b32 v{vlr}, 4, v{vl}
    """)
    sUv, sCo = k.s(), k.s()
    k.e(f"""
    s_lshl_b32 s{sUv}, s{sWave}, 3
    s_add_u32 s{sUv}, s{sUv}, s{sS}
    s_mul_i32 s{sCo}, s{sCH}, 640
    """)
    TWs = Touch(k, vl, 15, 6 * D_, seg5=True)
    u0 = 24 * OPT['hW']
    nX = 0
    if OPT['hX'] != 10:
        sRo2 = k.s()
        k.e(f"""
        s_xor_b32 s{sRo2}, s{sX8}, 1
        s_mul_i32 s{sRo2}, s{sRo2}, {256 * 2 * D_}
        """)
        TXs = Touch(k, vl, 16, 2048, share=TWs)
        TXs.unit(ptr['x'], sRo2, sUv, 0, 160)
        nX = 1
    nT = OPT['svT1']
    for it in range(nT):
        TWs.unit(ptr['wqkv'], sCo, sUv, u0 + 64 * it, 640)
    NB = 5 + nX + nT
    for i in range(5):
        p2_pat(i)()
    for i in range(5):
        k.e(f"s_waitcnt vmcnt({6 - i + NB})")
        for d in range(4):
            k.e(f"v_lshlrev_b32 v{ux[4*i+d]}, 16, v{xr[i]+d}")
            k.e(f"v_and_b32 v{ux[4*i+d]+1}, 0xffff0000, v{xr[i]+d}")
            k.e(f"v_pk_add_f32 {vr(vs_,2)}, {vr(vs_,2)}, {vr(ux[4*i+d],2)}")
    k.e(f"v_add_f32 v{vs_}, v{vs_}, v{vs_+1}")
    dpp_rowsum(k, vs_)
    k.e(f"s_mov_b32 s{sB}, {f32bits(1.0/640)}")
    k.e(f"v_mul_f32 v{vs_}, s{sB}, v{vs_}")
    for i in range(20):
        k.e(f"v_pk_add_f32 {vr(ux[i],2)}, {vr(ux[i],2)}, {vr(vs_,2)} op_sel_hi:[1,0] neg_lo:[0,1] neg_hi:[0,1]")
        k.e(f"v_pk_fma_f32 {vr(vq_,2)}, {vr(ux[i],2)}, {vr(ux[i],2)}, {vr(vq_,2)}")
    k.e(f"v_add_f32 v{vq_}, v{vq_}, v{vq_+1}")
    dpp_rowsum(k, vq_)
    k.e(f"v_mul_f32 v{vq_}, s{sB}, v{vq_}")
    k.e(f"s_mov_b32 s{sB}, {f32bits(1e-5)}")
    ln_finalize_multi(k, [vs_], [vq_], sB)
    k.e(f"""
    v_lshrrev_b32 v{t1}, 7, v{t0}
    v_and_b32 v{t0}, 127, v{t0}
    v_lshlrev_b32 v{t0}, 2, v{t0}
    v_lshl_add_u32 v{t0}, v{t1}, 10, v{t0}
    s_mov_b32 exec_lo, 0x00010001
    s_mov_b32 exec_hi, 0x00010001
    buffer_store_dword v{vs_}, v{t0}, s[{srdS}:{srdS+3}], 0 offen sc1
    buffer_store_dword v{vq_}, v{t0}, s[{srdS}:{srdS+3}], 0 offen offset:512 sc1
    s_mov_b64 exec, -1
    """)

    def cs_sum(younger, nowait=False):
        for a in ca[0]:
            k.e(f"v_mov_b64 {vr(a,2)}, 0")
        if nowait:
            l_ = k.label("csw")
            k.e(f"s_and_b32 s3, s{sWave}, 6")
            k.e(f"s_cmp_eq_u32 s3, 4")
            k.e(f"s_cbranch_scc1 {l_}")
            k.e("s_waitcnt vmcnt(0)")
            k.place(l_)
        for it in range(5):
            if not nowait:
                k.e(f"s_waitcnt vmcnt({4 - it + younger})")
            for d in range(4):
                k.e(f"v_lshlrev_b32 v{cu}, 16, v{wb[it] + d}")
                k.e(f"v_and_b32 v{cu+1}, 0xffff0000, v{wb[it] + d}")
                k.e(f"v_pk_add_f32 {vr(ca[0][d],2)}, {vr(ca[0][d],2)}, {vr(cu,2)}")

    def cs_pub(off_ws, lds_off):
        vals = [a + i for a in ca[0] for i in range(2)]
        allreduce4_multi(k, vals, [wb[i // 4] + i % 4 for i in range(8)])
        for h in range(4):
            k.e(f"ds_write_b64 v{vlw}, {vr(ca[0][h],2)} offset:{lds_off + 8*h}")
        k.e("s_waitcnt lgkmcnt(0)")
        k.e("s_barrier")
        lsk = k.label("csk")
        k.e(f"s_cmp_lg_u32 s{sWave}, 0")
        k.e(f"s_cbranch_scc1 {lsk}")
        for w in range(8):
            k.e(f"ds_read_b128 {vr(wb[w],4)}, v{vlr} offset:{lds_off + 512*w}")
        k.e(f"""
        s_lshl_b32 s3, s{sPi}, 9
        s_add_u32 s3, s3, {off_ws - WS_ST1}
        s_waitcnt lgkmcnt(0)
        """)
        for w in range(1, 8):
            for j in range(2):
                k.e(f"v_pk_add_f32 {vr(wb[0]+2*j,2)}, {vr(wb[0]+2*j,2)}, {vr(wb[w]+2*j,2)}")
        k.e("s_mov_b32 exec_hi, 0")
        k.e(f"buffer_store_dwordx4 {vr(wb[0],4)}, v{vlr}, s[{srdS}:{srdS+3}], s3 offen sc1")
        k.e("s_mov_b64 exec, -1")
        k.e("s_nop 1")
        k.place(lsk)
    cs_sum(nT + nX + 2)
    k.stamp_c("p1_pre")
    cs_pub(WS_CS1, 0)
    set_srd(k, srdX, ptr['dbg'], 256)
    k.e("s_waitcnt vmcnt(0)")
    k.e("s_barrier")
    lf = k.label("svf")
    k.e(f"""
    s_cmp_eq_u32 s{sWave}, 7
    s_cbranch_scc0 {lf}
    s_lshl_b32 s3, s{sPi}, {1 if OPT['diag'] else 2}
    v_mov_b32 v{t0}, s3
    v_mov_b32 v{t1}, 1
    s_mov_b64 exec, 1
    {'buffer_store_short' if OPT['diag'] else 'buffer_store_dword'} v{t1}, v{t0}, s[{srdX}:{srdX+3}], 0 offen {'offset:128' if OPT['diag'] else ''} sc1
    s_mov_b64 exec, -1
    """)
    k.place(lf)
    k.stamp_c("p1_b0")
    k.e("s_barrier")
    n2 = 0
    while u0 + 64 * (nT + n2) < 160:
        TWs.unit(ptr['wqkv'], sCo, sUv, u0 + 64 * (nT + n2), 640, skip=True); n2 += 1
    T5 = Touch(k, vl, 5, 2 * D_, share=TWs)
    if OPT['svwo']:
        T5.unit(ptr['wo'], sCo, sUv, 0, 640, skip=True)
    else:
        T5.unit(ptr['wo'], sCo, sUv, 48, 640, skip=True)
    for it in range(5):
        k.e(f"buffer_load_dwordx4 {vr(wb[it],4)}, v{vw1}, s[{srdW1}:{srdW1+3}], s{sO1} offen")
        k.e(f"s_add_u32 s{sO1}, s{sO1}, {32 * 2 * F_}")
    T14 = Touch(k, vl, 14, 2 * F_, share=TWs)
    k.e(f"s_mul_i32 s{sB}, s{sCH}, {13 * 128}")
    for it in range(OPT['svw1']):
        T14.unit(ptr['w1'], sB, sUv, 64 * it, 640)
    cs_sum(OPT['svw1'])
    cs_pub(WS_CS3, 4096)
    for it in range(OPT['svw2']):
        T5.unit(ptr['w2'], sCo, sUv, 64 * it, 1728)
    k.e("s_waitcnt vmcnt(0)")
    k.stamp_c("p1_loop")
    k.e(f"s_mov_b32 s{sSvc}, 1")
    k.e(f"s_branch {Lrole}")
    k.release(mV)

    k.lines.append('; @SEC cons')
    k.place(Lc)
    sW0, sW1 = k.s(), k.s()
    sA = k.s(2, 2)
    sB = sA + 1
    sEps = k.s(2, 2)
    srd0, srd1, srd2 = k.s(4), k.s(4), k.s(4)
    k.e(f"""
    s_and_b32 s{sW0}, s{sWave}, 1
    s_lshr_b32 s{sW1}, s{sWave}, 1
    s_mov_b32 s{sEps}, {f32bits(1e-6)}
    s_mov_b32 s{sEps+1}, {f32bits(1e-6)}
    """)
    mC = k.mark()
    sG, sC, sTy = dec1()
    Lq, Lp1done, Lqs, Lsj, Lsv2 = (k.label(x) for x in ("consq", "p1done", "qset", "setj", "sv2"))
    srdK = srd0
    k.e("s_waitcnt lgkmcnt(0)")
    set_srd(k, srdK, ptr['ws'], KV_BYTES, WS_KV)
    k.e(f"s_cmp_eq_u32 s{sTy}, 2")
    k.e(f"s_cbranch_scc1 {Lsv2}")
    mP1 = k.mark()
    ar = [k.v() for _ in range(11)]
    va = {(vi, ki): ar[2 * vi + ki] for vi in range(2) for ki in range(2)}
    vz, vrd, vat = ar[4:6], ar[6], ar[7:11]
    ad, vso = [[ar[2 * hh], ar[2 * hh + 1]] for hh in range(4)], ar[8]
    m1 = k.mark()
    sB2 = k.s()
    vd, ve = [k.v(), k.v()], [k.v(), k.v()]
    voob, t1 = k.v(), k.v()
    sM = k.s(2)
    k.e(f"s_cmp_eq_u32 s{sTy}, 1")
    k.e(f"s_cbranch_scc1 {Lqs}")
    k.e(f"""
    s_movk_i32 s{sB2}, 504
    s_lshl_b32 s{sA}, s{sWave}, 2
    v_and_b32 v{t1}, 15, v{vl}
    v_subrev_u32 v{vd[0]}, s{sA}, v{t1}
    v_add_u32 v{vd[1]}, 16, v{vd[0]}
    v_lshrrev_b32 v{t1}, 4, v{vl}
    v_lshlrev_b32 v{t1}, 2, v{t1}
    v_subrev_u32 v{ve[0]}, s{sA}, v{t1}
    v_add_u32 v{ve[1]}, 16, v{ve[0]}
    v_mov_b32 v{voob}, 2048
    """)
    for vi in range(2):
        for ki in range(2):
            k.e(f"""
            v_mul_u32_u24 v{t1}, 24, v{ve[vi]}
            v_add_lshl_u32 v{t1}, v{t1}, v{vd[ki]}, 2
            v_cmp_gt_u32 vcc, 20, v{ve[vi]}
            v_cmp_gt_u32 s[{sM}:{sM+1}], 20, v{vd[ki]}
            s_nop 1
            s_and_b64 vcc, vcc, s[{sM}:{sM+1}]
            s_nop 1
            v_cndmask_b32 v{va[(vi,ki)]}, v{voob}, v{t1}, vcc
            """)
    for ki in range(2):
        k.e(f"""
        v_lshlrev_b32 v{t1}, 2, v{vd[ki]}
        v_add_u32 v{t1}, {20*96}, v{t1}
        v_cmp_gt_u32 vcc, 16, v{vl}
        v_cmp_gt_u32 s[{sM}:{sM+1}], 20, v{vd[ki]}
        s_nop 1
        s_and_b64 vcc, vcc, s[{sM}:{sM+1}]
        s_nop 1
        v_cndmask_b32 v{vz[ki]}, v{voob}, v{t1}, vcc
        """)
    assert P1_AT + 4 * 2560 <= LDS_TOTAL
    k.e(f"s_mul_i32 s{sA}, s{sWave}, 2560")
    k.e(f"s_add_u32 s{sA}, s{sA}, {P1_AT}")
    for x in list(va.values()) + vz:
        k.e(f"v_add_u32 v{x}, s{sA}, v{x}")
    k.e(f"v_lshl_add_u32 v{vrd}, v{vl}, 2, s{sA}")
    k.e(f"v_mov_b32 v{voob}, {OOB}")
    for n, base in enumerate((0, 64, 128, 448)):
        k.e(f"""
        v_add_u32 v{t1}, {base}, v{vl}
        v_mul_u32_u24 v{vd[0]}, 2731, v{t1}
        v_lshrrev_b32 v{vd[0]}, 16, v{vd[0]}
        v_mul_u32_u24 v{vd[0]}, 24, v{vd[0]}
        v_sub_u32 v{vd[0]}, v{t1}, v{vd[0]}
        v_cmp_gt_u32 vcc, 20, v{vd[0]}
        v_cmp_gt_u32 s[{sM}:{sM+1}], s{sB2}, v{t1}
        v_lshlrev_b32 v{t1}, 2, v{t1}
        s_nop 0
        s_and_b64 vcc, vcc, s[{sM}:{sM+1}]
        s_nop 1
        v_cndmask_b32 v{vat[n]}, v{voob}, v{t1}, vcc
        """)
    k.e(f"s_branch {Lsj}")
    k.place(Lqs)

    vb, vc, t0 = vd[0], vd[1], ve[0]
    k.e(f"""
    s_mul_i32 s{sA}, s{sW1}, 20480
    s_mul_i32 s{sB}, s{sW0}, 5120
    s_add_u32 s{sA}, s{sA}, s{sB}
    v_lshlrev_b32 v{vso}, 4, v{vl}
    v_mov_b32 v{ar[9]}, {OOB}
    v_mov_b32 v{ar[10]}, {OOB}
    v_and_b32 v{vb}, 3, v{vl}
    v_lshlrev_b32 v{vb}, 8, v{vb}
    v_add_u32 v{vb}, s{sA}, v{vb}
    v_lshrrev_b32 v{t0}, 4, v{vl}
    v_min_u32 v{t0}, 2, v{t0}
    v_bfe_u32 v{vc}, v{vl}, 2, 2
    v_lshl_add_u32 v{vc}, v{t0}, 3, v{vc}
    v_cmp_gt_u32 vcc, 2, v{t0}
    s_nop 1
    v_cndmask_b32 v{t1}, 0, 4, vcc
    """)
    for hh in range(4):
        for hf in range(2):
            a = ad[hh][hf]
            k.e(f"v_add_u32 v{t0}, {20*hh}, v{vc}")
            if hf:
                k.e(f"v_add_u32 v{t0}, v{t0}, v{t1}")
            k.e(f"""
            v_lshrrev_b32 v{a}, 4, v{t0}
            v_lshl_add_u32 v{a}, v{a}, 10, v{vb}
            v_and_b32 v{t0}, 15, v{t0}
            v_lshl_add_u32 v{a}, v{t0}, 4, v{a}
            """)
    k.place(Lsj)
    k.release(m1)
    vc0, vc2, vc3, vst, vx0, vx2, vxr = (k.v() for _ in range(7))
    ones = k.v(4)
    sX0, sX3 = k.s(), k.s()
    k.e(f"""
    s_cmp_eq_u32 s{sTy}, 1
    s_cselect_b32 s{sX0}, 5, 3
    s_cselect_b32 s{sX3}, 3, 5
    s_mul_i32 s{sX0}, s{sX0}, s{sW0}
    s_add_u32 s{sX3}, s{sX3}, s{sX0}
    v_and_b32 v{vc0}, 15, v{vl}
    v_lshlrev_b32 v{vc0}, 2, v{vc0}
    v_add_u32 v{vc0}, {P1_ST + 1024}, v{vc0}
    s_mul_i32 s{sA}, s{sW0}, 320
    v_add_u32 v{vc2}, s{sA}, v{vc0}
    s_lshl_b32 s{sA}, s{sX3}, 6
    v_add_u32 v{vc3}, s{sA}, v{vc0}
    s_lshl_b32 s{sA}, s{sX0}, 6
    v_add_u32 v{vc0}, s{sA}, v{vc0}
    v_lshrrev_b32 v{vst}, 4, v{vl}
    v_lshlrev_b32 v{vst}, 4, v{vst}
    s_lshl_b32 s{sA}, s{sW1}, 8
    s_add_u32 s{sA}, s{sA}, {P1_ST}
    v_add_u32 v{vst}, s{sA}, v{vst}
    v_lshlrev_b32 v{vxr}, 4, v{vl}
    s_mul_i32 s{sA}, s{sW1}, 20480
    s_lshl_b32 s{sB}, s{sX0}, 10
    s_add_u32 s{sB}, s{sB}, s{sA}
    v_add_u32 v{vx0}, s{sB}, v{vxr}
    s_mul_i32 s{sB}, s{sW0}, 5120
    s_add_u32 s{sB}, s{sB}, s{sA}
    v_add_u32 v{vx2}, s{sB}, v{vxr}
    s_lshl_b32 s{sA}, s{sWave}, 10
    v_add_u32 v{vxr}, s{sA}, v{vxr}
    """)
    for x in (sX0, sX3):
        k.e(f"""
        s_cmp_ge_u32 s{x}, 5
        s_cselect_b32 s3, {2560 - 160}, 0
        s_lshl_b32 s{x}, s{x}, 5
        s_add_u32 s{x}, s{x}, s3
        """)
    ckv.mixed = (sX0, sX3)
    for j in range(4):
        k.e(f"v_mov_b32 v{ones+j}, 0x3f803f80")
    o = consumer_setup(k, ckv, sW1, sW0, vl)
    k.e(f"s_mov_b32 s{sA}, {f32bits(LOG2E)}")
    k.e(f"s_mov_b32 s{sB}, {f32bits(LOG2E)}")
    consumer_loop(k, o, None, tag="p1")
    tp = k.v(2)
    cs = [k.v(2) for _ in range(5)]
    stm = [k.v(4) for _ in range(4)]
    str_ = [k.v(4) for _ in range(4)]
    r2 = [k.v(4) for _ in range(4)]
    fr = [k.v(4), k.v(4)]
    Dz = [k.v(4), k.v(4)]
    k.e("s_barrier")
    k.stamp_c("p1_e1")
    co = [0, 64, 128, 0, 64]
    for nt in range(5):
        k.e(f"ds_read_b32 v{cs[nt]}, v{[vc0, vc0, vc2, vc3, vc3][nt]} offset:{co[nt]}")
    for mt in range(4):
        k.e(f"ds_read_b128 {vr(stm[mt],4)}, v{vst} offset:{mt*64}")
    for mt in range(4):
        k.e(f"ds_read_b128 {vr(str_[mt],4)}, v{vst} offset:{512 + mt*64}")
    for mt in range(4):
        k.e(f"s_waitcnt lgkmcnt({7 - mt})")
        for nt in range(5):
            a = o.acc[mt][nt]
            for j in range(2):
                k.e(f"v_pk_fma_f32 {vr(a+2*j,2)}, {vr(stm[mt]+2*j,2)}, {vr(cs[nt],2)}, {vr(a+2*j,2)} op_sel_hi:[1,0,1] neg_lo:[1,0,0] neg_hi:[1,0,0]")
    k.e("s_waitcnt lgkmcnt(0)")
    assert sB == sA + 1 and sA % 2 == 0
    for mt in range(4):
        for j in range(2):
            k.e(f"v_pk_mul_f32 {vr(r2[mt]+2*j,2)}, {vr(str_[mt]+2*j,2)}, s[{sA}:{sA+1}]")
    xo = [0, 1, 2, 5, 6]

    def fin_tile(nt, is_k, xo=xo):
        for tg in range(2):
            for mt in (2 * tg, 2 * tg + 1):
                for j in range(2):
                    a = o.acc[mt][nt] + 2 * j
                    if is_k:
                        phi_pair(k, a, str_[mt] + 2 * j, r2[mt] + 2 * j, sEps, tp)
                    else:
                        k.e(f"v_pk_mul_f32 {vr(a,2)}, {vr(a,2)}, {vr(str_[mt]+2*j,2)}")
            f = fr[tg]
            for i, mt in enumerate((2 * tg, 2 * tg + 1)):
                a = o.acc[mt][nt]
                k.e(f"v_cvt_pk_bf16_f32 v{f + 2*i}, v{a}, v{a+1}")
                k.e(f"v_cvt_pk_bf16_f32 v{f + 2*i + 1}, v{a+2}, v{a+3}")
            k.e(f"ds_write_b128 v{vx2 if nt == 2 else vx0}, {vr(f,4)} offset:{tg*10240 + xo[nt]*1024}")
    for nt in (0, 1):
        fin_tile(nt, True)
    Lv, Lj, Lk2 = k.label("vpath"), k.label("vjoin"), k.label("k2")
    k.e(f"s_cmp_eq_u32 s{sTy}, 1")
    k.e(f"s_cbranch_scc1 {Lq}")
    for nt in (3, 4):
        fin_tile(nt, False)
    k.e(f"s_cmp_eq_u32 s{sW0}, 1")
    k.e(f"s_cbranch_scc1 {Lv}")
    fin_tile(2, True)
    k.e(f"s_branch {Lj}")
    k.place(Lv)
    fin_tile(2, False)
    k.place(Lj)
    k.e(f"""
    s_lshl_b32 s{sA}, s{sC}, 2
    s_add_u32 s{sA}, s{sA}, s{sWave}
    s_lshl_b32 s{sA}, s{sA}, 11
    s_waitcnt lgkmcnt(0)
    s_barrier
    """)
    k.stamp_c("p1_e2")
    accs = [o.acc[mt][nt] for mt in range(4) for nt in range(5)]
    F = {}
    idx = 0
    for tg in range(4):
        for nm, off in (("k0", 0), ("k1", 1), ("v0", 5), ("v1", 6)):
            F[(tg, nm)] = accs[idx]; idx += 1
            if idx == 16:
                k.e("s_waitcnt lgkmcnt(11)")
            k.e(f"ds_read_b128 {vr(F[(tg, nm)],4)}, v{vxr} offset:{tg*10240 + off*1024}")
    Dk = {(vi, ki): accs[16 + 2 * vi + ki] for vi in range(2) for ki in range(2)}
    for tg in range(4):
        k.e(f"s_waitcnt lgkmcnt({12 - 4*tg})")
        for vi in range(2):
            for ki in range(2):
                d = Dk[(vi, ki)]
                k.e(f"v_mfma_f32_16x16x32_bf16 {vr(d,4)}, {vr(F[(tg, f'v{vi}')],4)}, {vr(F[(tg, f'k{ki}')],4)}, " + ("0" if tg == 0 else vr(d, 4)))
        for ki in range(2):
            d = Dz[ki]
            k.e(f"v_mfma_f32_16x16x32_bf16 {vr(d,4)}, {vr(ones,4)}, {vr(F[(tg, f'k{ki}')],4)}, " + ("0" if tg == 0 else vr(d, 4)))
    k.e("s_nop 3")
    for vi in range(2):
        for ki in range(2):
            for j in range(4):
                k.e(f"ds_write_b32 v{va[(vi,ki)]}, v{Dk[(vi,ki)]+j} offset:{j*96}")
            if (vi, ki) == (1, 0):
                k.e("s_waitcnt lgkmcnt(6)")
    for ki in range(2):
        k.e(f"ds_write_b32 v{vz[ki]}, v{Dz[ki]}")
    k.e("s_waitcnt lgkmcnt(0)")
    for n in range(8):
        k.e(f"ds_read_b32 v{accs[n // 4] + n % 4}, v{vrd} offset:{n*256}")
    for n in range(8):
        k.e(f"s_waitcnt lgkmcnt({7 - n})")
        k.e(f"buffer_atomic_add_f32 v{accs[n // 4] + n % 4}, v{vat[n % 3] if n < 7 else vat[3]}, s[{srdK}:{srdK+3}], s{sA} offen offset:{(n // 3) * 768 if n < 7 else 0}")
    k.e(f"s_branch {Lp1done}")
    k.place(Lq)
    srdP = srd1
    set_srd(k, srdP, ptr['ws'], S_ * 1536, WS_PQ)
    sQ = k.s()
    k.e(f"""
    s_lshl_b32 s{sQ}, s{sG}, 1
    s_add_u32 s{sQ}, s{sQ}, s{sW1}
    s_lshl_b32 s{sQ}, s{sQ}, 4
    s_add_u32 s{sQ}, s{sQ}, s{sC}
    s_lshl_b32 s{sQ}, s{sQ}, 1
    s_add_u32 s{sQ}, s{sQ}, s{sW0}
    s_mul_i32 s{sQ}, s{sQ}, {4 * 768}
    """)
    qb = [stm[0], stm[1], stm[2], stm[3]]

    def q_rd(hh):
        k.e("s_waitcnt lgkmcnt(0)")
        for i in range(4):
            for hf in range(2):
                k.e(f"ds_read_b64_tr_b16 {vr(o.acc[i][hh] + 2*hf, 2)}, v{ad[hh][hf]} offset:{(i // 2) * 10240 + 8 * (i % 2)}")

    def q_st(hh, pend):
        k.e(f"s_waitcnt lgkmcnt({pend})")
        k.e("s_mov_b32 exec_hi, 0xffff")
        for i in range(4):
            k.e(f"s_add_u32 s3, s{sQ}, {i * 32 * 768}")
            k.e(f"buffer_store_dwordx4 {vr(o.acc[i][hh],4)}, v{vso}, s[{srdP}:{srdP+3}], s3 offen offset:{hh*768} sc1")
        k.e("s_mov_b64 exec, -1")
    xq = [0, 1, 2, 3, 4]
    for hh in range(4):
        q_rd(hh)
        if hh < 3:
            fin_tile(hh + 2, True, xo=xq)
            q_st(hh, 2)
        else:
            q_st(hh, 0)
        if hh == 1:
            k.e("s_barrier")
    k.stamp_c("p1_e2")
    k.e(f"s_branch {Lp1done}")
    k.release(mP1)
    k.place(Lsv2)
    k.e("s_barrier")
    k.e("s_barrier")
    k.e(f"s_branch {Lp1done}")
    k.lines.append('; @SEC cons2')
    k.place(Lp1done)
    k.stamp_c("p1_st")
    k.release(mC)
    sRB, sCT = dec2()
    PQ = [k.v(64, 4), k.v(64, 4)]
    big = k.v(80, 4)
    xr = [k.v(4), k.v(4), k.v(2)]
    cE = k.v(4)
    vO, vO2, vrow, vPq, vKa, vKb, vW, vW2, vXw, vXr, t0, t1, t2 = (k.v() for _ in range(13))
    sM = k.s(2)
    k.e(f"""
    s_lshl_b32 s{sA}, s{sRB}, 6
    s_lshl_b32 s{sB}, s{sW0}, 5
    s_add_u32 s{sA}, s{sA}, s{sB}
    s_lshl_b32 s{sB}, s{sW1}, 4
    s_add_u32 s{sA}, s{sA}, s{sB}
    v_and_b32 v{t2}, 15, v{vl}
    v_add_u32 v{vrow}, s{sA}, v{t2}
    v_mul_u32_u24 v{vO}, {2*D_}, v{vrow}
    s_mul_i32 s{sA}, s{sCT}, 160
    v_add_u32 v{vO}, s{sA}, v{vO}
    v_lshrrev_b32 v{t1}, 4, v{vl}
    v_lshl_add_u32 v{vO2}, v{t1}, 3, v{vO}
    v_bfe_u32 v{t0}, v{vl}, 4, 1
    v_lshl_add_u32 v{vO}, v{t0}, 5, v{vO}
    v_lshrrev_b32 v{t0}, 5, v{vl}
    v_lshl_add_u32 v{vO}, v{t0}, 4, v{vO}
    v_cmp_eq_u32 vcc, 3, v{t1}
    v_lshrrev_b32 v{t0}, 2, v{t2}
    v_add_u32 v{vKa}, v{t0}, v{t2}
    v_cndmask_b32 v{vPq}, v{t1}, 1, vcc
    v_lshlrev_b32 v{vPq}, 8, v{vPq}
    v_lshl_add_u32 v{vPq}, v{t2}, 4, v{vPq}
    v_mul_u32_u24 v{vKb}, 5, v{t0}
    v_add_u32 v{vKb}, 4, v{vKb}
    v_and_b32 v{t0}, 3, v{t2}
    v_cmp_eq_u32 s[{sM}:{sM+1}], 0, v{t0}
    v_mov_b32 v{t0}, 20
    s_nop 0
    v_cndmask_b32 v{vKb}, v{t0}, v{vKb}, s[{sM}:{sM+1}]
    v_mul_u32_u24 v{vKa}, 48, v{vKa}
    v_mul_u32_u24 v{vKb}, 48, v{vKb}
    v_lshl_add_u32 v{vKa}, v{t1}, 4, v{vKa}
    v_lshl_add_u32 v{vKb}, v{t1}, 4, v{vKb}
    v_mov_b32 v{t0}, 1008
    v_cndmask_b32 v{vKa}, v{vKa}, v{t0}, vcc
    v_cndmask_b32 v{vKb}, v{vKb}, v{t0}, vcc
    s_lshl_b32 s{sA}, s{sW1}, 14
    s_add_u32 s{sA}, s{sA}, {L_KV}
    v_add_u32 v{vKa}, s{sA}, v{vKa}
    v_add_u32 v{vKb}, s{sA}, v{vKb}
    v_bfe_u32 v{t0}, v{vl}, 2, 3
    v_lshrrev_b32 v{t1}, 5, v{vl}
    v_mul_u32_u24 v{t1}, 2560, v{t1}
    v_mul_u32_u24 v{t0}, 160, v{t0}
    v_add_u32 v{vW}, v{t1}, v{t0}
    v_and_b32 v{t0}, 3, v{vl}
    v_lshl_add_u32 v{vW}, v{t0}, 3, v{vW}
    s_mul_i32 s{sA}, s{sW1}, 51200
    s_add_u32 s{sA}, s{sA}, {L_W2}
    v_add_u32 v{vW}, s{sA}, v{vW}
    s_mul_i32 s{sA}, s{sWave}, 5120
    s_add_u32 s{sA}, s{sA}, {L_X2}
    v_lshlrev_b32 v{t0}, 4, v{vl}
    v_add_u32 v{vXw}, s{sA}, v{t0}
    s_xor_b32 s{sA}, s{sWave}, 2
    s_mul_i32 s{sA}, s{sA}, 5120
    s_add_u32 s{sA}, s{sA}, {L_X2}
    v_add_u32 v{vXr}, s{sA}, v{t0}
    v_lshlrev_b32 v{vW2}, 4, v0
    v_lshlrev_b32 v{t2}, 3, v0
    s_lshl_b32 s{sA}, s{sJ}, 11
    v_add_u32 v{t2}, s{sA}, v{t2}
    v_and_b32 v{t2}, 0x7fff, v{t2}
    v_mov_b32 v{cE}, 0
    v_mov_b32 v{cE+1}, s{sEps}
    v_mov_b64 {vr(cE+2,2)}, 0
    """)
    srdX, srdP = srd2, srd1
    set_srd(k, srdX, ptr['x'], S_ * D_ * 2)
    set_srd(k, srdP, ptr['ws'], S_ * 1536, WS_PQ)
    k.e(f"buffer_load_dwordx4 {vr(xr[0],4)}, v{vO}, s[{srdX}:{srdX+3}], 0 offen")
    k.e(f"buffer_load_dwordx4 {vr(xr[1],4)}, v{vO}, s[{srdX}:{srdX+3}], 0 offen offset:64")
    k.e(f"buffer_load_dwordx2 {vr(xr[2],2)}, v{vO2}, s[{srdX}:{srdX+3}], 0 offen offset:128")
    k.e(f"""
    s_lshl_b32 s{sA}, s{sRB}, 2
    s_lshl_b32 s{sB}, s{sW0}, 1
    s_add_u32 s{sA}, s{sA}, s{sB}
    s_add_u32 s{sA}, s{sA}, s{sW1}
    s_xor_b32 s{sB}, s{sA}, 1
    s_lshl_b32 s{sA}, s{sA}, 1
    s_add_u32 s{sA}, s{sA}, s{sW1}
    s_mul_i32 s{sA}, s{sA}, {16 * 768}
    s_lshl_b32 s{sB}, s{sB}, 1
    s_add_u32 s{sB}, s{sB}, s{sW1}
    s_mul_i32 s{sB}, s{sB}, {16 * 768}
    s_waitcnt vmcnt(3)
    s_barrier
    """)
    k.stamp_c("p1_e3")
    sKo = k.s()
    pql = []
    for h in range(16):
        pre = []
        if h % 5 == 0 and h:
            pre = [f"s_add_u32 s{sA}, s{sA}, {5 * 768}", f"s_add_u32 s{sB}, s{sB}, {5 * 768}"]
        for i, sx in enumerate((sA, sB)):
            pql.append(pre + [f"buffer_load_dwordx4 {vr(PQ[i] + 4*h, 4)}, v{vPq}, s[{srdP}:{srdP+3}], s{sx} offen offset:{(h % 5) * 768} sc1"])
            pre = []
    k.e("s_barrier")
    k.stamp_c("p2_q")
    lead = OPT['pqq']
    for x in pql[:lead]:
        k.emit_list(x)
    k.e("s_barrier")
    k.stamp_c("p2_k")
    k.e(f"s_lshl_b32 s{sKo}, s{sJ}, 12")
    for i in range(16):
        k.e(f"s_and_b32 s{sKo}, s{sKo}, 0xffff")
        k.e(f"buffer_load_dwordx4 {vr(big + 4*i, 4)}, v{vW2}, s[{srdK}:{srdK+3}], s{sKo} offen sc1")
        k.e(f"s_add_u32 s{sKo}, s{sKo}, 4096")
    npq = 0
    for i in range(16):
        r = big + 4 * i
        k.e(f"s_waitcnt vmcnt({15 - i + npq})")
        k.e(f"v_cvt_pk_bf16_f32 v{r}, v{r}, v{r+1}")
        k.e(f"v_cvt_pk_bf16_f32 v{r+1}, v{r+2}, v{r+3}")
        k.e(f"ds_write_b64 v{t2}, {vr(r,2)}")
        k.e(f"v_add_u32 v{t2}, 2048, v{t2}")
        k.e(f"v_and_b32 v{t2}, 0x7fff, v{t2}")
        if i == 7:
            k.e("s_waitcnt lgkmcnt(4)")
        if i >= 8 and lead < 32:
            k.emit_list(pql[lead]); lead += 1; npq += 1
    k.e("s_waitcnt lgkmcnt(0)")
    k.e("s_barrier")
    k.stamp_c("p2_c")
    for x in pql[lead:]:
        k.emit_list(x)
    fka = [[big + 0, big + 4], [big + 8, big + 12]]
    fkb = [[big + 16, big + 20], [big + 24, big + 28]]
    Da = [[big + 32, big + 36], [big + 40, big + 44]]
    Db = [[big + 48, big + 52], [big + 56, big + 60]]

    def rd(p_):
        b = p_ % 2
        for i in range(2):
            h = 2 * p_ + i
            k.e(f"ds_read_b128 {vr(fkb[b][i],4)}, v{vKb} offset:{h*1024}")
            k.e(f"ds_read_b128 {vr(fka[b][i],4)}, v{vKa} offset:{h*1024}")

    def mm(u):
        p_, ti = u // 2, u % 2
        b = p_ % 2
        if ti == 0:
            k.e(f"s_waitcnt vmcnt({31 - (4 * p_ + 3)})")
        for i in range(2):
            h = 2 * p_ + i
            k.e(f"v_mfma_f32_16x16x32_bf16 {vr(Db[ti][i],4)}, {vr(fkb[b][i],4)}, {vr(PQ[ti] + 4*h,4)}, {vr(cE,4)}")
            k.e(f"v_mfma_f32_16x16x32_bf16 {vr(Da[ti][i],4)}, {vr(fka[b][i],4)}, {vr(PQ[ti] + 4*h,4)}, 0")

    def fin(u):
        p_, ti = u // 2, u % 2
        for i in range(2):
            k.e(f"v_rcp_f32 v{Db[ti][i]+1}, v{Db[ti][i]+1}")
        vals = []
        for i in range(2):
            a, d = Da[ti][i], Db[ti][i]
            k.e(f"v_pk_mul_f32 {vr(a,2)}, {vr(a,2)}, {vr(d,2)} op_sel:[0,1]")
            k.e(f"v_pk_mul_f32 {vr(a+2,2)}, {vr(a+2,2)}, {vr(d,2)} op_sel:[0,1]")
            k.e(f"v_mul_f32 v{d}, v{d}, v{d+1}")
            vals += [a, a + 1, a + 2, a + 3, d]
        for d in range(5):
            k.e(f"v_cvt_pk_bf16_f32 v{PQ[ti] + 5*p_ + d}, v{vals[2*d]}, v{vals[2*d+1]}")
    rd(0)
    rd(1)
    k.e("s_waitcnt lgkmcnt(4)")
    mm(0)
    for u in range(16):
        if u + 1 < 16:
            if (u + 1) % 2 == 0:
                k.e(f"s_waitcnt lgkmcnt({4 if (u + 1) // 2 + 1 < 8 else 0})")
            mm(u + 1)
            if (u + 1) % 2 == 1 and (u + 1) // 2 + 2 < 8:
                rd((u + 1) // 2 + 2)
            else:
                k.e("s_nop 3")
        else:
            k.e("s_nop 3")
        fin(u)
    k.stamp_c("p2_o")
    k.e("s_barrier")
    acc = [[big + 40 + 20 * ti + 4 * i for i in range(5)] for ti in range(2)]
    fw = [[big + 4 * i for i in range(5)], [big + 20 + 4 * i for i in range(5)]]

    def wrd(s):
        return [f"ds_read_b64_tr_b16 {vr(fw[s & 1][nt] + 2*h, 2)}, v{vW} offset:{s * 5120 + h * 1280 + nt * 32}" for nt in range(5) for h in range(2)]
    k.emit_list(wrd(0))
    for s in range(10):
        r = wrd(s + 1) if s + 1 < 10 else []
        issued = 0
        for nt in range(5):
            k.e(f"s_waitcnt lgkmcnt({8 - 2*nt + issued})")
            for ti in range(2):
                k.e(f"v_mfma_f32_16x16x32_bf16 {vr(acc[ti][nt],4)}, {vr(fw[s & 1][nt],4)}, {vr(PQ[ti] + 4*s,4)}, " + ("0" if s == 0 else vr(acc[ti][nt], 4)))
                if r:
                    k.e(r[2 * nt + ti]); issued += 1
    srdH, srdS = srd1, srd2
    set_srd(k, srdH, ptr['ws'], S_ * D_ * 2, WS_H)
    set_srd(k, srdS, ptr['ws'], S_ * 64, WS_ST2)
    k.stamp_c("p2_g")
    for nt in range(5):
        k.e(f"ds_write_b128 v{vXw}, {vr(acc[1][nt],4)} offset:{nt*1024}")
    vs_, vq_, u = big + 20, big + 22, big + 24
    k.e(f"v_mov_b64 {vr(vs_,2)}, 0")
    k.e(f"v_mov_b64 {vr(vq_,2)}, 0")
    k.e("s_waitcnt lgkmcnt(0)")
    k.e("s_barrier")
    for nt in range(5):
        k.e(f"ds_read_b128 {vr(fw[0][nt],4)}, v{vXr} offset:{nt*1024}")
    pk = [big + 28, big + 32, big + 36]
    for nt in range(5):
        a = acc[0][nt]
        k.e(f"s_waitcnt lgkmcnt({4 - nt})")
        k.e(f"v_pk_add_f32 {vr(a,2)}, {vr(a,2)}, {vr(fw[0][nt],2)}")
        k.e(f"v_pk_add_f32 {vr(a+2,2)}, {vr(a+2,2)}, {vr(fw[0][nt]+2,2)}")
        d = pk[nt // 2] + 2 * (nt & 1)
        k.e(f"v_cvt_pk_bf16_f32 v{d}, v{a}, v{a+1}")
        k.e(f"v_cvt_pk_bf16_f32 v{d+1}, v{a+2}, v{a+3}")
    for pr in range(2):
        k.e(f"v_permlane16_swap_b32 v{pk[pr]}, v{pk[pr]+2}")
        k.e(f"v_permlane16_swap_b32 v{pk[pr]+1}, v{pk[pr]+3}")
    for pr in range(3):
        for d in range(4 if pr < 2 else 2):
            r, x = pk[pr] + d, xr[pr] + d
            k.e(f"""
            v_lshlrev_b32 v{u}, 16, v{r}
            v_and_b32 v{u+1}, 0xffff0000, v{r}
            v_lshlrev_b32 v{u+2}, 16, v{x}
            v_and_b32 v{u+3}, 0xffff0000, v{x}
            v_pk_add_f32 {vr(u,2)}, {vr(u,2)}, {vr(u+2,2)}
            v_cvt_pk_bf16_f32 v{r}, v{u}, v{u+1}
            """)
        if pr < 2:
            k.e(f"buffer_store_dwordx4 {vr(pk[pr],4)}, v{vO}, s[{srdH}:{srdH+3}], 0 offen offset:{pr*64} sc1")
        else:
            k.e(f"buffer_store_dwordx2 {vr(pk[pr],2)}, v{vO2}, s[{srdH}:{srdH+3}], 0 offen offset:128 sc1")
    for pr in range(3):
        for d in range(4 if pr < 2 else 2):
            r = pk[pr] + d
            k.e(f"""
            v_lshlrev_b32 v{u}, 16, v{r}
            v_and_b32 v{u+1}, 0xffff0000, v{r}
            v_pk_add_f32 {vr(vs_,2)}, {vr(vs_,2)}, {vr(u,2)}
            v_pk_fma_f32 {vr(vq_,2)}, {vr(u,2)}, {vr(u,2)}, {vr(vq_,2)}
            """)
    k.e(f"v_add_f32 v{vs_}, v{vs_}, v{vs_+1}")
    k.e(f"v_add_f32 v{vs_+1}, v{vq_}, v{vq_+1}")
    allreduce4_multi(k, [vs_, vs_ + 1], [t0, t1])
    k.e(f"""
    v_lshlrev_b32 v{vrow}, 3, v{vrow}
    s_lshl_b32 s{sA}, s{sCT}, 14
    s_mov_b64 exec, 0xffff
    buffer_store_dwordx2 {vr(vs_,2)}, v{vrow}, s[{srdS}:{srdS+3}], s{sA} offen sc1
    s_mov_b64 exec, -1
    """)
    k.stamp_c("p2_st")
    k.release(mC)
    Lp4c = k.label("p4c")
    sRB, sCT = dec3()
    c = c3
    vO, vSt, vCs, vA0, vA1, t0, t1, t2 = (k.v() for _ in range(8))
    vW = [k.v() for _ in range(4)]
    st = [k.v(2) for _ in range(2)]
    acc = [[k.v(4) for _ in range(4)] for _ in range(2)]
    fw = [[k.v(4) for _ in range(4)] for _ in range(2)]
    AR = [[k.v(4) for _ in range(2)] for _ in range(20)]
    k.e("s_waitcnt vmcnt(0)")
    k.e("s_barrier")
    k.stamp_c("p2_e")
    k.e(f"s_cmp_ge_u32 s{sJ}, 28")
    k.e(f"s_cbranch_scc1 {Lp4c}")
    srdO = srd1
    set_srd(k, srdO, ptr['ws'], S_ * F_ * 2, WS_HH)
    k.e(f"""
    v_and_b32 v{t0}, 15, v{vl}
    v_lshrrev_b32 v{t1}, 4, v{vl}
    v_lshlrev_b32 v{vSt}, 15, v{t1}
    v_lshl_add_u32 v{vSt}, v{t0}, 3, v{vSt}
    s_lshl_b32 s{sA}, s{sRB}, 10
    s_lshl_b32 s{sB}, s{sWave}, 8
    s_add_u32 s{sA}, s{sA}, s{sB}
    v_add_u32 v{vSt}, s{sA}, v{vSt}
    v_lshlrev_b32 v{vCs}, 4, v{t1}
    v_add_u32 v{vCs}, {P3_SCR + 1024}, v{vCs}
    v_and_b32 v{t2}, 6, v{t0}
    v_xor_b32 v{t2}, v{t2}, v{t1}
    v_lshlrev_b32 v{t2}, 4, v{t2}
    v_lshl_add_u32 v{vA0}, v{t0}, 7, v{t2}
    s_lshl_b32 s{sA}, s{sWave}, 12
    s_add_u32 s{sA}, s{sA}, {c.baseA}
    v_add_u32 v{vA0}, s{sA}, v{vA0}
    v_xor_b32 v{vA1}, 64, v{vA0}
    v_mul_u32_u24 v{vO}, {2*F_}, v{t0}
    v_bfe_u32 v{t0}, v{vl}, 4, 1
    v_lshl_add_u32 v{vO}, v{t0}, 5, v{vO}
    v_lshrrev_b32 v{t0}, 5, v{vl}
    v_lshl_add_u32 v{vO}, v{t0}, 4, v{vO}
    s_lshl_b32 s{sA}, s{sRB}, 7
    s_lshl_b32 s{sB}, s{sWave}, 5
    s_add_u32 s{sA}, s{sA}, s{sB}
    s_mul_i32 s{sA}, s{sA}, {2*F_}
    s_lshl_b32 s{sB}, s{sCT}, 8
    s_add_u32 s{sA}, s{sA}, s{sB}
    v_add_u32 v{vO}, s{sA}, v{vO}
    v_bfe_u32 v{t1}, v{vl}, 2, 3
    v_mul_u32_u24 v{t0}, {c.r16b}, v{t0}
    v_lshl_add_u32 v{t0}, v{t1}, 7, v{t0}
    v_and_b32 v{t2}, 3, v{vl}
    v_lshl_add_u32 v{t0}, v{t2}, 3, v{t0}
    v_lshrrev_b32 v{t1}, 1, v{t1}
    s_mov_b32 s{sB}, {16 * 2 * F_}
    """)
    for j in range(4):
        k.e(f"v_xor_b32 v{t2}, {j}, v{t1}")
        k.e(f"v_lshl_add_u32 v{vW[j]}, v{t2}, 5, v{t0}")
    wbase = [0]

    def rds(n):
        ps, s_, t = n // 20, (n % 20) // 2, n & 1
        out = []
        want = 40960 if s_ >= 5 else 0
        if want != wbase[0]:
            d = want - wbase[0]
            out += [f"v_add_u32 v{x}, {d & 0xffffffff}, v{x}" for x in vW]
            wbase[0] = want
        npre = len(out)
        if ps == 0:
            out += [f"ds_read_b128 {vr(AR[n][mt],4)}, v{vA1 if t else vA0} offset:{(s_ % 4) * 16384 + mt * 2048}" for mt in range(2)]
        for nt in range(4):
            for h in range(2):
                out.append(f"ds_read_b64_tr_b16 {vr(fw[n & 1][nt] + 2*h, 2)}, v{vW[nt]} offset:{s_ * 8192 - want + t * 4096 + h * 1024}")
        return out[:npre], out[npre:]

    def blk(n, nxt):
        na = 2 if n < 20 else 0
        nprev = na + 8
        pre, rd = rds(nxt) if nxt is not None else ([], [])
        k.emit_list(pre)
        issued = 0
        j = 0
        for nt in range(4):
            k.e(f"s_waitcnt lgkmcnt({nprev - (na + 2*nt + 2) + issued})")
            for mt in range(2):
                a = acc[mt][nt]
                k.e(f"v_mfma_f32_16x16x32_bf16 {vr(a,4)}, {vr(fw[n & 1][nt],4)}, {vr(AR[n % 20][mt],4)}, " + ("0" if n % 20 == 0 else vr(a, 4)))
                j += 1
                want = min(len(rd), -(-j * len(rd) * 100 // (8 * OPT['rf3'])))
                while issued < want:
                    k.e(rd[issued]); issued += 1

    def epi(ps):
        cs3 = fw[0]
        k.e("s_nop 4")
        for nt in range(4):
            k.e(f"ds_read_b128 {vr(cs3[nt],4)}, v{vCs} offset:{ps*256 + nt*64}")
        k.e("s_waitcnt lgkmcnt(0)")
        Lns = k.label("p3ns")
        if ps == 1:
            k.e(f"s_cmp_eq_u32 s{sCT}, 13")
            k.e(f"s_cbranch_scc1 {Lns}")
        for mt in range(2):
            for pr in range(2):
                a0, a1 = acc[mt][2*pr], acc[mt][2*pr+1]
                for a, nt in ((a0, 2*pr), (a1, 2*pr+1)):
                    for j in range(2):
                        k.e(f"v_pk_fma_f32 {vr(a+2*j,2)}, {vr(cs3[nt]+2*j,2)}, {vr(st[mt],2)}, {vr(a+2*j,2)} op_sel_hi:[1,0,1] neg_lo:[0,1,0] neg_hi:[0,1,0]")
                    for j in range(2):
                        k.e(f"v_pk_mul_f32 {vr(a+2*j,2)}, {vr(a+2*j,2)}, {vr(st[mt],2)} op_sel:[0,1]")
                pk = fw[1][2 * mt + pr]
                k.e(f"""
                v_cvt_pk_bf16_f32 v{pk}, v{a0}, v{a0+1}
                v_cvt_pk_bf16_f32 v{pk+2}, v{a1}, v{a1+1}
                v_cvt_pk_bf16_f32 v{pk+1}, v{a0+2}, v{a0+3}
                v_cvt_pk_bf16_f32 v{pk+3}, v{a1+2}, v{a1+3}
                v_permlane16_swap_b32 v{pk}, v{pk+2}
                s_nop 0
                v_permlane16_swap_b32 v{pk+1}, v{pk+3}
                v_pk_max_i16 v{pk}, v{pk}, 0
                v_pk_max_i16 v{pk+2}, v{pk+2}, 0
                v_pk_max_i16 v{pk+1}, v{pk+1}, 0
                v_pk_max_i16 v{pk+3}, v{pk+3}, 0
                buffer_store_dwordx4 {vr(pk,4)}, v{vO}, s[{srdO}:{srdO+3}], {'s%d' % sB if mt else '0'} offen offset:{ps*128 + pr*64} sc1
                """)
        k.place(Lns)
    sK16, sI6, sE5 = k.s(), k.s(), k.s()
    k.e(f"s_movk_i32 s{sK16}, 16384")
    k.e(f"s_mov_b32 s{sI6}, {f32bits(1.0/640)}")
    k.e(f"s_mov_b32 s{sE5}, {f32bits(1e-5)}")
    k.e("s_barrier")
    tq = [AR[10][0], AR[10][1]]
    for mt in range(2):
        k.e(f"buffer_load_dwordx2 {vr(st[mt],2)}, v{vSt}, s[{srd2}:{srd2+3}], 0 offen offset:{mt*128} sc1")
        k.e(f"buffer_load_dwordx2 {vr(tq[mt],2)}, v{vSt}, s[{srd2}:{srd2+3}], s{sK16} offen offset:{mt*128} sc1")
    k.e("s_waitcnt vmcnt(0)")
    for mt in range(2):
        k.e(f"v_pk_add_f32 {vr(st[mt],2)}, {vr(st[mt],2)}, {vr(tq[mt],2)}")
    vm_, vs__ = [st[0], st[1]], [st[0] + 1, st[1] + 1]
    allreduce4_multi(k, vm_ + vs__, [tq[0], tq[0] + 1, tq[0] + 2, tq[0] + 3])
    for mt in range(2):
        k.e(f"""
        v_mul_f32 v{vm_[mt]}, s{sI6}, v{vm_[mt]}
        v_mul_f32 v{vs__[mt]}, s{sI6}, v{vs__[mt]}
        v_fma_f32 v{vs__[mt]}, -v{vm_[mt]}, v{vm_[mt]}, v{vs__[mt]}
        v_max_f32 v{vs__[mt]}, 0, v{vs__[mt]}
        """)
    ln_finalize_multi(k, vm_, vs__, sE5)
    k.stamp_c("p3_pre")
    k.e("s_barrier")
    k.stamp_c("p3_b0")
    w3 = [AR[18][0], AR[18][1], AR[19][0], AR[19][1]]
    rot0 = [fw[0], fw[1], w3]
    buf0 = {n: rot0[n % 3] for n in range(15)}
    for n in range(15, 20):
        buf0[n] = fw[(n - 15) % 2]

    def rdW(n):
        s_, t = n // 2, n & 1
        pre = []
        want = 40960 if s_ >= 5 else 0
        if want != wbase[0]:
            pre = [(f"v_add_u32 v{x}, {(want - wbase[0]) & 0xffffffff}, v{x}", None) for x in vW]
            wbase[0] = want
        return pre + [(f"ds_read_b64_tr_b16 {vr(buf0[n][nt] + 2*h, 2)}, v{vW[nt]} offset:{s_ * 8192 - want + t * 4096 + h * 1024}", ('w', n, nt))
                      for nt in range(4) for h in range(2)]

    def rdA(s_):
        return [(f"ds_read_b128 {vr(AR[2*s_+t][mt],4)}, v{vA1 if t else vA0} offset:{(s_ % 4) * 16384 + mt * 2048}", ('a', 2*s_+t, mt))
                for t in range(2) for mt in range(2)]
    pend0 = []

    def issue(x):
        k.e(x[0])
        if x[1] is not None:
            pend0.append(x[1])

    def need(tags):
        idx = [i for i, x in enumerate(pend0) if x in tags]
        if idx:
            done = max(idx) + 1
            k.e(f"s_waitcnt lgkmcnt({min(15, len(pend0) - done)})")
            del pend0[:done]
    for x in rdA(0) + rdW(0) + rdW(1)[:3]:
        issue(x)
    carry = rdW(1)[3:]
    for n in range(20):
        rd = list(carry); carry = []
        if n % 2 == 0:
            s_ = n // 2
            need([('a', n + t, mt) for t in range(2) for mt in range(2)])
            k.e("s_barrier")
            if s_ + 1 < 10:
                rd = rdA(s_ + 1) + rd
        if n + 2 <= 16:
            rd += rdW(n + 2)
        elif n >= 16 and n + 1 < 20:
            rd += rdW(n + 1)
        issued = 0
        j = 0
        for nt in range(4):
            need([('w', n, nt)])
            for mt in range(2):
                a = acc[mt][nt]
                k.e(f"v_mfma_f32_16x16x32_bf16 {vr(a,4)}, {vr(buf0[n][nt],4)}, {vr(AR[n][mt],4)}, " + ("0" if n == 0 else vr(a, 4)))
                j += 1
                want = -(-j * len(rd) // (8 if n < 16 else 5))
                while issued < min(want, len(rd)):
                    issue(rd[issued]); issued += 1
    k.e("s_barrier")
    k.stamp_c("p3_loop")
    epi(0)
    k.e("s_barrier")
    k.stamp_c("p3_st")
    fw3 = [AR[0][0], AR[0][1], AR[1][0], AR[1][1]]
    buf = {20: fw[0], 21: fw[1], 22: fw[0], 23: fw[1]}
    rot = [fw3, fw[0], fw[1]]
    for n in range(24, 40):
        buf[n] = rot[(n - 24) % 3]

    def rds1(n):
        s_, t = (n % 20) // 2, n & 1
        pre = []
        want = 40960 if s_ >= 5 else 0
        if want != wbase[0]:
            pre = [f"v_add_u32 v{x}, {(want - wbase[0]) & 0xffffffff}, v{x}" for x in vW]
            wbase[0] = want
        return pre + [f"ds_read_b64_tr_b16 {vr(buf[n][nt] + 2*h, 2)}, v{vW[nt]} offset:{s_ * 8192 - want + t * 4096 + h * 1024}" for nt in range(4) for h in range(2)]
    sched = {20: [], 21: [22], 22: [23, 24]}
    for n in range(23, 40):
        sched[n] = [n + 2] if n + 2 < 40 else []
    k.emit_list(rds1(20) + rds1(21))
    pend = [20] * 8 + [21] * 8
    for n in range(20, 40):
        if n == 20 + 2 * OPT['m1at'] + 1:
            k.e("s_waitcnt vmcnt(0)")
            k.e("s_barrier")
        if n == 38:
            k.e("s_waitcnt lgkmcnt(0)")
            k.e("s_barrier")
        rd = [(x, m_) for m_ in sched[n] for x in rds1(m_)]
        assert all((m_ % 20) // 2 <= 4 for _, m_ in rd) or n >= 20 + 2 * OPT['m1at'] + 1
        issued = 0
        j = 0
        for nt in range(4):
            idx = [i for i, x in enumerate(pend) if x == n]
            if idx:
                done = idx[min(len(idx) - 1, 2 * nt + 1 - (8 - len(idx)))] + 1 if 2 * nt + 1 - (8 - len(idx)) >= 0 else 0
                if done:
                    k.e(f"s_waitcnt lgkmcnt({min(15, len(pend) - done)})")
                    pend = pend[done:]
            for mt in range(2):
                a = acc[mt][nt]
                k.e(f"v_mfma_f32_16x16x32_bf16 {vr(a,4)}, {vr(buf[n][nt],4)}, {vr(AR[n % 20][mt],4)}, " + ("0" if n == 20 else vr(a, 4)))
                j += 1
                want = -(-j * len(rd) // 8)
                while issued < want:
                    k.e(rd[issued][0])
                    if rd[issued][0].startswith("ds_"):
                        pend.append(rd[issued][1])
                    issued += 1
    epi(1)
    k.stamp_c("p3_e")
    k.place(Lp4c)
    k.release(mC)
    Lcend = k.label("cend")
    sRB, sCT = dec2()
    c = c4
    srdH, srdO = srd1, srd2
    set_srd(k, srdH, ptr['ws'], S_ * D_ * 2, WS_H)
    set_srd(k, srdO, ptr['out'], S_ * D_ * 2)
    vO, vO2, t0, t1 = (k.v() for _ in range(4))
    hr = [[k.v(4), k.v(2)] for _ in range(2)]
    k.e(f"""
    s_lshl_b32 s{sA}, s{sRB}, 6
    s_lshl_b32 s{sB}, s{sW1}, 5
    s_add_u32 s{sA}, s{sA}, s{sB}
    v_and_b32 v{t0}, 15, v{vl}
    v_add_u32 v{t0}, s{sA}, v{t0}
    v_mul_u32_u24 v{vO}, {2*D_}, v{t0}
    s_mul_i32 s{sA}, s{sCT}, 160
    s_lshl_b32 s{sB}, s{sW0}, 6
    s_add_u32 s{sA}, s{sA}, s{sB}
    v_add_u32 v{vO}, s{sA}, v{vO}
    v_lshrrev_b32 v{t1}, 4, v{vl}
    v_lshl_add_u32 v{vO2}, v{t1}, 3, v{vO}
    v_bfe_u32 v{t0}, v{vl}, 4, 1
    v_lshl_add_u32 v{vO}, v{t0}, 5, v{vO}
    v_lshrrev_b32 v{t0}, 5, v{vl}
    v_lshl_add_u32 v{vO}, v{t0}, 4, v{vO}
    s_movk_i32 s{sB}, {16 * 2 * D_}
    """)

    def h_loads():
        for mt in range(2):
            so = f"s{sB}" if mt else "0"
            k.e(f"buffer_load_dwordx4 {vr(hr[mt][0],4)}, v{vO}, s[{srdH}:{srdH+3}], {so} offen sc1")
            k.e(f"buffer_load_dwordx2 {vr(hr[mt][1],2)}, v{vO2}, s[{srdH}:{srdH+3}], {so} offen offset:64 sc1")
    o = consumer_setup(k, c, sW1, sW0, vl)
    h_loads()
    consumer_loop(k, o, None, tag="p4")
    pk = [[k.v(4), k.v(2)] for _ in range(2)]
    u = k.v(4)
    for mt in range(2):
        for nt in range(3):
            a = o.acc[mt][nt]
            d = pk[mt][nt // 2] + 2 * (nt & 1)
            k.e(f"v_cvt_pk_bf16_f32 v{d}, v{a}, v{a+1}")
            k.e(f"v_cvt_pk_bf16_f32 v{d+1}, v{a+2}, v{a+3}")
    k.e("s_waitcnt vmcnt(0)")
    for mt in range(2):
        k.e(f"v_permlane16_swap_b32 v{pk[mt][0]}, v{pk[mt][0]+2}")
        k.e(f"v_permlane16_swap_b32 v{pk[mt][0]+1}, v{pk[mt][0]+3}")
    fl = 'sc1' if OPT['outsc1'] else ''
    Lno = k.label("p4n")
    for pr in range(2):
        if pr == 1:
            k.e(f"s_cmp_eq_u32 s{sW0}, 0")
            k.e(f"s_cbranch_scc1 {Lno}")
        for mt in range(2):
            so = f"s{sB}" if mt else "0"
            for d in range(4 if pr == 0 else 2):
                r, x = pk[mt][pr] + d, hr[mt][pr] + d
                k.e(f"""
                v_lshlrev_b32 v{u}, 16, v{r}
                v_and_b32 v{u+1}, 0xffff0000, v{r}
                v_lshlrev_b32 v{u+2}, 16, v{x}
                v_and_b32 v{u+3}, 0xffff0000, v{x}
                v_pk_add_f32 {vr(u,2)}, {vr(u,2)}, {vr(u+2,2)}
                v_cvt_pk_bf16_f32 v{r}, v{u}, v{u+1}
                """)
            if pr == 0:
                k.e(f"buffer_store_dwordx4 {vr(pk[mt][0],4)}, v{vO}, s[{srdO}:{srdO+3}], {so} offen {fl}")
            else:
                k.e(f"buffer_store_dwordx2 {vr(pk[mt][1],2)}, v{vO2}, s[{srdO}:{srdO+3}], {so} offen offset:64 {fl}")
    k.place(Lno)
    k.stamp_c("p4_st")
    if OPT['diag']:
        ld_ = k.label("dg")
        names = ["p1_pre", "p1_b0", "p1_loop", "p1_e1", "p1_e2", "p1_e3", "p2_q", "p2_k", "p2_c", "p2_g", "p2_e", "p3_b0", "p3_loop", "p3_e", "p4_b0", "p4_loop"]
        set_srd(k, srd0, ptr['dbg'], 256)
        k.e(f"s_cmp_eq_u32 s2, {OPT['diag']}")
        k.e(f"s_cbranch_scc0 {ld_}")
        k.e(f"s_cmp_eq_u32 s{sWave}, 0")
        k.e(f"s_cbranch_scc0 {ld_}")
        k.e("s_mov_b64 exec, 1")
        k.e("v_mov_b32 v1, 0")
        for i, n in enumerate(names):
            k.e(f"s_sub_u32 s3, s{68 + k.stamps['c'][n]}, s68")
            k.e("v_mov_b32 v2, s3")
            k.e(f"buffer_store_dword v2, v1, s[{srd0}:{srd0+3}], 0 offen offset:{4*i}")
        k.e("s_mov_b64 exec, -1")
        k.place(ld_)
    k.place(Lcend)
    endwave()
    k.place(k.end)
    k.place(k.name + "_last")
    k.e("s_endpgm")
    secs, cur = {"head": []}, "head"
    for ln in k.lines:
        if ln.startswith("; @SEC "):
            cur = ln.split()[-1]; secs[cur] = []
        else:
            secs[cur].append(ln)
    order_ = list(OPT['secs'])
    if not OPT['hfirst']:
        order_ = ['head', 'head2', 'help', 'head3'] + order_[1:]
    k.lines = [ln for n in order_ for ln in secs[n]]
    return k


def write(k, path, header=""):
    out = header + f"; @launch grid=(256,1,1) block=(512,1,1) lds={LDS_TOTAL}\n"
    out += '.amdgcn_target "amdgcn-amd-amdhsa--gfx950"\n.text\n' + k.text() + '.section .rodata,"a"\n' + k.descriptor()
    open(path, "w").write(out)
    if k.prof3:
        json.dump(k.stamps, open(path + ".json", "w"))


def hdr():
    ref = open('sequential_preLN__linear_attn_block__dense_activation_relu__prompt.s.ref').read()
    return "".join(l + "\n" for l in ref.splitlines()[:10])


if __name__ == "__main__":
    write(gen(False), 'k7.s', hdr())
    write(gen(True), 'k7_prof.s', hdr())
    g3.DBG.update(nodma=True)
    write(gen(True), 'k7_nodma.s', hdr())
    g3.DBG.update(nodma=False, nomma=True)
    write(gen(True), 'k7_nomma.s', hdr())
```

```python
from asmlib import *
from g3 import *
import g3
import struct, json

S_, D_, F_ = 2048, 640, 1728
WS_PQ = 0x0
WS_H = 0x400000
WS_HH = 0x800000
WS_KV = 0x1000000
KV_BYTES = 65536
WS_FL = 0x1100000
FS = 4224
FL_BYTES = 128 * FS
FL_Q, FL_2, FL_3, FL_C, FL_G, FL_S, FL_R = 0, 16 * FS, 32 * FS, 48 * FS, 64 * FS, 96 * FS, 112 * FS
NREP = 16
WS_ST1 = 0x1020000
WS_CS1 = 0x1024000
WS_CS3 = 0x102C000
WS_W2P = 0x1200000
W2P_CT = 27 * 10240
WS_ST2 = 0x1040000
LOG2E = 1.4426950408889634
NAME = "sequential_preLN__linear_attn_block__dense_activation_relu__prompt_kernel"
OPT = dict(kvH=16, qH=11, p3H=16, p4H=24, touch1=True, touch1b=True, twarm=True, pretouch=True, e2pos=12, early3=False, psleep=8, w2a=6, w1at={'w2a': [0], 'c': [1], 'g': [2]}, tdist=1, hW=3, hX=10, jrot=8, omode=2, pqper=3, w2b=0, p3H0=8, iw=17, iwser=False, rot3=True, rot4=False, otouch=False, hfirst=True, diag=False, wf4=5, p4H0=24, pf1=2, m1at=3, rf3=70, hb=11, svwo=True, inj=10, p4SA=8, p4SW=9, secs=('head', 'ltail', 'svc', 'cons', 'cons2'), p4early=False, dupst=False, dupfl='', accinit=True, svw2=0, svT1=1, kvH0=4, hW0=32, svw1=0, p4rot=True, selft=False, p4wl=4, pqlead=16, catom=True, pqtouch=False, rel=1, rf=65, rel4=2, rf4=90, lean=True, lprio=0, outsc1=False, w2early=True, pqq=10, codewarm=True)
LDS_TOTAL = 163840


def f32bits(x):
    return struct.unpack("<I", struct.pack("<f", x))[0]


def bf16_round_f32(k, v):
    k.e(f"v_cvt_pk_bf16_f32 v{v}, v{v}, v{v}")
    k.e(f"v_lshlrev_b32 v{v}, 16, v{v}")


def allreduce4_multi(k, xs, ts):
    for sw in ("v_permlane16_swap_b32", "v_permlane32_swap_b32"):
        for x, t in zip(xs, ts):
            k.e(f"v_mov_b32 v{t}, v{x}")
        k.e("s_nop 1" if len(xs) < 2 else "s_nop 0")
        for x, t in zip(xs, ts):
            k.e(f"{sw} v{x}, v{t}")
        k.e("s_nop 1" if len(xs) < 2 else "s_nop 0")
        for x, t in zip(xs, ts):
            k.e(f"v_add_f32 v{x}, v{x}, v{t}")


def ln_finalize_multi(k, vms, vvs, sEps):
    for vm in vms:
        bf16_round_f32(k, vm)
    for vv in vvs:
        bf16_round_f32(k, vv)
        k.e(f"v_add_f32 v{vv}, s{sEps}, v{vv}")
        bf16_round_f32(k, vv)
    for vv in vvs:
        k.e(f"v_sqrt_f32 v{vv}, v{vv}")
    k.e("s_nop 0")
    for vv in vvs:
        bf16_round_f32(k, vv)
    for vv in vvs:
        k.e(f"v_rcp_f32 v{vv}, v{vv}")
    k.e("s_nop 0")


def dpp_rowsum(k, x):
    for r in (8, 4, 2, 1):
        k.e("s_nop 1")
        k.e(f"v_add_f32_dpp v{x}, v{x}, v{x} row_ror:{r} row_mask:0xf bank_mask:0xf")


def set_srd(k, d, p, nbytes, off=0, bias=False):
    if bias and OPT['lean']:
        off -= BIAS
        nbytes += BIAS
    if off < 0:
        k.e(f"s_sub_u32 s{d}, s{p}, {-off}")
        k.e(f"s_subb_u32 s{d+1}, s{p+1}, 0")
    elif off:
        k.e(f"s_add_u32 s{d}, s{p}, {off}")
        k.e(f"s_addc_u32 s{d+1}, s{p+1}, 0")
    else:
        k.e(f"s_mov_b64 s[{d}:{d+1}], s[{p}:{p+1}]")
    k.e(f"s_mov_b32 s{d+2}, {nbytes}")
    k.e(f"s_mov_b32 s{d+3}, 0x20000")


class Touch:
    def __init__(self, k, vl, ncl, ld, seg5=False, share=None):
        self.k, self.ld = k, ld
        self.R = 64 // ncl
        self.vo = k.v()
        self.sO = share.sO if share else k.s()
        self.sB = share.sB if share else k.s(2, 2)
        t0, t1 = k.v(), k.v()
        magic = (1024 + ncl - 1) // ncl
        for l in range(64):
            assert (l * magic) >> 10 == l // ncl
        k.e(f"""
        v_min_u32 v{t1}, {self.R * ncl - 1}, v{vl}
        v_mul_u32_u24 v{t0}, {magic}, v{t1}
        v_lshrrev_b32 v{t0}, 10, v{t0}
        v_mul_u32_u24 v{self.vo}, {ncl}, v{t0}
        v_sub_u32 v{t1}, v{t1}, v{self.vo}
        v_mul_u32_u24 v{t0}, {ld}, v{t0}
        v_lshl_add_u32 v{self.vo}, v{t1}, 7, v{t0}
        """)
        if seg5:
            k.e(f"""
            v_mul_u32_u24 v{t0}, 205, v{t1}
            v_lshrrev_b32 v{t0}, 10, v{t0}
            v_mul_u32_u24 v{t0}, 640, v{t0}
            v_add_u32 v{self.vo}, v{self.vo}, v{t0}
            """)

    def unit(self, p, sOff, sU, add, nrows, skip=False):
        k = self.k
        le = k.label("tsk")
        k.e(f"""
        s_add_u32 s{self.sO}, s{sU}, {add}
        s_mul_i32 s{self.sO}, s{self.sO}, {self.R}
        """)
        if skip:
            k.e(f"s_cmp_ge_u32 s{self.sO}, {nrows}")
            k.e(f"s_cbranch_scc1 {le}")
        k.e(f"""
        s_min_u32 s{self.sO}, s{self.sO}, {nrows - self.R}
        s_mul_i32 s{self.sO}, s{self.sO}, {self.ld}
        s_add_u32 s{self.sO}, s{self.sO}, s{sOff}
        s_add_u32 s{self.sB}, s{p}, s{self.sO}
        s_addc_u32 s{self.sB+1}, s{p+1}, 0
        global_load_dword v{k.vdummy}, v{self.vo}, s[{self.sB}:{self.sB+1}]
        """)
        k.place(le)


def phi_pair(k, a, vrs, vr2, sEps2, t):
    k.e(f"v_pk_mul_f32 {vr(t,2)}, {vr(a,2)}, {vr(vr2,2)}")
    k.e(f"v_pk_fma_f32 {vr(a,2)}, {vr(a,2)}, {vr(vrs,2)}, 1.0 op_sel_hi:[1,1,0]")
    k.e(f"v_exp_f32_e64 v{t}, v{t} clamp")
    k.e(f"v_exp_f32_e64 v{t+1}, v{t+1} clamp")
    k.e(f"v_max_f32 v{a}, v{a}, v{t}")
    k.e(f"v_max_f32 v{a+1}, v{a+1}, v{t+1}")
    k.e(f"v_pk_add_f32 {vr(a,2)}, {vr(a,2)}, s[{sEps2}:{sEps2+1}]")


def gen(prof=False):
    k = Kern(NAME)
    k.prof3 = prof
    k.slimit, k.vlimit = 68, 256
    ckv = Cfg(BM=128, NS=10, lda=2 * D_, ldw=6 * D_, wl='odd', SA=4, SW=4, baseA=0, baseW=65536, WM=2, WN=2,
              transposed=False, colsum=False, H=OPT['kvH'], nseg=2, segd=None, mixed=True, rel=OPT['rel'], read_frac=OPT['rf'], lean=True, H0=OPT['kvH0'])
    P1_ST = ckv.endW
    P1_AT = P1_ST + 2048
    c3 = Cfg(BM=128, NS=10, lda=2 * D_, ldw=2 * F_, wl='x8', SA=4, SW=10, baseA=81920, baseW=0, WM=4, WN=1,
             transposed=True, colsum=False, H=OPT['p3H'], rel=1, lean=True, H0=OPT['p3H0'],
             dyn=(lambda j: (j, 10, 1, 0)) if OPT['rot3'] else None)
    P3_SCR = c3.endA
    HB = OPT['hb']
    c4 = Cfg(BM=64, NS=27, lda=2 * F_, ldw=160, wl='lin', SA=10, SW=8, baseA=0, baseW=81920, WM=2, WN=2,
             transposed=True, colsum=False, H=OPT['p4H'], rel=2, read_frac=OPT['rf4'], lean=True, wlead=OPT['p4wl'],
             smap=lambda j: 2 * j if j < 14 else 2 * (j - 14) + 1, afterA=lambda j: HB if j >= 14 else -99,
             afterW=lambda m: 0 if m >= 6 else -99, vmwait=True, wfirst=OPT['wf4'], H0=OPT['p4H0'],
             dyn=(lambda j: (j, 14, 2, 0) if j < 14 else (j - 14, 13, 2, 1)) if OPT['rot4'] else None)
    assert c4.endW <= LDS_TOTAL and c4.endA <= c4.baseW and P3_SCR + 2048 <= LDS_TOTAL and P1_ST + 1024 <= LDS_TOTAL
    L_W2, L_KV, L_X2 = 40960, 0, 143360

    F0V = '0x00010001' if OPT['diag'] else 1
    k.end = k.label("end")
    if prof:
        for i in range(28):
            k.e(f"s_mov_b32 s{68+i}, 0")
        k.stamp_c("start")
        k.e("s_memrealtime s[96:97]")
        k.e("s_waitcnt lgkmcnt(0)")
        k.e("s_mov_b32 s94, s96")
    k.e("s_cmp_ge_u32 s2, 256")
    k.e(f"s_cbranch_scc1 {k.end}")
    p = k.s(16, 4)
    pws = k.s(2, 2)
    k.e(f"s_load_dwordx16 s[{p}:{p+15}], s[0:1], 0")
    k.e(f"s_load_dwordx2 s[{pws}:{pws+1}], s[0:1], 64")
    ptr = dict(x=p, wqkv=p + 2, wo=p + 4, w1=p + 8, w2=p + 10, out=p + 12, dbg=p + 14, ws=pws)
    sWave, sJ, sRQ, sCH, sJ1 = k.s(), k.s(), k.s(), k.s(), k.s()
    vl = k.v()
    k.vdummy = k.v()
    k.e(f"""
    v_lshrrev_b32 v{vl}, 6, v0
    s_lshr_b32 s{sJ}, s2, 3
    v_readfirstlane_b32 s{sWave}, v{vl}
    v_and_b32 v{vl}, 63, v0
    s_bfe_u32 s{sRQ}, s2, 0x20001
    s_and_b32 s{sCH}, s2, 1
    s_sub_u32 s{sJ1}, s{sJ}, {OPT['jrot']}
    s_and_b32 s{sJ1}, s{sJ1}, 31
    """)

    def endwave():
        k.dump3(pws, sWave)
        k.e("s_endpgm")

    def dec1():
        sG, sC, sTy = k.s(), k.s(), k.s()
        k.e(f"""
        s_and_b32 s{sG}, s{sJ1}, 3
        s_lshl_b32 s3, s{sRQ}, 2
        s_add_u32 s{sG}, s{sG}, s3
        s_lshr_b32 s{sTy}, s{sJ1}, 3
        s_sub_u32 s{sTy}, s{sTy}, 1
        s_max_i32 s{sTy}, s{sTy}, 0
        s_lshr_b32 s{sC}, s{sJ1}, 2
        s_lshl_b32 s3, s{sCH}, 2
        s_add_u32 s{sC}, s{sC}, s3
        s_lshl_b32 s3, s{sCH}, 1
        s_add_u32 s3, s3, 4
        s_cmp_eq_u32 s{sTy}, 1
        s_cselect_b32 s3, s3, 0
        s_sub_u32 s{sC}, s{sC}, s3
        s_and_b32 s3, s{sJ1}, 7
        s_cmp_eq_u32 s{sTy}, 2
        s_cselect_b32 s{sC}, s3, s{sC}
        """)
        return sG, sC, sTy

    def dec2():
        sRB, sCT = k.s(), k.s()
        k.e(f"""
        s_and_b32 s{sRB}, s{sJ}, 7
        s_lshl_b32 s3, s{sRQ}, 3
        s_add_u32 s{sRB}, s{sRB}, s3
        s_lshr_b32 s{sCT}, s{sJ}, 3
        s_lshl_b32 s3, s{sCH}, 2
        s_add_u32 s{sCT}, s{sCT}, s3
        """)
        return sRB, sCT

    def dec3():
        sRB, sCT = k.s(), k.s()
        k.e(f"""
        s_and_b32 s{sRB}, s{sJ}, 3
        s_lshl_b32 s3, s{sRQ}, 2
        s_add_u32 s{sRB}, s{sRB}, s3
        s_lshr_b32 s{sCT}, s{sJ}, 2
        s_mul_i32 s3, s{sCH}, 7
        s_add_u32 s{sCT}, s{sCT}, s3
        """)
        return sRB, sCT

    def dec4():
        sRB, sCT, sId = k.s(), k.s(), k.s()
        k.e(f"""
        s_mul_i32 s{sRB}, s{sJ}, 205
        s_lshr_b32 s{sRB}, s{sRB}, 10
        s_mul_i32 s3, s{sRB}, 5
        s_sub_u32 s{sCT}, s{sJ}, s3
        s_mul_i32 s3, s{sCH}, 5
        s_add_u32 s{sCT}, s{sCT}, s3
        s_cmp_ge_u32 s{sRB}, 6
        s_cselect_b32 s{sId}, 1, 0
        s_mul_i32 s{sRB}, s{sRB}, 96
        s_lshl_b32 s3, s{sRQ}, 9
        s_add_u32 s{sRB}, s{sRB}, s3
        """)
        return sRB, sCT, sId

    Lc, Lh, Lsvc, Lrole = k.label("cons"), k.label("help"), k.label("svc"), k.label("role")
    sSvc = k.s()
    k.e(f"s_mov_b32 s{sSvc}, 0")
    k.e(f"s_cmp_ge_u32 s{sJ1}, 24")
    k.e(f"s_cbranch_scc1 {Lsvc}")
    if OPT['hfirst']:
        k.e(f"s_cmp_lt_u32 s{sWave}, 6")
        k.e(f"s_cbranch_scc1 {Lrole}")
    else:
        k.e(f"s_cmp_ge_u32 s{sWave}, 6")
        k.e(f"s_cbranch_scc1 {Lh}")
        k.lines.append('; @SEC help')
        k.place(Lh)
    mH = k.mark()
    sRo, sA = k.s(), k.s()
    Lh1 = k.label("h1")
    k.e(f"s_cmp_eq_u32 s{sWave}, 7")
    k.e(f"s_cbranch_scc1 {Lh1}")
    k.e(f"s_mul_i32 s{sRo}, s{sCH}, 640")
    TW = Touch(k, vl, 15, 6 * D_, seg5=True)
    k.e("s_waitcnt lgkmcnt(0)")
    for it in range(OPT['hW']):
        TW.unit(ptr['wqkv'], sRo, sJ1, 24 * it, 640)
    k.e("s_endpgm")
    k.place(Lh1)
    if OPT['codewarm']:
        va_ = k.v(2)
        sPC = k.s(2, 2)
        k.e(f"""
        s_getpc_b64 s[{sPC}:{sPC+1}]
        {k.name}_pc:
        s_sub_u32 s{sPC}, s{sPC}, {k.name}_pc-{k.name}
        s_subb_u32 s{sPC+1}, s{sPC+1}, 0
        s_lshl_b32 s{sA}, s{sJ1}, 11
        v_lshlrev_b32 v{va_}, 7, v{vl}
        v_add_u32 v{va_}, s{sA}, v{va_}
        v_min_u32 v{va_}, {k.name}_last-{k.name}, v{va_}
        v_mov_b32 v{va_+1}, s{sPC+1}
        v_add_co_u32 v{va_}, vcc, s{sPC}, v{va_}
        s_nop 1
        v_addc_co_u32 v{va_+1}, vcc, 0, v{va_+1}, vcc
        s_mov_b64 exec, 0xffff
        global_load_dword v{k.vdummy}, {vr(va_,2)}, off
        s_mov_b64 exec, -1
        """)
    if OPT['hX'] == 10:
        k.e(f"s_and_b32 s{sRo}, s2, 7")
        k.e(f"s_xor_b32 s{sRo}, s{sRo}, 1")
        k.e(f"s_mul_i32 s{sRo}, s{sRo}, {256 * 2 * D_}")
        TX = Touch(k, vl, 16, 2048, share=TW)
        k.e("s_waitcnt lgkmcnt(0)")
        TX.unit(ptr['x'], sRo, sJ1, 0, 160)
        lx = k.label("hx")
        k.e(f"s_cmp_ge_u32 s{sJ1}, 16")
        k.e(f"s_cbranch_scc1 {lx}")
        TX.unit(ptr['x'], sRo, sJ1, 24, 160)
        k.place(lx)
    else:
        k.e(f"s_mul_i32 s{sRo}, s{sRQ}, {512 * 2 * D_}")
        TX = Touch(k, vl, OPT['hX'], 2 * D_, share=TW)
        k.e("s_waitcnt lgkmcnt(0)")
        for it in range(-(-500 // (24 * TX.R))):
            TX.unit(ptr['x'], sRo, sJ1, 24 * it, 512)
    k.e("s_endpgm")
    k.release(mH)
    if not OPT['hfirst']:
        k.lines.append('; @SEC head2')
    k.place(Lrole)
    k.e(f"s_cmp_lt_u32 s{sWave}, 4")
    k.e(f"s_cbranch_scc1 {Lc}")
    k.e(f"s_cmp_ge_u32 s{sWave}, 6")
    k.e(f"s_cbranch_scc1 {k.end}")
    mL = k.mark()
    sLW, sRow, sCol, sSpin, sP, sU, sEx = (k.s() for _ in range(7))
    srdA, srdW, srdF = k.s(4), k.s(4), k.s(4)
    vf, vfa, vone = k.v(4), k.v(), k.v()
    c3r = k.v(4)
    vfb = k.v()
    sAct = k.s()
    sRotL = sEx
    k.e(f"s_sub_u32 s{sLW}, s{sWave}, 4")
    if OPT['lprio']:
        k.e(f"s_setprio {OPT['lprio']}")

    def poll(srd, expect, first_issued=False, tag="", wide=False, drain1=True, extra=None, younger=0, both=False):
        lp, lo = k.label("poll"), k.label("pollok")
        ldi = (f"buffer_load_dwordx3 {vr(vf,3)}, v{vfa}, s[{srd}:{srd+3}], 0 offen sc1" if wide
               else f"buffer_load_dword v{vf}, v{vfa}, s[{srd}:{srd+3}], 0 offen sc1")
        if extra is not None:
            ldi += f"\nbuffer_load_dword v{vf+3}, v{extra}, s[{srd}:{srd+3}], 0 offen sc1"
        if not both:
            k.e(f"s_cmp_eq_u32 s{sLW}, 1")
            k.e(f"s_cbranch_scc1 {lo}")
        k.e(f"s_mov_b32 s{sSpin}, 0")
        if not first_issued:
            k.e(ldi)
        if younger:
            k.e(f"s_waitcnt vmcnt({younger})")
            k.e(f"s_branch {lp}_c")
        k.place(lp)
        k.e("s_waitcnt vmcnt(0)")
        k.place(lp + "_c")
        if wide:
            k.e(f"v_and_b32 v{vf}, v{vf}, v{vf+2}")
        if extra is not None:
            k.e(f"v_and_b32 v{vf}, v{vf}, v{vf+3}")
        k.e(f"""
        v_cmp_ne_u32 vcc, {expect}, v{vf}
        s_add_u32 s{sSpin}, s{sSpin}, 1
        s_nop 3
        s_cbranch_vccz {lo}
        s_cmp_gt_u32 s{sSpin}, 0x40000
        s_cbranch_scc1 {k.end}
        s_sleep {OPT['psleep']}
        {ldi}
        s_branch {lp}
        """)
        k.place(lo)
        if drain1:
            k.e("s_waitcnt vmcnt(0)")
        k.stamp_l(tag)

    def set_flag(sOff, base, sExec=None):
        l0 = k.label("fl")
        k.e(f"""
        s_cmp_eq_u32 s{sLW}, 1
        s_cbranch_scc0 {l0}
        v_mov_b32 v{vfa}, {base}
        s_mov_b64 exec, 1
        buffer_store_dword v{vone}, v{vfa}, s[{srdF}:{srdF+3}], s{sOff} offen sc1
        s_mov_b64 exec, -1
        """)
        k.place(l0)

    def warm(pw, ldw, ncl, colbytes, clampc, nrows, rounds):
        if not OPT['twarm'] or not rounds:
            return 0
        mm_ = k.mark()
        sCo = k.s()
        k.e(f"s_mul_i32 s{sCo}, s{sCH}, {colbytes}")
        if clampc is not None:
            k.e(f"s_min_u32 s{sCo}, s{sCo}, {clampc}")
        T = Touch(k, vl, ncl, ldw)
        for it in rounds:
            T.unit(pw, sCo, sU, 64 * it, nrows)
        k.release(mm_)
        return len(rounds)

    def w1warm(where):
        r = OPT['w1at'].get(where, [])
        return warm(ptr['w1'], 2 * F_, 14, 7 * 256, 13 * 128, 640, r) if r else 0

    m = k.mark()
    sG, sC, sTy = dec1()
    srdD = k.s(4)
    k.e(f"""
    s_mul_i32 s{sRow}, s{sG}, {128 * 2 * D_}
    s_mul_i32 s{sCol}, s{sC}, 160
    s_add_u32 s3, s{sCol}, {2 * D_}
    s_lshl_b32 s{sCol}, s{sCol}, 1
    s_cmp_eq_u32 s{sTy}, 0
    s_cselect_b32 s{sCol}, s3, s{sCol}
    s_movk_i32 s{sEx}, 160
    s_cselect_b32 s{sEx}, {2 * D_}, s{sEx}
    """)
    Llq, Ltail = k.label("ldq"), k.label("ldtail")
    pat = [[k.v() for _ in range(5)] for _ in range(5)]
    q0, q1, q2, vcs = (k.v() for _ in range(4))
    pvi, pvb = [k.v() for _ in range(5)], [k.v() for _ in range(5)]
    csr = [k.v(4) for _ in range(4)]
    rp = [k.v() for _ in range(6)]
    rpd = [k.v(4) for _ in range(6)]
    sRp, sRc, sRv = k.s(), k.s(), k.s()
    vLtop = k.vtop

    def p2_pat(mI):
        def f():
            vi_, vb_ = pvi[mI], pvb[mI]
            k.e(f"""
            s_and_b32 s3, s{sWave}, 1
            s_lshl_b32 s3, s3, 3
            v_add_u32 v{q0}, {64*mI}, v{vl}
            v_mul_u32_u24 v{q1}, 205, v{q0}
            v_lshrrev_b32 v{q1}, 11, v{q1}
            v_mul_u32_u24 v{q2}, 10, v{q1}
            v_sub_u32 v{q2}, v{q0}, v{q2}
            v_lshlrev_b32 v{vb_}, 4, v{q2}
            v_and_b32 v{vi_}, 3, v{q1}
            v_bfe_u32 v{q0}, v{q1}, 3, 1
            v_lshl_or_b32 v{vi_}, v{q0}, 2, v{vi_}
            v_add_u32 v{vi_}, s3, v{vi_}
            v_bfe_u32 v{q0}, v{q1}, 2, 1
            v_lshrrev_b32 v{q2}, 4, v{q1}
            v_lshl_or_b32 v{q0}, v{q2}, 1, v{q0}
            v_mul_u32_u24 v{q0}, {5 * 1280}, v{q0}
            v_add_u32 v{vb_}, v{vb_}, v{q0}
            """)
            return 0
        return f

    pdone = set()

    def p2_lazy(u, mI):
        if (u, mI) in pdone:
            return
        pdone.add((u, mI))
        k.e(f"""
        v_add_u32 v{q0}, {16*u}, v{pvi[mI]}
        v_mul_u32_u24 v{q1}, 205, v{q0}
        v_lshrrev_b32 v{q1}, 10, v{q1}
        v_mad_u32_u24 v{q0}, v{q1}, 15, v{q0}
        v_mad_u32_u24 v{pat[u][mI]}, v{q0}, s{sEx}, v{pvb[mI]}
        """)

    def rp_pat():
        mm_ = k.mark()
        sN, sH, sL = k.s(), k.s(), k.s()
        k.e(f"""
        s_lshl_b32 s{sRv}, s{sJ1}, 3
        s_and_b32 s3, s2, 7
        s_add_u32 s{sRv}, s{sRv}, s3
        s_lshl_b32 s{sRv}, s{sRv}, 1
        s_add_u32 s{sRv}, s{sRv}, s{sLW}
        s_min_u32 s{sRp}, s{sRv}, 359
        s_mul_i32 s{sRc}, s{sRp}, 1457
        s_lshr_b32 s{sRc}, s{sRc}, 16
        s_mul_i32 s3, s{sRc}, 45
        s_sub_u32 s{sN}, s{sRp}, s3
        s_mul_i32 s{sN}, s{sN}, 6
        s_mul_i32 s{sRp}, s{sRp}, 6144
        s_movk_i32 s{sL}, {2 * D_}
        """)
        for i in range(6):
            k.e(f"""
            s_mul_i32 s{sH}, s{sN}, 13108
            s_lshr_b32 s{sH}, s{sH}, 16
            s_mul_i32 s3, s{sH}, 5
            s_sub_u32 s3, s{sN}, s3
            s_lshl_b32 s3, s3, 6
            v_add_u32 v{q0}, s3, v{vl}
            s_mul_i32 s{sH}, s{sH}, {32 * 2 * D_}
            s_mul_i32 s3, s{sRc}, 160
            s_add_u32 s{sH}, s{sH}, s3
            v_mul_u32_u24 v{q1}, 205, v{q0}
            v_lshrrev_b32 v{q1}, 11, v{q1}
            v_mul_u32_u24 v{q2}, 10, v{q1}
            v_sub_u32 v{q2}, v{q0}, v{q2}
            v_lshl_add_u32 v{rp[i]}, v{q2}, 4, s{sH}
            v_and_b32 v{q2}, 19, v{q1}
            v_and_b32 v{q0}, 4, v{q1}
            v_lshl_or_b32 v{q2}, v{q0}, 1, v{q2}
            v_and_b32 v{q0}, 8, v{q1}
            v_lshrrev_b32 v{q0}, 1, v{q0}
            v_or_b32 v{q2}, v{q2}, v{q0}
            v_mad_u32_u24 v{rp[i]}, v{q2}, s{sL}, v{rp[i]}
            s_add_u32 s{sN}, s{sN}, 1
            """)
        k.release(mm_)

    def p1_srds():
        k.e("s_waitcnt lgkmcnt(0)")
        set_srd(k, srdA, ptr['x'], S_ * D_ * 2, bias=True)
        set_srd(k, srdW, ptr['wqkv'], 3 * D_ * D_ * 2, bias=True)
        k.stamp_l("ld_first")

    def p1_late():
        set_srd(k, srdF, ptr['ws'], FL_BYTES, WS_FL)
        k.e(f"""
        v_mov_b32 v{vone}, 1
        s_lshl_b32 s{sU}, s{sJ}, 1
        s_add_u32 s{sU}, s{sU}, s{sLW}
        s_mul_i32 s{sP}, s{sG}, {FS}
        s_lshl_b32 s3, s{sC}, 2
        s_add_u32 s{sP}, s{sP}, s3
        """)
        k.e(f"""
        s_and_b32 s3, s{sC}, 3
        s_mul_i32 s3, s3, 320
        s_add_u32 s3, s3, 1280
        s_and_b32 s{sSpin}, s{sC}, 1
        s_mul_i32 s{sSpin}, s{sSpin}, 640
        s_cmp_eq_u32 s{sTy}, 0
        s_cselect_b32 s3, s3, s{sSpin}
        s_cselect_b32 s{sSpin}, 960, 0
        v_lshlrev_b32 v{vcs}, 4, v{vl}
        v_add_u32 v{vcs}, s3, v{vcs}
        v_cmp_lt_u32 vcc, 19, v{vl}
        v_mov_b32 v{q0}, s{sSpin}
        s_lshl_b32 s3, s{sCH}, 12
        v_cndmask_b32 v{q0}, 0, v{q0}, vcc
        s_add_u32 s3, s3, {WS_CS1 - WS_ST1}
        v_add3_u32 v{vcs}, v{vcs}, v{q0}, s3
        v_cmp_gt_u32 vcc, 40, v{vl}
        v_mov_b32 v{q0}, {OOB}
        s_nop 0
        v_cndmask_b32 v{vcs}, v{q0}, v{vcs}, vcc
        """)
        return 0

    def p1_last():
        set_srd(k, srdD, ptr['dbg'], 256)
        k.e(f"""
        v_lshlrev_b32 v{vfa}, 2, v{vl}
        v_or_b32 v{vfa}, {128 if OPT['diag'] else 0}, v{vfa}
        s_lshl_b32 s3, s{sLW}, 12
        buffer_load_dword v{vf}, v{vfa}, s[{srdD}:{srdD+3}], s3 offen sc1
        """)
        nwo = 0
        if not OPT['svwo']:
            mm_ = k.mark()
            sCo, sV = sRow, sCol
            k.e(f"s_mul_i32 s{sCo}, s{sCH}, 640")
            k.e(f"s_lshl_b32 s{sV}, s{sJ1}, 1")
            k.e(f"s_add_u32 s{sV}, s{sV}, s{sLW}")
            T = Touch(k, vl, 5, 2 * D_)
            T.unit(ptr['wo'], sCo, sV, 0, 640)
            k.release(mm_)
            nwo = 1
        set_srd(k, srdA, ptr['w2'], F_ * D_ * 2)
        for mI in range(6):
            k.e(f"buffer_load_dwordx4 {vr(rpd[mI],4)}, v{rp[mI]}, s[{srdA}:{srdA+3}], 0 offen")
        return 7 + nwo
    hooks = {}
    k.e(f"s_cmp_eq_u32 s{sSvc}, 1")
    k.e(f"s_cbranch_scc1 {Llq}")
    m2 = k.mark()
    ckv.segd = f"s{sEx}"
    ld = Loader(k, ckv, vl, sLW)

    def first():
        ld.bases(sRow, sCol)
        p1_srds()
        ld.early_a(srdA)
        if not OPT['hfirst']:
            lj_ = k.label("hj")
            k.e(f"s_branch {lj_}")
            k.lines.append('; @SEC head3')
            k.place(lj_)
    ld.patterns(between=first)

    def f0_part():
        poll(srdD, F0V, first_issued=True, tag="f0ok", drain1=False, younger=6 if OPT['svwo'] else 7)
        set_srd(k, srdA, ptr['ws'], WS_CS3 - WS_ST1, WS_ST1)
        lsd = k.label("std")
        k.e(f"""
        s_cmp_eq_u32 s{sLW}, 1
        s_cbranch_scc1 {lsd}
        s_mov_b32 m0, {P1_ST}
        s_lshl_b32 s3, s{sG}, 10
        v_lshlrev_b32 v{vfa}, 4, v{vl}
        buffer_load_dwordx4 v{vfa}, s[{srdA}:{srdA+3}], s3 offen sc1 lds
        s_movk_i32 s3, 8192
        buffer_load_dwordx4 {vr(csr[0],4)}, v{vcs}, s[{srdA}:{srdA+3}], 0 offen sc1
        buffer_load_dwordx4 {vr(csr[1],4)}, v{vcs}, s[{srdA}:{srdA+3}], s3 offen sc1
        s_movk_i32 s3, 16384
        buffer_load_dwordx4 {vr(csr[2],4)}, v{vcs}, s[{srdA}:{srdA+3}], s3 offen sc1
        s_movk_i32 s3, 24576
        buffer_load_dwordx4 {vr(csr[3],4)}, v{vcs}, s[{srdA}:{srdA+3}], s3 offen sc1
        v_add_u32 v{vfa}, {P1_ST + 1024}, v{vfa}
        """)
        k.place(lsd)
        return 0

    def early_valu():
        p1_late()
        for i in range(5):
            p2_pat(i)()
        rp_pat()
    ld.stream(srdA, srdW, last=p1_last, tag="p1", inject=(OPT['inj'], early_valu), hooks={9: f0_part})
    k.e(f"s_branch {Ltail}")
    k.release(m2)
    k.place(Llq)
    p1_late()
    k.e(f"s_movk_i32 s{sRv}, 1000")
    k.e(f"s_mov_b32 s{sRp}, 0")
    k.e(f"s_mov_b32 s{sRc}, 0")
    k.e(f"""
    s_lshl_b32 s{sP}, s{sCH}, 3
    s_add_u32 s{sP}, s{sP}, s{sC}
    s_mul_i32 s{sP}, s{sP}, {FS}
    s_lshl_b32 s3, s{sRQ}, 2
    s_add_u32 s{sP}, s{sP}, s3
    s_add_u32 s{sP}, s{sP}, {FL_S - FL_Q}
    """)
    set_srd(k, srdD, ptr['dbg'], 256)
    k.e(f"s_branch {Ltail}_s")
    k.lines.append('; @SEC ltail')
    k.place(Ltail)
    lsd = k.label("std")
    k.e(f"s_cmp_eq_u32 s{sLW}, 1")
    k.e(f"s_cbranch_scc1 {lsd}")
    k.e(f"""
    s_waitcnt vmcnt(2)
    v_pk_add_f32 {vr(csr[0],2)}, {vr(csr[0],2)}, {vr(csr[1],2)}
    v_pk_add_f32 {vr(csr[0]+2,2)}, {vr(csr[0]+2,2)}, {vr(csr[1]+2,2)}
    s_waitcnt vmcnt(0)
    v_pk_add_f32 {vr(csr[2],2)}, {vr(csr[2],2)}, {vr(csr[3],2)}
    v_pk_add_f32 {vr(csr[2]+2,2)}, {vr(csr[2]+2,2)}, {vr(csr[3]+2,2)}
    v_pk_add_f32 {vr(csr[0],2)}, {vr(csr[0],2)}, {vr(csr[2],2)}
    v_pk_add_f32 {vr(csr[0]+2,2)}, {vr(csr[0]+2,2)}, {vr(csr[2]+2,2)}
    ds_write_b128 v{vfa}, {vr(csr[0],4)}
    s_waitcnt lgkmcnt(0)
    """)
    k.place(lsd)
    k.place(Ltail + "_s")
    sRB2, sCT2 = dec2()
    set_srd(k, srdW, ptr['wo'], D_ * D_ * 2)
    sT, sKW, sLWd = k.s(), k.s(), k.s()
    k.e(f"""
    s_mul_i32 s{sKW}, s{sCT2}, 160
    s_movk_i32 s{sEx}, 1280
    s_mul_i32 s{sLWd}, s{sLW}, 5120
    """)
    nx = w1warm('stats')
    k.e(f"s_waitcnt vmcnt({nx})")
    k.e("s_barrier")
    lrp = k.label("rp")
    set_srd(k, srdA, ptr['ws'], 8 * W2P_CT, WS_W2P)
    k.e(f"""
    s_cmp_ge_u32 s{sRv}, 360
    s_cbranch_scc1 {lrp}
    v_lshlrev_b32 v{rp[0]}, 4, v{vl}
    s_add_u32 s3, s{sRp}, 4096
    """)
    for mI in range(6):
        k.e(f"buffer_store_dwordx4 {vr(rpd[mI],4)}, v{rp[0]}, s[{srdA}:{srdA+3}], {'s%d' % sRp if mI < 4 else 's3'} offen offset:{(mI % 4) * 1024} sc1")
    k.place(lrp)

    def w2_steps(lst):
        for s in lst:
            u = (s % 10) // 2
            k.e(f"s_add_u32 s{sT}, s{sKW}, {(s // 10) * 320 * 1280}")
            for mI in range(5):
                p2_lazy(u, mI)
                k.e(f"s_add_u32 m0, s{sLWd}, {L_W2 + s * 5120 + mI * 1024}")
                k.e("s_nop 0")
                if not g3.DBG['nodma']:
                    k.e(f"buffer_load_dwordx4 v{pat[u][mI]}, s[{srdW}:{srdW+3}], s{sT} offen lds")
    order = [0, 10, 2, 12, 4, 14, 6, 16, 8, 18]
    w2_steps(order[:OPT['w2a']])
    lsv = k.label("svp")
    k.e(f"s_cmp_eq_u32 s{sSvc}, 0")
    k.e(f"s_cbranch_scc1 {lsv}")
    k.e(f"v_lshlrev_b32 v{vfa}, 2, v{vl}")
    k.e(f"v_or_b32 v{vfa}, {128 if OPT['diag'] else 0}, v{vfa}")
    poll(srdD, F0V, tag="f0ok", drain1=False)
    k.place(lsv)
    w1warm('w2a')
    k.stamp_l("w2iss")
    k.e("s_barrier")
    w2_steps(order[OPT['w2a']:OPT['w2b']])
    w1warm('w2b')
    k.e("s_barrier")
    lkv, lfd = k.label("f1kv"), k.label("f1d")
    k.e(f"s_cmp_eq_u32 s{sTy}, 0")
    k.e(f"s_cbranch_scc1 {lkv}")
    set_flag(sP, FL_Q)
    k.e(f"s_branch {lfd}")
    k.place(lkv)
    k.e(f"""
    s_cmp_eq_u32 s{sLW}, 1
    s_cbranch_scc0 {lfd}
    s_mul_i32 s3, s{sC}, {FS}
    v_mov_b32 v{vfa}, {FL_C}
    v_mov_b32 v{vf}, 1
    s_mov_b64 exec, 1
    buffer_atomic_add v{vf}, v{vfa}, s[{srdF}:{srdF+3}], s3 offen sc0 sc1
    s_waitcnt vmcnt(0)
    v_readfirstlane_b32 s{sSpin}, v{vf}
    s_mov_b64 exec, -1
    s_cmp_eq_u32 s{sSpin}, 15
    s_cbranch_scc0 {lfd}
    v_mul_u32_u24 v{vfa}, {FS}, v{vl}
    v_add_u32 v{vfa}, {FL_G}, v{vfa}
    s_lshl_b32 s3, s{sC}, 2
    s_mov_b64 exec, {hex((1 << NREP) - 1)}
    buffer_store_dword v{vone}, v{vfa}, s[{srdF}:{srdF+3}], s3 offen sc1
    s_mov_b64 exec, -1
    """)
    k.place(lfd)
    k.stamp_l("f1set")
    w1warm('f1')
    if OPT['w2early']:
        w2_steps(order[max(OPT['w2a'], OPT['w2b']):])
    k.e(f"""
    s_lshr_b32 s3, s{sRB2}, 1
    s_mul_i32 s3, s3, {FS}
    v_and_b32 v{q0}, 7, v{vl}
    v_lshlrev_b32 v{q0}, 2, v{q0}
    v_and_b32 v{vfa}, 12, v{q0}
    v_add_u32 v{vfa}, s3, v{vfa}
    """)
    poll(srdF, 1, tag="f1q", drain1=False)
    if OPT['pqtouch']:
        lpt = k.label("pqt")
        set_srd(k, srdA, ptr['ws'], S_ * 1536, WS_PQ)
        k.e(f"""
        s_cmp_eq_u32 s{sLW}, 1
        s_cbranch_scc1 {lpt}
        s_lshl_b32 s3, s{sRB2}, 2
        s_lshr_b32 s{sSpin}, s{sJ}, 3
        s_add_u32 s3, s3, s{sSpin}
        s_mul_i32 s3, s3, {32 * 768}
        v_lshlrev_b32 v{vfa}, 7, v{vl}
        buffer_load_dword v{k.vdummy}, v{vfa}, s[{srdA}:{srdA+3}], s3 offen sc1
        s_add_u32 s3, s3, 8192
        buffer_load_dword v{k.vdummy}, v{vfa}, s[{srdA}:{srdA+3}], s3 offen sc1
        s_add_u32 s3, s3, 8192
        buffer_load_dword v{k.vdummy}, v{vfa}, s[{srdA}:{srdA+3}], s3 offen sc1
        """)
        k.place(lpt)
    k.e(f"""
    s_and_b32 s3, s2, {NREP - 1}
    s_mul_i32 s3, s3, {FS}
    s_add_u32 s3, s3, {FL_G}
    v_add_u32 v{vfa}, s3, v{q0}
    """)
    k.e(f"s_cmp_eq_u32 s{sLW}, 1")
    lq1 = k.label("q1")
    k.e(f"s_cbranch_scc1 {lq1}")
    k.e(f"buffer_load_dword v{vf}, v{vfa}, s[{srdF}:{srdF+3}], 0 offen sc1")
    k.place(lq1)
    k.e("s_barrier")
    poll(srdF, 1, tag="f1k", drain1=False, first_issued=True)
    k.e("s_barrier")
    k.e(f"""
    s_lshr_b32 s{sP}, s{sRB2}, 1
    s_mul_i32 s{sP}, s{sP}, {FS}
    s_and_b32 s3, s{sRB2}, 1
    s_lshl_b32 s3, s3, 5
    s_add_u32 s{sP}, s{sP}, s3
    s_lshl_b32 s3, s{sCT2}, 2
    s_add_u32 s{sP}, s{sP}, s3
    s_waitcnt vmcnt(0)
    s_barrier
    s_barrier
    """)
    lrp = k.label("rp")
    k.e(f"""
    s_cmp_ge_u32 s{sRv}, 360
    s_cbranch_scc1 {lrp}
    s_mul_i32 s3, s{sRc}, {FS}
    v_mov_b32 v{rp[0]}, {FL_R}
    s_waitcnt vmcnt(0)
    s_mov_b64 exec, 1
    buffer_atomic_add v{vone}, v{rp[0]}, s[{srdF}:{srdF+3}], s3 offen sc1
    s_mov_b64 exec, -1
    """)
    k.place(lrp)
    if not OPT['w2early']:
        w2_steps(order[max(OPT['w2a'], OPT['w2b']):])
    set_srd(k, srdA, ptr['ws'], S_ * D_ * 2, WS_H, bias=True)
    k.e(f"""
    s_mul_i32 s{sRow}, s{sRB2}, {64 * 2 * D_}
    s_add_u32 s{sRow}, s{sRow}, {BIAS if OPT['lean'] else 0}
    s_add_u32 s{sRow}, s{sRow}, s{sKW}
    s_mul_i32 s3, s{sLW}, 156
    s_add_u32 s{sRow}, s{sRow}, s3
    v_mul_u32_u24 v{vfa}, {2 * D_}, v{vl}
    """)
    k.release(m)
    mS = k.mark()
    Lskip3 = k.label("ldskip3")
    sRB3, sCT3 = dec3()
    ld = Loader(k, c3, vl, sLW)
    nx = 0
    if OPT['pretouch']:
        k.e(f"buffer_load_dword v{k.vdummy}, v{vfa}, s[{srdA}:{srdA+3}], s{sRow} offen sc1")
        nx += 1
    nx += w1warm('c')
    k.e(f"""
    s_lshl_b32 s3, s{sCH}, 3
    s_lshr_b32 s{sSpin}, s{sJ}, 2
    s_add_u32 s3, s3, s{sSpin}
    s_mul_i32 s3, s3, {FS}
    s_add_u32 s3, s3, {FL_S}
    v_and_b32 v{vfa}, 3, v{vl}
    v_lshlrev_b32 v{vfa}, 2, v{vfa}
    v_add_u32 v{vfa}, s3, v{vfa}
    """)
    poll(srdF, 1, tag="fsok", drain1=False)
    set_srd(k, srdW, ptr['ws'], 32768, WS_CS3)
    csr = [k.v(4) for _ in range(4)]
    k.e(f"""
    s_lshl_b32 s3, s{sCH}, 12
    s_lshr_b32 s{sSpin}, s{sJ}, 2
    s_lshl_b32 s{sSpin}, s{sSpin}, 9
    s_add_u32 s3, s3, s{sSpin}
    s_lshl_b32 s{sSpin}, s{sLW}, 20
    s_add_u32 s3, s3, s{sSpin}
    v_and_b32 v{vfa}, 31, v{vl}
    v_lshlrev_b32 v{vfa}, 4, v{vfa}
    """)
    for q_ in range(4):
        k.e(f"buffer_load_dwordx4 {vr(csr[q_],4)}, v{vfa}, s[{srdW}:{srdW+3}], s3 offen sc1")
        k.e("s_add_u32 s3, s3, 8192")
    ng = w1warm('g')
    ld.patterns()
    k.e(f"s_mul_i32 s{sRow}, s{sRB3}, {128 * 2 * D_}")
    k.e(f"s_lshl_b32 s{sCol}, s{sCT3}, 8")
    ld.bases(sRow, sCol)
    set_srd(k, srdW, ptr['w1'], F_ * D_ * 2, bias=True)
    ld.sRot = sRotL
    k.e(f"s_lshr_b32 s{sRotL}, s{sJ}, 2")
    k.e(f"s_mul_i32 s{sRotL}, s{sRotL}, 23")
    k.e(f"s_lshr_b32 s{sRotL}, s{sRotL}, 4")
    k.e(f"s_min_u32 s{sRotL}, s{sRotL}, 9")
    k.e("s_barrier")
    k.e(f"s_waitcnt vmcnt({ng})")
    for j in range(2):
        k.e(f"v_pk_add_f32 {vr(csr[0]+2*j,2)}, {vr(csr[0]+2*j,2)}, {vr(csr[1]+2*j,2)}")
        k.e(f"v_pk_add_f32 {vr(csr[2]+2*j,2)}, {vr(csr[2]+2*j,2)}, {vr(csr[3]+2*j,2)}")
        k.e(f"v_pk_add_f32 {vr(c3r+2*j,2)}, {vr(csr[0]+2*j,2)}, {vr(csr[2]+2*j,2)}")
    k.e("s_barrier")
    set_flag(sP, FL_2)
    k.stamp_l("f2set")
    Lidle3 = k.label("ldidle3")
    k.e(f"s_cmp_ge_u32 s{sJ}, 28")
    k.e(f"s_cbranch_scc1 {Lidle3}")
    ld.prefill_w(srdW, c3.SW)
    vl2 = k.v()
    k.e(f"""
    v_and_b32 v{vl2}, 31, v{vl}
    v_lshlrev_b32 v{vl2}, 4, v{vl2}
    s_lshl_b32 s3, s{sLW}, 9
    s_add_u32 s3, s3, {P3_SCR + 1024}
    v_add_u32 v{vl2}, s3, v{vl2}
    ds_write_b128 v{vl2}, {vr(c3r,4)}
    s_waitcnt lgkmcnt(0)
    """)
    k.e(f"""
    s_mul_i32 s3, s{sRB3}, {FS}
    s_add_u32 s3, s3, {FL_2}
    v_and_b32 v{vfa}, 15, v{vl}
    v_lshlrev_b32 v{vfa}, 2, v{vfa}
    v_add_u32 v{vfa}, s3, v{vfa}
    """)
    def r_check():
        lp, lo = k.label("rchk"), k.label("rok")
        k.e(f"""
        s_mul_i32 s3, s{sCH}, {4 * FS}
        s_add_u32 s3, s3, {FL_R}
        v_and_b32 v{vfa}, 3, v{vl}
        v_mul_u32_u24 v{vfa}, {FS}, v{vfa}
        v_add_u32 v{vfa}, s3, v{vfa}
        s_mov_b32 s{sSpin}, 0
        """)
        k.place(lp)
        k.e(f"""
        buffer_load_dword v{vf}, v{vfa}, s[{srdF}:{srdF+3}], 0 offen sc1
        s_waitcnt vmcnt(0)
        v_cmp_ne_u32 vcc, 45, v{vf}
        s_add_u32 s{sSpin}, s{sSpin}, 1
        s_nop 3
        s_cbranch_vccz {lo}
        s_cmp_gt_u32 s{sSpin}, 0x40000
        s_cbranch_scc1 {k.end}
        s_sleep 16
        s_branch {lp}
        """)
        k.place(lo)

    poll(srdF, 1, tag="f2ok", drain1=False)
    lrc = k.label("rc")
    k.e(f"s_cmp_eq_u32 s{sLW}, 0")
    k.e(f"s_cbranch_scc1 {lrc}")
    r_check()
    k.place(lrc)
    k.e("s_barrier")

    def idle_warm():
        mm_ = k.mark()
        sCo = k.s()
        k.e(f"""
        s_lshl_b32 s{sCo}, s{sCH}, 2
        s_add_u32 s{sCo}, s{sCo}, s{sJ}
        s_sub_u32 s{sCo}, s{sCo}, 28
        s_mul_i32 s{sCo}, s{sCo}, {W2P_CT}
        s_add_u32 s{sCo}, s{sCo}, {WS_W2P}
        """)
        T = Touch(k, vl, 16, 2048)
        for it in range(OPT['iw']):
            T.unit(ptr['ws'], sCo, sLW, 2 * it, 135)
            if OPT['iwser']:
                k.e('s_waitcnt vmcnt(0)')
        k.release(mm_)

    def w1p(lst):
        def f():
            n = 0
            assert ld.issued >= 40 + 80
            for m in lst:
                for op in ld._W(m, srdW, coff=128):
                    ld.emit_op(op); n += 1
            return n
        return f
    ld.stream(srdA, srdW, aflags="sc1", tag="p3", hooks={7: w1p([0, 1, 2]), 8: w1p([3, 4, 5]), 9: w1p([6, 7])})
    w1p([8])()
    k.e("s_barrier")
    w1p([9])()
    k.e(f"""
    s_mul_i32 s{sP}, s{sRB3}, {FS}
    s_lshl_b32 s3, s{sCT3}, 2
    s_add_u32 s{sP}, s{sP}, s3
    s_add_u32 s{sP}, s{sP}, {FL_3}
    s_mov_b32 s{sAct}, 1
    s_waitcnt vmcnt(20)
    s_barrier
    s_branch {Lskip3}
    """)
    k.place(Lidle3)
    k.e(f"s_mov_b32 s{sAct}, 0")
    k.release(mS)
    r_check()
    idle_warm()
    k.place(Lskip3)
    Lend, Lno3, Lno4 = k.label("ldend"), k.label("ldno3"), k.label("ldno4")
    sRB4, sCT4 = dec2()
    ld = Loader(k, c4, vl, sLW)
    ld.patterns()
    k.e(f"s_mul_i32 s{sRow}, s{sRB4}, {64 * 2 * F_}")
    k.e(f"s_mul_i32 s{sCol}, s{sCT4}, {W2P_CT}")
    ld.bases(sRow, sCol)
    set_srd(k, srdA, ptr['ws'], S_ * F_ * 2, WS_HH, bias=True)
    set_srd(k, srdW, ptr['ws'], 8 * W2P_CT, WS_W2P)
    ld.sRot = sRotL
    k.e(f"s_lshr_b32 s{sRotL}, s{sJ}, 3")
    k.e(f"s_mul_i32 s{sRotL}, s{sRotL}, 7")
    k.e(f"s_lshr_b32 s{sRotL}, s{sRotL}, 1")
    ld.prefill_w(srdW, OPT['pf1'])
    k.e(f"""
    s_cmp_eq_u32 s{sAct}, 0
    s_cbranch_scc1 {Lno3}
    s_waitcnt vmcnt({5 * OPT['pf1']})
    s_barrier
    """)
    set_flag(sP, 0)
    k.stamp_l("f3set")
    k.place(Lno3)
    for m_ in range(OPT['pf1'], 6):
        for op in ld._W(m_, srdW):
            ld.emit_op(op)
    ld.pw = 6
    k.e(f"""
    s_cmp_eq_u32 s{sAct}, 0
    s_cbranch_scc1 {Lno4}
    s_barrier
    """)
    k.place(Lno4)
    k.e(f"""
    s_lshr_b32 s3, s{sRB4}, 1
    s_mul_i32 s3, s3, {FS}
    s_add_u32 s3, s3, {FL_3}
    v_and_b32 v{vfa}, 15, v{vl}
    v_min_u32 v{vfb}, 12, v{vfa}
    v_min_u32 v{vfa}, 13, v{vfa}
    v_lshlrev_b32 v{vfa}, 2, v{vfa}
    v_add_u32 v{vfa}, s3, v{vfa}
    v_lshlrev_b32 v{vfb}, 2, v{vfb}
    v_add_u32 v{vfb}, s3, v{vfb}
    v_add_u32 v{vfb}, 64, v{vfb}
    """)
    poll(srdF, 1, tag="f3ok", drain1=False, both=True)
    mk = {}

    def f3b_set():
        k.e(f"""
        s_and_b32 s3, s{sAct}, s{sLW}
        s_cmp_eq_u32 s3, 1
        s_cselect_b32 s3, 64, {OOB}
        v_mov_b32 v{vfa}, s3
        s_mov_b64 exec, 1
        buffer_store_dword v{vone}, v{vfa}, s[{srdF}:{srdF+3}], s{sP} offen sc1
        s_mov_b64 exec, -1
        """)
        return 1

    def f3b_issue():
        k.e(f"buffer_load_dword v{vf}, v{vfb}, s[{srdF}:{srdF+3}], 0 offen sc1")
        mk['n'] = ld.issued
        return 1

    def f3b_check():
        k.e(f"v_mov_b32 v{vfa}, v{vfb}")
        poll(srdF, 1, tag="f3bok", drain1=False, both=True, first_issued=True, younger=max(1, ld.issued - mk['n']) if ld.issued > mk['n'] else 0)
        return 0

    def out_touch():
        set_srd(k, srdF, ptr['out'], S_ * D_ * 2)
        k.e(f"""
        s_mul_i32 s3, s{sRB4}, {64 * 2 * D_}
        s_mul_i32 s{sSpin}, s{sCT4}, 160
        s_add_u32 s3, s3, s{sSpin}
        s_mul_i32 s{sSpin}, s{sLW}, 156
        s_add_u32 s3, s3, s{sSpin}
        v_mul_u32_u24 v{vfa}, {2 * D_}, v{vl}
        buffer_load_dword v{k.vdummy}, v{vfa}, s[{srdF}:{srdF+3}], s3 offen
        """)
        return 1
    ld.stream(srdA, srdW, aflags="sc1", tag="p4", hooks={1: f3b_set, HB - 2: f3b_issue, HB: f3b_check},
              last=out_touch if OPT['otouch'] else None)
    k.place(Lend)
    endwave()
    k.release(mL)

    k.lines.append('; @SEC svc')
    k.place(Lsvc)
    mV = k.mark()
    k.vtop = vLtop
    sS, sA, sB, sX8, sPi = (k.s() for _ in range(5))
    srdX, srdS, srdK, srdW_ = k.s(4), k.s(4), k.s(4), k.s(4)
    xr = [k.v(4) for _ in range(5)]
    ux = [k.v(2) for _ in range(20)]
    t0, t1, vs_, vq_ = k.v(), k.v(), k.v(2), k.v(2)
    z4 = k.v(4)
    k.e(f"""
    s_and_b32 s{sS}, s{sJ1}, 7
    s_and_b32 s{sX8}, s2, 7
    s_lshl_b32 s{sPi}, s{sX8}, 3
    s_add_u32 s{sPi}, s{sPi}, s{sS}
    s_lshl_b32 s{sA}, s{sPi}, 3
    s_add_u32 s{sA}, s{sA}, s{sWave}
    s_lshl_b32 s{sA}, s{sA}, 2
    v_lshrrev_b32 v{t0}, 4, v{vl}
    v_add_u32 v{t0}, s{sA}, v{t0}
    v_mul_u32_u24 v{t1}, {2*D_}, v{t0}
    v_and_b32 v{vs_}, 15, v{vl}
    v_lshl_add_u32 v{t1}, v{vs_}, 4, v{t1}
    s_waitcnt lgkmcnt(0)
    """)
    set_srd(k, srdX, ptr['x'], S_ * D_ * 2)
    for i in range(5):
        k.e(f"buffer_load_dwordx4 {vr(xr[i],4)}, v{t1}, s[{srdX}:{srdX+3}], 0 offen offset:{i*256}")
    set_srd(k, srdS, ptr['ws'], WS_FL - WS_ST1 + FL_BYTES, WS_ST1)
    set_srd(k, srdK, ptr['ws'], KV_BYTES, WS_KV)
    set_srd(k, srdW_, ptr['wqkv'], 3 * D_ * D_ * 2)
    k.e(f"""
    v_mov_b64 {vr(z4,2)}, 0
    v_mov_b64 {vr(z4+2,2)}, 0
    s_lshl_b32 s{sB}, s{sA}, 5
    v_lshlrev_b32 v{t1}, 4, v{vl}
    s_mov_b64 exec, 0xff
    buffer_store_dwordx4 {vr(z4,4)}, v{t1}, s[{srdK}:{srdK+3}], s{sB} offen sc1
    s_mov_b64 exec, 3
    s_lshr_b32 s{sB}, s{sA}, 4
    s_mul_i32 s{sB}, s{sB}, {FS}
    s_and_b32 s3, s{sWave}, 3
    s_lshl_b32 s3, s3, 5
    s_add_u32 s{sB}, s{sB}, s3
    s_add_u32 s{sB}, s{sB}, {WS_FL - WS_ST1}
    buffer_store_dwordx4 {vr(z4,4)}, v{t1}, s[{srdS}:{srdS+3}], s{sB} offen sc1
    s_mov_b64 exec, -1
    v_mov_b64 {vr(vs_,2)}, 0
    v_mov_b64 {vr(vq_,2)}, 0
    """)
    NB = 10
    wb = [k.v(4) for _ in range(NB)]
    ca = [[k.v(2) for _ in range(4)] for _ in range(2)]
    cu = k.v(2)
    vw, vw1, vlw, vlr, t2 = (k.v() for _ in range(5))
    sO, sO1 = k.s(), k.s()
    srdW1 = k.s(4)
    set_srd(k, srdW1, ptr['w1'], F_ * D_ * 2)
    k.e(f"""
    s_lshl_b32 s3, s{sS}, 1
    v_bfe_u32 v{t2}, v{vl}, 3, 1
    v_add_u32 v{t2}, s3, v{t2}
    v_min_u32 v{t2}, 14, v{t2}
    v_mul_u32_u24 v{vw}, 205, v{t2}
    v_lshrrev_b32 v{vw}, 10, v{vw}
    v_mul_u32_u24 v{vw}, 640, v{vw}
    v_lshl_add_u32 v{vw}, v{t2}, 7, v{vw}
    v_and_b32 v{t2}, 7, v{vl}
    v_lshl_add_u32 v{vw}, v{t2}, 4, v{vw}
    v_lshrrev_b32 v{t2}, 4, v{vl}
    v_mul_u32_u24 v{vw1}, {6 * D_}, v{t2}
    v_add_u32 v{vw}, v{vw}, v{vw1}
    s_mul_i32 s{sB}, s{sRQ}, 40
    s_add_u32 s{sB}, s{sB}, s{sWave}
    s_mul_i32 s{sO}, s{sB}, {4 * 6 * D_}
    s_mul_i32 s3, s{sCH}, 640
    s_add_u32 s{sO}, s{sO}, s3
    """)
    for it in range(5):
        k.e(f"buffer_load_dwordx4 {vr(wb[it],4)}, v{vw}, s[{srdW_}:{srdW_+3}], s{sO} offen")
        k.e(f"s_add_u32 s{sO}, s{sO}, {32 * 6 * D_}")
    k.e(f"""
    v_mul_u32_u24 v{vw1}, {2 * F_}, v{t2}
    v_and_b32 v{t2}, 15, v{vl}
    v_lshl_add_u32 v{vw1}, v{t2}, 4, v{vw1}
    s_mul_i32 s{sO1}, s{sB}, {4 * 2 * F_}
    s_min_u32 s3, s{sS}, 6
    s_mul_i32 s{sB}, s{sCH}, 7
    s_add_u32 s3, s3, s{sB}
    s_lshl_b32 s3, s3, 8
    s_add_u32 s{sO1}, s{sO1}, s3
    """)
    k.e(f"""
    v_lshlrev_b32 v{vlw}, 5, v{t2}
    s_lshl_b32 s3, s{sWave}, 9
    v_add_u32 v{vlw}, s3, v{vlw}
    v_lshlrev_b32 v{vlr}, 4, v{vl}
    """)
    sUv, sCo = k.s(), k.s()
    k.e(f"""
    s_lshl_b32 s{sUv}, s{sWave}, 3
    s_add_u32 s{sUv}, s{sUv}, s{sS}
    s_mul_i32 s{sCo}, s{sCH}, 640
    """)
    TWs = Touch(k, vl, 15, 6 * D_, seg5=True)
    u0 = 24 * OPT['hW']
    nX = 0
    if OPT['hX'] != 10:
        sRo2 = k.s()
        k.e(f"""
        s_xor_b32 s{sRo2}, s{sX8}, 1
        s_mul_i32 s{sRo2}, s{sRo2}, {256 * 2 * D_}
        """)
        TXs = Touch(k, vl, 16, 2048, share=TWs)
        TXs.unit(ptr['x'], sRo2, sUv, 0, 160)
        nX = 1
    nT = OPT['svT1']
    for it in range(nT):
        TWs.unit(ptr['wqkv'], sCo, sUv, u0 + 64 * it, 640)
    NB = 5 + nX + nT
    for i in range(5):
        p2_pat(i)()
    for i in range(5):
        k.e(f"s_waitcnt vmcnt({6 - i + NB})")
        for d in range(4):
            k.e(f"v_lshlrev_b32 v{ux[4*i+d]}, 16, v{xr[i]+d}")
            k.e(f"v_and_b32 v{ux[4*i+d]+1}, 0xffff0000, v{xr[i]+d}")
            k.e(f"v_pk_add_f32 {vr(vs_,2)}, {vr(vs_,2)}, {vr(ux[4*i+d],2)}")
    k.e(f"v_add_f32 v{vs_}, v{vs_}, v{vs_+1}")
    dpp_rowsum(k, vs_)
    k.e(f"s_mov_b32 s{sB}, {f32bits(1.0/640)}")
    k.e(f"v_mul_f32 v{vs_}, s{sB}, v{vs_}")
    for i in range(20):
        k.e(f"v_pk_add_f32 {vr(ux[i],2)}, {vr(ux[i],2)}, {vr(vs_,2)} op_sel_hi:[1,0] neg_lo:[0,1] neg_hi:[0,1]")
        k.e(f"v_pk_fma_f32 {vr(vq_,2)}, {vr(ux[i],2)}, {vr(ux[i],2)}, {vr(vq_,2)}")
    k.e(f"v_add_f32 v{vq_}, v{vq_}, v{vq_+1}")
    dpp_rowsum(k, vq_)
    k.e(f"v_mul_f32 v{vq_}, s{sB}, v{vq_}")
    k.e(f"s_mov_b32 s{sB}, {f32bits(1e-5)}")
    ln_finalize_multi(k, [vs_], [vq_], sB)
    k.e(f"""
    v_lshrrev_b32 v{t1}, 7, v{t0}
    v_and_b32 v{t0}, 127, v{t0}
    v_lshlrev_b32 v{t0}, 2, v{t0}
    v_lshl_add_u32 v{t0}, v{t1}, 10, v{t0}
    s_mov_b32 exec_lo, 0x00010001
    s_mov_b32 exec_hi, 0x00010001
    buffer_store_dword v{vs_}, v{t0}, s[{srdS}:{srdS+3}], 0 offen sc1
    buffer_store_dword v{vq_}, v{t0}, s[{srdS}:{srdS+3}], 0 offen offset:512 sc1
    s_mov_b64 exec, -1
    """)

    def cs_sum(younger, nowait=False):
        for a in ca[0]:
            k.e(f"v_mov_b64 {vr(a,2)}, 0")
        if nowait:
            l_ = k.label("csw")
            k.e(f"s_and_b32 s3, s{sWave}, 6")
            k.e(f"s_cmp_eq_u32 s3, 4")
            k.e(f"s_cbranch_scc1 {l_}")
            k.e("s_waitcnt vmcnt(0)")
            k.place(l_)
        for it in range(5):
            if not nowait:
                k.e(f"s_waitcnt vmcnt({4 - it + younger})")
            for d in range(4):
                k.e(f"v_lshlrev_b32 v{cu}, 16, v{wb[it] + d}")
                k.e(f"v_and_b32 v{cu+1}, 0xffff0000, v{wb[it] + d}")
                k.e(f"v_pk_add_f32 {vr(ca[0][d],2)}, {vr(ca[0][d],2)}, {vr(cu,2)}")

    def cs_pub(off_ws, lds_off):
        vals = [a + i for a in ca[0] for i in range(2)]
        allreduce4_multi(k, vals, [wb[i // 4] + i % 4 for i in range(8)])
        for h in range(4):
            k.e(f"ds_write_b64 v{vlw}, {vr(ca[0][h],2)} offset:{lds_off + 8*h}")
        k.e("s_waitcnt lgkmcnt(0)")
        k.e("s_barrier")
        lsk = k.label("csk")
        k.e(f"s_cmp_lg_u32 s{sWave}, 0")
        k.e(f"s_cbranch_scc1 {lsk}")
        for w in range(8):
            k.e(f"ds_read_b128 {vr(wb[w],4)}, v{vlr} offset:{lds_off + 512*w}")
        k.e(f"""
        s_lshl_b32 s3, s{sPi}, 9
        s_add_u32 s3, s3, {off_ws - WS_ST1}
        s_waitcnt lgkmcnt(0)
        """)
        for w in range(1, 8):
            for j in range(2):
                k.e(f"v_pk_add_f32 {vr(wb[0]+2*j,2)}, {vr(wb[0]+2*j,2)}, {vr(wb[w]+2*j,2)}")
        k.e("s_mov_b32 exec_hi, 0")
        k.e(f"buffer_store_dwordx4 {vr(wb[0],4)}, v{vlr}, s[{srdS}:{srdS+3}], s3 offen sc1")
        k.e("s_mov_b64 exec, -1")
        k.e("s_nop 1")
        k.place(lsk)
    cs_sum(nT + nX + 2)
    k.stamp_c("p1_pre")
    cs_pub(WS_CS1, 0)
    set_srd(k, srdX, ptr['dbg'], 256)
    k.e("s_waitcnt vmcnt(0)")
    k.e("s_barrier")
    lf = k.label("svf")
    k.e(f"""
    s_cmp_eq_u32 s{sWave}, 7
    s_cbranch_scc0 {lf}
    s_lshl_b32 s3, s{sPi}, {1 if OPT['diag'] else 2}
    v_mov_b32 v{t0}, s3
    v_mov_b32 v{t1}, 1
    s_mov_b64 exec, 1
    {'buffer_store_short' if OPT['diag'] else 'buffer_store_dword'} v{t1}, v{t0}, s[{srdX}:{srdX+3}], 0 offen {'offset:128' if OPT['diag'] else ''} sc1
    s_mov_b64 exec, -1
    """)
    k.place(lf)
    k.stamp_c("p1_b0")
    k.e("s_barrier")
    n2 = 0
    while u0 + 64 * (nT + n2) < 160:
        TWs.unit(ptr['wqkv'], sCo, sUv, u0 + 64 * (nT + n2), 640, skip=True); n2 += 1
    T5 = Touch(k, vl, 5, 2 * D_, share=TWs)
    if OPT['svwo']:
        T5.unit(ptr['wo'], sCo, sUv, 0, 640, skip=True)
    else:
        T5.unit(ptr['wo'], sCo, sUv, 48, 640, skip=True)
    for it in range(5):
        k.e(f"buffer_load_dwordx4 {vr(wb[it],4)}, v{vw1}, s[{srdW1}:{srdW1+3}], s{sO1} offen")
        k.e(f"s_add_u32 s{sO1}, s{sO1}, {32 * 2 * F_}")
    T14 = Touch(k, vl, 14, 2 * F_, share=TWs)
    k.e(f"s_mul_i32 s{sB}, s{sCH}, {13 * 128}")
    for it in range(OPT['svw1']):
        T14.unit(ptr['w1'], sB, sUv, 64 * it, 640)
    cs_sum(OPT['svw1'])
    cs_pub(WS_CS3, 4096)
    for it in range(OPT['svw2']):
        T5.unit(ptr['w2'], sCo, sUv, 64 * it, 1728)
    k.e("s_waitcnt vmcnt(0)")
    k.stamp_c("p1_loop")
    k.e(f"s_mov_b32 s{sSvc}, 1")
    k.e(f"s_branch {Lrole}")
    k.release(mV)

    k.lines.append('; @SEC cons')
    k.place(Lc)
    sW0, sW1 = k.s(), k.s()
    sA = k.s(2, 2)
    sB = sA + 1
    sEps = k.s(2, 2)
    srd0, srd1, srd2 = k.s(4), k.s(4), k.s(4)
    k.e(f"""
    s_and_b32 s{sW0}, s{sWave}, 1
    s_lshr_b32 s{sW1}, s{sWave}, 1
    s_mov_b32 s{sEps}, {f32bits(1e-6)}
    s_mov_b32 s{sEps+1}, {f32bits(1e-6)}
    """)
    mC = k.mark()
    sG, sC, sTy = dec1()
    Lq, Lp1done, Lqs, Lsj, Lsv2 = (k.label(x) for x in ("consq", "p1done", "qset", "setj", "sv2"))
    srdK = srd0
    k.e("s_waitcnt lgkmcnt(0)")
    set_srd(k, srdK, ptr['ws'], KV_BYTES, WS_KV)
    k.e(f"s_cmp_eq_u32 s{sTy}, 2")
    k.e(f"s_cbranch_scc1 {Lsv2}")
    mP1 = k.mark()
    ar = [k.v() for _ in range(11)]
    va = {(vi, ki): ar[2 * vi + ki] for vi in range(2) for ki in range(2)}
    vz, vrd, vat = ar[4:6], ar[6], ar[7:11]
    ad, vso = [[ar[2 * hh], ar[2 * hh + 1]] for hh in range(4)], ar[8]
    m1 = k.mark()
    sB2 = k.s()
    vd, ve = [k.v(), k.v()], [k.v(), k.v()]
    voob, t1 = k.v(), k.v()
    sM = k.s(2)
    k.e(f"s_cmp_eq_u32 s{sTy}, 1")
    k.e(f"s_cbranch_scc1 {Lqs}")
    k.e(f"""
    s_movk_i32 s{sB2}, 504
    s_lshl_b32 s{sA}, s{sWave}, 2
    v_and_b32 v{t1}, 15, v{vl}
    v_subrev_u32 v{vd[0]}, s{sA}, v{t1}
    v_add_u32 v{vd[1]}, 16, v{vd[0]}
    v_lshrrev_b32 v{t1}, 4, v{vl}
    v_lshlrev_b32 v{t1}, 2, v{t1}
    v_subrev_u32 v{ve[0]}, s{sA}, v{t1}
    v_add_u32 v{ve[1]}, 16, v{ve[0]}
    v_mov_b32 v{voob}, 2048
    """)
    for vi in range(2):
        for ki in range(2):
            k.e(f"""
            v_mul_u32_u24 v{t1}, 24, v{ve[vi]}
            v_add_lshl_u32 v{t1}, v{t1}, v{vd[ki]}, 2
            v_cmp_gt_u32 vcc, 20, v{ve[vi]}
            v_cmp_gt_u32 s[{sM}:{sM+1}], 20, v{vd[ki]}
            s_nop 1
            s_and_b64 vcc, vcc, s[{sM}:{sM+1}]
            s_nop 1
            v_cndmask_b32 v{va[(vi,ki)]}, v{voob}, v{t1}, vcc
            """)
    for ki in range(2):
        k.e(f"""
        v_lshlrev_b32 v{t1}, 2, v{vd[ki]}
        v_add_u32 v{t1}, {20*96}, v{t1}
        v_cmp_gt_u32 vcc, 16, v{vl}
        v_cmp_gt_u32 s[{sM}:{sM+1}], 20, v{vd[ki]}
        s_nop 1
        s_and_b64 vcc, vcc, s[{sM}:{sM+1}]
        s_nop 1
        v_cndmask_b32 v{vz[ki]}, v{voob}, v{t1}, vcc
        """)
    assert P1_AT + 4 * 2560 <= LDS_TOTAL
    k.e(f"s_mul_i32 s{sA}, s{sWave}, 2560")
    k.e(f"s_add_u32 s{sA}, s{sA}, {P1_AT}")
    for x in list(va.values()) + vz:
        k.e(f"v_add_u32 v{x}, s{sA}, v{x}")
    k.e(f"v_lshl_add_u32 v{vrd}, v{vl}, 2, s{sA}")
    k.e(f"v_mov_b32 v{voob}, {OOB}")
    for n, base in enumerate((0, 64, 128, 448)):
        k.e(f"""
        v_add_u32 v{t1}, {base}, v{vl}
        v_mul_u32_u24 v{vd[0]}, 2731, v{t1}
        v_lshrrev_b32 v{vd[0]}, 16, v{vd[0]}
        v_mul_u32_u24 v{vd[0]}, 24, v{vd[0]}
        v_sub_u32 v{vd[0]}, v{t1}, v{vd[0]}
        v_cmp_gt_u32 vcc, 20, v{vd[0]}
        v_cmp_gt_u32 s[{sM}:{sM+1}], s{sB2}, v{t1}
        v_lshlrev_b32 v{t1}, 2, v{t1}
        s_nop 0
        s_and_b64 vcc, vcc, s[{sM}:{sM+1}]
        s_nop 1
        v_cndmask_b32 v{vat[n]}, v{voob}, v{t1}, vcc
        """)
    k.e(f"s_branch {Lsj}")
    k.place(Lqs)

    vb, vc, t0 = vd[0], vd[1], ve[0]
    k.e(f"""
    s_mul_i32 s{sA}, s{sW1}, 20480
    s_mul_i32 s{sB}, s{sW0}, 5120
    s_add_u32 s{sA}, s{sA}, s{sB}
    v_lshlrev_b32 v{vso}, 4, v{vl}
    v_mov_b32 v{ar[9]}, {OOB}
    v_mov_b32 v{ar[10]}, {OOB}
    v_and_b32 v{vb}, 3, v{vl}
    v_lshlrev_b32 v{vb}, 8, v{vb}
    v_add_u32 v{vb}, s{sA}, v{vb}
    v_lshrrev_b32 v{t0}, 4, v{vl}
    v_min_u32 v{t0}, 2, v{t0}
    v_bfe_u32 v{vc}, v{vl}, 2, 2
    v_lshl_add_u32 v{vc}, v{t0}, 3, v{vc}
    v_cmp_gt_u32 vcc, 2, v{t0}
    s_nop 1
    v_cndmask_b32 v{t1}, 0, 4, vcc
    """)
    for hh in range(4):
        for hf in range(2):
            a = ad[hh][hf]
            k.e(f"v_add_u32 v{t0}, {20*hh}, v{vc}")
            if hf:
                k.e(f"v_add_u32 v{t0}, v{t0}, v{t1}")
            k.e(f"""
            v_lshrrev_b32 v{a}, 4, v{t0}
            v_lshl_add_u32 v{a}, v{a}, 10, v{vb}
            v_and_b32 v{t0}, 15, v{t0}
            v_lshl_add_u32 v{a}, v{t0}, 4, v{a}
            """)
    k.place(Lsj)
    k.release(m1)
    vc0, vc2, vc3, vst, vx0, vx2, vxr = (k.v() for _ in range(7))
    ones = k.v(4)
    sX0, sX3 = k.s(), k.s()
    k.e(f"""
    s_cmp_eq_u32 s{sTy}, 1
    s_cselect_b32 s{sX0}, 5, 3
    s_cselect_b32 s{sX3}, 3, 5
    s_mul_i32 s{sX0}, s{sX0}, s{sW0}
    s_add_u32 s{sX3}, s{sX3}, s{sX0}
    v_and_b32 v{vc0}, 15, v{vl}
    v_lshlrev_b32 v{vc0}, 2, v{vc0}
    v_add_u32 v{vc0}, {P1_ST + 1024}, v{vc0}
    s_mul_i32 s{sA}, s{sW0}, 320
    v_add_u32 v{vc2}, s{sA}, v{vc0}
    s_lshl_b32 s{sA}, s{sX3}, 6
    v_add_u32 v{vc3}, s{sA}, v{vc0}
    s_lshl_b32 s{sA}, s{sX0}, 6
    v_add_u32 v{vc0}, s{sA}, v{vc0}
    v_lshrrev_b32 v{vst}, 4, v{vl}
    v_lshlrev_b32 v{vst}, 4, v{vst}
    s_lshl_b32 s{sA}, s{sW1}, 8
    s_add_u32 s{sA}, s{sA}, {P1_ST}
    v_add_u32 v{vst}, s{sA}, v{vst}
    v_lshlrev_b32 v{vxr}, 4, v{vl}
    s_mul_i32 s{sA}, s{sW1}, 20480
    s_lshl_b32 s{sB}, s{sX0}, 10
    s_add_u32 s{sB}, s{sB}, s{sA}
    v_add_u32 v{vx0}, s{sB}, v{vxr}
    s_mul_i32 s{sB}, s{sW0}, 5120
    s_add_u32 s{sB}, s{sB}, s{sA}
    v_add_u32 v{vx2}, s{sB}, v{vxr}
    s_lshl_b32 s{sA}, s{sWave}, 10
    v_add_u32 v{vxr}, s{sA}, v{vxr}
    """)
    for x in (sX0, sX3):
        k.e(f"""
        s_cmp_ge_u32 s{x}, 5
        s_cselect_b32 s3, {2560 - 160}, 0
        s_lshl_b32 s{x}, s{x}, 5
        s_add_u32 s{x}, s{x}, s3
        """)
    ckv.mixed = (sX0, sX3)
    for j in range(4):
        k.e(f"v_mov_b32 v{ones+j}, 0x3f803f80")
    o = consumer_setup(k, ckv, sW1, sW0, vl)
    k.e(f"s_mov_b32 s{sA}, {f32bits(LOG2E)}")
    k.e(f"s_mov_b32 s{sB}, {f32bits(LOG2E)}")
    consumer_loop(k, o, None, tag="p1")
    tp = k.v(2)
    cs = [k.v(2) for _ in range(5)]
    stm = [k.v(4) for _ in range(4)]
    str_ = [k.v(4) for _ in range(4)]
    r2 = [k.v(4) for _ in range(4)]
    fr = [k.v(4), k.v(4)]
    Dz = [k.v(4), k.v(4)]
    k.e("s_barrier")
    k.stamp_c("p1_e1")
    co = [0, 64, 128, 0, 64]
    for nt in range(5):
        k.e(f"ds_read_b32 v{cs[nt]}, v{[vc0, vc0, vc2, vc3, vc3][nt]} offset:{co[nt]}")
    for mt in range(4):
        k.e(f"ds_read_b128 {vr(stm[mt],4)}, v{vst} offset:{mt*64}")
    for mt in range(4):
        k.e(f"ds_read_b128 {vr(str_[mt],4)}, v{vst} offset:{512 + mt*64}")
    for mt in range(4):
        k.e(f"s_waitcnt lgkmcnt({7 - mt})")
        for nt in range(5):
            a = o.acc[mt][nt]
            for j in range(2):
                k.e(f"v_pk_fma_f32 {vr(a+2*j,2)}, {vr(stm[mt]+2*j,2)}, {vr(cs[nt],2)}, {vr(a+2*j,2)} op_sel_hi:[1,0,1] neg_lo:[1,0,0] neg_hi:[1,0,0]")
    k.e("s_waitcnt lgkmcnt(0)")
    assert sB == sA + 1 and sA % 2 == 0
    for mt in range(4):
        for j in range(2):
            k.e(f"v_pk_mul_f32 {vr(r2[mt]+2*j,2)}, {vr(str_[mt]+2*j,2)}, s[{sA}:{sA+1}]")
    xo = [0, 1, 2, 5, 6]

    def fin_tile(nt, is_k, xo=xo):
        for tg in range(2):
            for mt in (2 * tg, 2 * tg + 1):
                for j in range(2):
                    a = o.acc[mt][nt] + 2 * j
                    if is_k:
                        phi_pair(k, a, str_[mt] + 2 * j, r2[mt] + 2 * j, sEps, tp)
                    else:
                        k.e(f"v_pk_mul_f32 {vr(a,2)}, {vr(a,2)}, {vr(str_[mt]+2*j,2)}")
            f = fr[tg]
            for i, mt in enumerate((2 * tg, 2 * tg + 1)):
                a = o.acc[mt][nt]
                k.e(f"v_cvt_pk_bf16_f32 v{f + 2*i}, v{a}, v{a+1}")
                k.e(f"v_cvt_pk_bf16_f32 v{f + 2*i + 1}, v{a+2}, v{a+3}")
            k.e(f"ds_write_b128 v{vx2 if nt == 2 else vx0}, {vr(f,4)} offset:{tg*10240 + xo[nt]*1024}")
    for nt in (0, 1):
        fin_tile(nt, True)
    Lv, Lj, Lk2 = k.label("vpath"), k.label("vjoin"), k.label("k2")
    k.e(f"s_cmp_eq_u32 s{sTy}, 1")
    k.e(f"s_cbranch_scc1 {Lq}")
    for nt in (3, 4):
        fin_tile(nt, False)
    k.e(f"s_cmp_eq_u32 s{sW0}, 1")
    k.e(f"s_cbranch_scc1 {Lv}")
    fin_tile(2, True)
    k.e(f"s_branch {Lj}")
    k.place(Lv)
    fin_tile(2, False)
    k.place(Lj)
    k.e(f"""
    s_lshl_b32 s{sA}, s{sC}, 2
    s_add_u32 s{sA}, s{sA}, s{sWave}
    s_lshl_b32 s{sA}, s{sA}, 11
    s_waitcnt lgkmcnt(0)
    s_barrier
    """)
    k.stamp_c("p1_e2")
    accs = [o.acc[mt][nt] for mt in range(4) for nt in range(5)]
    F = {}
    idx = 0
    for tg in range(4):
        for nm, off in (("k0", 0), ("k1", 1), ("v0", 5), ("v1", 6)):
            F[(tg, nm)] = accs[idx]; idx += 1
            if idx == 16:
                k.e("s_waitcnt lgkmcnt(11)")
            k.e(f"ds_read_b128 {vr(F[(tg, nm)],4)}, v{vxr} offset:{tg*10240 + off*1024}")
    Dk = {(vi, ki): accs[16 + 2 * vi + ki] for vi in range(2) for ki in range(2)}
    for tg in range(4):
        k.e(f"s_waitcnt lgkmcnt({12 - 4*tg})")
        for vi in range(2):
            for ki in range(2):
                d = Dk[(vi, ki)]
                k.e(f"v_mfma_f32_16x16x32_bf16 {vr(d,4)}, {vr(F[(tg, f'v{vi}')],4)}, {vr(F[(tg, f'k{ki}')],4)}, " + ("0" if tg == 0 else vr(d, 4)))
        for ki in range(2):
            d = Dz[ki]
            k.e(f"v_mfma_f32_16x16x32_bf16 {vr(d,4)}, {vr(ones,4)}, {vr(F[(tg, f'k{ki}')],4)}, " + ("0" if tg == 0 else vr(d, 4)))
    k.e("s_nop 3")
    for vi in range(2):
        for ki in range(2):
            for j in range(4):
                k.e(f"ds_write_b32 v{va[(vi,ki)]}, v{Dk[(vi,ki)]+j} offset:{j*96}")
            if (vi, ki) == (1, 0):
                k.e("s_waitcnt lgkmcnt(6)")
    for ki in range(2):
        k.e(f"ds_write_b32 v{vz[ki]}, v{Dz[ki]}")
    k.e("s_waitcnt lgkmcnt(0)")
    for n in range(8):
        k.e(f"ds_read_b32 v{accs[n // 4] + n % 4}, v{vrd} offset:{n*256}")
    for n in range(8):
        k.e(f"s_waitcnt lgkmcnt({7 - n})")
        k.e(f"buffer_atomic_add_f32 v{accs[n // 4] + n % 4}, v{vat[n % 3] if n < 7 else vat[3]}, s[{srdK}:{srdK+3}], s{sA} offen offset:{(n // 3) * 768 if n < 7 else 0}")
    k.e(f"s_branch {Lp1done}")
    k.place(Lq)
    srdP = srd1
    set_srd(k, srdP, ptr['ws'], S_ * 1536, WS_PQ)
    sQ = k.s()
    k.e(f"""
    s_lshl_b32 s{sQ}, s{sG}, 1
    s_add_u32 s{sQ}, s{sQ}, s{sW1}
    s_lshl_b32 s{sQ}, s{sQ}, 4
    s_add_u32 s{sQ}, s{sQ}, s{sC}
    s_lshl_b32 s{sQ}, s{sQ}, 1
    s_add_u32 s{sQ}, s{sQ}, s{sW0}
    s_mul_i32 s{sQ}, s{sQ}, {4 * 768}
    """)
    qb = [stm[0], stm[1], stm[2], stm[3]]

    def q_rd(hh):
        k.e("s_waitcnt lgkmcnt(0)")
        for i in range(4):
            for hf in range(2):
                k.e(f"ds_read_b64_tr_b16 {vr(o.acc[i][hh] + 2*hf, 2)}, v{ad[hh][hf]} offset:{(i // 2) * 10240 + 8 * (i % 2)}")

    def q_st(hh, pend):
        k.e(f"s_waitcnt lgkmcnt({pend})")
        k.e("s_mov_b32 exec_hi, 0xffff")
        for i in range(4):
            k.e(f"s_add_u32 s3, s{sQ}, {i * 32 * 768}")
            k.e(f"buffer_store_dwordx4 {vr(o.acc[i][hh],4)}, v{vso}, s[{srdP}:{srdP+3}], s3 offen offset:{hh*768} sc1")
        k.e("s_mov_b64 exec, -1")
    xq = [0, 1, 2, 3, 4]
    for hh in range(4):
        q_rd(hh)
        if hh < 3:
            fin_tile(hh + 2, True, xo=xq)
            q_st(hh, 2)
        else:
            q_st(hh, 0)
        if hh == 1:
            k.e("s_barrier")
    k.stamp_c("p1_e2")
    k.e(f"s_branch {Lp1done}")
    k.release(mP1)
    k.place(Lsv2)
    k.e("s_barrier")
    k.e("s_barrier")
    k.e(f"s_branch {Lp1done}")
    k.lines.append('; @SEC cons2')
    k.place(Lp1done)
    k.stamp_c("p1_st")
    k.release(mC)
    sRB, sCT = dec2()
    PQ = [k.v(64, 4), k.v(64, 4)]
    big = k.v(80, 4)
    xr = [k.v(4), k.v(4), k.v(2)]
    cE = k.v(4)
    vO, vO2, vrow, vPq, vKa, vKb, vW, vW2, vXw, vXr, t0, t1, t2 = (k.v() for _ in range(13))
    sM = k.s(2)
    k.e(f"""
    s_lshl_b32 s{sA}, s{sRB}, 6
    s_lshl_b32 s{sB}, s{sW0}, 5
    s_add_u32 s{sA}, s{sA}, s{sB}
    s_lshl_b32 s{sB}, s{sW1}, 4
    s_add_u32 s{sA}, s{sA}, s{sB}
    v_and_b32 v{t2}, 15, v{vl}
    v_add_u32 v{vrow}, s{sA}, v{t2}
    v_mul_u32_u24 v{vO}, {2*D_}, v{vrow}
    s_mul_i32 s{sA}, s{sCT}, 160
    v_add_u32 v{vO}, s{sA}, v{vO}
    v_lshrrev_b32 v{t1}, 4, v{vl}
    v_lshl_add_u32 v{vO2}, v{t1}, 3, v{vO}
    v_bfe_u32 v{t0}, v{vl}, 4, 1
    v_lshl_add_u32 v{vO}, v{t0}, 5, v{vO}
    v_lshrrev_b32 v{t0}, 5, v{vl}
    v_lshl_add_u32 v{vO}, v{t0}, 4, v{vO}
    v_cmp_eq_u32 vcc, 3, v{t1}
    v_lshrrev_b32 v{t0}, 2, v{t2}
    v_add_u32 v{vKa}, v{t0}, v{t2}
    v_cndmask_b32 v{vPq}, v{t1}, 1, vcc
    v_lshlrev_b32 v{vPq}, 8, v{vPq}
    v_lshl_add_u32 v{vPq}, v{t2}, 4, v{vPq}
    v_mul_u32_u24 v{vKb}, 5, v{t0}
    v_add_u32 v{vKb}, 4, v{vKb}
    v_and_b32 v{t0}, 3, v{t2}
    v_cmp_eq_u32 s[{sM}:{sM+1}], 0, v{t0}
    v_mov_b32 v{t0}, 20
    s_nop 0
    v_cndmask_b32 v{vKb}, v{t0}, v{vKb}, s[{sM}:{sM+1}]
    v_mul_u32_u24 v{vKa}, 48, v{vKa}
    v_mul_u32_u24 v{vKb}, 48, v{vKb}
    v_lshl_add_u32 v{vKa}, v{t1}, 4, v{vKa}
    v_lshl_add_u32 v{vKb}, v{t1}, 4, v{vKb}
    v_mov_b32 v{t0}, 1008
    v_cndmask_b32 v{vKa}, v{vKa}, v{t0}, vcc
    v_cndmask_b32 v{vKb}, v{vKb}, v{t0}, vcc
    s_lshl_b32 s{sA}, s{sW1}, 14
    s_add_u32 s{sA}, s{sA}, {L_KV}
    v_add_u32 v{vKa}, s{sA}, v{vKa}
    v_add_u32 v{vKb}, s{sA}, v{vKb}
    v_bfe_u32 v{t0}, v{vl}, 2, 3
    v_lshrrev_b32 v{t1}, 5, v{vl}
    v_mul_u32_u24 v{t1}, 2560, v{t1}
    v_mul_u32_u24 v{t0}, 160, v{t0}
    v_add_u32 v{vW}, v{t1}, v{t0}
    v_and_b32 v{t0}, 3, v{vl}
    v_lshl_add_u32 v{vW}, v{t0}, 3, v{vW}
    s_mul_i32 s{sA}, s{sW1}, 51200
    s_add_u32 s{sA}, s{sA}, {L_W2}
    v_add_u32 v{vW}, s{sA}, v{vW}
    s_mul_i32 s{sA}, s{sWave}, 5120
    s_add_u32 s{sA}, s{sA}, {L_X2}
    v_lshlrev_b32 v{t0}, 4, v{vl}
    v_add_u32 v{vXw}, s{sA}, v{t0}
    s_xor_b32 s{sA}, s{sWave}, 2
    s_mul_i32 s{sA}, s{sA}, 5120
    s_add_u32 s{sA}, s{sA}, {L_X2}
    v_add_u32 v{vXr}, s{sA}, v{t0}
    v_lshlrev_b32 v{vW2}, 4, v0
    v_lshlrev_b32 v{t2}, 3, v0
    s_lshl_b32 s{sA}, s{sJ}, 11
    v_add_u32 v{t2}, s{sA}, v{t2}
    v_and_b32 v{t2}, 0x7fff, v{t2}
    v_mov_b32 v{cE}, 0
    v_mov_b32 v{cE+1}, s{sEps}
    v_mov_b64 {vr(cE+2,2)}, 0
    """)
    srdX, srdP = srd2, srd1
    set_srd(k, srdX, ptr['x'], S_ * D_ * 2)
    set_srd(k, srdP, ptr['ws'], S_ * 1536, WS_PQ)
    k.e(f"""
    s_lshl_b32 s{sA}, s{sRB}, 2
    s_lshl_b32 s{sB}, s{sW0}, 1
    s_add_u32 s{sA}, s{sA}, s{sB}
    s_add_u32 s{sA}, s{sA}, s{sW1}
    s_xor_b32 s{sB}, s{sA}, 1
    s_lshl_b32 s{sA}, s{sA}, 1
    s_add_u32 s{sA}, s{sA}, s{sW1}
    s_mul_i32 s{sA}, s{sA}, {16 * 768}
    s_lshl_b32 s{sB}, s{sB}, 1
    s_add_u32 s{sB}, s{sB}, s{sW1}
    s_mul_i32 s{sB}, s{sB}, {16 * 768}
    s_waitcnt vmcnt(0)
    s_barrier
    """)
    k.stamp_c("p1_e3")
    k.e(f"buffer_load_dwordx4 {vr(xr[0],4)}, v{vO}, s[{srdX}:{srdX+3}], 0 offen")
    k.e(f"buffer_load_dwordx4 {vr(xr[1],4)}, v{vO}, s[{srdX}:{srdX+3}], 0 offen offset:64")
    k.e(f"buffer_load_dwordx2 {vr(xr[2],2)}, v{vO2}, s[{srdX}:{srdX+3}], 0 offen offset:128")
    sKo = k.s()
    pql = []
    for h in range(16):
        pre = []
        if h % 5 == 0 and h:
            pre = [f"s_add_u32 s{sA}, s{sA}, {5 * 768}", f"s_add_u32 s{sB}, s{sB}, {5 * 768}"]
        for i, sx in enumerate((sA, sB)):
            pql.append(pre + [f"buffer_load_dwordx4 {vr(PQ[i] + 4*h, 4)}, v{vPq}, s[{srdP}:{srdP+3}], s{sx} offen offset:{(h % 5) * 768} sc1"])
            pre = []
    k.e("s_barrier")
    k.stamp_c("p2_q")
    lead = OPT['pqq']
    for x in pql[:lead]:
        k.emit_list(x)
    k.e("s_barrier")
    k.stamp_c("p2_k")
    k.e(f"s_lshl_b32 s{sKo}, s{sJ}, 12")
    for i in range(16):
        k.e(f"s_and_b32 s{sKo}, s{sKo}, 0xffff")
        k.e(f"buffer_load_dwordx4 {vr(big + 4*i, 4)}, v{vW2}, s[{srdK}:{srdK+3}], s{sKo} offen sc1")
        k.e(f"s_add_u32 s{sKo}, s{sKo}, 4096")
    npq = 0
    for i in range(16):
        r = big + 4 * i
        k.e(f"s_waitcnt vmcnt({15 - i + npq})")
        k.e(f"v_cvt_pk_bf16_f32 v{r}, v{r}, v{r+1}")
        k.e(f"v_cvt_pk_bf16_f32 v{r+1}, v{r+2}, v{r+3}")
        k.e(f"ds_write_b64 v{t2}, {vr(r,2)}")
        k.e(f"v_add_u32 v{t2}, 2048, v{t2}")
        k.e(f"v_and_b32 v{t2}, 0x7fff, v{t2}")
        if i == 7:
            k.e("s_waitcnt lgkmcnt(4)")
        if i >= 8 and lead < 32:
            k.emit_list(pql[lead]); lead += 1; npq += 1
    k.e("s_waitcnt lgkmcnt(0)")
    k.e("s_barrier")
    k.stamp_c("p2_c")
    fka = [[big + 0, big + 4], [big + 8, big + 12]]
    fkb = [[big + 16, big + 20], [big + 24, big + 28]]
    Da = [[big + 32, big + 36], [big + 40, big + 44]]
    Db = [[big + 48, big + 52], [big + 56, big + 60]]

    def rd(p_):
        b = p_ % 2
        out = []
        for i in range(2):
            h = 2 * p_ + i
            out.append(f"ds_read_b128 {vr(fkb[b][i],4)}, v{vKb} offset:{h*1024}")
            out.append(f"ds_read_b128 {vr(fka[b][i],4)}, v{vKa} offset:{h*1024}")
        return out

    def mm(u):
        p_, ti = u // 2, u % 2
        b = p_ % 2
        out = []
        for i in range(2):
            h = 2 * p_ + i
            out.append(f"v_mfma_f32_16x16x32_bf16 {vr(Db[ti][i],4)}, {vr(fkb[b][i],4)}, {vr(PQ[ti] + 4*h,4)}, {vr(cE,4)}")
            out.append(f"v_mfma_f32_16x16x32_bf16 {vr(Da[ti][i],4)}, {vr(fka[b][i],4)}, {vr(PQ[ti] + 4*h,4)}, 0")
        return out

    def fin(u):
        p_, ti = u // 2, u % 2
        out = [f"v_rcp_f32 v{Db[ti][i]+1}, v{Db[ti][i]+1}" for i in range(2)]
        vals = []
        for i in range(2):
            a, d = Da[ti][i], Db[ti][i]
            if OPT['omode'] == 1:
                out += [f"v_mul_f32 v{a+j}, v{a+j}, v{d+1}" for j in range(4)]
            else:
                out.append(f"v_pk_mul_f32 {vr(a,2)}, {vr(a,2)}, {vr(d,2)} op_sel:[0,1]")
                out.append(f"v_pk_mul_f32 {vr(a+2,2)}, {vr(a+2,2)}, {vr(d,2)} op_sel:[0,1]")
            out.append(f"v_mul_f32 v{d}, v{d}, v{d+1}")
            vals += [a, a + 1, a + 2, a + 3, d]
        out += [f"v_cvt_pk_bf16_f32 v{PQ[ti] + 5*p_ + d}, v{vals[2*d]}, v{vals[2*d+1]}" for d in range(5)]
        return out
    fw = [[big + 4 * i for i in range(5)], [big + 20 + 4 * i for i in range(5)]]

    def wrd(s):
        return [f"ds_read_b64_tr_b16 {vr(fw[s & 1][nt] + 2*h, 2)}, v{vW} offset:{s * 5120 + h * 1280 + nt * 32}" for nt in range(5) for h in range(2)]

    def vm_need(p_):
        assert lead >= 4 * p_ + 4
        k.e(f"s_waitcnt vmcnt({lead - (4 * p_ + 4)})")
    k.emit_list(rd(0) + rd(1))
    vm_need(0)
    k.e("s_waitcnt lgkmcnt(4)")
    k.emit_list(mm(0))
    k.e("s_nop 5")
    for u in range(16):
        f = fin(u)
        if u + 1 < 16:
            if (u + 1) % 2 == 0:
                vm_need((u + 1) // 2)
                k.e(f"s_waitcnt lgkmcnt({4 if (u + 1) // 2 + 1 < 8 else 0})")
            m_ = mm(u + 1)
            if OPT['omode'] == 2:
                k.emit_list(m_)
                k.emit_list(f)
            else:
                q_ = len(f) // 4
                for i in range(4):
                    k.e(m_[i])
                    k.emit_list(f[q_ * i: q_ * i + q_] if i < 3 else f[3 * q_:])
            if (u + 1) % 2 == 1 and (u + 1) // 2 + 2 < 8:
                k.emit_list(rd((u + 1) // 2 + 2))
            for _ in range(OPT['pqper']):
                if lead < 32:
                    k.emit_list(pql[lead]); lead += 1
                    if lead == 32:
                        k.e("s_barrier")
        else:
            k.emit_list(wrd(0))
            k.emit_list(f)
    k.stamp_c("p2_o")
    acc = [[big + 40 + 20 * ti + 4 * i for i in range(5)] for ti in range(2)]
    for s in range(10):
        r = wrd(s + 1) if s + 1 < 10 else []
        issued = 0
        for nt in range(5):
            k.e(f"s_waitcnt lgkmcnt({8 - 2*nt + issued})")
            for ti in range(2):
                k.e(f"v_mfma_f32_16x16x32_bf16 {vr(acc[ti][nt],4)}, {vr(fw[s & 1][nt],4)}, {vr(PQ[ti] + 4*s,4)}, " + ("0" if s == 0 else vr(acc[ti][nt], 4)))
                if r:
                    k.e(r[2 * nt + ti]); issued += 1
    srdH, srdS = srd1, srd2
    set_srd(k, srdH, ptr['ws'], S_ * D_ * 2, WS_H)
    set_srd(k, srdS, ptr['ws'], S_ * 64, WS_ST2)
    k.stamp_c("p2_g")
    for nt in range(5):
        k.e(f"ds_write_b128 v{vXw}, {vr(acc[1][nt],4)} offset:{nt*1024}")
    vs_, vq_, u = big + 20, big + 22, big + 24
    k.e(f"v_mov_b64 {vr(vs_,2)}, 0")
    k.e(f"v_mov_b64 {vr(vq_,2)}, 0")
    k.e("s_waitcnt lgkmcnt(0)")
    k.e("s_barrier")
    for nt in range(5):
        k.e(f"ds_read_b128 {vr(fw[0][nt],4)}, v{vXr} offset:{nt*1024}")
    pk = [big + 28, big + 32, big + 36]
    for nt in range(5):
        a = acc[0][nt]
        k.e(f"s_waitcnt lgkmcnt({4 - nt})")
        k.e(f"v_pk_add_f32 {vr(a,2)}, {vr(a,2)}, {vr(fw[0][nt],2)}")
        k.e(f"v_pk_add_f32 {vr(a+2,2)}, {vr(a+2,2)}, {vr(fw[0][nt]+2,2)}")
        d = pk[nt // 2] + 2 * (nt & 1)
        k.e(f"v_cvt_pk_bf16_f32 v{d}, v{a}, v{a+1}")
        k.e(f"v_cvt_pk_bf16_f32 v{d+1}, v{a+2}, v{a+3}")
    for pr in range(2):
        k.e(f"v_permlane16_swap_b32 v{pk[pr]}, v{pk[pr]+2}")
        k.e(f"v_permlane16_swap_b32 v{pk[pr]+1}, v{pk[pr]+3}")
    for pr in range(3):
        for d in range(4 if pr < 2 else 2):
            r, x = pk[pr] + d, xr[pr] + d
            k.e(f"""
            v_lshlrev_b32 v{u}, 16, v{r}
            v_and_b32 v{u+1}, 0xffff0000, v{r}
            v_lshlrev_b32 v{u+2}, 16, v{x}
            v_and_b32 v{u+3}, 0xffff0000, v{x}
            v_pk_add_f32 {vr(u,2)}, {vr(u,2)}, {vr(u+2,2)}
            v_cvt_pk_bf16_f32 v{r}, v{u}, v{u+1}
            """)
        if pr < 2:
            k.e(f"buffer_store_dwordx4 {vr(pk[pr],4)}, v{vO}, s[{srdH}:{srdH+3}], 0 offen offset:{pr*64} sc1")
        else:
            k.e(f"buffer_store_dwordx2 {vr(pk[pr],2)}, v{vO2}, s[{srdH}:{srdH+3}], 0 offen offset:128 sc1")
    for pr in range(3):
        for d in range(4 if pr < 2 else 2):
            r = pk[pr] + d
            k.e(f"""
            v_lshlrev_b32 v{u}, 16, v{r}
            v_and_b32 v{u+1}, 0xffff0000, v{r}
            v_pk_add_f32 {vr(vs_,2)}, {vr(vs_,2)}, {vr(u,2)}
            v_pk_fma_f32 {vr(vq_,2)}, {vr(u,2)}, {vr(u,2)}, {vr(vq_,2)}
            """)
    k.e(f"v_add_f32 v{vs_}, v{vs_}, v{vs_+1}")
    k.e(f"v_add_f32 v{vs_+1}, v{vq_}, v{vq_+1}")
    allreduce4_multi(k, [vs_, vs_ + 1], [t0, t1])
    k.e(f"""
    v_lshlrev_b32 v{vrow}, 3, v{vrow}
    s_lshl_b32 s{sA}, s{sCT}, 14
    s_mov_b64 exec, 0xffff
    buffer_store_dwordx2 {vr(vs_,2)}, v{vrow}, s[{srdS}:{srdS+3}], s{sA} offen sc1
    s_mov_b64 exec, -1
    """)
    k.stamp_c("p2_st")
    k.release(mC)
    Lp4c = k.label("p4c")
    sRB, sCT = dec3()
    c = c3
    vO, vSt, vCs, vA0, vA1, t0, t1, t2 = (k.v() for _ in range(8))
    vW = [k.v() for _ in range(4)]
    st = [k.v(2) for _ in range(2)]
    acc = [[k.v(4) for _ in range(4)] for _ in range(2)]
    fw = [[k.v(4) for _ in range(4)] for _ in range(2)]
    AR = [[k.v(4) for _ in range(2)] for _ in range(20)]
    k.e("s_waitcnt vmcnt(0)")
    k.e("s_barrier")
    k.stamp_c("p2_e")
    k.e(f"s_cmp_ge_u32 s{sJ}, 28")
    k.e(f"s_cbranch_scc1 {Lp4c}")
    srdO = srd1
    set_srd(k, srdO, ptr['ws'], S_ * F_ * 2, WS_HH)
    k.e(f"""
    v_and_b32 v{t0}, 15, v{vl}
    v_lshrrev_b32 v{t1}, 4, v{vl}
    v_lshlrev_b32 v{vSt}, 15, v{t1}
    v_lshl_add_u32 v{vSt}, v{t0}, 3, v{vSt}
    s_lshl_b32 s{sA}, s{sRB}, 10
    s_lshl_b32 s{sB}, s{sWave}, 8
    s_add_u32 s{sA}, s{sA}, s{sB}
    v_add_u32 v{vSt}, s{sA}, v{vSt}
    v_lshlrev_b32 v{vCs}, 4, v{t1}
    v_add_u32 v{vCs}, {P3_SCR + 1024}, v{vCs}
    v_and_b32 v{t2}, 6, v{t0}
    v_xor_b32 v{t2}, v{t2}, v{t1}
    v_lshlrev_b32 v{t2}, 4, v{t2}
    v_lshl_add_u32 v{vA0}, v{t0}, 7, v{t2}
    s_lshl_b32 s{sA}, s{sWave}, 12
    s_add_u32 s{sA}, s{sA}, {c.baseA}
    v_add_u32 v{vA0}, s{sA}, v{vA0}
    v_xor_b32 v{vA1}, 64, v{vA0}
    v_mul_u32_u24 v{vO}, {2*F_}, v{t0}
    v_bfe_u32 v{t0}, v{vl}, 4, 1
    v_lshl_add_u32 v{vO}, v{t0}, 5, v{vO}
    v_lshrrev_b32 v{t0}, 5, v{vl}
    v_lshl_add_u32 v{vO}, v{t0}, 4, v{vO}
    s_lshl_b32 s{sA}, s{sRB}, 7
    s_lshl_b32 s{sB}, s{sWave}, 5
    s_add_u32 s{sA}, s{sA}, s{sB}
    s_mul_i32 s{sA}, s{sA}, {2*F_}
    s_lshl_b32 s{sB}, s{sCT}, 8
    s_add_u32 s{sA}, s{sA}, s{sB}
    v_add_u32 v{vO}, s{sA}, v{vO}
    v_bfe_u32 v{t1}, v{vl}, 2, 3
    v_mul_u32_u24 v{t0}, {c.r16b}, v{t0}
    v_lshl_add_u32 v{t0}, v{t1}, 7, v{t0}
    v_and_b32 v{t2}, 3, v{vl}
    v_lshl_add_u32 v{t0}, v{t2}, 3, v{t0}
    v_lshrrev_b32 v{t1}, 1, v{t1}
    s_mov_b32 s{sB}, {16 * 2 * F_}
    """)
    for j in range(4):
        k.e(f"v_xor_b32 v{t2}, {j}, v{t1}")
        k.e(f"v_lshl_add_u32 v{vW[j]}, v{t2}, 5, v{t0}")
    wbase = [0]

    def rds(n):
        ps, s_, t = n // 20, (n % 20) // 2, n & 1
        out = []
        want = 40960 if s_ >= 5 else 0
        if want != wbase[0]:
            d = want - wbase[0]
            out += [f"v_add_u32 v{x}, {d & 0xffffffff}, v{x}" for x in vW]
            wbase[0] = want
        npre = len(out)
        if ps == 0:
            out += [f"ds_read_b128 {vr(AR[n][mt],4)}, v{vA1 if t else vA0} offset:{(s_ % 4) * 16384 + mt * 2048}" for mt in range(2)]
        for nt in range(4):
            for h in range(2):
                out.append(f"ds_read_b64_tr_b16 {vr(fw[n & 1][nt] + 2*h, 2)}, v{vW[nt]} offset:{s_ * 8192 - want + t * 4096 + h * 1024}")
        return out[:npre], out[npre:]

    def blk(n, nxt):
        na = 2 if n < 20 else 0
        nprev = na + 8
        pre, rd = rds(nxt) if nxt is not None else ([], [])
        k.emit_list(pre)
        issued = 0
        j = 0
        for nt in range(4):
            k.e(f"s_waitcnt lgkmcnt({nprev - (na + 2*nt + 2) + issued})")
            for mt in range(2):
                a = acc[mt][nt]
                k.e(f"v_mfma_f32_16x16x32_bf16 {vr(a,4)}, {vr(fw[n & 1][nt],4)}, {vr(AR[n % 20][mt],4)}, " + ("0" if n % 20 == 0 else vr(a, 4)))
                j += 1
                want = min(len(rd), -(-j * len(rd) * 100 // (8 * OPT['rf3'])))
                while issued < want:
                    k.e(rd[issued]); issued += 1

    def epi(ps):
        cs3 = fw[0]
        k.e("s_nop 4")
        for nt in range(4):
            k.e(f"ds_read_b128 {vr(cs3[nt],4)}, v{vCs} offset:{ps*256 + nt*64}")
        k.e("s_waitcnt lgkmcnt(0)")
        Lns = k.label("p3ns")
        if ps == 1:
            k.e(f"s_cmp_eq_u32 s{sCT}, 13")
            k.e(f"s_cbranch_scc1 {Lns}")
        for mt in range(2):
            for pr in range(2):
                a0, a1 = acc[mt][2*pr], acc[mt][2*pr+1]
                for a, nt in ((a0, 2*pr), (a1, 2*pr+1)):
                    for j in range(2):
                        k.e(f"v_pk_fma_f32 {vr(a+2*j,2)}, {vr(cs3[nt]+2*j,2)}, {vr(st[mt],2)}, {vr(a+2*j,2)} op_sel_hi:[1,0,1] neg_lo:[0,1,0] neg_hi:[0,1,0]")
                    for j in range(2):
                        k.e(f"v_pk_mul_f32 {vr(a+2*j,2)}, {vr(a+2*j,2)}, {vr(st[mt],2)} op_sel:[0,1]")
                pk = fw[1][2 * mt + pr]
                k.e(f"""
                v_cvt_pk_bf16_f32 v{pk}, v{a0}, v{a0+1}
                v_cvt_pk_bf16_f32 v{pk+2}, v{a1}, v{a1+1}
                v_cvt_pk_bf16_f32 v{pk+1}, v{a0+2}, v{a0+3}
                v_cvt_pk_bf16_f32 v{pk+3}, v{a1+2}, v{a1+3}
                v_permlane16_swap_b32 v{pk}, v{pk+2}
                s_nop 0
                v_permlane16_swap_b32 v{pk+1}, v{pk+3}
                v_pk_max_i16 v{pk}, v{pk}, 0
                v_pk_max_i16 v{pk+2}, v{pk+2}, 0
                v_pk_max_i16 v{pk+1}, v{pk+1}, 0
                v_pk_max_i16 v{pk+3}, v{pk+3}, 0
                buffer_store_dwordx4 {vr(pk,4)}, v{vO}, s[{srdO}:{srdO+3}], {'s%d' % sB if mt else '0'} offen offset:{ps*128 + pr*64} sc1
                """)
        k.place(Lns)
    sK16, sI6, sE5 = k.s(), k.s(), k.s()
    k.e(f"s_movk_i32 s{sK16}, 16384")
    k.e(f"s_mov_b32 s{sI6}, {f32bits(1.0/640)}")
    k.e(f"s_mov_b32 s{sE5}, {f32bits(1e-5)}")
    k.e("s_barrier")
    tq = [AR[10][0], AR[10][1]]
    for mt in range(2):
        k.e(f"buffer_load_dwordx2 {vr(st[mt],2)}, v{vSt}, s[{srd2}:{srd2+3}], 0 offen offset:{mt*128} sc1")
        k.e(f"buffer_load_dwordx2 {vr(tq[mt],2)}, v{vSt}, s[{srd2}:{srd2+3}], s{sK16} offen offset:{mt*128} sc1")
    k.e("s_waitcnt vmcnt(0)")
    for mt in range(2):
        k.e(f"v_pk_add_f32 {vr(st[mt],2)}, {vr(st[mt],2)}, {vr(tq[mt],2)}")
    vm_, vs__ = [st[0], st[1]], [st[0] + 1, st[1] + 1]
    allreduce4_multi(k, vm_ + vs__, [tq[0], tq[0] + 1, tq[0] + 2, tq[0] + 3])
    for mt in range(2):
        k.e(f"""
        v_mul_f32 v{vm_[mt]}, s{sI6}, v{vm_[mt]}
        v_mul_f32 v{vs__[mt]}, s{sI6}, v{vs__[mt]}
        v_fma_f32 v{vs__[mt]}, -v{vm_[mt]}, v{vm_[mt]}, v{vs__[mt]}
        v_max_f32 v{vs__[mt]}, 0, v{vs__[mt]}
        """)
    ln_finalize_multi(k, vm_, vs__, sE5)
    k.stamp_c("p3_pre")
    k.e("s_barrier")
    k.stamp_c("p3_b0")
    w3 = [AR[18][0], AR[18][1], AR[19][0], AR[19][1]]
    rot0 = [fw[0], fw[1], w3]
    buf0 = {n: rot0[n % 3] for n in range(15)}
    for n in range(15, 20):
        buf0[n] = fw[(n - 15) % 2]

    def rdW(n):
        s_, t = n // 2, n & 1
        pre = []
        want = 40960 if s_ >= 5 else 0
        if want != wbase[0]:
            pre = [(f"v_add_u32 v{x}, {(want - wbase[0]) & 0xffffffff}, v{x}", None) for x in vW]
            wbase[0] = want
        return pre + [(f"ds_read_b64_tr_b16 {vr(buf0[n][nt] + 2*h, 2)}, v{vW[nt]} offset:{s_ * 8192 - want + t * 4096 + h * 1024}", ('w', n, nt))
                      for nt in range(4) for h in range(2)]

    def rdA(s_):
        return [(f"ds_read_b128 {vr(AR[2*s_+t][mt],4)}, v{vA1 if t else vA0} offset:{(s_ % 4) * 16384 + mt * 2048}", ('a', 2*s_+t, mt))
                for t in range(2) for mt in range(2)]
    pend0 = []

    def issue(x):
        k.e(x[0])
        if x[1] is not None:
            pend0.append(x[1])

    def need(tags):
        idx = [i for i, x in enumerate(pend0) if x in tags]
        if idx:
            done = max(idx) + 1
            k.e(f"s_waitcnt lgkmcnt({min(15, len(pend0) - done)})")
            del pend0[:done]
    for x in rdA(0) + rdW(0) + rdW(1)[:3]:
        issue(x)
    carry = rdW(1)[3:]
    for n in range(20):
        rd = list(carry); carry = []
        if n % 2 == 0:
            s_ = n // 2
            need([('a', n + t, mt) for t in range(2) for mt in range(2)])
            k.e("s_barrier")
            if s_ + 1 < 10:
                rd = rdA(s_ + 1) + rd
        if n + 2 <= 16:
            rd += rdW(n + 2)
        elif n >= 16 and n + 1 < 20:
            rd += rdW(n + 1)
        issued = 0
        j = 0
        for nt in range(4):
            need([('w', n, nt)])
            for mt in range(2):
                a = acc[mt][nt]
                k.e(f"v_mfma_f32_16x16x32_bf16 {vr(a,4)}, {vr(buf0[n][nt],4)}, {vr(AR[n][mt],4)}, " + ("0" if n == 0 else vr(a, 4)))
                j += 1
                want = -(-j * len(rd) // (8 if n < 16 else 5))
                while issued < min(want, len(rd)):
                    issue(rd[issued]); issued += 1
    k.e("s_barrier")
    k.stamp_c("p3_loop")
    epi(0)
    k.e("s_barrier")
    k.stamp_c("p3_st")
    fw3 = [AR[0][0], AR[0][1], AR[1][0], AR[1][1]]
    buf = {20: fw[0], 21: fw[1], 22: fw[0], 23: fw[1]}
    rot = [fw3, fw[0], fw[1]]
    for n in range(24, 40):
        buf[n] = rot[(n - 24) % 3]

    def rds1(n):
        s_, t = (n % 20) // 2, n & 1
        pre = []
        want = 40960 if s_ >= 5 else 0
        if want != wbase[0]:
            pre = [f"v_add_u32 v{x}, {(want - wbase[0]) & 0xffffffff}, v{x}" for x in vW]
            wbase[0] = want
        return pre + [f"ds_read_b64_tr_b16 {vr(buf[n][nt] + 2*h, 2)}, v{vW[nt]} offset:{s_ * 8192 - want + t * 4096 + h * 1024}" for nt in range(4) for h in range(2)]
    sched = {20: [], 21: [22], 22: [23, 24]}
    for n in range(23, 40):
        sched[n] = [n + 2] if n + 2 < 40 else []
    k.emit_list(rds1(20) + rds1(21))
    pend = [20] * 8 + [21] * 8
    for n in range(20, 40):
        if n == 20 + 2 * OPT['m1at'] + 1:
            k.e("s_waitcnt vmcnt(0)")
            k.e("s_barrier")
        if n == 38:
            k.e("s_waitcnt lgkmcnt(0)")
            k.e("s_barrier")
        rd = [(x, m_) for m_ in sched[n] for x in rds1(m_)]
        assert all((m_ % 20) // 2 <= 4 for _, m_ in rd) or n >= 20 + 2 * OPT['m1at'] + 1
        issued = 0
        j = 0
        for nt in range(4):
            idx = [i for i, x in enumerate(pend) if x == n]
            if idx:
                done = idx[min(len(idx) - 1, 2 * nt + 1 - (8 - len(idx)))] + 1 if 2 * nt + 1 - (8 - len(idx)) >= 0 else 0
                if done:
                    k.e(f"s_waitcnt lgkmcnt({min(15, len(pend) - done)})")
                    pend = pend[done:]
            for mt in range(2):
                a = acc[mt][nt]
                k.e(f"v_mfma_f32_16x16x32_bf16 {vr(a,4)}, {vr(buf[n][nt],4)}, {vr(AR[n % 20][mt],4)}, " + ("0" if n == 20 else vr(a, 4)))
                j += 1
                want = -(-j * len(rd) // 8)
                while issued < want:
                    k.e(rd[issued][0])
                    if rd[issued][0].startswith("ds_"):
                        pend.append(rd[issued][1])
                    issued += 1
    epi(1)
    k.stamp_c("p3_e")
    k.place(Lp4c)
    k.release(mC)
    Lcend = k.label("cend")
    sRB, sCT = dec2()
    c = c4
    srdH, srdO = srd1, srd2
    set_srd(k, srdH, ptr['ws'], S_ * D_ * 2, WS_H)
    set_srd(k, srdO, ptr['out'], S_ * D_ * 2)
    vO, vO2, t0, t1 = (k.v() for _ in range(4))
    hr = [[k.v(4), k.v(2)] for _ in range(2)]
    k.e(f"""
    s_lshl_b32 s{sA}, s{sRB}, 6
    s_lshl_b32 s{sB}, s{sW1}, 5
    s_add_u32 s{sA}, s{sA}, s{sB}
    v_and_b32 v{t0}, 15, v{vl}
    v_add_u32 v{t0}, s{sA}, v{t0}
    v_mul_u32_u24 v{vO}, {2*D_}, v{t0}
    s_mul_i32 s{sA}, s{sCT}, 160
    s_lshl_b32 s{sB}, s{sW0}, 6
    s_add_u32 s{sA}, s{sA}, s{sB}
    v_add_u32 v{vO}, s{sA}, v{vO}
    v_lshrrev_b32 v{t1}, 4, v{vl}
    v_lshl_add_u32 v{vO2}, v{t1}, 3, v{vO}
    v_bfe_u32 v{t0}, v{vl}, 4, 1
    v_lshl_add_u32 v{vO}, v{t0}, 5, v{vO}
    v_lshrrev_b32 v{t0}, 5, v{vl}
    v_lshl_add_u32 v{vO}, v{t0}, 4, v{vO}
    s_movk_i32 s{sB}, {16 * 2 * D_}
    """)

    def h_loads():
        for mt in range(2):
            so = f"s{sB}" if mt else "0"
            k.e(f"buffer_load_dwordx4 {vr(hr[mt][0],4)}, v{vO}, s[{srdH}:{srdH+3}], {so} offen sc1")
            k.e(f"buffer_load_dwordx2 {vr(hr[mt][1],2)}, v{vO2}, s[{srdH}:{srdH+3}], {so} offen offset:64 sc1")
    o = consumer_setup(k, c, sW1, sW0, vl)
    h_loads()
    consumer_loop(k, o, None, tag="p4")
    pk = [[k.v(4), k.v(2)] for _ in range(2)]
    u = k.v(4)
    for mt in range(2):
        for nt in range(3):
            a = o.acc[mt][nt]
            d = pk[mt][nt // 2] + 2 * (nt & 1)
            k.e(f"v_cvt_pk_bf16_f32 v{d}, v{a}, v{a+1}")
            k.e(f"v_cvt_pk_bf16_f32 v{d+1}, v{a+2}, v{a+3}")
    k.e("s_waitcnt vmcnt(0)")
    for mt in range(2):
        k.e(f"v_permlane16_swap_b32 v{pk[mt][0]}, v{pk[mt][0]+2}")
        k.e(f"v_permlane16_swap_b32 v{pk[mt][0]+1}, v{pk[mt][0]+3}")
    fl = 'sc1' if OPT['outsc1'] else ''
    Lno = k.label("p4n")
    for pr in range(2):
        if pr == 1:
            k.e(f"s_cmp_eq_u32 s{sW0}, 0")
            k.e(f"s_cbranch_scc1 {Lno}")
        for mt in range(2):
            so = f"s{sB}" if mt else "0"
            for d in range(4 if pr == 0 else 2):
                r, x = pk[mt][pr] + d, hr[mt][pr] + d
                k.e(f"""
                v_lshlrev_b32 v{u}, 16, v{r}
                v_and_b32 v{u+1}, 0xffff0000, v{r}
                v_lshlrev_b32 v{u+2}, 16, v{x}
                v_and_b32 v{u+3}, 0xffff0000, v{x}
                v_pk_add_f32 {vr(u,2)}, {vr(u,2)}, {vr(u+2,2)}
                v_cvt_pk_bf16_f32 v{r}, v{u}, v{u+1}
                """)
            if pr == 0:
                k.e(f"buffer_store_dwordx4 {vr(pk[mt][0],4)}, v{vO}, s[{srdO}:{srdO+3}], {so} offen {fl}")
            else:
                k.e(f"buffer_store_dwordx2 {vr(pk[mt][1],2)}, v{vO2}, s[{srdO}:{srdO+3}], {so} offen offset:64 {fl}")
    k.place(Lno)
    k.stamp_c("p4_st")
    if OPT['diag']:
        ld_ = k.label("dg")
        names = ["p1_pre", "p1_b0", "p1_loop", "p1_e1", "p1_e2", "p1_e3", "p2_q", "p2_k", "p2_c", "p2_g", "p2_e", "p3_b0", "p3_loop", "p3_e", "p4_b0", "p4_loop"]
        set_srd(k, srd0, ptr['dbg'], 256)
        k.e(f"s_cmp_eq_u32 s2, {OPT['diag']}")
        k.e(f"s_cbranch_scc0 {ld_}")
        k.e(f"s_cmp_eq_u32 s{sWave}, 0")
        k.e(f"s_cbranch_scc0 {ld_}")
        k.e("s_mov_b64 exec, 1")
        k.e("v_mov_b32 v1, 0")
        for i, n in enumerate(names):
            k.e(f"s_sub_u32 s3, s{68 + k.stamps['c'][n]}, s68")
            k.e("v_mov_b32 v2, s3")
            k.e(f"buffer_store_dword v2, v1, s[{srd0}:{srd0+3}], 0 offen offset:{4*i}")
        k.e("s_mov_b64 exec, -1")
        k.place(ld_)
    k.place(Lcend)
    endwave()
    k.place(k.end)
    k.place(k.name + "_last")
    k.e("s_endpgm")
    secs, cur = {"head": []}, "head"
    for ln in k.lines:
        if ln.startswith("; @SEC "):
            cur = ln.split()[-1]; secs[cur] = []
        else:
            secs[cur].append(ln)
    order_ = list(OPT['secs'])
    if not OPT['hfirst']:
        order_ = ['head', 'head2', 'help', 'head3'] + order_[1:]
    k.lines = [ln for n in order_ for ln in secs[n]]
    return k


def write(k, path, header=""):
    out = header + f"; @launch grid=(256,1,1) block=(512,1,1) lds={LDS_TOTAL}\n"
    out += '.amdgcn_target "amdgcn-amd-amdhsa--gfx950"\n.text\n' + k.text() + '.section .rodata,"a"\n' + k.descriptor()
    open(path, "w").write(out)
    if k.prof3:
        json.dump(k.stamps, open(path + ".json", "w"))


def hdr():
    ref = open('sequential_preLN__linear_attn_block__dense_activation_relu__prompt.s.ref').read()
    return "".join(l + "\n" for l in ref.splitlines()[:10])


if __name__ == "__main__":
    write(gen(False), 'k7.s', hdr())
    write(gen(True), 'k7_prof.s', hdr())
    g3.DBG.update(nodma=True)
    write(gen(True), 'k7_nodma.s', hdr())
    g3.DBG.update(nodma=False, nomma=True)
    write(gen(True), 'k7_nomma.s', hdr())
```

```python
from asmlib import *
from g3 import *
import g3
import struct, json

S_, D_, F_ = 2048, 640, 1728
WS_PQ = 0x0
WS_H = 0x400000
WS_HH = 0x800000
WS_KV = 0x1000000
KV_BYTES = 65536
WS_FL = 0x1100000
FS = 4224
FL_BYTES = 128 * FS
FL_Q, FL_2, FL_3, FL_C, FL_G, FL_S, FL_R = 0, 16 * FS, 32 * FS, 48 * FS, 64 * FS, 96 * FS, 112 * FS
NREP = 16
WS_ST1 = 0x1020000
WS_CS1 = 0x1024000
WS_CS3 = 0x102C000
WS_W2P = 0x1200000
W2P_CT = 27 * 10240
WS_ST2 = 0x1040000
LOG2E = 1.4426950408889634
NAME = "sequential_preLN__linear_attn_block__dense_activation_relu__prompt_kernel"
OPT = dict(kvH=16, qH=11, p3H=16, p4H=24, touch1=True, touch1b=True, twarm=True, pretouch=True, e2pos=12, early3=False, psleep=8, w2a=6, w1at={'w2a': [0], 'c': [1], 'g': [2]}, tdist=1, hW=3, hX=10, jrot=8, tlbw=False, omode=2, pqper=3, w2b=0, p3H0=8, iw=17, iwser=False, rot3=True, rot4=False, otouch=False, hfirst=True, diag=False, wf4=5, p4H0=24, pf1=2, m1at=3, rf3=70, hb=11, svwo=True, inj=10, p4SA=8, p4SW=9, secs=('head', 'ltail', 'svc', 'cons', 'cons2'), p4early=False, dupst=False, dupfl='', accinit=True, svw2=0, svT1=1, kvH0=4, hW0=32, svw1=0, p4rot=True, selft=False, p4wl=4, pqlead=16, catom=True, pqtouch=False, rel=1, rf=65, rel4=2, rf4=90, lean=True, lprio=0, outsc1=False, w2early=True, pqq=10, codewarm=True)
LDS_TOTAL = 163840


def f32bits(x):
    return struct.unpack("<I", struct.pack("<f", x))[0]


def bf16_round_f32(k, v):
    k.e(f"v_cvt_pk_bf16_f32 v{v}, v{v}, v{v}")
    k.e(f"v_lshlrev_b32 v{v}, 16, v{v}")


def allreduce4_multi(k, xs, ts):
    for sw in ("v_permlane16_swap_b32", "v_permlane32_swap_b32"):
        for x, t in zip(xs, ts):
            k.e(f"v_mov_b32 v{t}, v{x}")
        k.e("s_nop 1" if len(xs) < 2 else "s_nop 0")
        for x, t in zip(xs, ts):
            k.e(f"{sw} v{x}, v{t}")
        k.e("s_nop 1" if len(xs) < 2 else "s_nop 0")
        for x, t in zip(xs, ts):
            k.e(f"v_add_f32 v{x}, v{x}, v{t}")


def ln_finalize_multi(k, vms, vvs, sEps):
    for vm in vms:
        bf16_round_f32(k, vm)
    for vv in vvs:
        bf16_round_f32(k, vv)
        k.e(f"v_add_f32 v{vv}, s{sEps}, v{vv}")
        bf16_round_f32(k, vv)
    for vv in vvs:
        k.e(f"v_sqrt_f32 v{vv}, v{vv}")
    k.e("s_nop 0")
    for vv in vvs:
        bf16_round_f32(k, vv)
    for vv in vvs:
        k.e(f"v_rcp_f32 v{vv}, v{vv}")
    k.e("s_nop 0")


def dpp_rowsum(k, x):
    for r in (8, 4, 2, 1):
        k.e("s_nop 1")
        k.e(f"v_add_f32_dpp v{x}, v{x}, v{x} row_ror:{r} row_mask:0xf bank_mask:0xf")


def set_srd(k, d, p, nbytes, off=0, bias=False):
    if bias and OPT['lean']:
        off -= BIAS
        nbytes += BIAS
    if off < 0:
        k.e(f"s_sub_u32 s{d}, s{p}, {-off}")
        k.e(f"s_subb_u32 s{d+1}, s{p+1}, 0")
    elif off:
        k.e(f"s_add_u32 s{d}, s{p}, {off}")
        k.e(f"s_addc_u32 s{d+1}, s{p+1}, 0")
    else:
        k.e(f"s_mov_b64 s[{d}:{d+1}], s[{p}:{p+1}]")
    k.e(f"s_mov_b32 s{d+2}, {nbytes}")
    k.e(f"s_mov_b32 s{d+3}, 0x20000")


class Touch:
    def __init__(self, k, vl, ncl, ld, seg5=False, share=None):
        self.k, self.ld = k, ld
        self.R = 64 // ncl
        self.vo = k.v()
        self.sO = share.sO if share else k.s()
        self.sB = share.sB if share else k.s(2, 2)
        t0, t1 = k.v(), k.v()
        magic = (1024 + ncl - 1) // ncl
        for l in range(64):
            assert (l * magic) >> 10 == l // ncl
        k.e(f"""
        v_min_u32 v{t1}, {self.R * ncl - 1}, v{vl}
        v_mul_u32_u24 v{t0}, {magic}, v{t1}
        v_lshrrev_b32 v{t0}, 10, v{t0}
        v_mul_u32_u24 v{self.vo}, {ncl}, v{t0}
        v_sub_u32 v{t1}, v{t1}, v{self.vo}
        v_mul_u32_u24 v{t0}, {ld}, v{t0}
        v_lshl_add_u32 v{self.vo}, v{t1}, 7, v{t0}
        """)
        if seg5:
            k.e(f"""
            v_mul_u32_u24 v{t0}, 205, v{t1}
            v_lshrrev_b32 v{t0}, 10, v{t0}
            v_mul_u32_u24 v{t0}, 640, v{t0}
            v_add_u32 v{self.vo}, v{self.vo}, v{t0}
            """)

    def unit(self, p, sOff, sU, add, nrows, skip=False):
        k = self.k
        le = k.label("tsk")
        k.e(f"""
        s_add_u32 s{self.sO}, s{sU}, {add}
        s_mul_i32 s{self.sO}, s{self.sO}, {self.R}
        """)
        if skip:
            k.e(f"s_cmp_ge_u32 s{self.sO}, {nrows}")
            k.e(f"s_cbranch_scc1 {le}")
        k.e(f"""
        s_min_u32 s{self.sO}, s{self.sO}, {nrows - self.R}
        s_mul_i32 s{self.sO}, s{self.sO}, {self.ld}
        s_add_u32 s{self.sO}, s{self.sO}, s{sOff}
        s_add_u32 s{self.sB}, s{p}, s{self.sO}
        s_addc_u32 s{self.sB+1}, s{p+1}, 0
        global_load_dword v{k.vdummy}, v{self.vo}, s[{self.sB}:{self.sB+1}]
        """)
        k.place(le)


def phi_pair(k, a, vrs, vr2, sEps2, t):
    k.e(f"v_pk_mul_f32 {vr(t,2)}, {vr(a,2)}, {vr(vr2,2)}")
    k.e(f"v_pk_fma_f32 {vr(a,2)}, {vr(a,2)}, {vr(vrs,2)}, 1.0 op_sel_hi:[1,1,0]")
    k.e(f"v_exp_f32_e64 v{t}, v{t} clamp")
    k.e(f"v_exp_f32_e64 v{t+1}, v{t+1} clamp")
    k.e(f"v_max_f32 v{a}, v{a}, v{t}")
    k.e(f"v_max_f32 v{a+1}, v{a+1}, v{t+1}")
    k.e(f"v_pk_add_f32 {vr(a,2)}, {vr(a,2)}, s[{sEps2}:{sEps2+1}]")


def gen(prof=False):
    k = Kern(NAME)
    k.prof3 = prof
    k.slimit, k.vlimit = 68, 256
    ckv = Cfg(BM=128, NS=10, lda=2 * D_, ldw=6 * D_, wl='odd', SA=4, SW=4, baseA=0, baseW=65536, WM=2, WN=2,
              transposed=False, colsum=False, H=OPT['kvH'], nseg=2, segd=None, mixed=True, rel=OPT['rel'], read_frac=OPT['rf'], lean=True, H0=OPT['kvH0'])
    P1_ST = ckv.endW
    P1_AT = P1_ST + 2048
    c3 = Cfg(BM=128, NS=10, lda=2 * D_, ldw=2 * F_, wl='x8', SA=4, SW=10, baseA=81920, baseW=0, WM=4, WN=1,
             transposed=True, colsum=False, H=OPT['p3H'], rel=1, lean=True, H0=OPT['p3H0'],
             dyn=(lambda j: (j, 10, 1, 0)) if OPT['rot3'] else None)
    P3_SCR = c3.endA
    HB = OPT['hb']
    c4 = Cfg(BM=64, NS=27, lda=2 * F_, ldw=160, wl='lin', SA=10, SW=8, baseA=0, baseW=81920, WM=2, WN=2,
             transposed=True, colsum=False, H=OPT['p4H'], rel=2, read_frac=OPT['rf4'], lean=True, wlead=OPT['p4wl'],
             smap=lambda j: 2 * j if j < 14 else 2 * (j - 14) + 1, afterA=lambda j: HB if j >= 14 else -99,
             afterW=lambda m: 0 if m >= 6 else -99, vmwait=True, wfirst=OPT['wf4'], H0=OPT['p4H0'],
             dyn=(lambda j: (j, 14, 2, 0) if j < 14 else (j - 14, 13, 2, 1)) if OPT['rot4'] else None)
    assert c4.endW <= LDS_TOTAL and c4.endA <= c4.baseW and P3_SCR + 2048 <= LDS_TOTAL and P1_ST + 1024 <= LDS_TOTAL
    L_W2, L_KV, L_X2 = 40960, 0, 143360

    F0V = '0x00010001' if OPT['diag'] else 1
    k.end = k.label("end")
    if prof:
        for i in range(28):
            k.e(f"s_mov_b32 s{68+i}, 0")
        k.stamp_c("start")
        k.e("s_memrealtime s[96:97]")
        k.e("s_waitcnt lgkmcnt(0)")
        k.e("s_mov_b32 s94, s96")
    k.e("s_cmp_ge_u32 s2, 256")
    k.e(f"s_cbranch_scc1 {k.end}")
    p = k.s(16, 4)
    pws = k.s(2, 2)
    k.e(f"s_load_dwordx16 s[{p}:{p+15}], s[0:1], 0")
    k.e(f"s_load_dwordx2 s[{pws}:{pws+1}], s[0:1], 64")
    ptr = dict(x=p, wqkv=p + 2, wo=p + 4, w1=p + 8, w2=p + 10, out=p + 12, dbg=p + 14, ws=pws)
    sWave, sJ, sRQ, sCH, sJ1 = k.s(), k.s(), k.s(), k.s(), k.s()
    vl = k.v()
    k.vdummy = k.v()
    k.e(f"""
    v_lshrrev_b32 v{vl}, 6, v0
    s_lshr_b32 s{sJ}, s2, 3
    v_readfirstlane_b32 s{sWave}, v{vl}
    v_and_b32 v{vl}, 63, v0
    s_bfe_u32 s{sRQ}, s2, 0x20001
    s_and_b32 s{sCH}, s2, 1
    s_sub_u32 s{sJ1}, s{sJ}, {OPT['jrot']}
    s_and_b32 s{sJ1}, s{sJ1}, 31
    """)

    def endwave():
        k.dump3(pws, sWave)
        k.e("s_endpgm")

    def dec1():
        sG, sC, sTy = k.s(), k.s(), k.s()
        k.e(f"""
        s_and_b32 s{sG}, s{sJ1}, 3
        s_lshl_b32 s3, s{sRQ}, 2
        s_add_u32 s{sG}, s{sG}, s3
        s_lshr_b32 s{sTy}, s{sJ1}, 3
        s_sub_u32 s{sTy}, s{sTy}, 1
        s_max_i32 s{sTy}, s{sTy}, 0
        s_lshr_b32 s{sC}, s{sJ1}, 2
        s_lshl_b32 s3, s{sCH}, 2
        s_add_u32 s{sC}, s{sC}, s3
        s_lshl_b32 s3, s{sCH}, 1
        s_add_u32 s3, s3, 4
        s_cmp_eq_u32 s{sTy}, 1
        s_cselect_b32 s3, s3, 0
        s_sub_u32 s{sC}, s{sC}, s3
        s_and_b32 s3, s{sJ1}, 7
        s_cmp_eq_u32 s{sTy}, 2
        s_cselect_b32 s{sC}, s3, s{sC}
        """)
        return sG, sC, sTy

    def dec2():
        sRB, sCT = k.s(), k.s()
        k.e(f"""
        s_and_b32 s{sRB}, s{sJ}, 7
        s_lshl_b32 s3, s{sRQ}, 3
        s_add_u32 s{sRB}, s{sRB}, s3
        s_lshr_b32 s{sCT}, s{sJ}, 3
        s_lshl_b32 s3, s{sCH}, 2
        s_add_u32 s{sCT}, s{sCT}, s3
        """)
        return sRB, sCT

    def dec3():
        sRB, sCT = k.s(), k.s()
        k.e(f"""
        s_and_b32 s{sRB}, s{sJ}, 3
        s_lshl_b32 s3, s{sRQ}, 2
        s_add_u32 s{sRB}, s{sRB}, s3
        s_lshr_b32 s{sCT}, s{sJ}, 2
        s_mul_i32 s3, s{sCH}, 7
        s_add_u32 s{sCT}, s{sCT}, s3
        """)
        return sRB, sCT

    def dec4():
        sRB, sCT, sId = k.s(), k.s(), k.s()
        k.e(f"""
        s_mul_i32 s{sRB}, s{sJ}, 205
        s_lshr_b32 s{sRB}, s{sRB}, 10
        s_mul_i32 s3, s{sRB}, 5
        s_sub_u32 s{sCT}, s{sJ}, s3
        s_mul_i32 s3, s{sCH}, 5
        s_add_u32 s{sCT}, s{sCT}, s3
        s_cmp_ge_u32 s{sRB}, 6
        s_cselect_b32 s{sId}, 1, 0
        s_mul_i32 s{sRB}, s{sRB}, 96
        s_lshl_b32 s3, s{sRQ}, 9
        s_add_u32 s{sRB}, s{sRB}, s3
        """)
        return sRB, sCT, sId

    Lc, Lh, Lsvc, Lrole = k.label("cons"), k.label("help"), k.label("svc"), k.label("role")
    sSvc = k.s()
    k.e(f"s_mov_b32 s{sSvc}, 0")
    k.e(f"s_cmp_ge_u32 s{sJ1}, 24")
    k.e(f"s_cbranch_scc1 {Lsvc}")
    if OPT['hfirst']:
        k.e(f"s_cmp_lt_u32 s{sWave}, 6")
        k.e(f"s_cbranch_scc1 {Lrole}")
    else:
        k.e(f"s_cmp_ge_u32 s{sWave}, 6")
        k.e(f"s_cbranch_scc1 {Lh}")
        k.lines.append('; @SEC help')
        k.place(Lh)
    mH = k.mark()
    sRo, sA = k.s(), k.s()
    Lh1 = k.label("h1")
    k.e(f"s_cmp_eq_u32 s{sWave}, 7")
    k.e(f"s_cbranch_scc1 {Lh1}")
    k.e(f"s_mul_i32 s{sRo}, s{sCH}, 640")
    TW = Touch(k, vl, 15, 6 * D_, seg5=True)
    k.e("s_waitcnt lgkmcnt(0)")
    for it in range(OPT['hW']):
        TW.unit(ptr['wqkv'], sRo, sJ1, 24 * it, 640)
    k.e("s_endpgm")
    k.place(Lh1)
    if OPT['codewarm']:
        va_ = k.v(2)
        sPC = k.s(2, 2)
        k.e(f"""
        s_getpc_b64 s[{sPC}:{sPC+1}]
        {k.name}_pc:
        s_sub_u32 s{sPC}, s{sPC}, {k.name}_pc-{k.name}
        s_subb_u32 s{sPC+1}, s{sPC+1}, 0
        s_lshl_b32 s{sA}, s{sJ1}, 11
        v_lshlrev_b32 v{va_}, 7, v{vl}
        v_add_u32 v{va_}, s{sA}, v{va_}
        v_min_u32 v{va_}, {k.name}_last-{k.name}, v{va_}
        v_mov_b32 v{va_+1}, s{sPC+1}
        v_add_co_u32 v{va_}, vcc, s{sPC}, v{va_}
        s_nop 1
        v_addc_co_u32 v{va_+1}, vcc, 0, v{va_+1}, vcc
        s_mov_b64 exec, 0xffff
        global_load_dword v{k.vdummy}, {vr(va_,2)}, off
        s_mov_b64 exec, -1
        """)
    if OPT['hX'] == 10:
        k.e(f"s_and_b32 s{sRo}, s2, 7")
        k.e(f"s_xor_b32 s{sRo}, s{sRo}, 1")
        k.e(f"s_mul_i32 s{sRo}, s{sRo}, {256 * 2 * D_}")
        TX = Touch(k, vl, 16, 2048, share=TW)
        k.e("s_waitcnt lgkmcnt(0)")
        TX.unit(ptr['x'], sRo, sJ1, 0, 160)
        lx = k.label("hx")
        k.e(f"s_cmp_ge_u32 s{sJ1}, 16")
        k.e(f"s_cbranch_scc1 {lx}")
        TX.unit(ptr['x'], sRo, sJ1, 24, 160)
        k.place(lx)
    else:
        k.e(f"s_mul_i32 s{sRo}, s{sRQ}, {512 * 2 * D_}")
        TX = Touch(k, vl, OPT['hX'], 2 * D_, share=TW)
        k.e("s_waitcnt lgkmcnt(0)")
        for it in range(-(-500 // (24 * TX.R))):
            TX.unit(ptr['x'], sRo, sJ1, 24 * it, 512)
    k.e("s_endpgm")
    k.release(mH)
    if not OPT['hfirst']:
        k.lines.append('; @SEC head2')
    k.place(Lrole)
    k.e(f"s_cmp_lt_u32 s{sWave}, 4")
    k.e(f"s_cbranch_scc1 {Lc}")
    k.e(f"s_cmp_ge_u32 s{sWave}, 6")
    k.e(f"s_cbranch_scc1 {k.end}")
    mL = k.mark()
    sLW, sRow, sCol, sSpin, sP, sU, sEx = (k.s() for _ in range(7))
    srdA, srdW, srdF = k.s(4), k.s(4), k.s(4)
    vf, vfa, vone = k.v(4), k.v(), k.v()
    c3r = k.v(4)
    vfb = k.v()
    sAct = k.s()
    sRotL = sEx
    k.e(f"s_sub_u32 s{sLW}, s{sWave}, 4")
    if OPT['lprio']:
        k.e(f"s_setprio {OPT['lprio']}")

    def poll(srd, expect, first_issued=False, tag="", wide=False, drain1=True, extra=None, younger=0, both=False):
        lp, lo = k.label("poll"), k.label("pollok")
        ldi = (f"buffer_load_dwordx3 {vr(vf,3)}, v{vfa}, s[{srd}:{srd+3}], 0 offen sc1" if wide
               else f"buffer_load_dword v{vf}, v{vfa}, s[{srd}:{srd+3}], 0 offen sc1")
        if extra is not None:
            ldi += f"\nbuffer_load_dword v{vf+3}, v{extra}, s[{srd}:{srd+3}], 0 offen sc1"
        if not both:
            k.e(f"s_cmp_eq_u32 s{sLW}, 1")
            k.e(f"s_cbranch_scc1 {lo}")
        k.e(f"s_mov_b32 s{sSpin}, 0")
        if not first_issued:
            k.e(ldi)
        if younger:
            k.e(f"s_waitcnt vmcnt({younger})")
            k.e(f"s_branch {lp}_c")
        k.place(lp)
        k.e("s_waitcnt vmcnt(0)")
        k.place(lp + "_c")
        if wide:
            k.e(f"v_and_b32 v{vf}, v{vf}, v{vf+2}")
        if extra is not None:
            k.e(f"v_and_b32 v{vf}, v{vf}, v{vf+3}")
        k.e(f"""
        v_cmp_ne_u32 vcc, {expect}, v{vf}
        s_add_u32 s{sSpin}, s{sSpin}, 1
        s_nop 3
        s_cbranch_vccz {lo}
        s_cmp_gt_u32 s{sSpin}, 0x40000
        s_cbranch_scc1 {k.end}
        s_sleep {OPT['psleep']}
        {ldi}
        s_branch {lp}
        """)
        k.place(lo)
        if drain1:
            k.e("s_waitcnt vmcnt(0)")
        k.stamp_l(tag)

    def set_flag(sOff, base, sExec=None):
        l0 = k.label("fl")
        k.e(f"""
        s_cmp_eq_u32 s{sLW}, 1
        s_cbranch_scc0 {l0}
        v_mov_b32 v{vfa}, {base}
        s_mov_b64 exec, 1
        buffer_store_dword v{vone}, v{vfa}, s[{srdF}:{srdF+3}], s{sOff} offen sc1
        s_mov_b64 exec, -1
        """)
        k.place(l0)

    def warm(pw, ldw, ncl, colbytes, clampc, nrows, rounds):
        if not OPT['twarm'] or not rounds:
            return 0
        mm_ = k.mark()
        sCo = k.s()
        k.e(f"s_mul_i32 s{sCo}, s{sCH}, {colbytes}")
        if clampc is not None:
            k.e(f"s_min_u32 s{sCo}, s{sCo}, {clampc}")
        T = Touch(k, vl, ncl, ldw)
        for it in rounds:
            T.unit(pw, sCo, sU, 64 * it, nrows)
        k.release(mm_)
        return len(rounds)

    def w1warm(where):
        r = OPT['w1at'].get(where, [])
        return warm(ptr['w1'], 2 * F_, 14, 7 * 256, 13 * 128, 640, r) if r else 0

    m = k.mark()
    sG, sC, sTy = dec1()
    srdD = k.s(4)
    k.e(f"""
    s_mul_i32 s{sRow}, s{sG}, {128 * 2 * D_}
    s_mul_i32 s{sCol}, s{sC}, 160
    s_add_u32 s3, s{sCol}, {2 * D_}
    s_lshl_b32 s{sCol}, s{sCol}, 1
    s_cmp_eq_u32 s{sTy}, 0
    s_cselect_b32 s{sCol}, s3, s{sCol}
    s_movk_i32 s{sEx}, 160
    s_cselect_b32 s{sEx}, {2 * D_}, s{sEx}
    """)
    Llq, Ltail = k.label("ldq"), k.label("ldtail")
    pat = [[k.v() for _ in range(5)] for _ in range(5)]
    q0, q1, q2, vcs = (k.v() for _ in range(4))
    pvi, pvb = [k.v() for _ in range(5)], [k.v() for _ in range(5)]
    csr = [k.v(4) for _ in range(4)]
    rp = [k.v() for _ in range(6)]
    rpd = [k.v(4) for _ in range(6)]
    sRp, sRc, sRv = k.s(), k.s(), k.s()
    vLtop = k.vtop

    def p2_pat(mI):
        def f():
            vi_, vb_ = pvi[mI], pvb[mI]
            k.e(f"""
            s_and_b32 s3, s{sWave}, 1
            s_lshl_b32 s3, s3, 3
            v_add_u32 v{q0}, {64*mI}, v{vl}
            v_mul_u32_u24 v{q1}, 205, v{q0}
            v_lshrrev_b32 v{q1}, 11, v{q1}
            v_mul_u32_u24 v{q2}, 10, v{q1}
            v_sub_u32 v{q2}, v{q0}, v{q2}
            v_lshlrev_b32 v{vb_}, 4, v{q2}
            v_and_b32 v{vi_}, 3, v{q1}
            v_bfe_u32 v{q0}, v{q1}, 3, 1
            v_lshl_or_b32 v{vi_}, v{q0}, 2, v{vi_}
            v_add_u32 v{vi_}, s3, v{vi_}
            v_bfe_u32 v{q0}, v{q1}, 2, 1
            v_lshrrev_b32 v{q2}, 4, v{q1}
            v_lshl_or_b32 v{q0}, v{q2}, 1, v{q0}
            v_mul_u32_u24 v{q0}, {5 * 1280}, v{q0}
            v_add_u32 v{vb_}, v{vb_}, v{q0}
            """)
            return 0
        return f

    pdone = set()

    def p2_lazy(u, mI):
        if (u, mI) in pdone:
            return
        pdone.add((u, mI))
        k.e(f"""
        v_add_u32 v{q0}, {16*u}, v{pvi[mI]}
        v_mul_u32_u24 v{q1}, 205, v{q0}
        v_lshrrev_b32 v{q1}, 10, v{q1}
        v_mad_u32_u24 v{q0}, v{q1}, 15, v{q0}
        v_mad_u32_u24 v{pat[u][mI]}, v{q0}, s{sEx}, v{pvb[mI]}
        """)

    def rp_pat():
        mm_ = k.mark()
        sN, sH, sL = k.s(), k.s(), k.s()
        k.e(f"""
        s_lshl_b32 s{sRv}, s{sJ1}, 3
        s_and_b32 s3, s2, 7
        s_add_u32 s{sRv}, s{sRv}, s3
        s_lshl_b32 s{sRv}, s{sRv}, 1
        s_add_u32 s{sRv}, s{sRv}, s{sLW}
        s_min_u32 s{sRp}, s{sRv}, 359
        s_mul_i32 s{sRc}, s{sRp}, 1457
        s_lshr_b32 s{sRc}, s{sRc}, 16
        s_mul_i32 s3, s{sRc}, 45
        s_sub_u32 s{sN}, s{sRp}, s3
        s_mul_i32 s{sN}, s{sN}, 6
        s_mul_i32 s{sRp}, s{sRp}, 6144
        s_movk_i32 s{sL}, {2 * D_}
        """)
        for i in range(6):
            k.e(f"""
            s_mul_i32 s{sH}, s{sN}, 13108
            s_lshr_b32 s{sH}, s{sH}, 16
            s_mul_i32 s3, s{sH}, 5
            s_sub_u32 s3, s{sN}, s3
            s_lshl_b32 s3, s3, 6
            v_add_u32 v{q0}, s3, v{vl}
            s_mul_i32 s{sH}, s{sH}, {32 * 2 * D_}
            s_mul_i32 s3, s{sRc}, 160
            s_add_u32 s{sH}, s{sH}, s3
            v_mul_u32_u24 v{q1}, 205, v{q0}
            v_lshrrev_b32 v{q1}, 11, v{q1}
            v_mul_u32_u24 v{q2}, 10, v{q1}
            v_sub_u32 v{q2}, v{q0}, v{q2}
            v_lshl_add_u32 v{rp[i]}, v{q2}, 4, s{sH}
            v_and_b32 v{q2}, 19, v{q1}
            v_and_b32 v{q0}, 4, v{q1}
            v_lshl_or_b32 v{q2}, v{q0}, 1, v{q2}
            v_and_b32 v{q0}, 8, v{q1}
            v_lshrrev_b32 v{q0}, 1, v{q0}
            v_or_b32 v{q2}, v{q2}, v{q0}
            v_mad_u32_u24 v{rp[i]}, v{q2}, s{sL}, v{rp[i]}
            s_add_u32 s{sN}, s{sN}, 1
            """)
        k.release(mm_)

    def p1_srds():
        k.e("s_waitcnt lgkmcnt(0)")
        set_srd(k, srdA, ptr['x'], S_ * D_ * 2, bias=True)
        set_srd(k, srdW, ptr['wqkv'], 3 * D_ * D_ * 2, bias=True)
        k.stamp_l("ld_first")

    def p1_late():
        set_srd(k, srdF, ptr['ws'], FL_BYTES, WS_FL)
        k.e(f"""
        v_mov_b32 v{vone}, 1
        s_lshl_b32 s{sU}, s{sJ}, 1
        s_add_u32 s{sU}, s{sU}, s{sLW}
        s_mul_i32 s{sP}, s{sG}, {FS}
        s_lshl_b32 s3, s{sC}, 2
        s_add_u32 s{sP}, s{sP}, s3
        """)
        k.e(f"""
        s_and_b32 s3, s{sC}, 3
        s_mul_i32 s3, s3, 320
        s_add_u32 s3, s3, 1280
        s_and_b32 s{sSpin}, s{sC}, 1
        s_mul_i32 s{sSpin}, s{sSpin}, 640
        s_cmp_eq_u32 s{sTy}, 0
        s_cselect_b32 s3, s3, s{sSpin}
        s_cselect_b32 s{sSpin}, 960, 0
        v_lshlrev_b32 v{vcs}, 4, v{vl}
        v_add_u32 v{vcs}, s3, v{vcs}
        v_cmp_lt_u32 vcc, 19, v{vl}
        v_mov_b32 v{q0}, s{sSpin}
        s_lshl_b32 s3, s{sCH}, 12
        v_cndmask_b32 v{q0}, 0, v{q0}, vcc
        s_add_u32 s3, s3, {WS_CS1 - WS_ST1}
        v_add3_u32 v{vcs}, v{vcs}, v{q0}, s3
        v_cmp_gt_u32 vcc, 40, v{vl}
        v_mov_b32 v{q0}, {OOB}
        s_nop 0
        v_cndmask_b32 v{vcs}, v{q0}, v{vcs}, vcc
        """)
        return 0

    def p1_last():
        set_srd(k, srdD, ptr['dbg'], 256)
        k.e(f"""
        v_lshlrev_b32 v{vfa}, 2, v{vl}
        v_or_b32 v{vfa}, {128 if OPT['diag'] else 0}, v{vfa}
        s_lshl_b32 s3, s{sLW}, 12
        buffer_load_dword v{vf}, v{vfa}, s[{srdD}:{srdD+3}], s3 offen sc1
        """)
        nwo = 0
        if not OPT['svwo']:
            mm_ = k.mark()
            sCo, sV = sRow, sCol
            k.e(f"s_mul_i32 s{sCo}, s{sCH}, 640")
            k.e(f"s_lshl_b32 s{sV}, s{sJ1}, 1")
            k.e(f"s_add_u32 s{sV}, s{sV}, s{sLW}")
            T = Touch(k, vl, 5, 2 * D_)
            T.unit(ptr['wo'], sCo, sV, 0, 640)
            k.release(mm_)
            nwo = 1
        set_srd(k, srdA, ptr['w2'], F_ * D_ * 2)
        for mI in range(6):
            k.e(f"buffer_load_dwordx4 {vr(rpd[mI],4)}, v{rp[mI]}, s[{srdA}:{srdA+3}], 0 offen")
        return 7 + nwo
    hooks = {}
    k.e(f"s_cmp_eq_u32 s{sSvc}, 1")
    k.e(f"s_cbranch_scc1 {Llq}")
    m2 = k.mark()
    ckv.segd = f"s{sEx}"
    ld = Loader(k, ckv, vl, sLW)

    def first():
        ld.bases(sRow, sCol)
        p1_srds()
        ld.early_a(srdA)
        if not OPT['hfirst']:
            lj_ = k.label("hj")
            k.e(f"s_branch {lj_}")
            k.lines.append('; @SEC head3')
            k.place(lj_)
    ld.patterns(between=first)

    def f0_part():
        poll(srdD, F0V, first_issued=True, tag="f0ok", drain1=False, younger=6 if OPT['svwo'] else 7)
        set_srd(k, srdA, ptr['ws'], WS_CS3 - WS_ST1, WS_ST1)
        lsd = k.label("std")
        k.e(f"""
        s_cmp_eq_u32 s{sLW}, 1
        s_cbranch_scc1 {lsd}
        s_mov_b32 m0, {P1_ST}
        s_lshl_b32 s3, s{sG}, 10
        v_lshlrev_b32 v{vfa}, 4, v{vl}
        buffer_load_dwordx4 v{vfa}, s[{srdA}:{srdA+3}], s3 offen sc1 lds
        s_movk_i32 s3, 8192
        buffer_load_dwordx4 {vr(csr[0],4)}, v{vcs}, s[{srdA}:{srdA+3}], 0 offen sc1
        buffer_load_dwordx4 {vr(csr[1],4)}, v{vcs}, s[{srdA}:{srdA+3}], s3 offen sc1
        s_movk_i32 s3, 16384
        buffer_load_dwordx4 {vr(csr[2],4)}, v{vcs}, s[{srdA}:{srdA+3}], s3 offen sc1
        s_movk_i32 s3, 24576
        buffer_load_dwordx4 {vr(csr[3],4)}, v{vcs}, s[{srdA}:{srdA+3}], s3 offen sc1
        v_add_u32 v{vfa}, {P1_ST + 1024}, v{vfa}
        """)
        k.place(lsd)
        return 0

    def early_valu():
        p1_late()
        for i in range(5):
            p2_pat(i)()
        rp_pat()
    ld.stream(srdA, srdW, last=p1_last, tag="p1", inject=(OPT['inj'], early_valu), hooks={9: f0_part})
    k.e(f"s_branch {Ltail}")
    k.release(m2)
    k.place(Llq)
    p1_late()
    k.e(f"s_movk_i32 s{sRv}, 1000")
    k.e(f"s_mov_b32 s{sRp}, 0")
    k.e(f"s_mov_b32 s{sRc}, 0")
    k.e(f"""
    s_lshl_b32 s{sP}, s{sCH}, 3
    s_add_u32 s{sP}, s{sP}, s{sC}
    s_mul_i32 s{sP}, s{sP}, {FS}
    s_lshl_b32 s3, s{sRQ}, 2
    s_add_u32 s{sP}, s{sP}, s3
    s_add_u32 s{sP}, s{sP}, {FL_S - FL_Q}
    """)
    set_srd(k, srdD, ptr['dbg'], 256)
    k.e(f"s_branch {Ltail}_s")
    k.lines.append('; @SEC ltail')
    k.place(Ltail)
    lsd = k.label("std")
    k.e(f"s_cmp_eq_u32 s{sLW}, 1")
    k.e(f"s_cbranch_scc1 {lsd}")
    k.e(f"""
    s_waitcnt vmcnt(2)
    v_pk_add_f32 {vr(csr[0],2)}, {vr(csr[0],2)}, {vr(csr[1],2)}
    v_pk_add_f32 {vr(csr[0]+2,2)}, {vr(csr[0]+2,2)}, {vr(csr[1]+2,2)}
    s_waitcnt vmcnt(0)
    v_pk_add_f32 {vr(csr[2],2)}, {vr(csr[2],2)}, {vr(csr[3],2)}
    v_pk_add_f32 {vr(csr[2]+2,2)}, {vr(csr[2]+2,2)}, {vr(csr[3]+2,2)}
    v_pk_add_f32 {vr(csr[0],2)}, {vr(csr[0],2)}, {vr(csr[2],2)}
    v_pk_add_f32 {vr(csr[0]+2,2)}, {vr(csr[0]+2,2)}, {vr(csr[2]+2,2)}
    ds_write_b128 v{vfa}, {vr(csr[0],4)}
    s_waitcnt lgkmcnt(0)
    """)
    k.place(lsd)
    k.place(Ltail + "_s")
    sRB2, sCT2 = dec2()
    set_srd(k, srdW, ptr['wo'], D_ * D_ * 2)
    sT, sKW, sLWd = k.s(), k.s(), k.s()
    k.e(f"""
    s_mul_i32 s{sKW}, s{sCT2}, 160
    s_movk_i32 s{sEx}, 1280
    s_mul_i32 s{sLWd}, s{sLW}, 5120
    """)
    nx = w1warm('stats')
    k.e(f"s_waitcnt vmcnt({nx})")
    k.e("s_barrier")
    lrp = k.label("rp")
    set_srd(k, srdA, ptr['ws'], 8 * W2P_CT, WS_W2P)
    k.e(f"""
    s_cmp_ge_u32 s{sRv}, 360
    s_cbranch_scc1 {lrp}
    v_lshlrev_b32 v{rp[0]}, 4, v{vl}
    s_add_u32 s3, s{sRp}, 4096
    """)
    for mI in range(6):
        k.e(f"buffer_store_dwordx4 {vr(rpd[mI],4)}, v{rp[0]}, s[{srdA}:{srdA+3}], {'s%d' % sRp if mI < 4 else 's3'} offen offset:{(mI % 4) * 1024} sc1")
    k.place(lrp)

    def w2_steps(lst):
        for s in lst:
            u = (s % 10) // 2
            k.e(f"s_add_u32 s{sT}, s{sKW}, {(s // 10) * 320 * 1280}")
            for mI in range(5):
                p2_lazy(u, mI)
                k.e(f"s_add_u32 m0, s{sLWd}, {L_W2 + s * 5120 + mI * 1024}")
                k.e("s_nop 0")
                if not g3.DBG['nodma']:
                    k.e(f"buffer_load_dwordx4 v{pat[u][mI]}, s[{srdW}:{srdW+3}], s{sT} offen lds")
    order = [0, 10, 2, 12, 4, 14, 6, 16, 8, 18]
    w2_steps(order[:OPT['w2a']])
    lsv = k.label("svp")
    k.e(f"s_cmp_eq_u32 s{sSvc}, 0")
    k.e(f"s_cbranch_scc1 {lsv}")
    k.e(f"v_lshlrev_b32 v{vfa}, 2, v{vl}")
    k.e(f"v_or_b32 v{vfa}, {128 if OPT['diag'] else 0}, v{vfa}")
    poll(srdD, F0V, tag="f0ok", drain1=False)
    k.place(lsv)
    w1warm('w2a')
    k.stamp_l("w2iss")
    k.e("s_barrier")
    w2_steps(order[OPT['w2a']:OPT['w2b']])
    w1warm('w2b')
    k.e("s_barrier")
    lkv, lfd = k.label("f1kv"), k.label("f1d")
    k.e(f"s_cmp_eq_u32 s{sTy}, 0")
    k.e(f"s_cbranch_scc1 {lkv}")
    set_flag(sP, FL_Q)
    k.e(f"s_branch {lfd}")
    k.place(lkv)
    k.e(f"""
    s_cmp_eq_u32 s{sLW}, 1
    s_cbranch_scc0 {lfd}
    s_mul_i32 s3, s{sC}, {FS}
    v_mov_b32 v{vfa}, {FL_C}
    v_mov_b32 v{vf}, 1
    s_mov_b64 exec, 1
    buffer_atomic_add v{vf}, v{vfa}, s[{srdF}:{srdF+3}], s3 offen sc0 sc1
    s_waitcnt vmcnt(0)
    v_readfirstlane_b32 s{sSpin}, v{vf}
    s_mov_b64 exec, -1
    s_cmp_eq_u32 s{sSpin}, 15
    s_cbranch_scc0 {lfd}
    v_mul_u32_u24 v{vfa}, {FS}, v{vl}
    v_add_u32 v{vfa}, {FL_G}, v{vfa}
    s_lshl_b32 s3, s{sC}, 2
    s_mov_b64 exec, {hex((1 << NREP) - 1)}
    buffer_store_dword v{vone}, v{vfa}, s[{srdF}:{srdF+3}], s3 offen sc1
    s_mov_b64 exec, -1
    """)
    k.place(lfd)
    k.stamp_l("f1set")
    w1warm('f1')
    if OPT['w2early']:
        w2_steps(order[max(OPT['w2a'], OPT['w2b']):])
    k.e(f"""
    s_lshr_b32 s3, s{sRB2}, 1
    s_mul_i32 s3, s3, {FS}
    v_and_b32 v{q0}, 7, v{vl}
    v_lshlrev_b32 v{q0}, 2, v{q0}
    v_and_b32 v{vfa}, 12, v{q0}
    v_add_u32 v{vfa}, s3, v{vfa}
    """)
    poll(srdF, 1, tag="f1q", drain1=False)
    if OPT['pqtouch']:
        lpt = k.label("pqt")
        set_srd(k, srdA, ptr['ws'], S_ * 1536, WS_PQ)
        k.e(f"""
        s_cmp_eq_u32 s{sLW}, 1
        s_cbranch_scc1 {lpt}
        s_lshl_b32 s3, s{sRB2}, 2
        s_lshr_b32 s{sSpin}, s{sJ}, 3
        s_add_u32 s3, s3, s{sSpin}
        s_mul_i32 s3, s3, {32 * 768}
        v_lshlrev_b32 v{vfa}, 7, v{vl}
        buffer_load_dword v{k.vdummy}, v{vfa}, s[{srdA}:{srdA+3}], s3 offen sc1
        s_add_u32 s3, s3, 8192
        buffer_load_dword v{k.vdummy}, v{vfa}, s[{srdA}:{srdA+3}], s3 offen sc1
        s_add_u32 s3, s3, 8192
        buffer_load_dword v{k.vdummy}, v{vfa}, s[{srdA}:{srdA+3}], s3 offen sc1
        """)
        k.place(lpt)
    k.e(f"""
    s_and_b32 s3, s2, {NREP - 1}
    s_mul_i32 s3, s3, {FS}
    s_add_u32 s3, s3, {FL_G}
    v_add_u32 v{vfa}, s3, v{q0}
    """)
    k.e(f"s_cmp_eq_u32 s{sLW}, 1")
    lq1 = k.label("q1")
    k.e(f"s_cbranch_scc1 {lq1}")
    k.e(f"buffer_load_dword v{vf}, v{vfa}, s[{srdF}:{srdF+3}], 0 offen sc1")
    k.place(lq1)
    k.e("s_barrier")
    poll(srdF, 1, tag="f1k", drain1=False, first_issued=True)
    k.e("s_barrier")
    k.e(f"""
    s_lshr_b32 s{sP}, s{sRB2}, 1
    s_mul_i32 s{sP}, s{sP}, {FS}
    s_and_b32 s3, s{sRB2}, 1
    s_lshl_b32 s3, s3, 5
    s_add_u32 s{sP}, s{sP}, s3
    s_lshl_b32 s3, s{sCT2}, 2
    s_add_u32 s{sP}, s{sP}, s3
    s_waitcnt vmcnt(0)
    s_barrier
    s_barrier
    """)
    lrp = k.label("rp")
    k.e(f"""
    s_cmp_ge_u32 s{sRv}, 360
    s_cbranch_scc1 {lrp}
    s_mul_i32 s3, s{sRc}, {FS}
    v_mov_b32 v{rp[0]}, {FL_R}
    s_waitcnt vmcnt(0)
    s_mov_b64 exec, 1
    buffer_atomic_add v{vone}, v{rp[0]}, s[{srdF}:{srdF+3}], s3 offen sc1
    s_mov_b64 exec, -1
    """)
    k.place(lrp)
    if not OPT['w2early']:
        w2_steps(order[max(OPT['w2a'], OPT['w2b']):])
    set_srd(k, srdA, ptr['ws'], S_ * D_ * 2, WS_H, bias=True)
    k.e(f"""
    s_mul_i32 s{sRow}, s{sRB2}, {64 * 2 * D_}
    s_add_u32 s{sRow}, s{sRow}, {BIAS if OPT['lean'] else 0}
    s_add_u32 s{sRow}, s{sRow}, s{sKW}
    s_mul_i32 s3, s{sLW}, 156
    s_add_u32 s{sRow}, s{sRow}, s3
    v_mul_u32_u24 v{vfa}, {2 * D_}, v{vl}
    """)
    k.release(m)
    mS = k.mark()
    Lskip3 = k.label("ldskip3")
    sRB3, sCT3 = dec3()
    ld = Loader(k, c3, vl, sLW)
    nx = 0
    if OPT['pretouch']:
        k.e(f"buffer_load_dword v{k.vdummy}, v{vfa}, s[{srdA}:{srdA+3}], s{sRow} offen sc1")
        nx += 1
    nx += w1warm('c')
    k.e(f"""
    s_lshl_b32 s3, s{sCH}, 3
    s_lshr_b32 s{sSpin}, s{sJ}, 2
    s_add_u32 s3, s3, s{sSpin}
    s_mul_i32 s3, s3, {FS}
    s_add_u32 s3, s3, {FL_S}
    v_and_b32 v{vfa}, 3, v{vl}
    v_lshlrev_b32 v{vfa}, 2, v{vfa}
    v_add_u32 v{vfa}, s3, v{vfa}
    """)
    poll(srdF, 1, tag="fsok", drain1=False)
    set_srd(k, srdW, ptr['ws'], 32768, WS_CS3)
    csr = [k.v(4) for _ in range(4)]
    k.e(f"""
    s_lshl_b32 s3, s{sCH}, 12
    s_lshr_b32 s{sSpin}, s{sJ}, 2
    s_lshl_b32 s{sSpin}, s{sSpin}, 9
    s_add_u32 s3, s3, s{sSpin}
    s_lshl_b32 s{sSpin}, s{sLW}, 20
    s_add_u32 s3, s3, s{sSpin}
    v_and_b32 v{vfa}, 31, v{vl}
    v_lshlrev_b32 v{vfa}, 4, v{vfa}
    """)
    for q_ in range(4):
        k.e(f"buffer_load_dwordx4 {vr(csr[q_],4)}, v{vfa}, s[{srdW}:{srdW+3}], s3 offen sc1")
        k.e("s_add_u32 s3, s3, 8192")
    ng = w1warm('g')
    ld.patterns()
    k.e(f"s_mul_i32 s{sRow}, s{sRB3}, {128 * 2 * D_}")
    k.e(f"s_lshl_b32 s{sCol}, s{sCT3}, 8")
    ld.bases(sRow, sCol)
    set_srd(k, srdW, ptr['w1'], F_ * D_ * 2, bias=True)
    ld.sRot = sRotL
    k.e(f"s_lshr_b32 s{sRotL}, s{sJ}, 2")
    k.e(f"s_mul_i32 s{sRotL}, s{sRotL}, 23")
    k.e(f"s_lshr_b32 s{sRotL}, s{sRotL}, 4")
    k.e(f"s_min_u32 s{sRotL}, s{sRotL}, 9")
    k.e("s_barrier")
    k.e(f"s_waitcnt vmcnt({ng})")
    for j in range(2):
        k.e(f"v_pk_add_f32 {vr(csr[0]+2*j,2)}, {vr(csr[0]+2*j,2)}, {vr(csr[1]+2*j,2)}")
        k.e(f"v_pk_add_f32 {vr(csr[2]+2*j,2)}, {vr(csr[2]+2*j,2)}, {vr(csr[3]+2*j,2)}")
        k.e(f"v_pk_add_f32 {vr(c3r+2*j,2)}, {vr(csr[0]+2*j,2)}, {vr(csr[2]+2*j,2)}")
    k.e("s_barrier")
    set_flag(sP, FL_2)
    k.stamp_l("f2set")
    Lidle3 = k.label("ldidle3")
    k.e(f"s_cmp_ge_u32 s{sJ}, 28")
    k.e(f"s_cbranch_scc1 {Lidle3}")
    ld.prefill_w(srdW, c3.SW)
    vl2 = k.v()
    k.e(f"""
    v_and_b32 v{vl2}, 31, v{vl}
    v_lshlrev_b32 v{vl2}, 4, v{vl2}
    s_lshl_b32 s3, s{sLW}, 9
    s_add_u32 s3, s3, {P3_SCR + 1024}
    v_add_u32 v{vl2}, s3, v{vl2}
    ds_write_b128 v{vl2}, {vr(c3r,4)}
    s_waitcnt lgkmcnt(0)
    """)
    k.e(f"""
    s_mul_i32 s3, s{sRB3}, {FS}
    s_add_u32 s3, s3, {FL_2}
    v_and_b32 v{vfa}, 15, v{vl}
    v_lshlrev_b32 v{vfa}, 2, v{vfa}
    v_add_u32 v{vfa}, s3, v{vfa}
    """)
    def r_check():
        lp, lo = k.label("rchk"), k.label("rok")
        k.e(f"""
        s_mul_i32 s3, s{sCH}, {4 * FS}
        s_add_u32 s3, s3, {FL_R}
        v_and_b32 v{vfa}, 3, v{vl}
        v_mul_u32_u24 v{vfa}, {FS}, v{vfa}
        v_add_u32 v{vfa}, s3, v{vfa}
        s_mov_b32 s{sSpin}, 0
        """)
        k.place(lp)
        k.e(f"""
        buffer_load_dword v{vf}, v{vfa}, s[{srdF}:{srdF+3}], 0 offen sc1
        s_waitcnt vmcnt(0)
        v_cmp_ne_u32 vcc, 45, v{vf}
        s_add_u32 s{sSpin}, s{sSpin}, 1
        s_nop 3
        s_cbranch_vccz {lo}
        s_cmp_gt_u32 s{sSpin}, 0x40000
        s_cbranch_scc1 {k.end}
        s_sleep 16
        s_branch {lp}
        """)
        k.place(lo)

    poll(srdF, 1, tag="f2ok", drain1=False)
    lrc = k.label("rc")
    k.e(f"s_cmp_eq_u32 s{sLW}, 0")
    k.e(f"s_cbranch_scc1 {lrc}")
    r_check()
    k.place(lrc)
    k.e("s_barrier")

    def idle_warm():
        mm_ = k.mark()
        sCo = k.s()
        k.e(f"""
        s_lshl_b32 s{sCo}, s{sCH}, 2
        s_add_u32 s{sCo}, s{sCo}, s{sJ}
        s_sub_u32 s{sCo}, s{sCo}, 28
        s_mul_i32 s{sCo}, s{sCo}, {W2P_CT}
        s_add_u32 s{sCo}, s{sCo}, {WS_W2P}
        """)
        T = Touch(k, vl, 16, 2048)
        for it in range(OPT['iw']):
            T.unit(ptr['ws'], sCo, sLW, 2 * it, 135)
            if OPT['iwser']:
                k.e('s_waitcnt vmcnt(0)')
        k.release(mm_)

    def w1p(lst):
        def f():
            n = 0
            assert ld.issued >= 40 + 80
            for m in lst:
                for op in ld._W(m, srdW, coff=128):
                    ld.emit_op(op); n += 1
            return n
        return f
    ld.stream(srdA, srdW, aflags="sc1", tag="p3", hooks={7: w1p([0, 1, 2]), 8: w1p([3, 4, 5]), 9: w1p([6, 7])})
    w1p([8])()
    k.e("s_barrier")
    w1p([9])()
    k.e(f"""
    s_mul_i32 s{sP}, s{sRB3}, {FS}
    s_lshl_b32 s3, s{sCT3}, 2
    s_add_u32 s{sP}, s{sP}, s3
    s_add_u32 s{sP}, s{sP}, {FL_3}
    s_mov_b32 s{sAct}, 1
    s_waitcnt vmcnt(20)
    s_barrier
    s_branch {Lskip3}
    """)
    k.place(Lidle3)
    k.e(f"s_mov_b32 s{sAct}, 0")
    k.release(mS)
    r_check()
    idle_warm()
    k.place(Lskip3)
    Lend, Lno3, Lno4 = k.label("ldend"), k.label("ldno3"), k.label("ldno4")
    sRB4, sCT4 = dec2()
    ld = Loader(k, c4, vl, sLW)
    ld.patterns()
    k.e(f"s_mul_i32 s{sRow}, s{sRB4}, {64 * 2 * F_}")
    k.e(f"s_mul_i32 s{sCol}, s{sCT4}, {W2P_CT}")
    ld.bases(sRow, sCol)
    set_srd(k, srdA, ptr['ws'], S_ * F_ * 2, WS_HH, bias=True)
    set_srd(k, srdW, ptr['ws'], 8 * W2P_CT, WS_W2P)
    ld.sRot = sRotL
    k.e(f"s_lshr_b32 s{sRotL}, s{sJ}, 3")
    k.e(f"s_mul_i32 s{sRotL}, s{sRotL}, 7")
    k.e(f"s_lshr_b32 s{sRotL}, s{sRotL}, 1")
    ld.prefill_w(srdW, OPT['pf1'])
    k.e(f"""
    s_cmp_eq_u32 s{sAct}, 0
    s_cbranch_scc1 {Lno3}
    s_waitcnt vmcnt({5 * OPT['pf1']})
    s_barrier
    """)
    set_flag(sP, 0)
    k.stamp_l("f3set")
    k.place(Lno3)
    for m_ in range(OPT['pf1'], 6):
        for op in ld._W(m_, srdW):
            ld.emit_op(op)
    ld.pw = 6
    k.e(f"""
    s_cmp_eq_u32 s{sAct}, 0
    s_cbranch_scc1 {Lno4}
    s_barrier
    """)
    k.place(Lno4)
    k.e(f"""
    s_lshr_b32 s3, s{sRB4}, 1
    s_mul_i32 s3, s3, {FS}
    s_add_u32 s3, s3, {FL_3}
    v_and_b32 v{vfa}, 15, v{vl}
    v_min_u32 v{vfb}, 12, v{vfa}
    v_min_u32 v{vfa}, 13, v{vfa}
    v_lshlrev_b32 v{vfa}, 2, v{vfa}
    v_add_u32 v{vfa}, s3, v{vfa}
    v_lshlrev_b32 v{vfb}, 2, v{vfb}
    v_add_u32 v{vfb}, s3, v{vfb}
    v_add_u32 v{vfb}, 64, v{vfb}
    """)
    poll(srdF, 1, tag="f3ok", drain1=False, both=True)
    mk = {}

    def f3b_set():
        k.e(f"""
        s_and_b32 s3, s{sAct}, s{sLW}
        s_cmp_eq_u32 s3, 1
        s_cselect_b32 s3, 64, {OOB}
        v_mov_b32 v{vfa}, s3
        s_mov_b64 exec, 1
        buffer_store_dword v{vone}, v{vfa}, s[{srdF}:{srdF+3}], s{sP} offen sc1
        s_mov_b64 exec, -1
        """)
        return 1

    def f3b_issue():
        k.e(f"buffer_load_dword v{vf}, v{vfb}, s[{srdF}:{srdF+3}], 0 offen sc1")
        mk['n'] = ld.issued
        return 1

    def f3b_check():
        k.e(f"v_mov_b32 v{vfa}, v{vfb}")
        poll(srdF, 1, tag="f3bok", drain1=False, both=True, first_issued=True, younger=max(1, ld.issued - mk['n']) if ld.issued > mk['n'] else 0)
        return 0

    def out_touch():
        set_srd(k, srdF, ptr['out'], S_ * D_ * 2)
        k.e(f"""
        s_mul_i32 s3, s{sRB4}, {64 * 2 * D_}
        s_mul_i32 s{sSpin}, s{sCT4}, 160
        s_add_u32 s3, s3, s{sSpin}
        s_mul_i32 s{sSpin}, s{sLW}, 156
        s_add_u32 s3, s3, s{sSpin}
        v_mul_u32_u24 v{vfa}, {2 * D_}, v{vl}
        buffer_load_dword v{k.vdummy}, v{vfa}, s[{srdF}:{srdF+3}], s3 offen
        """)
        return 1
    ld.stream(srdA, srdW, aflags="sc1", tag="p4", hooks={1: f3b_set, HB - 2: f3b_issue, HB: f3b_check},
              last=out_touch if OPT['otouch'] else None)
    k.place(Lend)
    endwave()
    k.release(mL)

    k.lines.append('; @SEC svc')
    k.place(Lsvc)
    mV = k.mark()
    k.vtop = vLtop
    sS, sA, sB, sX8, sPi = (k.s() for _ in range(5))
    srdX, srdS, srdK, srdW_ = k.s(4), k.s(4), k.s(4), k.s(4)
    xr = [k.v(4) for _ in range(5)]
    ux = [k.v(2) for _ in range(20)]
    t0, t1, vs_, vq_ = k.v(), k.v(), k.v(2), k.v(2)
    z4 = k.v(4)
    k.e(f"""
    s_and_b32 s{sS}, s{sJ1}, 7
    s_and_b32 s{sX8}, s2, 7
    s_lshl_b32 s{sPi}, s{sX8}, 3
    s_add_u32 s{sPi}, s{sPi}, s{sS}
    s_lshl_b32 s{sA}, s{sPi}, 3
    s_add_u32 s{sA}, s{sA}, s{sWave}
    s_lshl_b32 s{sA}, s{sA}, 2
    v_lshrrev_b32 v{t0}, 4, v{vl}
    v_add_u32 v{t0}, s{sA}, v{t0}
    v_mul_u32_u24 v{t1}, {2*D_}, v{t0}
    v_and_b32 v{vs_}, 15, v{vl}
    v_lshl_add_u32 v{t1}, v{vs_}, 4, v{t1}
    s_waitcnt lgkmcnt(0)
    """)
    set_srd(k, srdX, ptr['x'], S_ * D_ * 2)
    for i in range(5):
        k.e(f"buffer_load_dwordx4 {vr(xr[i],4)}, v{t1}, s[{srdX}:{srdX+3}], 0 offen offset:{i*256}")
    set_srd(k, srdS, ptr['ws'], WS_FL - WS_ST1 + FL_BYTES, WS_ST1)
    set_srd(k, srdK, ptr['ws'], KV_BYTES, WS_KV)
    set_srd(k, srdW_, ptr['wqkv'], 3 * D_ * D_ * 2)
    k.e(f"""
    v_mov_b64 {vr(z4,2)}, 0
    v_mov_b64 {vr(z4+2,2)}, 0
    s_lshl_b32 s{sB}, s{sA}, 5
    v_lshlrev_b32 v{t1}, 4, v{vl}
    s_mov_b64 exec, 0xff
    buffer_store_dwordx4 {vr(z4,4)}, v{t1}, s[{srdK}:{srdK+3}], s{sB} offen sc1
    s_mov_b64 exec, 3
    s_lshr_b32 s{sB}, s{sA}, 4
    s_mul_i32 s{sB}, s{sB}, {FS}
    s_and_b32 s3, s{sWave}, 3
    s_lshl_b32 s3, s3, 5
    s_add_u32 s{sB}, s{sB}, s3
    s_add_u32 s{sB}, s{sB}, {WS_FL - WS_ST1}
    buffer_store_dwordx4 {vr(z4,4)}, v{t1}, s[{srdS}:{srdS+3}], s{sB} offen sc1
    s_mov_b64 exec, -1
    v_mov_b64 {vr(vs_,2)}, 0
    v_mov_b64 {vr(vq_,2)}, 0
    """)
    NB = 10
    wb = [k.v(4) for _ in range(NB)]
    ca = [[k.v(2) for _ in range(4)] for _ in range(2)]
    cu = k.v(2)
    vw, vw1, vlw, vlr, t2 = (k.v() for _ in range(5))
    sO, sO1 = k.s(), k.s()
    srdW1 = k.s(4)
    set_srd(k, srdW1, ptr['w1'], F_ * D_ * 2)
    k.e(f"""
    s_lshl_b32 s3, s{sS}, 1
    v_bfe_u32 v{t2}, v{vl}, 3, 1
    v_add_u32 v{t2}, s3, v{t2}
    v_min_u32 v{t2}, 14, v{t2}
    v_mul_u32_u24 v{vw}, 205, v{t2}
    v_lshrrev_b32 v{vw}, 10, v{vw}
    v_mul_u32_u24 v{vw}, 640, v{vw}
    v_lshl_add_u32 v{vw}, v{t2}, 7, v{vw}
    v_and_b32 v{t2}, 7, v{vl}
    v_lshl_add_u32 v{vw}, v{t2}, 4, v{vw}
    v_lshrrev_b32 v{t2}, 4, v{vl}
    v_mul_u32_u24 v{vw1}, {6 * D_}, v{t2}
    v_add_u32 v{vw}, v{vw}, v{vw1}
    s_mul_i32 s{sB}, s{sRQ}, 40
    s_add_u32 s{sB}, s{sB}, s{sWave}
    s_mul_i32 s{sO}, s{sB}, {4 * 6 * D_}
    s_mul_i32 s3, s{sCH}, 640
    s_add_u32 s{sO}, s{sO}, s3
    """)
    for it in range(5):
        k.e(f"buffer_load_dwordx4 {vr(wb[it],4)}, v{vw}, s[{srdW_}:{srdW_+3}], s{sO} offen")
        k.e(f"s_add_u32 s{sO}, s{sO}, {32 * 6 * D_}")
    k.e(f"""
    v_mul_u32_u24 v{vw1}, {2 * F_}, v{t2}
    v_and_b32 v{t2}, 15, v{vl}
    v_lshl_add_u32 v{vw1}, v{t2}, 4, v{vw1}
    s_mul_i32 s{sO1}, s{sB}, {4 * 2 * F_}
    s_min_u32 s3, s{sS}, 6
    s_mul_i32 s{sB}, s{sCH}, 7
    s_add_u32 s3, s3, s{sB}
    s_lshl_b32 s3, s3, 8
    s_add_u32 s{sO1}, s{sO1}, s3
    """)
    k.e(f"""
    v_lshlrev_b32 v{vlw}, 5, v{t2}
    s_lshl_b32 s3, s{sWave}, 9
    v_add_u32 v{vlw}, s3, v{vlw}
    v_lshlrev_b32 v{vlr}, 4, v{vl}
    """)
    sUv, sCo = k.s(), k.s()
    k.e(f"""
    s_lshl_b32 s{sUv}, s{sWave}, 3
    s_add_u32 s{sUv}, s{sUv}, s{sS}
    s_mul_i32 s{sCo}, s{sCH}, 640
    """)
    TWs = Touch(k, vl, 15, 6 * D_, seg5=True)
    u0 = 24 * OPT['hW']
    nX = 0
    if OPT['hX'] != 10:
        sRo2 = k.s()
        k.e(f"""
        s_xor_b32 s{sRo2}, s{sX8}, 1
        s_mul_i32 s{sRo2}, s{sRo2}, {256 * 2 * D_}
        """)
        TXs = Touch(k, vl, 16, 2048, share=TWs)
        TXs.unit(ptr['x'], sRo2, sUv, 0, 160)
        nX = 1
    if OPT['tlbw']:
        lt_ = k.label("tlb")
        sTp = TWs.sB
        k.e(f"s_cmp_lg_u32 s{sWave}, 0")
        k.e(f"s_cbranch_scc1 {lt_}")
        k.e(f"s_mov_b64 s[{srdK}:{srdK+1}], s[{ptr['ws']}:{ptr['ws']+1}]")
        k.e(f"s_mov_b32 s{srdK+2}, {0x1500000}")
        k.e(f"s_lshl_b32 s3, s{sS}, 22")
        for i, (nm, nb) in enumerate((('out', S_ * D_ * 2), ('w2', F_ * D_ * 2))):
            k.e(f"s_cmp_eq_u32 s{sS}, {6 + i}")
            k.e(f"s_cselect_b64 s[{srdK}:{srdK+1}], s[{ptr[nm]}:{ptr[nm]+1}], s[{srdK}:{srdK+1}]")
            k.e(f"s_cselect_b32 s{srdK+2}, {nb}, s{srdK+2}")
            k.e(f"s_cselect_b32 s3, 0, s3")
        k.e(f"v_lshlrev_b32 v{cu}, 16, v{vl}")
        k.e(f"buffer_load_dword v{k.vdummy}, v{cu}, s[{srdK}:{srdK+3}], s3 offen")
        k.place(lt_)
    nT = OPT['svT1']
    for it in range(nT):
        TWs.unit(ptr['wqkv'], sCo, sUv, u0 + 64 * it, 640)
    NB = 5 + nX + nT
    for i in range(5):
        p2_pat(i)()
    for i in range(5):
        k.e(f"s_waitcnt vmcnt({6 - i + NB})")
        for d in range(4):
            k.e(f"v_lshlrev_b32 v{ux[4*i+d]}, 16, v{xr[i]+d}")
            k.e(f"v_and_b32 v{ux[4*i+d]+1}, 0xffff0000, v{xr[i]+d}")
            k.e(f"v_pk_add_f32 {vr(vs_,2)}, {vr(vs_,2)}, {vr(ux[4*i+d],2)}")
    k.e(f"v_add_f32 v{vs_}, v{vs_}, v{vs_+1}")
    dpp_rowsum(k, vs_)
    k.e(f"s_mov_b32 s{sB}, {f32bits(1.0/640)}")
    k.e(f"v_mul_f32 v{vs_}, s{sB}, v{vs_}")
    for i in range(20):
        k.e(f"v_pk_add_f32 {vr(ux[i],2)}, {vr(ux[i],2)}, {vr(vs_,2)} op_sel_hi:[1,0] neg_lo:[0,1] neg_hi:[0,1]")
        k.e(f"v_pk_fma_f32 {vr(vq_,2)}, {vr(ux[i],2)}, {vr(ux[i],2)}, {vr(vq_,2)}")
    k.e(f"v_add_f32 v{vq_}, v{vq_}, v{vq_+1}")
    dpp_rowsum(k, vq_)
    k.e(f"v_mul_f32 v{vq_}, s{sB}, v{vq_}")
    k.e(f"s_mov_b32 s{sB}, {f32bits(1e-5)}")
    ln_finalize_multi(k, [vs_], [vq_], sB)
    k.e(f"""
    v_lshrrev_b32 v{t1}, 7, v{t0}
    v_and_b32 v{t0}, 127, v{t0}
    v_lshlrev_b32 v{t0}, 2, v{t0}
    v_lshl_add_u32 v{t0}, v{t1}, 10, v{t0}
    s_mov_b32 exec_lo, 0x00010001
    s_mov_b32 exec_hi, 0x00010001
    buffer_store_dword v{vs_}, v{t0}, s[{srdS}:{srdS+3}], 0 offen sc1
    buffer_store_dword v{vq_}, v{t0}, s[{srdS}:{srdS+3}], 0 offen offset:512 sc1
    s_mov_b64 exec, -1
    """)

    def cs_sum(younger, nowait=False):
        for a in ca[0]:
            k.e(f"v_mov_b64 {vr(a,2)}, 0")
        if nowait:
            l_ = k.label("csw")
            k.e(f"s_and_b32 s3, s{sWave}, 6")
            k.e(f"s_cmp_eq_u32 s3, 4")
            k.e(f"s_cbranch_scc1 {l_}")
            k.e("s_waitcnt vmcnt(0)")
            k.place(l_)
        for it in range(5):
            if not nowait:
                k.e(f"s_waitcnt vmcnt({4 - it + younger})")
            for d in range(4):
                k.e(f"v_lshlrev_b32 v{cu}, 16, v{wb[it] + d}")
                k.e(f"v_and_b32 v{cu+1}, 0xffff0000, v{wb[it] + d}")
                k.e(f"v_pk_add_f32 {vr(ca[0][d],2)}, {vr(ca[0][d],2)}, {vr(cu,2)}")

    def cs_pub(off_ws, lds_off):
        vals = [a + i for a in ca[0] for i in range(2)]
        allreduce4_multi(k, vals, [wb[i // 4] + i % 4 for i in range(8)])
        for h in range(4):
            k.e(f"ds_write_b64 v{vlw}, {vr(ca[0][h],2)} offset:{lds_off + 8*h}")
        k.e("s_waitcnt lgkmcnt(0)")
        k.e("s_barrier")
        lsk = k.label("csk")
        k.e(f"s_cmp_lg_u32 s{sWave}, 0")
        k.e(f"s_cbranch_scc1 {lsk}")
        for w in range(8):
            k.e(f"ds_read_b128 {vr(wb[w],4)}, v{vlr} offset:{lds_off + 512*w}")
        k.e(f"""
        s_lshl_b32 s3, s{sPi}, 9
        s_add_u32 s3, s3, {off_ws - WS_ST1}
        s_waitcnt lgkmcnt(0)
        """)
        for w in range(1, 8):
            for j in range(2):
                k.e(f"v_pk_add_f32 {vr(wb[0]+2*j,2)}, {vr(wb[0]+2*j,2)}, {vr(wb[w]+2*j,2)}")
        k.e("s_mov_b32 exec_hi, 0")
        k.e(f"buffer_store_dwordx4 {vr(wb[0],4)}, v{vlr}, s[{srdS}:{srdS+3}], s3 offen sc1")
        k.e("s_mov_b64 exec, -1")
        k.e("s_nop 1")
        k.place(lsk)
    cs_sum(nT + nX + 2)
    k.stamp_c("p1_pre")
    cs_pub(WS_CS1, 0)
    set_srd(k, srdX, ptr['dbg'], 256)
    k.e("s_waitcnt vmcnt(0)")
    k.e("s_barrier")
    lf = k.label("svf")
    k.e(f"""
    s_cmp_eq_u32 s{sWave}, 7
    s_cbranch_scc0 {lf}
    s_lshl_b32 s3, s{sPi}, {1 if OPT['diag'] else 2}
    v_mov_b32 v{t0}, s3
    v_mov_b32 v{t1}, 1
    s_mov_b64 exec, 1
    {'buffer_store_short' if OPT['diag'] else 'buffer_store_dword'} v{t1}, v{t0}, s[{srdX}:{srdX+3}], 0 offen {'offset:128' if OPT['diag'] else ''} sc1
    s_mov_b64 exec, -1
    """)
    k.place(lf)
    k.stamp_c("p1_b0")
    k.e("s_barrier")
    n2 = 0
    while u0 + 64 * (nT + n2) < 160:
        TWs.unit(ptr['wqkv'], sCo, sUv, u0 + 64 * (nT + n2), 640, skip=True); n2 += 1
    T5 = Touch(k, vl, 5, 2 * D_, share=TWs)
    if OPT['svwo']:
        T5.unit(ptr['wo'], sCo, sUv, 0, 640, skip=True)
    else:
        T5.unit(ptr['wo'], sCo, sUv, 48, 640, skip=True)
    for it in range(5):
        k.e(f"buffer_load_dwordx4 {vr(wb[it],4)}, v{vw1}, s[{srdW1}:{srdW1+3}], s{sO1} offen")
        k.e(f"s_add_u32 s{sO1}, s{sO1}, {32 * 2 * F_}")
    T14 = Touch(k, vl, 14, 2 * F_, share=TWs)
    k.e(f"s_mul_i32 s{sB}, s{sCH}, {13 * 128}")
    for it in range(OPT['svw1']):
        T14.unit(ptr['w1'], sB, sUv, 64 * it, 640)
    cs_sum(OPT['svw1'])
    cs_pub(WS_CS3, 4096)
    for it in range(OPT['svw2']):
        T5.unit(ptr['w2'], sCo, sUv, 64 * it, 1728)
    k.e("s_waitcnt vmcnt(0)")
    k.stamp_c("p1_loop")
    k.e(f"s_mov_b32 s{sSvc}, 1")
    k.e(f"s_branch {Lrole}")
    k.release(mV)

    k.lines.append('; @SEC cons')
    k.place(Lc)
    sW0, sW1 = k.s(), k.s()
    sA = k.s(2, 2)
    sB = sA + 1
    sEps = k.s(2, 2)
    srd0, srd1, srd2 = k.s(4), k.s(4), k.s(4)
    k.e(f"""
    s_and_b32 s{sW0}, s{sWave}, 1
    s_lshr_b32 s{sW1}, s{sWave}, 1
    s_mov_b32 s{sEps}, {f32bits(1e-6)}
    s_mov_b32 s{sEps+1}, {f32bits(1e-6)}
    """)
    mC = k.mark()
    sG, sC, sTy = dec1()
    Lq, Lp1done, Lqs, Lsj, Lsv2 = (k.label(x) for x in ("consq", "p1done", "qset", "setj", "sv2"))
    srdK = srd0
    k.e("s_waitcnt lgkmcnt(0)")
    set_srd(k, srdK, ptr['ws'], KV_BYTES, WS_KV)
    k.e(f"s_cmp_eq_u32 s{sTy}, 2")
    k.e(f"s_cbranch_scc1 {Lsv2}")
    mP1 = k.mark()
    ar = [k.v() for _ in range(11)]
    va = {(vi, ki): ar[2 * vi + ki] for vi in range(2) for ki in range(2)}
    vz, vrd, vat = ar[4:6], ar[6], ar[7:11]
    ad, vso = [[ar[2 * hh], ar[2 * hh + 1]] for hh in range(4)], ar[8]
    m1 = k.mark()
    sB2 = k.s()
    vd, ve = [k.v(), k.v()], [k.v(), k.v()]
    voob, t1 = k.v(), k.v()
    sM = k.s(2)
    k.e(f"s_cmp_eq_u32 s{sTy}, 1")
    k.e(f"s_cbranch_scc1 {Lqs}")
    k.e(f"""
    s_movk_i32 s{sB2}, 504
    s_lshl_b32 s{sA}, s{sWave}, 2
    v_and_b32 v{t1}, 15, v{vl}
    v_subrev_u32 v{vd[0]}, s{sA}, v{t1}
    v_add_u32 v{vd[1]}, 16, v{vd[0]}
    v_lshrrev_b32 v{t1}, 4, v{vl}
    v_lshlrev_b32 v{t1}, 2, v{t1}
    v_subrev_u32 v{ve[0]}, s{sA}, v{t1}
    v_add_u32 v{ve[1]}, 16, v{ve[0]}
    v_mov_b32 v{voob}, 2048
    """)
    for vi in range(2):
        for ki in range(2):
            k.e(f"""
            v_mul_u32_u24 v{t1}, 24, v{ve[vi]}
            v_add_lshl_u32 v{t1}, v{t1}, v{vd[ki]}, 2
            v_cmp_gt_u32 vcc, 20, v{ve[vi]}
            v_cmp_gt_u32 s[{sM}:{sM+1}], 20, v{vd[ki]}
            s_nop 1
            s_and_b64 vcc, vcc, s[{sM}:{sM+1}]
            s_nop 1
            v_cndmask_b32 v{va[(vi,ki)]}, v{voob}, v{t1}, vcc
            """)
    for ki in range(2):
        k.e(f"""
        v_lshlrev_b32 v{t1}, 2, v{vd[ki]}
        v_add_u32 v{t1}, {20*96}, v{t1}
        v_cmp_gt_u32 vcc, 16, v{vl}
        v_cmp_gt_u32 s[{sM}:{sM+1}], 20, v{vd[ki]}
        s_nop 1
        s_and_b64 vcc, vcc, s[{sM}:{sM+1}]
        s_nop 1
        v_cndmask_b32 v{vz[ki]}, v{voob}, v{t1}, vcc
        """)
    assert P1_AT + 4 * 2560 <= LDS_TOTAL
    k.e(f"s_mul_i32 s{sA}, s{sWave}, 2560")
    k.e(f"s_add_u32 s{sA}, s{sA}, {P1_AT}")
    for x in list(va.values()) + vz:
        k.e(f"v_add_u32 v{x}, s{sA}, v{x}")
    k.e(f"v_lshl_add_u32 v{vrd}, v{vl}, 2, s{sA}")
    k.e(f"v_mov_b32 v{voob}, {OOB}")
    for n, base in enumerate((0, 64, 128, 448)):
        k.e(f"""
        v_add_u32 v{t1}, {base}, v{vl}
        v_mul_u32_u24 v{vd[0]}, 2731, v{t1}
        v_lshrrev_b32 v{vd[0]}, 16, v{vd[0]}
        v_mul_u32_u24 v{vd[0]}, 24, v{vd[0]}
        v_sub_u32 v{vd[0]}, v{t1}, v{vd[0]}
        v_cmp_gt_u32 vcc, 20, v{vd[0]}
        v_cmp_gt_u32 s[{sM}:{sM+1}], s{sB2}, v{t1}
        v_lshlrev_b32 v{t1}, 2, v{t1}
        s_nop 0
        s_and_b64 vcc, vcc, s[{sM}:{sM+1}]
        s_nop 1
        v_cndmask_b32 v{vat[n]}, v{voob}, v{t1}, vcc
        """)
    k.e(f"s_branch {Lsj}")
    k.place(Lqs)

    vb, vc, t0 = vd[0], vd[1], ve[0]
    k.e(f"""
    s_mul_i32 s{sA}, s{sW1}, 20480
    s_mul_i32 s{sB}, s{sW0}, 5120
    s_add_u32 s{sA}, s{sA}, s{sB}
    v_lshlrev_b32 v{vso}, 4, v{vl}
    v_mov_b32 v{ar[9]}, {OOB}
    v_mov_b32 v{ar[10]}, {OOB}
    v_and_b32 v{vb}, 3, v{vl}
    v_lshlrev_b32 v{vb}, 8, v{vb}
    v_add_u32 v{vb}, s{sA}, v{vb}
    v_lshrrev_b32 v{t0}, 4, v{vl}
    v_min_u32 v{t0}, 2, v{t0}
    v_bfe_u32 v{vc}, v{vl}, 2, 2
    v_lshl_add_u32 v{vc}, v{t0}, 3, v{vc}
    v_cmp_gt_u32 vcc, 2, v{t0}
    s_nop 1
    v_cndmask_b32 v{t1}, 0, 4, vcc
    """)
    for hh in range(4):
        for hf in range(2):
            a = ad[hh][hf]
            k.e(f"v_add_u32 v{t0}, {20*hh}, v{vc}")
            if hf:
                k.e(f"v_add_u32 v{t0}, v{t0}, v{t1}")
            k.e(f"""
            v_lshrrev_b32 v{a}, 4, v{t0}
            v_lshl_add_u32 v{a}, v{a}, 10, v{vb}
            v_and_b32 v{t0}, 15, v{t0}
            v_lshl_add_u32 v{a}, v{t0}, 4, v{a}
            """)
    k.place(Lsj)
    k.release(m1)
    vc0, vc2, vc3, vst, vx0, vx2, vxr = (k.v() for _ in range(7))
    ones = k.v(4)
    sX0, sX3 = k.s(), k.s()
    k.e(f"""
    s_cmp_eq_u32 s{sTy}, 1
    s_cselect_b32 s{sX0}, 5, 3
    s_cselect_b32 s{sX3}, 3, 5
    s_mul_i32 s{sX0}, s{sX0}, s{sW0}
    s_add_u32 s{sX3}, s{sX3}, s{sX0}
    v_and_b32 v{vc0}, 15, v{vl}
    v_lshlrev_b32 v{vc0}, 2, v{vc0}
    v_add_u32 v{vc0}, {P1_ST + 1024}, v{vc0}
    s_mul_i32 s{sA}, s{sW0}, 320
    v_add_u32 v{vc2}, s{sA}, v{vc0}
    s_lshl_b32 s{sA}, s{sX3}, 6
    v_add_u32 v{vc3}, s{sA}, v{vc0}
    s_lshl_b32 s{sA}, s{sX0}, 6
    v_add_u32 v{vc0}, s{sA}, v{vc0}
    v_lshrrev_b32 v{vst}, 4, v{vl}
    v_lshlrev_b32 v{vst}, 4, v{vst}
    s_lshl_b32 s{sA}, s{sW1}, 8
    s_add_u32 s{sA}, s{sA}, {P1_ST}
    v_add_u32 v{vst}, s{sA}, v{vst}
    v_lshlrev_b32 v{vxr}, 4, v{vl}
    s_mul_i32 s{sA}, s{sW1}, 20480
    s_lshl_b32 s{sB}, s{sX0}, 10
    s_add_u32 s{sB}, s{sB}, s{sA}
    v_add_u32 v{vx0}, s{sB}, v{vxr}
    s_mul_i32 s{sB}, s{sW0}, 5120
    s_add_u32 s{sB}, s{sB}, s{sA}
    v_add_u32 v{vx2}, s{sB}, v{vxr}
    s_lshl_b32 s{sA}, s{sWave}, 10
    v_add_u32 v{vxr}, s{sA}, v{vxr}
    """)
    for x in (sX0, sX3):
        k.e(f"""
        s_cmp_ge_u32 s{x}, 5
        s_cselect_b32 s3, {2560 - 160}, 0
        s_lshl_b32 s{x}, s{x}, 5
        s_add_u32 s{x}, s{x}, s3
        """)
    ckv.mixed = (sX0, sX3)
    for j in range(4):
        k.e(f"v_mov_b32 v{ones+j}, 0x3f803f80")
    o = consumer_setup(k, ckv, sW1, sW0, vl)
    k.e(f"s_mov_b32 s{sA}, {f32bits(LOG2E)}")
    k.e(f"s_mov_b32 s{sB}, {f32bits(LOG2E)}")
    consumer_loop(k, o, None, tag="p1")
    tp = k.v(2)
    cs = [k.v(2) for _ in range(5)]
    stm = [k.v(4) for _ in range(4)]
    str_ = [k.v(4) for _ in range(4)]
    r2 = [k.v(4) for _ in range(4)]
    fr = [k.v(4), k.v(4)]
    Dz = [k.v(4), k.v(4)]
    k.e("s_barrier")
    k.stamp_c("p1_e1")
    co = [0, 64, 128, 0, 64]
    for nt in range(5):
        k.e(f"ds_read_b32 v{cs[nt]}, v{[vc0, vc0, vc2, vc3, vc3][nt]} offset:{co[nt]}")
    for mt in range(4):
        k.e(f"ds_read_b128 {vr(stm[mt],4)}, v{vst} offset:{mt*64}")
    for mt in range(4):
        k.e(f"ds_read_b128 {vr(str_[mt],4)}, v{vst} offset:{512 + mt*64}")
    for mt in range(4):
        k.e(f"s_waitcnt lgkmcnt({7 - mt})")
        for nt in range(5):
            a = o.acc[mt][nt]
            for j in range(2):
                k.e(f"v_pk_fma_f32 {vr(a+2*j,2)}, {vr(stm[mt]+2*j,2)}, {vr(cs[nt],2)}, {vr(a+2*j,2)} op_sel_hi:[1,0,1] neg_lo:[1,0,0] neg_hi:[1,0,0]")
    k.e("s_waitcnt lgkmcnt(0)")
    assert sB == sA + 1 and sA % 2 == 0
    for mt in range(4):
        for j in range(2):
            k.e(f"v_pk_mul_f32 {vr(r2[mt]+2*j,2)}, {vr(str_[mt]+2*j,2)}, s[{sA}:{sA+1}]")
    xo = [0, 1, 2, 5, 6]

    def fin_tile(nt, is_k, xo=xo):
        for tg in range(2):
            for mt in (2 * tg, 2 * tg + 1):
                for j in range(2):
                    a = o.acc[mt][nt] + 2 * j
                    if is_k:
                        phi_pair(k, a, str_[mt] + 2 * j, r2[mt] + 2 * j, sEps, tp)
                    else:
                        k.e(f"v_pk_mul_f32 {vr(a,2)}, {vr(a,2)}, {vr(str_[mt]+2*j,2)}")
            f = fr[tg]
            for i, mt in enumerate((2 * tg, 2 * tg + 1)):
                a = o.acc[mt][nt]
                k.e(f"v_cvt_pk_bf16_f32 v{f + 2*i}, v{a}, v{a+1}")
                k.e(f"v_cvt_pk_bf16_f32 v{f + 2*i + 1}, v{a+2}, v{a+3}")
            k.e(f"ds_write_b128 v{vx2 if nt == 2 else vx0}, {vr(f,4)} offset:{tg*10240 + xo[nt]*1024}")
    for nt in (0, 1):
        fin_tile(nt, True)
    Lv, Lj, Lk2 = k.label("vpath"), k.label("vjoin"), k.label("k2")
    k.e(f"s_cmp_eq_u32 s{sTy}, 1")
    k.e(f"s_cbranch_scc1 {Lq}")
    for nt in (3, 4):
        fin_tile(nt, False)
    k.e(f"s_cmp_eq_u32 s{sW0}, 1")
    k.e(f"s_cbranch_scc1 {Lv}")
    fin_tile(2, True)
    k.e(f"s_branch {Lj}")
    k.place(Lv)
    fin_tile(2, False)
    k.place(Lj)
    k.e(f"""
    s_lshl_b32 s{sA}, s{sC}, 2
    s_add_u32 s{sA}, s{sA}, s{sWave}
    s_lshl_b32 s{sA}, s{sA}, 11
    s_waitcnt lgkmcnt(0)
    s_barrier
    """)
    k.stamp_c("p1_e2")
    accs = [o.acc[mt][nt] for mt in range(4) for nt in range(5)]
    F = {}
    idx = 0
    for tg in range(4):
        for nm, off in (("k0", 0), ("k1", 1), ("v0", 5), ("v1", 6)):
            F[(tg, nm)] = accs[idx]; idx += 1
            if idx == 16:
                k.e("s_waitcnt lgkmcnt(11)")
            k.e(f"ds_read_b128 {vr(F[(tg, nm)],4)}, v{vxr} offset:{tg*10240 + off*1024}")
    Dk = {(vi, ki): accs[16 + 2 * vi + ki] for vi in range(2) for ki in range(2)}
    for tg in range(4):
        k.e(f"s_waitcnt lgkmcnt({12 - 4*tg})")
        for vi in range(2):
            for ki in range(2):
                d = Dk[(vi, ki)]
                k.e(f"v_mfma_f32_16x16x32_bf16 {vr(d,4)}, {vr(F[(tg, f'v{vi}')],4)}, {vr(F[(tg, f'k{ki}')],4)}, " + ("0" if tg == 0 else vr(d, 4)))
        for ki in range(2):
            d = Dz[ki]
            k.e(f"v_mfma_f32_16x16x32_bf16 {vr(d,4)}, {vr(ones,4)}, {vr(F[(tg, f'k{ki}')],4)}, " + ("0" if tg == 0 else vr(d, 4)))
    k.e("s_nop 3")
    for vi in range(2):
        for ki in range(2):
            for j in range(4):
                k.e(f"ds_write_b32 v{va[(vi,ki)]}, v{Dk[(vi,ki)]+j} offset:{j*96}")
            if (vi, ki) == (1, 0):
                k.e("s_waitcnt lgkmcnt(6)")
    for ki in range(2):
        k.e(f"ds_write_b32 v{vz[ki]}, v{Dz[ki]}")
    k.e("s_waitcnt lgkmcnt(0)")
    for n in range(8):
        k.e(f"ds_read_b32 v{accs[n // 4] + n % 4}, v{vrd} offset:{n*256}")
    for n in range(8):
        k.e(f"s_waitcnt lgkmcnt({7 - n})")
        k.e(f"buffer_atomic_add_f32 v{accs[n // 4] + n % 4}, v{vat[n % 3] if n < 7 else vat[3]}, s[{srdK}:{srdK+3}], s{sA} offen offset:{(n // 3) * 768 if n < 7 else 0}")
    k.e(f"s_branch {Lp1done}")
    k.place(Lq)
    srdP = srd1
    set_srd(k, srdP, ptr['ws'], S_ * 1536, WS_PQ)
    sQ = k.s()
    k.e(f"""
    s_lshl_b32 s{sQ}, s{sG}, 1
    s_add_u32 s{sQ}, s{sQ}, s{sW1}
    s_lshl_b32 s{sQ}, s{sQ}, 4
    s_add_u32 s{sQ}, s{sQ}, s{sC}
    s_lshl_b32 s{sQ}, s{sQ}, 1
    s_add_u32 s{sQ}, s{sQ}, s{sW0}
    s_mul_i32 s{sQ}, s{sQ}, {4 * 768}
    """)
    qb = [stm[0], stm[1], stm[2], stm[3]]

    def q_rd(hh):
        k.e("s_waitcnt lgkmcnt(0)")
        for i in range(4):
            for hf in range(2):
                k.e(f"ds_read_b64_tr_b16 {vr(o.acc[i][hh] + 2*hf, 2)}, v{ad[hh][hf]} offset:{(i // 2) * 10240 + 8 * (i % 2)}")

    def q_st(hh, pend):
        k.e(f"s_waitcnt lgkmcnt({pend})")
        k.e("s_mov_b32 exec_hi, 0xffff")
        for i in range(4):
            k.e(f"s_add_u32 s3, s{sQ}, {i * 32 * 768}")
            k.e(f"buffer_store_dwordx4 {vr(o.acc[i][hh],4)}, v{vso}, s[{srdP}:{srdP+3}], s3 offen offset:{hh*768} sc1")
        k.e("s_mov_b64 exec, -1")
    xq = [0, 1, 2, 3, 4]
    for hh in range(4):
        q_rd(hh)
        if hh < 3:
            fin_tile(hh + 2, True, xo=xq)
            q_st(hh, 2)
        else:
            q_st(hh, 0)
        if hh == 1:
            k.e("s_barrier")
    k.stamp_c("p1_e2")
    k.e(f"s_branch {Lp1done}")
    k.release(mP1)
    k.place(Lsv2)
    k.e("s_barrier")
    k.e("s_barrier")
    k.e(f"s_branch {Lp1done}")
    k.lines.append('; @SEC cons2')
    k.place(Lp1done)
    k.stamp_c("p1_st")
    k.release(mC)
    sRB, sCT = dec2()
    PQ = [k.v(64, 4), k.v(64, 4)]
    big = k.v(80, 4)
    xr = [k.v(4), k.v(4), k.v(2)]
    cE = k.v(4)
    vO, vO2, vrow, vPq, vKa, vKb, vW, vW2, vXw, vXr, t0, t1, t2 = (k.v() for _ in range(13))
    sM = k.s(2)
    k.e(f"""
    s_lshl_b32 s{sA}, s{sRB}, 6
    s_lshl_b32 s{sB}, s{sW0}, 5
    s_add_u32 s{sA}, s{sA}, s{sB}
    s_lshl_b32 s{sB}, s{sW1}, 4
    s_add_u32 s{sA}, s{sA}, s{sB}
    v_and_b32 v{t2}, 15, v{vl}
    v_add_u32 v{vrow}, s{sA}, v{t2}
    v_mul_u32_u24 v{vO}, {2*D_}, v{vrow}
    s_mul_i32 s{sA}, s{sCT}, 160
    v_add_u32 v{vO}, s{sA}, v{vO}
    v_lshrrev_b32 v{t1}, 4, v{vl}
    v_lshl_add_u32 v{vO2}, v{t1}, 3, v{vO}
    v_bfe_u32 v{t0}, v{vl}, 4, 1
    v_lshl_add_u32 v{vO}, v{t0}, 5, v{vO}
    v_lshrrev_b32 v{t0}, 5, v{vl}
    v_lshl_add_u32 v{vO}, v{t0}, 4, v{vO}
    v_cmp_eq_u32 vcc, 3, v{t1}
    v_lshrrev_b32 v{t0}, 2, v{t2}
    v_add_u32 v{vKa}, v{t0}, v{t2}
    v_cndmask_b32 v{vPq}, v{t1}, 1, vcc
    v_lshlrev_b32 v{vPq}, 8, v{vPq}
    v_lshl_add_u32 v{vPq}, v{t2}, 4, v{vPq}
    v_mul_u32_u24 v{vKb}, 5, v{t0}
    v_add_u32 v{vKb}, 4, v{vKb}
    v_and_b32 v{t0}, 3, v{t2}
    v_cmp_eq_u32 s[{sM}:{sM+1}], 0, v{t0}
    v_mov_b32 v{t0}, 20
    s_nop 0
    v_cndmask_b32 v{vKb}, v{t0}, v{vKb}, s[{sM}:{sM+1}]
    v_mul_u32_u24 v{vKa}, 48, v{vKa}
    v_mul_u32_u24 v{vKb}, 48, v{vKb}
    v_lshl_add_u32 v{vKa}, v{t1}, 4, v{vKa}
    v_lshl_add_u32 v{vKb}, v{t1}, 4, v{vKb}
    v_mov_b32 v{t0}, 1008
    v_cndmask_b32 v{vKa}, v{vKa}, v{t0}, vcc
    v_cndmask_b32 v{vKb}, v{vKb}, v{t0}, vcc
    s_lshl_b32 s{sA}, s{sW1}, 14
    s_add_u32 s{sA}, s{sA}, {L_KV}
    v_add_u32 v{vKa}, s{sA}, v{vKa}
    v_add_u32 v{vKb}, s{sA}, v{vKb}
    v_bfe_u32 v{t0}, v{vl}, 2, 3
    v_lshrrev_b32 v{t1}, 5, v{vl}
    v_mul_u32_u24 v{t1}, 2560, v{t1}
    v_mul_u32_u24 v{t0}, 160, v{t0}
    v_add_u32 v{vW}, v{t1}, v{t0}
    v_and_b32 v{t0}, 3, v{vl}
    v_lshl_add_u32 v{vW}, v{t0}, 3, v{vW}
    s_mul_i32 s{sA}, s{sW1}, 51200
    s_add_u32 s{sA}, s{sA}, {L_W2}
    v_add_u32 v{vW}, s{sA}, v{vW}
    s_mul_i32 s{sA}, s{sWave}, 5120
    s_add_u32 s{sA}, s{sA}, {L_X2}
    v_lshlrev_b32 v{t0}, 4, v{vl}
    v_add_u32 v{vXw}, s{sA}, v{t0}
    s_xor_b32 s{sA}, s{sWave}, 2
    s_mul_i32 s{sA}, s{sA}, 5120
    s_add_u32 s{sA}, s{sA}, {L_X2}
    v_add_u32 v{vXr}, s{sA}, v{t0}
    v_lshlrev_b32 v{vW2}, 4, v0
    v_lshlrev_b32 v{t2}, 3, v0
    s_lshl_b32 s{sA}, s{sJ}, 11
    v_add_u32 v{t2}, s{sA}, v{t2}
    v_and_b32 v{t2}, 0x7fff, v{t2}
    v_mov_b32 v{cE}, 0
    v_mov_b32 v{cE+1}, s{sEps}
    v_mov_b64 {vr(cE+2,2)}, 0
    """)
    srdX, srdP = srd2, srd1
    set_srd(k, srdX, ptr['x'], S_ * D_ * 2)
    set_srd(k, srdP, ptr['ws'], S_ * 1536, WS_PQ)
    k.e(f"""
    s_lshl_b32 s{sA}, s{sRB}, 2
    s_lshl_b32 s{sB}, s{sW0}, 1
    s_add_u32 s{sA}, s{sA}, s{sB}
    s_add_u32 s{sA}, s{sA}, s{sW1}
    s_xor_b32 s{sB}, s{sA}, 1
    s_lshl_b32 s{sA}, s{sA}, 1
    s_add_u32 s{sA}, s{sA}, s{sW1}
    s_mul_i32 s{sA}, s{sA}, {16 * 768}
    s_lshl_b32 s{sB}, s{sB}, 1
    s_add_u32 s{sB}, s{sB}, s{sW1}
    s_mul_i32 s{sB}, s{sB}, {16 * 768}
    s_waitcnt vmcnt(0)
    s_barrier
    """)
    k.stamp_c("p1_e3")
    k.e(f"buffer_load_dwordx4 {vr(xr[0],4)}, v{vO}, s[{srdX}:{srdX+3}], 0 offen")
    k.e(f"buffer_load_dwordx4 {vr(xr[1],4)}, v{vO}, s[{srdX}:{srdX+3}], 0 offen offset:64")
    k.e(f"buffer_load_dwordx2 {vr(xr[2],2)}, v{vO2}, s[{srdX}:{srdX+3}], 0 offen offset:128")
    sKo = k.s()
    pql = []
    for h in range(16):
        pre = []
        if h % 5 == 0 and h:
            pre = [f"s_add_u32 s{sA}, s{sA}, {5 * 768}", f"s_add_u32 s{sB}, s{sB}, {5 * 768}"]
        for i, sx in enumerate((sA, sB)):
            pql.append(pre + [f"buffer_load_dwordx4 {vr(PQ[i] + 4*h, 4)}, v{vPq}, s[{srdP}:{srdP+3}], s{sx} offen offset:{(h % 5) * 768} sc1"])
            pre = []
    k.e("s_barrier")
    k.stamp_c("p2_q")
    lead = OPT['pqq']
    for x in pql[:lead]:
        k.emit_list(x)
    k.e("s_barrier")
    k.stamp_c("p2_k")
    k.e(f"s_lshl_b32 s{sKo}, s{sJ}, 12")
    for i in range(16):
        k.e(f"s_and_b32 s{sKo}, s{sKo}, 0xffff")
        k.e(f"buffer_load_dwordx4 {vr(big + 4*i, 4)}, v{vW2}, s[{srdK}:{srdK+3}], s{sKo} offen sc1")
        k.e(f"s_add_u32 s{sKo}, s{sKo}, 4096")
    npq = 0
    for i in range(16):
        r = big + 4 * i
        k.e(f"s_waitcnt vmcnt({15 - i + npq})")
        k.e(f"v_cvt_pk_bf16_f32 v{r}, v{r}, v{r+1}")
        k.e(f"v_cvt_pk_bf16_f32 v{r+1}, v{r+2}, v{r+3}")
        k.e(f"ds_write_b64 v{t2}, {vr(r,2)}")
        k.e(f"v_add_u32 v{t2}, 2048, v{t2}")
        k.e(f"v_and_b32 v{t2}, 0x7fff, v{t2}")
        if i == 7:
            k.e("s_waitcnt lgkmcnt(4)")
        if i >= 8 and lead < 32:
            k.emit_list(pql[lead]); lead += 1; npq += 1
    k.e("s_waitcnt lgkmcnt(0)")
    k.e("s_barrier")
    k.stamp_c("p2_c")
    fka = [[big + 0, big + 4], [big + 8, big + 12]]
    fkb = [[big + 16, big + 20], [big + 24, big + 28]]
    Da = [[big + 32, big + 36], [big + 40, big + 44]]
    Db = [[big + 48, big + 52], [big + 56, big + 60]]

    def rd(p_):
        b = p_ % 2
        out = []
        for i in range(2):
            h = 2 * p_ + i
            out.append(f"ds_read_b128 {vr(fkb[b][i],4)}, v{vKb} offset:{h*1024}")
            out.append(f"ds_read_b128 {vr(fka[b][i],4)}, v{vKa} offset:{h*1024}")
        return out

    def mm(u):
        p_, ti = u // 2, u % 2
        b = p_ % 2
        out = []
        for i in range(2):
            h = 2 * p_ + i
            out.append(f"v_mfma_f32_16x16x32_bf16 {vr(Db[ti][i],4)}, {vr(fkb[b][i],4)}, {vr(PQ[ti] + 4*h,4)}, {vr(cE,4)}")
            out.append(f"v_mfma_f32_16x16x32_bf16 {vr(Da[ti][i],4)}, {vr(fka[b][i],4)}, {vr(PQ[ti] + 4*h,4)}, 0")
        return out

    def fin(u):
        p_, ti = u // 2, u % 2
        out = [f"v_rcp_f32 v{Db[ti][i]+1}, v{Db[ti][i]+1}" for i in range(2)]
        vals = []
        for i in range(2):
            a, d = Da[ti][i], Db[ti][i]
            if OPT['omode'] == 1:
                out += [f"v_mul_f32 v{a+j}, v{a+j}, v{d+1}" for j in range(4)]
            else:
                out.append(f"v_pk_mul_f32 {vr(a,2)}, {vr(a,2)}, {vr(d,2)} op_sel:[0,1]")
                out.append(f"v_pk_mul_f32 {vr(a+2,2)}, {vr(a+2,2)}, {vr(d,2)} op_sel:[0,1]")
            out.append(f"v_mul_f32 v{d}, v{d}, v{d+1}")
            vals += [a, a + 1, a + 2, a + 3, d]
        out += [f"v_cvt_pk_bf16_f32 v{PQ[ti] + 5*p_ + d}, v{vals[2*d]}, v{vals[2*d+1]}" for d in range(5)]
        return out
    fw = [[big + 4 * i for i in range(5)], [big + 20 + 4 * i for i in range(5)]]

    def wrd(s):
        return [f"ds_read_b64_tr_b16 {vr(fw[s & 1][nt] + 2*h, 2)}, v{vW} offset:{s * 5120 + h * 1280 + nt * 32}" for nt in range(5) for h in range(2)]

    def vm_need(p_):
        assert lead >= 4 * p_ + 4
        k.e(f"s_waitcnt vmcnt({lead - (4 * p_ + 4)})")
    k.emit_list(rd(0) + rd(1))
    vm_need(0)
    k.e("s_waitcnt lgkmcnt(4)")
    k.emit_list(mm(0))
    k.e("s_nop 5")
    for u in range(16):
        f = fin(u)
        if u + 1 < 16:
            if (u + 1) % 2 == 0:
                vm_need((u + 1) // 2)
                k.e(f"s_waitcnt lgkmcnt({4 if (u + 1) // 2 + 1 < 8 else 0})")
            m_ = mm(u + 1)
            if OPT['omode'] == 2:
                k.emit_list(m_)
                k.emit_list(f)
            else:
                q_ = len(f) // 4
                for i in range(4):
                    k.e(m_[i])
                    k.emit_list(f[q_ * i: q_ * i + q_] if i < 3 else f[3 * q_:])
            if (u + 1) % 2 == 1 and (u + 1) // 2 + 2 < 8:
                k.emit_list(rd((u + 1) // 2 + 2))
            for _ in range(OPT['pqper']):
                if lead < 32:
                    k.emit_list(pql[lead]); lead += 1
                    if lead == 32:
                        k.e("s_barrier")
        else:
            k.emit_list(wrd(0))
            k.emit_list(f)
    k.stamp_c("p2_o")
    acc = [[big + 40 + 20 * ti + 4 * i for i in range(5)] for ti in range(2)]
    for s in range(10):
        r = wrd(s + 1) if s + 1 < 10 else []
        issued = 0
        for nt in range(5):
            k.e(f"s_waitcnt lgkmcnt({8 - 2*nt + issued})")
            for ti in range(2):
                k.e(f"v_mfma_f32_16x16x32_bf16 {vr(acc[ti][nt],4)}, {vr(fw[s & 1][nt],4)}, {vr(PQ[ti] + 4*s,4)}, " + ("0" if s == 0 else vr(acc[ti][nt], 4)))
                if r:
                    k.e(r[2 * nt + ti]); issued += 1
    srdH, srdS = srd1, srd2
    set_srd(k, srdH, ptr['ws'], S_ * D_ * 2, WS_H)
    set_srd(k, srdS, ptr['ws'], S_ * 64, WS_ST2)
    k.stamp_c("p2_g")
    for nt in range(5):
        k.e(f"ds_write_b128 v{vXw}, {vr(acc[1][nt],4)} offset:{nt*1024}")
    vs_, vq_, u = big + 20, big + 22, big + 24
    k.e(f"v_mov_b64 {vr(vs_,2)}, 0")
    k.e(f"v_mov_b64 {vr(vq_,2)}, 0")
    k.e("s_waitcnt lgkmcnt(0)")
    k.e("s_barrier")
    for nt in range(5):
        k.e(f"ds_read_b128 {vr(fw[0][nt],4)}, v{vXr} offset:{nt*1024}")
    pk = [big + 28, big + 32, big + 36]
    for nt in range(5):
        a = acc[0][nt]
        k.e(f"s_waitcnt lgkmcnt({4 - nt})")
        k.e(f"v_pk_add_f32 {vr(a,2)}, {vr(a,2)}, {vr(fw[0][nt],2)}")
        k.e(f"v_pk_add_f32 {vr(a+2,2)}, {vr(a+2,2)}, {vr(fw[0][nt]+2,2)}")
        d = pk[nt // 2] + 2 * (nt & 1)
        k.e(f"v_cvt_pk_bf16_f32 v{d}, v{a}, v{a+1}")
        k.e(f"v_cvt_pk_bf16_f32 v{d+1}, v{a+2}, v{a+3}")
    for pr in range(2):
        k.e(f"v_permlane16_swap_b32 v{pk[pr]}, v{pk[pr]+2}")
        k.e(f"v_permlane16_swap_b32 v{pk[pr]+1}, v{pk[pr]+3}")
    for pr in range(3):
        for d in range(4 if pr < 2 else 2):
            r, x = pk[pr] + d, xr[pr] + d
            k.e(f"""
            v_lshlrev_b32 v{u}, 16, v{r}
            v_and_b32 v{u+1}, 0xffff0000, v{r}
            v_lshlrev_b32 v{u+2}, 16, v{x}
            v_and_b32 v{u+3}, 0xffff0000, v{x}
            v_pk_add_f32 {vr(u,2)}, {vr(u,2)}, {vr(u+2,2)}
            v_cvt_pk_bf16_f32 v{r}, v{u}, v{u+1}
            """)
        if pr < 2:
            k.e(f"buffer_store_dwordx4 {vr(pk[pr],4)}, v{vO}, s[{srdH}:{srdH+3}], 0 offen offset:{pr*64} sc1")
        else:
            k.e(f"buffer_store_dwordx2 {vr(pk[pr],2)}, v{vO2}, s[{srdH}:{srdH+3}], 0 offen offset:128 sc1")
    for pr in range(3):
        for d in range(4 if pr < 2 else 2):
            r = pk[pr] + d
            k.e(f"""
            v_lshlrev_b32 v{u}, 16, v{r}
            v_and_b32 v{u+1}, 0xffff0000, v{r}
            v_pk_add_f32 {vr(vs_,2)}, {vr(vs_,2)}, {vr(u,2)}
            v_pk_fma_f32 {vr(vq_,2)}, {vr(u,2)}, {vr(u,2)}, {vr(vq_,2)}
            """)
    k.e(f"v_add_f32 v{vs_}, v{vs_}, v{vs_+1}")
    k.e(f"v_add_f32 v{vs_+1}, v{vq_}, v{vq_+1}")
    allreduce4_multi(k, [vs_, vs_ + 1], [t0, t1])
    k.e(f"""
    v_lshlrev_b32 v{vrow}, 3, v{vrow}
    s_lshl_b32 s{sA}, s{sCT}, 14
    s_mov_b64 exec, 0xffff
    buffer_store_dwordx2 {vr(vs_,2)}, v{vrow}, s[{srdS}:{srdS+3}], s{sA} offen sc1
    s_mov_b64 exec, -1
    """)
    k.stamp_c("p2_st")
    k.release(mC)
    Lp4c = k.label("p4c")
    sRB, sCT = dec3()
    c = c3
    vO, vSt, vCs, vA0, vA1, t0, t1, t2 = (k.v() for _ in range(8))
    vW = [k.v() for _ in range(4)]
    st = [k.v(2) for _ in range(2)]
    acc = [[k.v(4) for _ in range(4)] for _ in range(2)]
    fw = [[k.v(4) for _ in range(4)] for _ in range(2)]
    AR = [[k.v(4) for _ in range(2)] for _ in range(20)]
    k.e("s_waitcnt vmcnt(0)")
    k.e("s_barrier")
    k.stamp_c("p2_e")
    k.e(f"s_cmp_ge_u32 s{sJ}, 28")
    k.e(f"s_cbranch_scc1 {Lp4c}")
    srdO = srd1
    set_srd(k, srdO, ptr['ws'], S_ * F_ * 2, WS_HH)
    k.e(f"""
    v_and_b32 v{t0}, 15, v{vl}
    v_lshrrev_b32 v{t1}, 4, v{vl}
    v_lshlrev_b32 v{vSt}, 15, v{t1}
    v_lshl_add_u32 v{vSt}, v{t0}, 3, v{vSt}
    s_lshl_b32 s{sA}, s{sRB}, 10
    s_lshl_b32 s{sB}, s{sWave}, 8
    s_add_u32 s{sA}, s{sA}, s{sB}
    v_add_u32 v{vSt}, s{sA}, v{vSt}
    v_lshlrev_b32 v{vCs}, 4, v{t1}
    v_add_u32 v{vCs}, {P3_SCR + 1024}, v{vCs}
    v_and_b32 v{t2}, 6, v{t0}
    v_xor_b32 v{t2}, v{t2}, v{t1}
    v_lshlrev_b32 v{t2}, 4, v{t2}
    v_lshl_add_u32 v{vA0}, v{t0}, 7, v{t2}
    s_lshl_b32 s{sA}, s{sWave}, 12
    s_add_u32 s{sA}, s{sA}, {c.baseA}
    v_add_u32 v{vA0}, s{sA}, v{vA0}
    v_xor_b32 v{vA1}, 64, v{vA0}
    v_mul_u32_u24 v{vO}, {2*F_}, v{t0}
    v_bfe_u32 v{t0}, v{vl}, 4, 1
    v_lshl_add_u32 v{vO}, v{t0}, 5, v{vO}
    v_lshrrev_b32 v{t0}, 5, v{vl}
    v_lshl_add_u32 v{vO}, v{t0}, 4, v{vO}
    s_lshl_b32 s{sA}, s{sRB}, 7
    s_lshl_b32 s{sB}, s{sWave}, 5
    s_add_u32 s{sA}, s{sA}, s{sB}
    s_mul_i32 s{sA}, s{sA}, {2*F_}
    s_lshl_b32 s{sB}, s{sCT}, 8
    s_add_u32 s{sA}, s{sA}, s{sB}
    v_add_u32 v{vO}, s{sA}, v{vO}
    v_bfe_u32 v{t1}, v{vl}, 2, 3
    v_mul_u32_u24 v{t0}, {c.r16b}, v{t0}
    v_lshl_add_u32 v{t0}, v{t1}, 7, v{t0}
    v_and_b32 v{t2}, 3, v{vl}
    v_lshl_add_u32 v{t0}, v{t2}, 3, v{t0}
    v_lshrrev_b32 v{t1}, 1, v{t1}
    s_mov_b32 s{sB}, {16 * 2 * F_}
    """)
    for j in range(4):
        k.e(f"v_xor_b32 v{t2}, {j}, v{t1}")
        k.e(f"v_lshl_add_u32 v{vW[j]}, v{t2}, 5, v{t0}")
    wbase = [0]

    def rds(n):
        ps, s_, t = n // 20, (n % 20) // 2, n & 1
        out = []
        want = 40960 if s_ >= 5 else 0
        if want != wbase[0]:
            d = want - wbase[0]
            out += [f"v_add_u32 v{x}, {d & 0xffffffff}, v{x}" for x in vW]
            wbase[0] = want
        npre = len(out)
        if ps == 0:
            out += [f"ds_read_b128 {vr(AR[n][mt],4)}, v{vA1 if t else vA0} offset:{(s_ % 4) * 16384 + mt * 2048}" for mt in range(2)]
        for nt in range(4):
            for h in range(2):
                out.append(f"ds_read_b64_tr_b16 {vr(fw[n & 1][nt] + 2*h, 2)}, v{vW[nt]} offset:{s_ * 8192 - want + t * 4096 + h * 1024}")
        return out[:npre], out[npre:]

    def blk(n, nxt):
        na = 2 if n < 20 else 0
        nprev = na + 8
        pre, rd = rds(nxt) if nxt is not None else ([], [])
        k.emit_list(pre)
        issued = 0
        j = 0
        for nt in range(4):
            k.e(f"s_waitcnt lgkmcnt({nprev - (na + 2*nt + 2) + issued})")
            for mt in range(2):
                a = acc[mt][nt]
                k.e(f"v_mfma_f32_16x16x32_bf16 {vr(a,4)}, {vr(fw[n & 1][nt],4)}, {vr(AR[n % 20][mt],4)}, " + ("0" if n % 20 == 0 else vr(a, 4)))
                j += 1
                want = min(len(rd), -(-j * len(rd) * 100 // (8 * OPT['rf3'])))
                while issued < want:
                    k.e(rd[issued]); issued += 1

    def epi(ps):
        cs3 = fw[0]
        k.e("s_nop 4")
        for nt in range(4):
            k.e(f"ds_read_b128 {vr(cs3[nt],4)}, v{vCs} offset:{ps*256 + nt*64}")
        k.e("s_waitcnt lgkmcnt(0)")
        Lns = k.label("p3ns")
        if ps == 1:
            k.e(f"s_cmp_eq_u32 s{sCT}, 13")
            k.e(f"s_cbranch_scc1 {Lns}")
        for mt in range(2):
            for pr in range(2):
                a0, a1 = acc[mt][2*pr], acc[mt][2*pr+1]
                for a, nt in ((a0, 2*pr), (a1, 2*pr+1)):
                    for j in range(2):
                        k.e(f"v_pk_fma_f32 {vr(a+2*j,2)}, {vr(cs3[nt]+2*j,2)}, {vr(st[mt],2)}, {vr(a+2*j,2)} op_sel_hi:[1,0,1] neg_lo:[0,1,0] neg_hi:[0,1,0]")
                    for j in range(2):
                        k.e(f"v_pk_mul_f32 {vr(a+2*j,2)}, {vr(a+2*j,2)}, {vr(st[mt],2)} op_sel:[0,1]")
                pk = fw[1][2 * mt + pr]
                k.e(f"""
                v_cvt_pk_bf16_f32 v{pk}, v{a0}, v{a0+1}
                v_cvt_pk_bf16_f32 v{pk+2}, v{a1}, v{a1+1}
                v_cvt_pk_bf16_f32 v{pk+1}, v{a0+2}, v{a0+3}
                v_cvt_pk_bf16_f32 v{pk+3}, v{a1+2}, v{a1+3}
                v_permlane16_swap_b32 v{pk}, v{pk+2}
                s_nop 0
                v_permlane16_swap_b32 v{pk+1}, v{pk+3}
                v_pk_max_i16 v{pk}, v{pk}, 0
                v_pk_max_i16 v{pk+2}, v{pk+2}, 0
                v_pk_max_i16 v{pk+1}, v{pk+1}, 0
                v_pk_max_i16 v{pk+3}, v{pk+3}, 0
                buffer_store_dwordx4 {vr(pk,4)}, v{vO}, s[{srdO}:{srdO+3}], {'s%d' % sB if mt else '0'} offen offset:{ps*128 + pr*64} sc1
                """)
        k.place(Lns)
    sK16, sI6, sE5 = k.s(), k.s(), k.s()
    k.e(f"s_movk_i32 s{sK16}, 16384")
    k.e(f"s_mov_b32 s{sI6}, {f32bits(1.0/640)}")
    k.e(f"s_mov_b32 s{sE5}, {f32bits(1e-5)}")
    k.e("s_barrier")
    tq = [AR[10][0], AR[10][1]]
    for mt in range(2):
        k.e(f"buffer_load_dwordx2 {vr(st[mt],2)}, v{vSt}, s[{srd2}:{srd2+3}], 0 offen offset:{mt*128} sc1")
        k.e(f"buffer_load_dwordx2 {vr(tq[mt],2)}, v{vSt}, s[{srd2}:{srd2+3}], s{sK16} offen offset:{mt*128} sc1")
    k.e("s_waitcnt vmcnt(0)")
    for mt in range(2):
        k.e(f"v_pk_add_f32 {vr(st[mt],2)}, {vr(st[mt],2)}, {vr(tq[mt],2)}")
    vm_, vs__ = [st[0], st[1]], [st[0] + 1, st[1] + 1]
    allreduce4_multi(k, vm_ + vs__, [tq[0], tq[0] + 1, tq[0] + 2, tq[0] + 3])
    for mt in range(2):
        k.e(f"""
        v_mul_f32 v{vm_[mt]}, s{sI6}, v{vm_[mt]}
        v_mul_f32 v{vs__[mt]}, s{sI6}, v{vs__[mt]}
        v_fma_f32 v{vs__[mt]}, -v{vm_[mt]}, v{vm_[mt]}, v{vs__[mt]}
        v_max_f32 v{vs__[mt]}, 0, v{vs__[mt]}
        """)
    ln_finalize_multi(k, vm_, vs__, sE5)
    k.stamp_c("p3_pre")
    k.e("s_barrier")
    k.stamp_c("p3_b0")
    w3 = [AR[18][0], AR[18][1], AR[19][0], AR[19][1]]
    rot0 = [fw[0], fw[1], w3]
    buf0 = {n: rot0[n % 3] for n in range(15)}
    for n in range(15, 20):
        buf0[n] = fw[(n - 15) % 2]

    def rdW(n):
        s_, t = n // 2, n & 1
        pre = []
        want = 40960 if s_ >= 5 else 0
        if want != wbase[0]:
            pre = [(f"v_add_u32 v{x}, {(want - wbase[0]) & 0xffffffff}, v{x}", None) for x in vW]
            wbase[0] = want
        return pre + [(f"ds_read_b64_tr_b16 {vr(buf0[n][nt] + 2*h, 2)}, v{vW[nt]} offset:{s_ * 8192 - want + t * 4096 + h * 1024}", ('w', n, nt))
                      for nt in range(4) for h in range(2)]

    def rdA(s_):
        return [(f"ds_read_b128 {vr(AR[2*s_+t][mt],4)}, v{vA1 if t else vA0} offset:{(s_ % 4) * 16384 + mt * 2048}", ('a', 2*s_+t, mt))
                for t in range(2) for mt in range(2)]
    pend0 = []

    def issue(x):
        k.e(x[0])
        if x[1] is not None:
            pend0.append(x[1])

    def need(tags):
        idx = [i for i, x in enumerate(pend0) if x in tags]
        if idx:
            done = max(idx) + 1
            k.e(f"s_waitcnt lgkmcnt({min(15, len(pend0) - done)})")
            del pend0[:done]
    for x in rdA(0) + rdW(0) + rdW(1)[:3]:
        issue(x)
    carry = rdW(1)[3:]
    for n in range(20):
        rd = list(carry); carry = []
        if n % 2 == 0:
            s_ = n // 2
            need([('a', n + t, mt) for t in range(2) for mt in range(2)])
            k.e("s_barrier")
            if s_ + 1 < 10:
                rd = rdA(s_ + 1) + rd
        if n + 2 <= 16:
            rd += rdW(n + 2)
        elif n >= 16 and n + 1 < 20:
            rd += rdW(n + 1)
        issued = 0
        j = 0
        for nt in range(4):
            need([('w', n, nt)])
            for mt in range(2):
                a = acc[mt][nt]
                k.e(f"v_mfma_f32_16x16x32_bf16 {vr(a,4)}, {vr(buf0[n][nt],4)}, {vr(AR[n][mt],4)}, " + ("0" if n == 0 else vr(a, 4)))
                j += 1
                want = -(-j * len(rd) // (8 if n < 16 else 5))
                while issued < min(want, len(rd)):
                    issue(rd[issued]); issued += 1
    k.e("s_barrier")
    k.stamp_c("p3_loop")
    epi(0)
    k.e("s_barrier")
    k.stamp_c("p3_st")
    fw3 = [AR[0][0], AR[0][1], AR[1][0], AR[1][1]]
    buf = {20: fw[0], 21: fw[1], 22: fw[0], 23: fw[1]}
    rot = [fw3, fw[0], fw[1]]
    for n in range(24, 40):
        buf[n] = rot[(n - 24) % 3]

    def rds1(n):
        s_, t = (n % 20) // 2, n & 1
        pre = []
        want = 40960 if s_ >= 5 else 0
        if want != wbase[0]:
            pre = [f"v_add_u32 v{x}, {(want - wbase[0]) & 0xffffffff}, v{x}" for x in vW]
            wbase[0] = want
        return pre + [f"ds_read_b64_tr_b16 {vr(buf[n][nt] + 2*h, 2)}, v{vW[nt]} offset:{s_ * 8192 - want + t * 4096 + h * 1024}" for nt in range(4) for h in range(2)]
    sched = {20: [], 21: [22], 22: [23, 24]}
    for n in range(23, 40):
        sched[n] = [n + 2] if n + 2 < 40 else []
    k.emit_list(rds1(20) + rds1(21))
    pend = [20] * 8 + [21] * 8
    for n in range(20, 40):
        if n == 20 + 2 * OPT['m1at'] + 1:
            k.e("s_waitcnt vmcnt(0)")
            k.e("s_barrier")
        if n == 38:
            k.e("s_waitcnt lgkmcnt(0)")
            k.e("s_barrier")
        rd = [(x, m_) for m_ in sched[n] for x in rds1(m_)]
        assert all((m_ % 20) // 2 <= 4 for _, m_ in rd) or n >= 20 + 2 * OPT['m1at'] + 1
        issued = 0
        j = 0
        for nt in range(4):
            idx = [i for i, x in enumerate(pend) if x == n]
            if idx:
                done = idx[min(len(idx) - 1, 2 * nt + 1 - (8 - len(idx)))] + 1 if 2 * nt + 1 - (8 - len(idx)) >= 0 else 0
                if done:
                    k.e(f"s_waitcnt lgkmcnt({min(15, len(pend) - done)})")
                    pend = pend[done:]
            for mt in range(2):
                a = acc[mt][nt]
                k.e(f"v_mfma_f32_16x16x32_bf16 {vr(a,4)}, {vr(buf[n][nt],4)}, {vr(AR[n % 20][mt],4)}, " + ("0" if n == 20 else vr(a, 4)))
                j += 1
                want = -(-j * len(rd) // 8)
                while issued < want:
                    k.e(rd[issued][0])
                    if rd[issued][0].startswith("ds_"):
                        pend.append(rd[issued][1])
                    issued += 1
    epi(1)
    k.stamp_c("p3_e")
    k.place(Lp4c)
    k.release(mC)
    Lcend = k.label("cend")
    sRB, sCT = dec2()
    c = c4
    srdH, srdO = srd1, srd2
    set_srd(k, srdH, ptr['ws'], S_ * D_ * 2, WS_H)
    set_srd(k, srdO, ptr['out'], S_ * D_ * 2)
    vO, vO2, t0, t1 = (k.v() for _ in range(4))
    hr = [[k.v(4), k.v(2)] for _ in range(2)]
    k.e(f"""
    s_lshl_b32 s{sA}, s{sRB}, 6
    s_lshl_b32 s{sB}, s{sW1}, 5
    s_add_u32 s{sA}, s{sA}, s{sB}
    v_and_b32 v{t0}, 15, v{vl}
    v_add_u32 v{t0}, s{sA}, v{t0}
    v_mul_u32_u24 v{vO}, {2*D_}, v{t0}
    s_mul_i32 s{sA}, s{sCT}, 160
    s_lshl_b32 s{sB}, s{sW0}, 6
    s_add_u32 s{sA}, s{sA}, s{sB}
    v_add_u32 v{vO}, s{sA}, v{vO}
    v_lshrrev_b32 v{t1}, 4, v{vl}
    v_lshl_add_u32 v{vO2}, v{t1}, 3, v{vO}
    v_bfe_u32 v{t0}, v{vl}, 4, 1
    v_lshl_add_u32 v{vO}, v{t0}, 5, v{vO}
    v_lshrrev_b32 v{t0}, 5, v{vl}
    v_lshl_add_u32 v{vO}, v{t0}, 4, v{vO}
    s_movk_i32 s{sB}, {16 * 2 * D_}
    """)

    def h_loads():
        for mt in range(2):
            so = f"s{sB}" if mt else "0"
            k.e(f"buffer_load_dwordx4 {vr(hr[mt][0],4)}, v{vO}, s[{srdH}:{srdH+3}], {so} offen sc1")
            k.e(f"buffer_load_dwordx2 {vr(hr[mt][1],2)}, v{vO2}, s[{srdH}:{srdH+3}], {so} offen offset:64 sc1")
    o = consumer_setup(k, c, sW1, sW0, vl)
    h_loads()
    consumer_loop(k, o, None, tag="p4")
    pk = [[k.v(4), k.v(2)] for _ in range(2)]
    u = k.v(4)
    for mt in range(2):
        for nt in range(3):
            a = o.acc[mt][nt]
            d = pk[mt][nt // 2] + 2 * (nt & 1)
            k.e(f"v_cvt_pk_bf16_f32 v{d}, v{a}, v{a+1}")
            k.e(f"v_cvt_pk_bf16_f32 v{d+1}, v{a+2}, v{a+3}")
    k.e("s_waitcnt vmcnt(0)")
    for mt in range(2):
        k.e(f"v_permlane16_swap_b32 v{pk[mt][0]}, v{pk[mt][0]+2}")
        k.e(f"v_permlane16_swap_b32 v{pk[mt][0]+1}, v{pk[mt][0]+3}")
    fl = 'sc1' if OPT['outsc1'] else ''
    Lno = k.label("p4n")
    for pr in range(2):
        if pr == 1:
            k.e(f"s_cmp_eq_u32 s{sW0}, 0")
            k.e(f"s_cbranch_scc1 {Lno}")
        for mt in range(2):
            so = f"s{sB}" if mt else "0"
            for d in range(4 if pr == 0 else 2):
                r, x = pk[mt][pr] + d, hr[mt][pr] + d
                k.e(f"""
                v_lshlrev_b32 v{u}, 16, v{r}
                v_and_b32 v{u+1}, 0xffff0000, v{r}
                v_lshlrev_b32 v{u+2}, 16, v{x}
                v_and_b32 v{u+3}, 0xffff0000, v{x}
                v_pk_add_f32 {vr(u,2)}, {vr(u,2)}, {vr(u+2,2)}
                v_cvt_pk_bf16_f32 v{r}, v{u}, v{u+1}
                """)
            if pr == 0:
                k.e(f"buffer_store_dwordx4 {vr(pk[mt][0],4)}, v{vO}, s[{srdO}:{srdO+3}], {so} offen {fl}")
            else:
                k.e(f"buffer_store_dwordx2 {vr(pk[mt][1],2)}, v{vO2}, s[{srdO}:{srdO+3}], {so} offen offset:64 {fl}")
    k.place(Lno)
    k.stamp_c("p4_st")
    if OPT['diag']:
        ld_ = k.label("dg")
        names = ["p1_pre", "p1_b0", "p1_loop", "p1_e1", "p1_e2", "p1_e3", "p2_q", "p2_k", "p2_c", "p2_g", "p2_e", "p3_b0", "p3_loop", "p3_e", "p4_b0", "p4_loop"]
        set_srd(k, srd0, ptr['dbg'], 256)
        k.e(f"s_cmp_eq_u32 s2, {OPT['diag']}")
        k.e(f"s_cbranch_scc0 {ld_}")
        k.e(f"s_cmp_eq_u32 s{sWave}, 0")
        k.e(f"s_cbranch_scc0 {ld_}")
        k.e("s_mov_b64 exec, 1")
        k.e("v_mov_b32 v1, 0")
        for i, n in enumerate(names):
            k.e(f"s_sub_u32 s3, s{68 + k.stamps['c'][n]}, s68")
            k.e("v_mov_b32 v2, s3")
            k.e(f"buffer_store_dword v2, v1, s[{srd0}:{srd0+3}], 0 offen offset:{4*i}")
        k.e("s_mov_b64 exec, -1")
        k.place(ld_)
    k.place(Lcend)
    endwave()
    k.place(k.end)
    k.place(k.name + "_last")
    k.e("s_endpgm")
    secs, cur = {"head": []}, "head"
    for ln in k.lines:
        if ln.startswith("; @SEC "):
            cur = ln.split()[-1]; secs[cur] = []
        else:
            secs[cur].append(ln)
    order_ = list(OPT['secs'])
    if not OPT['hfirst']:
        order_ = ['head', 'head2', 'help', 'head3'] + order_[1:]
    k.lines = [ln for n in order_ for ln in secs[n]]
    return k


def write(k, path, header=""):
    out = header + f"; @launch grid=(256,1,1) block=(512,1,1) lds={LDS_TOTAL}\n"
    out += '.amdgcn_target "amdgcn-amd-amdhsa--gfx950"\n.text\n' + k.text() + '.section .rodata,"a"\n' + k.descriptor()
    open(path, "w").write(out)
    if k.prof3:
        json.dump(k.stamps, open(path + ".json", "w"))


def hdr():
    ref = open('sequential_preLN__linear_attn_block__dense_activation_relu__prompt.s.ref').read()
    return "".join(l + "\n" for l in ref.splitlines()[:10])


if __name__ == "__main__":
    write(gen(False), 'k7.s', hdr())
    write(gen(True), 'k7_prof.s', hdr())
    g3.DBG.update(nodma=True)
    write(gen(True), 'k7_nodma.s', hdr())
    g3.DBG.update(nodma=False, nomma=True)
    write(gen(True), 'k7_nomma.s', hdr())
```

```python
import sys, json
import k7, g3
from k7 import *
name = sys.argv[1]
for kv in sys.argv[2:]:
    a, b = kv.split("=")
    assert a in OPT, a
    OPT[a] = eval(b)
write(gen(False), f'var/{name}.s', hdr())
write(gen(True), f'var/{name}_prof.s', hdr())
```

```python
from asmlib import *
from g3 import *
import g3
import struct, json

S_, D_, F_ = 2048, 640, 1728
WS_PQ = 0x0
WS_H = 0x400000
WS_HH = 0x800000
WS_KV = 0x1000000
KV_BYTES = 65536
WS_FL = 0x1100000
FS = 4224
FL_BYTES = 128 * FS
FL_Q, FL_2, FL_3, FL_C, FL_G, FL_S, FL_R = 0, 16 * FS, 32 * FS, 48 * FS, 64 * FS, 96 * FS, 112 * FS
NREP = 16
WS_ST1 = 0x1020000
WS_CS1 = 0x1024000
WS_CS3 = 0x102C000
WS_W2P = 0x1200000
W2P_CT = 27 * 10240
WS_ST2 = 0x1040000
LOG2E = 1.4426950408889634
NAME = "sequential_preLN__linear_attn_block__dense_activation_relu__prompt_kernel"
OPT = dict(kvH=16, qH=11, p3H=16, p4H=24, touch1=True, touch1b=True, twarm=True, pretouch=True, e2pos=12, early3=False, psleep=8, w2a=6, w1at={'w2a': [0], 'c': [1], 'g': [2]}, tdist=1, hW=3, hX=10, jrot=8, onehop=True, vfirst=0, tlbw=False, omode=2, pqper=3, w2b=0, p3H0=8, iw=17, iwser=False, rot3=True, rot4=False, otouch=False, hfirst=True, diag=False, wf4=5, p4H0=24, pf1=2, m1at=3, rf3=70, hb=11, svwo=True, inj=10, p4SA=8, p4SW=9, secs=('head', 'ltail', 'svc', 'cons', 'cons2'), p4early=False, dupst=False, dupfl='', accinit=True, svw2=0, svT1=1, kvH0=4, hW0=32, svw1=0, p4rot=True, selft=False, p4wl=4, pqlead=16, catom=True, pqtouch=False, rel=1, rf=65, rel4=2, rf4=90, lean=True, lprio=0, outsc1=False, w2early=True, pqq=10, codewarm=True)
LDS_TOTAL = 163840


def f32bits(x):
    return struct.unpack("<I", struct.pack("<f", x))[0]


def bf16_round_f32(k, v):
    k.e(f"v_cvt_pk_bf16_f32 v{v}, v{v}, v{v}")
    k.e(f"v_lshlrev_b32 v{v}, 16, v{v}")


def allreduce4_multi(k, xs, ts):
    for sw in ("v_permlane16_swap_b32", "v_permlane32_swap_b32"):
        for x, t in zip(xs, ts):
            k.e(f"v_mov_b32 v{t}, v{x}")
        k.e("s_nop 1" if len(xs) < 2 else "s_nop 0")
        for x, t in zip(xs, ts):
            k.e(f"{sw} v{x}, v{t}")
        k.e("s_nop 1" if len(xs) < 2 else "s_nop 0")
        for x, t in zip(xs, ts):
            k.e(f"v_add_f32 v{x}, v{x}, v{t}")


def ln_finalize_multi(k, vms, vvs, sEps):
    for vm in vms:
        bf16_round_f32(k, vm)
    for vv in vvs:
        bf16_round_f32(k, vv)
        k.e(f"v_add_f32 v{vv}, s{sEps}, v{vv}")
        bf16_round_f32(k, vv)
    for vv in vvs:
        k.e(f"v_sqrt_f32 v{vv}, v{vv}")
    k.e("s_nop 0")
    for vv in vvs:
        bf16_round_f32(k, vv)
    for vv in vvs:
        k.e(f"v_rcp_f32 v{vv}, v{vv}")
    k.e("s_nop 0")


def dpp_rowsum(k, x):
    for r in (8, 4, 2, 1):
        k.e("s_nop 1")
        k.e(f"v_add_f32_dpp v{x}, v{x}, v{x} row_ror:{r} row_mask:0xf bank_mask:0xf")


def set_srd(k, d, p, nbytes, off=0, bias=False):
    if bias and OPT['lean']:
        off -= BIAS
        nbytes += BIAS
    if off < 0:
        k.e(f"s_sub_u32 s{d}, s{p}, {-off}")
        k.e(f"s_subb_u32 s{d+1}, s{p+1}, 0")
    elif off:
        k.e(f"s_add_u32 s{d}, s{p}, {off}")
        k.e(f"s_addc_u32 s{d+1}, s{p+1}, 0")
    else:
        k.e(f"s_mov_b64 s[{d}:{d+1}], s[{p}:{p+1}]")
    k.e(f"s_mov_b32 s{d+2}, {nbytes}")
    k.e(f"s_mov_b32 s{d+3}, 0x20000")


class Touch:
    def __init__(self, k, vl, ncl, ld, seg5=False, share=None):
        self.k, self.ld = k, ld
        self.R = 64 // ncl
        self.vo = k.v()
        self.sO = share.sO if share else k.s()
        self.sB = share.sB if share else k.s(2, 2)
        t0, t1 = k.v(), k.v()
        magic = (1024 + ncl - 1) // ncl
        for l in range(64):
            assert (l * magic) >> 10 == l // ncl
        k.e(f"""
        v_min_u32 v{t1}, {self.R * ncl - 1}, v{vl}
        v_mul_u32_u24 v{t0}, {magic}, v{t1}
        v_lshrrev_b32 v{t0}, 10, v{t0}
        v_mul_u32_u24 v{self.vo}, {ncl}, v{t0}
        v_sub_u32 v{t1}, v{t1}, v{self.vo}
        v_mul_u32_u24 v{t0}, {ld}, v{t0}
        v_lshl_add_u32 v{self.vo}, v{t1}, 7, v{t0}
        """)
        if seg5:
            k.e(f"""
            v_mul_u32_u24 v{t0}, 205, v{t1}
            v_lshrrev_b32 v{t0}, 10, v{t0}
            v_mul_u32_u24 v{t0}, 640, v{t0}
            v_add_u32 v{self.vo}, v{self.vo}, v{t0}
            """)

    def unit(self, p, sOff, sU, add, nrows, skip=False):
        k = self.k
        le = k.label("tsk")
        k.e(f"""
        s_add_u32 s{self.sO}, s{sU}, {add}
        s_mul_i32 s{self.sO}, s{self.sO}, {self.R}
        """)
        if skip:
            k.e(f"s_cmp_ge_u32 s{self.sO}, {nrows}")
            k.e(f"s_cbranch_scc1 {le}")
        k.e(f"""
        s_min_u32 s{self.sO}, s{self.sO}, {nrows - self.R}
        s_mul_i32 s{self.sO}, s{self.sO}, {self.ld}
        s_add_u32 s{self.sO}, s{self.sO}, s{sOff}
        s_add_u32 s{self.sB}, s{p}, s{self.sO}
        s_addc_u32 s{self.sB+1}, s{p+1}, 0
        global_load_dword v{k.vdummy}, v{self.vo}, s[{self.sB}:{self.sB+1}]
        """)
        k.place(le)


def phi_pair(k, a, vrs, vr2, sEps2, t):
    k.e(f"v_pk_mul_f32 {vr(t,2)}, {vr(a,2)}, {vr(vr2,2)}")
    k.e(f"v_pk_fma_f32 {vr(a,2)}, {vr(a,2)}, {vr(vrs,2)}, 1.0 op_sel_hi:[1,1,0]")
    k.e(f"v_exp_f32_e64 v{t}, v{t} clamp")
    k.e(f"v_exp_f32_e64 v{t+1}, v{t+1} clamp")
    k.e(f"v_max_f32 v{a}, v{a}, v{t}")
    k.e(f"v_max_f32 v{a+1}, v{a+1}, v{t+1}")
    k.e(f"v_pk_add_f32 {vr(a,2)}, {vr(a,2)}, s[{sEps2}:{sEps2+1}]")


def gen(prof=False):
    k = Kern(NAME)
    k.prof3 = prof
    k.slimit, k.vlimit = 68, 256
    ckv = Cfg(BM=128, NS=10, lda=2 * D_, ldw=6 * D_, wl='odd', SA=4, SW=4, baseA=0, baseW=65536, WM=2, WN=2,
              transposed=False, colsum=False, H=OPT['kvH'], nseg=2, segd=None, mixed=True, rel=OPT['rel'], read_frac=OPT['rf'], lean=True, H0=OPT['kvH0'])
    P1_ST = ckv.endW
    P1_AT = P1_ST + 2048
    c3 = Cfg(BM=128, NS=10, lda=2 * D_, ldw=2 * F_, wl='x8', SA=4, SW=10, baseA=81920, baseW=0, WM=4, WN=1,
             transposed=True, colsum=False, H=OPT['p3H'], rel=1, lean=True, H0=OPT['p3H0'],
             dyn=(lambda j: (j, 10, 1, 0)) if OPT['rot3'] else None)
    P3_SCR = c3.endA
    HB = OPT['hb']
    c4 = Cfg(BM=64, NS=27, lda=2 * F_, ldw=160, wl='lin', SA=10, SW=8, baseA=0, baseW=81920, WM=2, WN=2,
             transposed=True, colsum=False, H=OPT['p4H'], rel=2, read_frac=OPT['rf4'], lean=True, wlead=OPT['p4wl'],
             smap=lambda j: 2 * j if j < 14 else 2 * (j - 14) + 1, afterA=lambda j: HB if j >= 14 else -99,
             afterW=lambda m: 0 if m >= 6 else -99, vmwait=True, wfirst=OPT['wf4'], H0=OPT['p4H0'],
             dyn=(lambda j: (j, 14, 2, 0) if j < 14 else (j - 14, 13, 2, 1)) if OPT['rot4'] else None)
    assert c4.endW <= LDS_TOTAL and c4.endA <= c4.baseW and P3_SCR + 2048 <= LDS_TOTAL and P1_ST + 1024 <= LDS_TOTAL
    L_W2, L_KV, L_X2 = 40960, 0, 143360

    F0V = '0x00010001' if OPT['diag'] else 1
    k.end = k.label("end")
    if prof:
        for i in range(28):
            k.e(f"s_mov_b32 s{68+i}, 0")
        k.stamp_c("start")
        k.e("s_memrealtime s[96:97]")
        k.e("s_waitcnt lgkmcnt(0)")
        k.e("s_mov_b32 s94, s96")
    k.e("s_cmp_ge_u32 s2, 256")
    k.e(f"s_cbranch_scc1 {k.end}")
    p = k.s(16, 4)
    pws = k.s(2, 2)
    k.e(f"s_load_dwordx16 s[{p}:{p+15}], s[0:1], 0")
    k.e(f"s_load_dwordx2 s[{pws}:{pws+1}], s[0:1], 64")
    ptr = dict(x=p, wqkv=p + 2, wo=p + 4, w1=p + 8, w2=p + 10, out=p + 12, dbg=p + 14, ws=pws)
    sWave, sJ, sRQ, sCH, sJ1 = k.s(), k.s(), k.s(), k.s(), k.s()
    vl = k.v()
    k.vdummy = k.v()
    k.e(f"""
    v_lshrrev_b32 v{vl}, 6, v0
    s_lshr_b32 s{sJ}, s2, 3
    v_readfirstlane_b32 s{sWave}, v{vl}
    v_and_b32 v{vl}, 63, v0
    s_bfe_u32 s{sRQ}, s2, 0x20001
    s_and_b32 s{sCH}, s2, 1
    s_sub_u32 s{sJ1}, s{sJ}, {OPT['jrot']}
    s_and_b32 s{sJ1}, s{sJ1}, 31
    """)

    def endwave():
        k.dump3(pws, sWave)
        k.e("s_endpgm")

    def dec1():
        sG, sC, sTy = k.s(), k.s(), k.s()
        k.e(f"""
        s_and_b32 s{sG}, s{sJ1}, 3
        s_lshl_b32 s3, s{sRQ}, 2
        s_add_u32 s{sG}, s{sG}, s3
        s_lshr_b32 s{sTy}, s{sJ1}, 3
        s_sub_u32 s{sTy}, s{sTy}, 1
        s_max_i32 s{sTy}, s{sTy}, 0
        s_lshr_b32 s{sC}, s{sJ1}, 2
        s_lshl_b32 s3, s{sCH}, 2
        s_add_u32 s{sC}, s{sC}, s3
        s_lshl_b32 s3, s{sCH}, 1
        s_add_u32 s3, s3, 4
        s_cmp_eq_u32 s{sTy}, 1
        s_cselect_b32 s3, s3, 0
        s_sub_u32 s{sC}, s{sC}, s3
        s_and_b32 s3, s{sJ1}, 7
        s_cmp_eq_u32 s{sTy}, 2
        s_cselect_b32 s{sC}, s3, s{sC}
        """)
        return sG, sC, sTy

    def dec2():
        sRB, sCT = k.s(), k.s()
        k.e(f"""
        s_and_b32 s{sRB}, s{sJ}, 7
        s_lshl_b32 s3, s{sRQ}, 3
        s_add_u32 s{sRB}, s{sRB}, s3
        s_lshr_b32 s{sCT}, s{sJ}, 3
        s_lshl_b32 s3, s{sCH}, 2
        s_add_u32 s{sCT}, s{sCT}, s3
        """)
        return sRB, sCT

    def dec3():
        sRB, sCT = k.s(), k.s()
        k.e(f"""
        s_and_b32 s{sRB}, s{sJ}, 3
        s_lshl_b32 s3, s{sRQ}, 2
        s_add_u32 s{sRB}, s{sRB}, s3
        s_lshr_b32 s{sCT}, s{sJ}, 2
        s_mul_i32 s3, s{sCH}, 7
        s_add_u32 s{sCT}, s{sCT}, s3
        """)
        return sRB, sCT

    def dec4():
        sRB, sCT, sId = k.s(), k.s(), k.s()
        k.e(f"""
        s_mul_i32 s{sRB}, s{sJ}, 205
        s_lshr_b32 s{sRB}, s{sRB}, 10
        s_mul_i32 s3, s{sRB}, 5
        s_sub_u32 s{sCT}, s{sJ}, s3
        s_mul_i32 s3, s{sCH}, 5
        s_add_u32 s{sCT}, s{sCT}, s3
        s_cmp_ge_u32 s{sRB}, 6
        s_cselect_b32 s{sId}, 1, 0
        s_mul_i32 s{sRB}, s{sRB}, 96
        s_lshl_b32 s3, s{sRQ}, 9
        s_add_u32 s{sRB}, s{sRB}, s3
        """)
        return sRB, sCT, sId

    Lc, Lh, Lsvc, Lrole = k.label("cons"), k.label("help"), k.label("svc"), k.label("role")
    sSvc = k.s()
    k.e(f"s_mov_b32 s{sSvc}, 0")
    k.e(f"s_cmp_ge_u32 s{sJ1}, 24")
    k.e(f"s_cbranch_scc1 {Lsvc}")
    if OPT['hfirst']:
        k.e(f"s_cmp_lt_u32 s{sWave}, 6")
        k.e(f"s_cbranch_scc1 {Lrole}")
    else:
        k.e(f"s_cmp_ge_u32 s{sWave}, 6")
        k.e(f"s_cbranch_scc1 {Lh}")
        k.lines.append('; @SEC help')
        k.place(Lh)
    mH = k.mark()
    sRo, sA = k.s(), k.s()
    Lh1 = k.label("h1")
    k.e(f"s_cmp_eq_u32 s{sWave}, 7")
    k.e(f"s_cbranch_scc1 {Lh1}")
    k.e(f"s_mul_i32 s{sRo}, s{sCH}, 640")
    TW = Touch(k, vl, 15, 6 * D_, seg5=True)
    k.e("s_waitcnt lgkmcnt(0)")
    for it in range(OPT['hW']):
        TW.unit(ptr['wqkv'], sRo, sJ1, 24 * it, 640)
    k.e("s_endpgm")
    k.place(Lh1)
    if OPT['codewarm']:
        va_ = k.v(2)
        sPC = k.s(2, 2)
        k.e(f"""
        s_getpc_b64 s[{sPC}:{sPC+1}]
        {k.name}_pc:
        s_sub_u32 s{sPC}, s{sPC}, {k.name}_pc-{k.name}
        s_subb_u32 s{sPC+1}, s{sPC+1}, 0
        s_lshl_b32 s{sA}, s{sJ1}, 11
        v_lshlrev_b32 v{va_}, 7, v{vl}
        v_add_u32 v{va_}, s{sA}, v{va_}
        v_min_u32 v{va_}, {k.name}_last-{k.name}, v{va_}
        v_mov_b32 v{va_+1}, s{sPC+1}
        v_add_co_u32 v{va_}, vcc, s{sPC}, v{va_}
        s_nop 1
        v_addc_co_u32 v{va_+1}, vcc, 0, v{va_+1}, vcc
        s_mov_b64 exec, 0xffff
        global_load_dword v{k.vdummy}, {vr(va_,2)}, off
        s_mov_b64 exec, -1
        """)
    if OPT['hX'] == 10:
        k.e(f"s_and_b32 s{sRo}, s2, 7")
        k.e(f"s_xor_b32 s{sRo}, s{sRo}, 1")
        k.e(f"s_mul_i32 s{sRo}, s{sRo}, {256 * 2 * D_}")
        TX = Touch(k, vl, 16, 2048, share=TW)
        k.e("s_waitcnt lgkmcnt(0)")
        TX.unit(ptr['x'], sRo, sJ1, 0, 160)
        lx = k.label("hx")
        k.e(f"s_cmp_ge_u32 s{sJ1}, 16")
        k.e(f"s_cbranch_scc1 {lx}")
        TX.unit(ptr['x'], sRo, sJ1, 24, 160)
        k.place(lx)
    else:
        k.e(f"s_mul_i32 s{sRo}, s{sRQ}, {512 * 2 * D_}")
        TX = Touch(k, vl, OPT['hX'], 2 * D_, share=TW)
        k.e("s_waitcnt lgkmcnt(0)")
        for it in range(-(-500 // (24 * TX.R))):
            TX.unit(ptr['x'], sRo, sJ1, 24 * it, 512)
    k.e("s_endpgm")
    k.release(mH)
    if not OPT['hfirst']:
        k.lines.append('; @SEC head2')
    k.place(Lrole)
    k.e(f"s_cmp_lt_u32 s{sWave}, 4")
    k.e(f"s_cbranch_scc1 {Lc}")
    k.e(f"s_cmp_ge_u32 s{sWave}, 6")
    k.e(f"s_cbranch_scc1 {k.end}")
    mL = k.mark()
    sLW, sRow, sCol, sSpin, sP, sU, sEx = (k.s() for _ in range(7))
    srdA, srdW, srdF = k.s(4), k.s(4), k.s(4)
    vf, vfa, vone = k.v(4), k.v(), k.v()
    c3r = k.v(4)
    vfb = k.v()
    sAct = k.s()
    sRotL = sEx
    k.e(f"s_sub_u32 s{sLW}, s{sWave}, 4")
    if OPT['lprio']:
        k.e(f"s_setprio {OPT['lprio']}")

    def poll(srd, expect, first_issued=False, tag="", wide=False, drain1=True, extra=None, younger=0, both=False):
        lp, lo = k.label("poll"), k.label("pollok")
        ldi = (f"buffer_load_dwordx3 {vr(vf,3)}, v{vfa}, s[{srd}:{srd+3}], 0 offen sc1" if wide
               else f"buffer_load_dword v{vf}, v{vfa}, s[{srd}:{srd+3}], 0 offen sc1")
        if extra is not None:
            ldi += f"\nbuffer_load_dword v{vf+3}, v{extra}, s[{srd}:{srd+3}], 0 offen sc1"
        if not both:
            k.e(f"s_cmp_eq_u32 s{sLW}, 1")
            k.e(f"s_cbranch_scc1 {lo}")
        k.e(f"s_mov_b32 s{sSpin}, 0")
        if not first_issued:
            k.e(ldi)
        if younger:
            k.e(f"s_waitcnt vmcnt({younger})")
            k.e(f"s_branch {lp}_c")
        k.place(lp)
        k.e("s_waitcnt vmcnt(0)")
        k.place(lp + "_c")
        if wide:
            k.e(f"v_and_b32 v{vf}, v{vf}, v{vf+2}")
        if extra is not None:
            k.e(f"v_and_b32 v{vf}, v{vf}, v{vf+3}")
        k.e(f"""
        v_cmp_ne_u32 vcc, {expect}, v{vf}
        s_add_u32 s{sSpin}, s{sSpin}, 1
        s_nop 3
        s_cbranch_vccz {lo}
        s_cmp_gt_u32 s{sSpin}, 0x40000
        s_cbranch_scc1 {k.end}
        s_sleep {OPT['psleep']}
        {ldi}
        s_branch {lp}
        """)
        k.place(lo)
        if drain1:
            k.e("s_waitcnt vmcnt(0)")
        k.stamp_l(tag)

    def set_flag(sOff, base, sExec=None):
        l0 = k.label("fl")
        k.e(f"""
        s_cmp_eq_u32 s{sLW}, 1
        s_cbranch_scc0 {l0}
        v_mov_b32 v{vfa}, {base}
        s_mov_b64 exec, 1
        buffer_store_dword v{vone}, v{vfa}, s[{srdF}:{srdF+3}], s{sOff} offen sc1
        s_mov_b64 exec, -1
        """)
        k.place(l0)

    def warm(pw, ldw, ncl, colbytes, clampc, nrows, rounds):
        if not OPT['twarm'] or not rounds:
            return 0
        mm_ = k.mark()
        sCo = k.s()
        k.e(f"s_mul_i32 s{sCo}, s{sCH}, {colbytes}")
        if clampc is not None:
            k.e(f"s_min_u32 s{sCo}, s{sCo}, {clampc}")
        T = Touch(k, vl, ncl, ldw)
        for it in rounds:
            T.unit(pw, sCo, sU, 64 * it, nrows)
        k.release(mm_)
        return len(rounds)

    def w1warm(where):
        r = OPT['w1at'].get(where, [])
        return warm(ptr['w1'], 2 * F_, 14, 7 * 256, 13 * 128, 640, r) if r else 0

    m = k.mark()
    sG, sC, sTy = dec1()
    srdD = k.s(4)
    k.e(f"""
    s_mul_i32 s{sRow}, s{sG}, {128 * 2 * D_}
    s_mul_i32 s{sCol}, s{sC}, 160
    s_add_u32 s3, s{sCol}, {2 * D_}
    s_lshl_b32 s{sCol}, s{sCol}, 1
    s_cmp_eq_u32 s{sTy}, 0
    s_cselect_b32 s{sCol}, s3, s{sCol}
    s_movk_i32 s{sEx}, 160
    s_cselect_b32 s{sEx}, {2 * D_}, s{sEx}
    """)
    Llq, Ltail = k.label("ldq"), k.label("ldtail")
    pat = [[k.v() for _ in range(5)] for _ in range(5)]
    q0, q1, q2, vcs = (k.v() for _ in range(4))
    pvi, pvb = [k.v() for _ in range(5)], [k.v() for _ in range(5)]
    csr = [k.v(4) for _ in range(4)]
    rp = [k.v() for _ in range(6)]
    rpd = [k.v(4) for _ in range(6)]
    sRp, sRc, sRv = k.s(), k.s(), k.s()
    vLtop = k.vtop

    def p2_pat(mI):
        def f():
            vi_, vb_ = pvi[mI], pvb[mI]
            k.e(f"""
            s_and_b32 s3, s{sWave}, 1
            s_lshl_b32 s3, s3, 3
            v_add_u32 v{q0}, {64*mI}, v{vl}
            v_mul_u32_u24 v{q1}, 205, v{q0}
            v_lshrrev_b32 v{q1}, 11, v{q1}
            v_mul_u32_u24 v{q2}, 10, v{q1}
            v_sub_u32 v{q2}, v{q0}, v{q2}
            v_lshlrev_b32 v{vb_}, 4, v{q2}
            v_and_b32 v{vi_}, 3, v{q1}
            v_bfe_u32 v{q0}, v{q1}, 3, 1
            v_lshl_or_b32 v{vi_}, v{q0}, 2, v{vi_}
            v_add_u32 v{vi_}, s3, v{vi_}
            v_bfe_u32 v{q0}, v{q1}, 2, 1
            v_lshrrev_b32 v{q2}, 4, v{q1}
            v_lshl_or_b32 v{q0}, v{q2}, 1, v{q0}
            v_mul_u32_u24 v{q0}, {5 * 1280}, v{q0}
            v_add_u32 v{vb_}, v{vb_}, v{q0}
            """)
            return 0
        return f

    pdone = set()

    def p2_lazy(u, mI):
        if (u, mI) in pdone:
            return
        pdone.add((u, mI))
        k.e(f"""
        v_add_u32 v{q0}, {16*u}, v{pvi[mI]}
        v_mul_u32_u24 v{q1}, 205, v{q0}
        v_lshrrev_b32 v{q1}, 10, v{q1}
        v_mad_u32_u24 v{q0}, v{q1}, 15, v{q0}
        v_mad_u32_u24 v{pat[u][mI]}, v{q0}, s{sEx}, v{pvb[mI]}
        """)

    def rp_pat():
        mm_ = k.mark()
        sN, sH, sL = k.s(), k.s(), k.s()
        k.e(f"""
        s_lshl_b32 s{sRv}, s{sJ1}, 3
        s_and_b32 s3, s2, 7
        s_add_u32 s{sRv}, s{sRv}, s3
        s_lshl_b32 s{sRv}, s{sRv}, 1
        s_add_u32 s{sRv}, s{sRv}, s{sLW}
        s_min_u32 s{sRp}, s{sRv}, 359
        s_mul_i32 s{sRc}, s{sRp}, 1457
        s_lshr_b32 s{sRc}, s{sRc}, 16
        s_mul_i32 s3, s{sRc}, 45
        s_sub_u32 s{sN}, s{sRp}, s3
        s_mul_i32 s{sN}, s{sN}, 6
        s_mul_i32 s{sRp}, s{sRp}, 6144
        s_movk_i32 s{sL}, {2 * D_}
        """)
        for i in range(6):
            k.e(f"""
            s_mul_i32 s{sH}, s{sN}, 13108
            s_lshr_b32 s{sH}, s{sH}, 16
            s_mul_i32 s3, s{sH}, 5
            s_sub_u32 s3, s{sN}, s3
            s_lshl_b32 s3, s3, 6
            v_add_u32 v{q0}, s3, v{vl}
            s_mul_i32 s{sH}, s{sH}, {32 * 2 * D_}
            s_mul_i32 s3, s{sRc}, 160
            s_add_u32 s{sH}, s{sH}, s3
            v_mul_u32_u24 v{q1}, 205, v{q0}
            v_lshrrev_b32 v{q1}, 11, v{q1}
            v_mul_u32_u24 v{q2}, 10, v{q1}
            v_sub_u32 v{q2}, v{q0}, v{q2}
            v_lshl_add_u32 v{rp[i]}, v{q2}, 4, s{sH}
            v_and_b32 v{q2}, 19, v{q1}
            v_and_b32 v{q0}, 4, v{q1}
            v_lshl_or_b32 v{q2}, v{q0}, 1, v{q2}
            v_and_b32 v{q0}, 8, v{q1}
            v_lshrrev_b32 v{q0}, 1, v{q0}
            v_or_b32 v{q2}, v{q2}, v{q0}
            v_mad_u32_u24 v{rp[i]}, v{q2}, s{sL}, v{rp[i]}
            s_add_u32 s{sN}, s{sN}, 1
            """)
        k.release(mm_)

    def p1_srds():
        k.e("s_waitcnt lgkmcnt(0)")
        set_srd(k, srdA, ptr['x'], S_ * D_ * 2, bias=True)
        set_srd(k, srdW, ptr['wqkv'], 3 * D_ * D_ * 2, bias=True)
        k.stamp_l("ld_first")

    def p1_late():
        set_srd(k, srdF, ptr['ws'], FL_BYTES, WS_FL)
        k.e(f"""
        v_mov_b32 v{vone}, 1
        s_lshl_b32 s{sU}, s{sJ}, 1
        s_add_u32 s{sU}, s{sU}, s{sLW}
        s_mul_i32 s{sP}, s{sG}, {FS}
        s_lshl_b32 s3, s{sC}, 2
        s_add_u32 s{sP}, s{sP}, s3
        """)
        k.e(f"""
        s_and_b32 s3, s{sC}, 3
        s_mul_i32 s3, s3, 320
        s_add_u32 s3, s3, 1280
        s_and_b32 s{sSpin}, s{sC}, 1
        s_mul_i32 s{sSpin}, s{sSpin}, 640
        s_cmp_eq_u32 s{sTy}, 0
        s_cselect_b32 s3, s3, s{sSpin}
        s_cselect_b32 s{sSpin}, 960, 0
        v_lshlrev_b32 v{vcs}, 4, v{vl}
        v_add_u32 v{vcs}, s3, v{vcs}
        v_cmp_lt_u32 vcc, 19, v{vl}
        v_mov_b32 v{q0}, s{sSpin}
        s_lshl_b32 s3, s{sCH}, 12
        v_cndmask_b32 v{q0}, 0, v{q0}, vcc
        s_add_u32 s3, s3, {WS_CS1 - WS_ST1}
        v_add3_u32 v{vcs}, v{vcs}, v{q0}, s3
        v_cmp_gt_u32 vcc, 40, v{vl}
        v_mov_b32 v{q0}, {OOB}
        s_nop 0
        v_cndmask_b32 v{vcs}, v{q0}, v{vcs}, vcc
        """)
        return 0

    def p1_last():
        set_srd(k, srdD, ptr['dbg'], 256)
        k.e(f"""
        v_lshlrev_b32 v{vfa}, 2, v{vl}
        v_or_b32 v{vfa}, {128 if OPT['diag'] else 0}, v{vfa}
        s_lshl_b32 s3, s{sLW}, 12
        buffer_load_dword v{vf}, v{vfa}, s[{srdD}:{srdD+3}], s3 offen sc1
        """)
        nwo = 0
        if not OPT['svwo']:
            mm_ = k.mark()
            sCo, sV = sRow, sCol
            k.e(f"s_mul_i32 s{sCo}, s{sCH}, 640")
            k.e(f"s_lshl_b32 s{sV}, s{sJ1}, 1")
            k.e(f"s_add_u32 s{sV}, s{sV}, s{sLW}")
            T = Touch(k, vl, 5, 2 * D_)
            T.unit(ptr['wo'], sCo, sV, 0, 640)
            k.release(mm_)
            nwo = 1
        set_srd(k, srdA, ptr['w2'], F_ * D_ * 2)
        for mI in range(6):
            k.e(f"buffer_load_dwordx4 {vr(rpd[mI],4)}, v{rp[mI]}, s[{srdA}:{srdA+3}], 0 offen")
        return 7 + nwo
    hooks = {}
    k.e(f"s_cmp_eq_u32 s{sSvc}, 1")
    k.e(f"s_cbranch_scc1 {Llq}")
    m2 = k.mark()
    ckv.segd = f"s{sEx}"
    ld = Loader(k, ckv, vl, sLW)

    def first():
        ld.bases(sRow, sCol)
        p1_srds()
        ld.early_a(srdA)
        if not OPT['hfirst']:
            lj_ = k.label("hj")
            k.e(f"s_branch {lj_}")
            k.lines.append('; @SEC head3')
            k.place(lj_)
    if OPT['vfirst'] == 0:
        ld.patterns(between=first)
    else:
        ld.patterns()
        if OPT['vfirst'] == 2:
            for i in range(5):
                p2_pat(i)()
            rp_pat()
        first()

    def f0_part():
        poll(srdD, F0V, first_issued=True, tag="f0ok", drain1=False, younger=6 if OPT['svwo'] else 7)
        set_srd(k, srdA, ptr['ws'], WS_CS3 - WS_ST1, WS_ST1)
        lsd = k.label("std")
        k.e(f"""
        s_cmp_eq_u32 s{sLW}, 1
        s_cbranch_scc1 {lsd}
        s_mov_b32 m0, {P1_ST}
        s_lshl_b32 s3, s{sG}, 10
        v_lshlrev_b32 v{vfa}, 4, v{vl}
        buffer_load_dwordx4 v{vfa}, s[{srdA}:{srdA+3}], s3 offen sc1 lds
        s_movk_i32 s3, 8192
        buffer_load_dwordx4 {vr(csr[0],4)}, v{vcs}, s[{srdA}:{srdA+3}], 0 offen sc1
        buffer_load_dwordx4 {vr(csr[1],4)}, v{vcs}, s[{srdA}:{srdA+3}], s3 offen sc1
        s_movk_i32 s3, 16384
        buffer_load_dwordx4 {vr(csr[2],4)}, v{vcs}, s[{srdA}:{srdA+3}], s3 offen sc1
        s_movk_i32 s3, 24576
        buffer_load_dwordx4 {vr(csr[3],4)}, v{vcs}, s[{srdA}:{srdA+3}], s3 offen sc1
        v_add_u32 v{vfa}, {P1_ST + 1024}, v{vfa}
        """)
        k.place(lsd)
        return 0

    def early_valu():
        p1_late()
        if OPT['vfirst'] < 2:
            for i in range(5):
                p2_pat(i)()
            rp_pat()
    ld.stream(srdA, srdW, last=p1_last, tag="p1", inject=(OPT['inj'], early_valu), hooks={9: f0_part})
    k.e(f"s_branch {Ltail}")
    k.release(m2)
    k.place(Llq)
    p1_late()
    k.e(f"s_movk_i32 s{sRv}, 1000")
    k.e(f"s_mov_b32 s{sRp}, 0")
    k.e(f"s_mov_b32 s{sRc}, 0")
    k.e(f"""
    s_lshl_b32 s{sP}, s{sCH}, 3
    s_add_u32 s{sP}, s{sP}, s{sC}
    s_mul_i32 s{sP}, s{sP}, {FS}
    s_lshl_b32 s3, s{sRQ}, 2
    s_add_u32 s{sP}, s{sP}, s3
    s_add_u32 s{sP}, s{sP}, {FL_S - FL_Q}
    """)
    set_srd(k, srdD, ptr['dbg'], 256)
    k.e(f"s_branch {Ltail}_s")
    k.lines.append('; @SEC ltail')
    k.place(Ltail)
    lsd = k.label("std")
    k.e(f"s_cmp_eq_u32 s{sLW}, 1")
    k.e(f"s_cbranch_scc1 {lsd}")
    k.e(f"""
    s_waitcnt vmcnt(2)
    v_pk_add_f32 {vr(csr[0],2)}, {vr(csr[0],2)}, {vr(csr[1],2)}
    v_pk_add_f32 {vr(csr[0]+2,2)}, {vr(csr[0]+2,2)}, {vr(csr[1]+2,2)}
    s_waitcnt vmcnt(0)
    v_pk_add_f32 {vr(csr[2],2)}, {vr(csr[2],2)}, {vr(csr[3],2)}
    v_pk_add_f32 {vr(csr[2]+2,2)}, {vr(csr[2]+2,2)}, {vr(csr[3]+2,2)}
    v_pk_add_f32 {vr(csr[0],2)}, {vr(csr[0],2)}, {vr(csr[2],2)}
    v_pk_add_f32 {vr(csr[0]+2,2)}, {vr(csr[0]+2,2)}, {vr(csr[2]+2,2)}
    ds_write_b128 v{vfa}, {vr(csr[0],4)}
    s_waitcnt lgkmcnt(0)
    """)
    k.place(lsd)
    k.place(Ltail + "_s")
    sRB2, sCT2 = dec2()
    set_srd(k, srdW, ptr['wo'], D_ * D_ * 2)
    sT, sKW, sLWd = k.s(), k.s(), k.s()
    k.e(f"""
    s_mul_i32 s{sKW}, s{sCT2}, 160
    s_movk_i32 s{sEx}, 1280
    s_mul_i32 s{sLWd}, s{sLW}, 5120
    """)
    nx = w1warm('stats')
    k.e(f"s_waitcnt vmcnt({nx})")
    k.e("s_barrier")
    lrp = k.label("rp")
    set_srd(k, srdA, ptr['ws'], 8 * W2P_CT, WS_W2P)
    k.e(f"""
    s_cmp_ge_u32 s{sRv}, 360
    s_cbranch_scc1 {lrp}
    v_lshlrev_b32 v{rp[0]}, 4, v{vl}
    s_add_u32 s3, s{sRp}, 4096
    """)
    for mI in range(6):
        k.e(f"buffer_store_dwordx4 {vr(rpd[mI],4)}, v{rp[0]}, s[{srdA}:{srdA+3}], {'s%d' % sRp if mI < 4 else 's3'} offen offset:{(mI % 4) * 1024} sc1")
    k.place(lrp)

    def w2_steps(lst):
        for s in lst:
            u = (s % 10) // 2
            k.e(f"s_add_u32 s{sT}, s{sKW}, {(s // 10) * 320 * 1280}")
            for mI in range(5):
                p2_lazy(u, mI)
                k.e(f"s_add_u32 m0, s{sLWd}, {L_W2 + s * 5120 + mI * 1024}")
                k.e("s_nop 0")
                if not g3.DBG['nodma']:
                    k.e(f"buffer_load_dwordx4 v{pat[u][mI]}, s[{srdW}:{srdW+3}], s{sT} offen lds")
    order = [0, 10, 2, 12, 4, 14, 6, 16, 8, 18]
    w2_steps(order[:OPT['w2a']])
    lsv = k.label("svp")
    k.e(f"s_cmp_eq_u32 s{sSvc}, 0")
    k.e(f"s_cbranch_scc1 {lsv}")
    k.e(f"v_lshlrev_b32 v{vfa}, 2, v{vl}")
    k.e(f"v_or_b32 v{vfa}, {128 if OPT['diag'] else 0}, v{vfa}")
    poll(srdD, F0V, tag="f0ok", drain1=False)
    k.place(lsv)
    w1warm('w2a')
    k.stamp_l("w2iss")
    k.e("s_barrier")
    w2_steps(order[OPT['w2a']:OPT['w2b']])
    w1warm('w2b')
    k.e("s_barrier")
    lkv, lfd = k.label("f1kv"), k.label("f1d")
    k.e(f"s_cmp_eq_u32 s{sTy}, 0")
    k.e(f"s_cbranch_scc1 {lkv}")
    set_flag(sP, FL_Q)
    k.e(f"s_branch {lfd}")
    k.place(lkv)
    if not OPT['onehop']:
        k.e(f"""
        s_cmp_eq_u32 s{sLW}, 1
        s_cbranch_scc0 {lfd}
        s_mul_i32 s3, s{sC}, {FS}
        v_mov_b32 v{vfa}, {FL_C}
        v_mov_b32 v{vf}, 1
        s_mov_b64 exec, 1
        buffer_atomic_add v{vf}, v{vfa}, s[{srdF}:{srdF+3}], s3 offen sc0 sc1
        s_waitcnt vmcnt(0)
        v_readfirstlane_b32 s{sSpin}, v{vf}
        s_mov_b64 exec, -1
        s_cmp_eq_u32 s{sSpin}, 15
        s_cbranch_scc0 {lfd}
        v_mul_u32_u24 v{vfa}, {FS}, v{vl}
        v_add_u32 v{vfa}, {FL_G}, v{vfa}
        s_lshl_b32 s3, s{sC}, 2
        s_mov_b64 exec, {hex((1 << NREP) - 1)}
        buffer_store_dword v{vone}, v{vfa}, s[{srdF}:{srdF+3}], s3 offen sc1
        s_mov_b64 exec, -1
        """)
    else:
        k.e(f"""
        s_cmp_eq_u32 s{sLW}, 1
        s_cbranch_scc0 {lfd}
        v_mul_u32_u24 v{vfa}, {2 * FS}, v{vl}
        v_add_u32 v{vfa}, {FL_G}, v{vfa}
        s_and_b32 s3, s{sC}, 1
        s_mul_i32 s3, s3, {FS}
        s_mov_b64 exec, {hex((1 << NREP) - 1)}
        buffer_atomic_add v{vone}, v{vfa}, s[{srdF}:{srdF+3}], s3 offen sc1
        s_mov_b64 exec, -1
        """)
    k.place(lfd)
    k.stamp_l("f1set")
    w1warm('f1')
    if OPT['w2early']:
        w2_steps(order[max(OPT['w2a'], OPT['w2b']):])
    k.e(f"""
    s_lshr_b32 s3, s{sRB2}, 1
    s_mul_i32 s3, s3, {FS}
    v_and_b32 v{q0}, 7, v{vl}
    v_lshlrev_b32 v{q0}, 2, v{q0}
    v_and_b32 v{vfa}, 12, v{q0}
    v_add_u32 v{vfa}, s3, v{vfa}
    """)
    poll(srdF, 1, tag="f1q", drain1=False)
    if OPT['pqtouch']:
        lpt = k.label("pqt")
        set_srd(k, srdA, ptr['ws'], S_ * 1536, WS_PQ)
        k.e(f"""
        s_cmp_eq_u32 s{sLW}, 1
        s_cbranch_scc1 {lpt}
        s_lshl_b32 s3, s{sRB2}, 2
        s_lshr_b32 s{sSpin}, s{sJ}, 3
        s_add_u32 s3, s3, s{sSpin}
        s_mul_i32 s3, s3, {32 * 768}
        v_lshlrev_b32 v{vfa}, 7, v{vl}
        buffer_load_dword v{k.vdummy}, v{vfa}, s[{srdA}:{srdA+3}], s3 offen sc1
        s_add_u32 s3, s3, 8192
        buffer_load_dword v{k.vdummy}, v{vfa}, s[{srdA}:{srdA+3}], s3 offen sc1
        s_add_u32 s3, s3, 8192
        buffer_load_dword v{k.vdummy}, v{vfa}, s[{srdA}:{srdA+3}], s3 offen sc1
        """)
        k.place(lpt)
    k.e(f"""
    s_and_b32 s3, s2, {NREP - 1}
    s_mul_i32 s3, s3, {FS * (2 if OPT['onehop'] else 1)}
    s_add_u32 s3, s3, {FL_G}
    v_add_u32 v{vfa}, s3, v{q0}
    """)
    if OPT['onehop']:
        k.e(f"v_and_b32 v{vfa}, 1, v{vl}")
        k.e(f"v_mul_u32_u24 v{vfa}, {FS}, v{vfa}")
        k.e(f"v_add_u32 v{vfa}, s3, v{vfa}")
    k.e(f"s_cmp_eq_u32 s{sLW}, 1")
    lq1 = k.label("q1")
    k.e(f"s_cbranch_scc1 {lq1}")
    k.e(f"buffer_load_dword v{vf}, v{vfa}, s[{srdF}:{srdF+3}], 0 offen sc1")
    k.place(lq1)
    k.e("s_barrier")
    poll(srdF, 64 if OPT['onehop'] else 1, tag="f1k", drain1=False, first_issued=True)
    k.e("s_barrier")
    k.e(f"""
    s_lshr_b32 s{sP}, s{sRB2}, 1
    s_mul_i32 s{sP}, s{sP}, {FS}
    s_and_b32 s3, s{sRB2}, 1
    s_lshl_b32 s3, s3, 5
    s_add_u32 s{sP}, s{sP}, s3
    s_lshl_b32 s3, s{sCT2}, 2
    s_add_u32 s{sP}, s{sP}, s3
    s_waitcnt vmcnt(0)
    s_barrier
    s_barrier
    """)
    lrp = k.label("rp")
    k.e(f"""
    s_cmp_ge_u32 s{sRv}, 360
    s_cbranch_scc1 {lrp}
    s_mul_i32 s3, s{sRc}, {FS}
    v_mov_b32 v{rp[0]}, {FL_R}
    s_waitcnt vmcnt(0)
    s_mov_b64 exec, 1
    buffer_atomic_add v{vone}, v{rp[0]}, s[{srdF}:{srdF+3}], s3 offen sc1
    s_mov_b64 exec, -1
    """)
    k.place(lrp)
    if not OPT['w2early']:
        w2_steps(order[max(OPT['w2a'], OPT['w2b']):])
    set_srd(k, srdA, ptr['ws'], S_ * D_ * 2, WS_H, bias=True)
    k.e(f"""
    s_mul_i32 s{sRow}, s{sRB2}, {64 * 2 * D_}
    s_add_u32 s{sRow}, s{sRow}, {BIAS if OPT['lean'] else 0}
    s_add_u32 s{sRow}, s{sRow}, s{sKW}
    s_mul_i32 s3, s{sLW}, 156
    s_add_u32 s{sRow}, s{sRow}, s3
    v_mul_u32_u24 v{vfa}, {2 * D_}, v{vl}
    """)
    k.release(m)
    mS = k.mark()
    Lskip3 = k.label("ldskip3")
    sRB3, sCT3 = dec3()
    ld = Loader(k, c3, vl, sLW)
    nx = 0
    if OPT['pretouch']:
        k.e(f"buffer_load_dword v{k.vdummy}, v{vfa}, s[{srdA}:{srdA+3}], s{sRow} offen sc1")
        nx += 1
    nx += w1warm('c')
    k.e(f"""
    s_lshl_b32 s3, s{sCH}, 3
    s_lshr_b32 s{sSpin}, s{sJ}, 2
    s_add_u32 s3, s3, s{sSpin}
    s_mul_i32 s3, s3, {FS}
    s_add_u32 s3, s3, {FL_S}
    v_and_b32 v{vfa}, 3, v{vl}
    v_lshlrev_b32 v{vfa}, 2, v{vfa}
    v_add_u32 v{vfa}, s3, v{vfa}
    """)
    poll(srdF, 1, tag="fsok", drain1=False)
    set_srd(k, srdW, ptr['ws'], 32768, WS_CS3)
    csr = [k.v(4) for _ in range(4)]
    k.e(f"""
    s_lshl_b32 s3, s{sCH}, 12
    s_lshr_b32 s{sSpin}, s{sJ}, 2
    s_lshl_b32 s{sSpin}, s{sSpin}, 9
    s_add_u32 s3, s3, s{sSpin}
    s_lshl_b32 s{sSpin}, s{sLW}, 20
    s_add_u32 s3, s3, s{sSpin}
    v_and_b32 v{vfa}, 31, v{vl}
    v_lshlrev_b32 v{vfa}, 4, v{vfa}
    """)
    for q_ in range(4):
        k.e(f"buffer_load_dwordx4 {vr(csr[q_],4)}, v{vfa}, s[{srdW}:{srdW+3}], s3 offen sc1")
        k.e("s_add_u32 s3, s3, 8192")
    ng = w1warm('g')
    ld.patterns()
    k.e(f"s_mul_i32 s{sRow}, s{sRB3}, {128 * 2 * D_}")
    k.e(f"s_lshl_b32 s{sCol}, s{sCT3}, 8")
    ld.bases(sRow, sCol)
    set_srd(k, srdW, ptr['w1'], F_ * D_ * 2, bias=True)
    ld.sRot = sRotL
    k.e(f"s_lshr_b32 s{sRotL}, s{sJ}, 2")
    k.e(f"s_mul_i32 s{sRotL}, s{sRotL}, 23")
    k.e(f"s_lshr_b32 s{sRotL}, s{sRotL}, 4")
    k.e(f"s_min_u32 s{sRotL}, s{sRotL}, 9")
    k.e("s_barrier")
    k.e(f"s_waitcnt vmcnt({ng})")
    for j in range(2):
        k.e(f"v_pk_add_f32 {vr(csr[0]+2*j,2)}, {vr(csr[0]+2*j,2)}, {vr(csr[1]+2*j,2)}")
        k.e(f"v_pk_add_f32 {vr(csr[2]+2*j,2)}, {vr(csr[2]+2*j,2)}, {vr(csr[3]+2*j,2)}")
        k.e(f"v_pk_add_f32 {vr(c3r+2*j,2)}, {vr(csr[0]+2*j,2)}, {vr(csr[2]+2*j,2)}")
    k.e("s_barrier")
    set_flag(sP, FL_2)
    k.stamp_l("f2set")
    Lidle3 = k.label("ldidle3")
    k.e(f"s_cmp_ge_u32 s{sJ}, 28")
    k.e(f"s_cbranch_scc1 {Lidle3}")
    ld.prefill_w(srdW, c3.SW)
    vl2 = k.v()
    k.e(f"""
    v_and_b32 v{vl2}, 31, v{vl}
    v_lshlrev_b32 v{vl2}, 4, v{vl2}
    s_lshl_b32 s3, s{sLW}, 9
    s_add_u32 s3, s3, {P3_SCR + 1024}
    v_add_u32 v{vl2}, s3, v{vl2}
    ds_write_b128 v{vl2}, {vr(c3r,4)}
    s_waitcnt lgkmcnt(0)
    """)
    k.e(f"""
    s_mul_i32 s3, s{sRB3}, {FS}
    s_add_u32 s3, s3, {FL_2}
    v_and_b32 v{vfa}, 15, v{vl}
    v_lshlrev_b32 v{vfa}, 2, v{vfa}
    v_add_u32 v{vfa}, s3, v{vfa}
    """)
    def r_check():
        lp, lo = k.label("rchk"), k.label("rok")
        k.e(f"""
        s_mul_i32 s3, s{sCH}, {4 * FS}
        s_add_u32 s3, s3, {FL_R}
        v_and_b32 v{vfa}, 3, v{vl}
        v_mul_u32_u24 v{vfa}, {FS}, v{vfa}
        v_add_u32 v{vfa}, s3, v{vfa}
        s_mov_b32 s{sSpin}, 0
        """)
        k.place(lp)
        k.e(f"""
        buffer_load_dword v{vf}, v{vfa}, s[{srdF}:{srdF+3}], 0 offen sc1
        s_waitcnt vmcnt(0)
        v_cmp_ne_u32 vcc, 45, v{vf}
        s_add_u32 s{sSpin}, s{sSpin}, 1
        s_nop 3
        s_cbranch_vccz {lo}
        s_cmp_gt_u32 s{sSpin}, 0x40000
        s_cbranch_scc1 {k.end}
        s_sleep 16
        s_branch {lp}
        """)
        k.place(lo)

    poll(srdF, 1, tag="f2ok", drain1=False)
    lrc = k.label("rc")
    k.e(f"s_cmp_eq_u32 s{sLW}, 0")
    k.e(f"s_cbranch_scc1 {lrc}")
    r_check()
    k.place(lrc)
    k.e("s_barrier")

    def idle_warm():
        mm_ = k.mark()
        sCo = k.s()
        k.e(f"""
        s_lshl_b32 s{sCo}, s{sCH}, 2
        s_add_u32 s{sCo}, s{sCo}, s{sJ}
        s_sub_u32 s{sCo}, s{sCo}, 28
        s_mul_i32 s{sCo}, s{sCo}, {W2P_CT}
        s_add_u32 s{sCo}, s{sCo}, {WS_W2P}
        """)
        T = Touch(k, vl, 16, 2048)
        for it in range(OPT['iw']):
            T.unit(ptr['ws'], sCo, sLW, 2 * it, 135)
            if OPT['iwser']:
                k.e('s_waitcnt vmcnt(0)')
        k.release(mm_)

    def w1p(lst):
        def f():
            n = 0
            assert ld.issued >= 40 + 80
            for m in lst:
                for op in ld._W(m, srdW, coff=128):
                    ld.emit_op(op); n += 1
            return n
        return f
    ld.stream(srdA, srdW, aflags="sc1", tag="p3", hooks={7: w1p([0, 1, 2]), 8: w1p([3, 4, 5]), 9: w1p([6, 7])})
    w1p([8])()
    k.e("s_barrier")
    w1p([9])()
    k.e(f"""
    s_mul_i32 s{sP}, s{sRB3}, {FS}
    s_lshl_b32 s3, s{sCT3}, 2
    s_add_u32 s{sP}, s{sP}, s3
    s_add_u32 s{sP}, s{sP}, {FL_3}
    s_mov_b32 s{sAct}, 1
    s_waitcnt vmcnt(20)
    s_barrier
    s_branch {Lskip3}
    """)
    k.place(Lidle3)
    k.e(f"s_mov_b32 s{sAct}, 0")
    k.release(mS)
    r_check()
    idle_warm()
    k.place(Lskip3)
    Lend, Lno3, Lno4 = k.label("ldend"), k.label("ldno3"), k.label("ldno4")
    sRB4, sCT4 = dec2()
    ld = Loader(k, c4, vl, sLW)
    ld.patterns()
    k.e(f"s_mul_i32 s{sRow}, s{sRB4}, {64 * 2 * F_}")
    k.e(f"s_mul_i32 s{sCol}, s{sCT4}, {W2P_CT}")
    ld.bases(sRow, sCol)
    set_srd(k, srdA, ptr['ws'], S_ * F_ * 2, WS_HH, bias=True)
    set_srd(k, srdW, ptr['ws'], 8 * W2P_CT, WS_W2P)
    ld.sRot = sRotL
    k.e(f"s_lshr_b32 s{sRotL}, s{sJ}, 3")
    k.e(f"s_mul_i32 s{sRotL}, s{sRotL}, 7")
    k.e(f"s_lshr_b32 s{sRotL}, s{sRotL}, 1")
    ld.prefill_w(srdW, OPT['pf1'])
    k.e(f"""
    s_cmp_eq_u32 s{sAct}, 0
    s_cbranch_scc1 {Lno3}
    s_waitcnt vmcnt({5 * OPT['pf1']})
    s_barrier
    """)
    set_flag(sP, 0)
    k.stamp_l("f3set")
    k.place(Lno3)
    for m_ in range(OPT['pf1'], 6):
        for op in ld._W(m_, srdW):
            ld.emit_op(op)
    ld.pw = 6
    k.e(f"""
    s_cmp_eq_u32 s{sAct}, 0
    s_cbranch_scc1 {Lno4}
    s_barrier
    """)
    k.place(Lno4)
    k.e(f"""
    s_lshr_b32 s3, s{sRB4}, 1
    s_mul_i32 s3, s3, {FS}
    s_add_u32 s3, s3, {FL_3}
    v_and_b32 v{vfa}, 15, v{vl}
    v_min_u32 v{vfb}, 12, v{vfa}
    v_min_u32 v{vfa}, 13, v{vfa}
    v_lshlrev_b32 v{vfa}, 2, v{vfa}
    v_add_u32 v{vfa}, s3, v{vfa}
    v_lshlrev_b32 v{vfb}, 2, v{vfb}
    v_add_u32 v{vfb}, s3, v{vfb}
    v_add_u32 v{vfb}, 64, v{vfb}
    """)
    poll(srdF, 1, tag="f3ok", drain1=False, both=True)
    mk = {}

    def f3b_set():
        k.e(f"""
        s_and_b32 s3, s{sAct}, s{sLW}
        s_cmp_eq_u32 s3, 1
        s_cselect_b32 s3, 64, {OOB}
        v_mov_b32 v{vfa}, s3
        s_mov_b64 exec, 1
        buffer_store_dword v{vone}, v{vfa}, s[{srdF}:{srdF+3}], s{sP} offen sc1
        s_mov_b64 exec, -1
        """)
        return 1

    def f3b_issue():
        k.e(f"buffer_load_dword v{vf}, v{vfb}, s[{srdF}:{srdF+3}], 0 offen sc1")
        mk['n'] = ld.issued
        return 1

    def f3b_check():
        k.e(f"v_mov_b32 v{vfa}, v{vfb}")
        poll(srdF, 1, tag="f3bok", drain1=False, both=True, first_issued=True, younger=max(1, ld.issued - mk['n']) if ld.issued > mk['n'] else 0)
        return 0

    def out_touch():
        set_srd(k, srdF, ptr['out'], S_ * D_ * 2)
        k.e(f"""
        s_mul_i32 s3, s{sRB4}, {64 * 2 * D_}
        s_mul_i32 s{sSpin}, s{sCT4}, 160
        s_add_u32 s3, s3, s{sSpin}
        s_mul_i32 s{sSpin}, s{sLW}, 156
        s_add_u32 s3, s3, s{sSpin}
        v_mul_u32_u24 v{vfa}, {2 * D_}, v{vl}
        buffer_load_dword v{k.vdummy}, v{vfa}, s[{srdF}:{srdF+3}], s3 offen
        """)
        return 1
    ld.stream(srdA, srdW, aflags="sc1", tag="p4", hooks={1: f3b_set, HB - 2: f3b_issue, HB: f3b_check},
              last=out_touch if OPT['otouch'] else None)
    k.place(Lend)
    endwave()
    k.release(mL)

    k.lines.append('; @SEC svc')
    k.place(Lsvc)
    mV = k.mark()
    k.vtop = vLtop
    sS, sA, sB, sX8, sPi = (k.s() for _ in range(5))
    srdX, srdS, srdK, srdW_ = k.s(4), k.s(4), k.s(4), k.s(4)
    xr = [k.v(4) for _ in range(5)]
    ux = [k.v(2) for _ in range(20)]
    t0, t1, vs_, vq_ = k.v(), k.v(), k.v(2), k.v(2)
    z4 = k.v(4)
    k.e(f"""
    s_and_b32 s{sS}, s{sJ1}, 7
    s_and_b32 s{sX8}, s2, 7
    s_lshl_b32 s{sPi}, s{sX8}, 3
    s_add_u32 s{sPi}, s{sPi}, s{sS}
    s_lshl_b32 s{sA}, s{sPi}, 3
    s_add_u32 s{sA}, s{sA}, s{sWave}
    s_lshl_b32 s{sA}, s{sA}, 2
    v_lshrrev_b32 v{t0}, 4, v{vl}
    v_add_u32 v{t0}, s{sA}, v{t0}
    v_mul_u32_u24 v{t1}, {2*D_}, v{t0}
    v_and_b32 v{vs_}, 15, v{vl}
    v_lshl_add_u32 v{t1}, v{vs_}, 4, v{t1}
    s_waitcnt lgkmcnt(0)
    """)
    set_srd(k, srdX, ptr['x'], S_ * D_ * 2)
    for i in range(5):
        k.e(f"buffer_load_dwordx4 {vr(xr[i],4)}, v{t1}, s[{srdX}:{srdX+3}], 0 offen offset:{i*256}")
    set_srd(k, srdS, ptr['ws'], WS_FL - WS_ST1 + FL_BYTES, WS_ST1)
    set_srd(k, srdK, ptr['ws'], KV_BYTES, WS_KV)
    set_srd(k, srdW_, ptr['wqkv'], 3 * D_ * D_ * 2)
    k.e(f"""
    v_mov_b64 {vr(z4,2)}, 0
    v_mov_b64 {vr(z4+2,2)}, 0
    s_lshl_b32 s{sB}, s{sA}, 5
    v_lshlrev_b32 v{t1}, 4, v{vl}
    s_mov_b64 exec, 0xff
    buffer_store_dwordx4 {vr(z4,4)}, v{t1}, s[{srdK}:{srdK+3}], s{sB} offen sc1
    s_mov_b64 exec, 3
    s_lshr_b32 s{sB}, s{sA}, 4
    s_mul_i32 s{sB}, s{sB}, {FS}
    s_and_b32 s3, s{sWave}, 3
    s_lshl_b32 s3, s3, 5
    s_add_u32 s{sB}, s{sB}, s3
    s_add_u32 s{sB}, s{sB}, {WS_FL - WS_ST1}
    buffer_store_dwordx4 {vr(z4,4)}, v{t1}, s[{srdS}:{srdS+3}], s{sB} offen sc1
    s_mov_b64 exec, -1
    v_mov_b64 {vr(vs_,2)}, 0
    v_mov_b64 {vr(vq_,2)}, 0
    """)
    NB = 10
    wb = [k.v(4) for _ in range(NB)]
    ca = [[k.v(2) for _ in range(4)] for _ in range(2)]
    cu = k.v(2)
    vw, vw1, vlw, vlr, t2 = (k.v() for _ in range(5))
    sO, sO1 = k.s(), k.s()
    srdW1 = k.s(4)
    set_srd(k, srdW1, ptr['w1'], F_ * D_ * 2)
    k.e(f"""
    s_lshl_b32 s3, s{sS}, 1
    v_bfe_u32 v{t2}, v{vl}, 3, 1
    v_add_u32 v{t2}, s3, v{t2}
    v_min_u32 v{t2}, 14, v{t2}
    v_mul_u32_u24 v{vw}, 205, v{t2}
    v_lshrrev_b32 v{vw}, 10, v{vw}
    v_mul_u32_u24 v{vw}, 640, v{vw}
    v_lshl_add_u32 v{vw}, v{t2}, 7, v{vw}
    v_and_b32 v{t2}, 7, v{vl}
    v_lshl_add_u32 v{vw}, v{t2}, 4, v{vw}
    v_lshrrev_b32 v{t2}, 4, v{vl}
    v_mul_u32_u24 v{vw1}, {6 * D_}, v{t2}
    v_add_u32 v{vw}, v{vw}, v{vw1}
    s_mul_i32 s{sB}, s{sRQ}, 40
    s_add_u32 s{sB}, s{sB}, s{sWave}
    s_mul_i32 s{sO}, s{sB}, {4 * 6 * D_}
    s_mul_i32 s3, s{sCH}, 640
    s_add_u32 s{sO}, s{sO}, s3
    """)
    for it in range(5):
        k.e(f"buffer_load_dwordx4 {vr(wb[it],4)}, v{vw}, s[{srdW_}:{srdW_+3}], s{sO} offen")
        k.e(f"s_add_u32 s{sO}, s{sO}, {32 * 6 * D_}")
    k.e(f"""
    v_mul_u32_u24 v{vw1}, {2 * F_}, v{t2}
    v_and_b32 v{t2}, 15, v{vl}
    v_lshl_add_u32 v{vw1}, v{t2}, 4, v{vw1}
    s_mul_i32 s{sO1}, s{sB}, {4 * 2 * F_}
    s_min_u32 s3, s{sS}, 6
    s_mul_i32 s{sB}, s{sCH}, 7
    s_add_u32 s3, s3, s{sB}
    s_lshl_b32 s3, s3, 8
    s_add_u32 s{sO1}, s{sO1}, s3
    """)
    k.e(f"""
    v_lshlrev_b32 v{vlw}, 5, v{t2}
    s_lshl_b32 s3, s{sWave}, 9
    v_add_u32 v{vlw}, s3, v{vlw}
    v_lshlrev_b32 v{vlr}, 4, v{vl}
    """)
    sUv, sCo = k.s(), k.s()
    k.e(f"""
    s_lshl_b32 s{sUv}, s{sWave}, 3
    s_add_u32 s{sUv}, s{sUv}, s{sS}
    s_mul_i32 s{sCo}, s{sCH}, 640
    """)
    TWs = Touch(k, vl, 15, 6 * D_, seg5=True)
    u0 = 24 * OPT['hW']
    nX = 0
    if OPT['hX'] != 10:
        sRo2 = k.s()
        k.e(f"""
        s_xor_b32 s{sRo2}, s{sX8}, 1
        s_mul_i32 s{sRo2}, s{sRo2}, {256 * 2 * D_}
        """)
        TXs = Touch(k, vl, 16, 2048, share=TWs)
        TXs.unit(ptr['x'], sRo2, sUv, 0, 160)
        nX = 1
    if OPT['tlbw']:
        lt_ = k.label("tlb")
        sTp = TWs.sB
        k.e(f"s_cmp_lg_u32 s{sWave}, 0")
        k.e(f"s_cbranch_scc1 {lt_}")
        k.e(f"s_mov_b64 s[{srdK}:{srdK+1}], s[{ptr['ws']}:{ptr['ws']+1}]")
        k.e(f"s_mov_b32 s{srdK+2}, {0x1500000}")
        k.e(f"s_lshl_b32 s3, s{sS}, 22")
        for i, (nm, nb) in enumerate((('out', S_ * D_ * 2), ('w2', F_ * D_ * 2))):
            k.e(f"s_cmp_eq_u32 s{sS}, {6 + i}")
            k.e(f"s_cselect_b64 s[{srdK}:{srdK+1}], s[{ptr[nm]}:{ptr[nm]+1}], s[{srdK}:{srdK+1}]")
            k.e(f"s_cselect_b32 s{srdK+2}, {nb}, s{srdK+2}")
            k.e(f"s_cselect_b32 s3, 0, s3")
        k.e(f"v_lshlrev_b32 v{cu}, 16, v{vl}")
        k.e(f"buffer_load_dword v{k.vdummy}, v{cu}, s[{srdK}:{srdK+3}], s3 offen")
        k.place(lt_)
    nT = OPT['svT1']
    for it in range(nT):
        TWs.unit(ptr['wqkv'], sCo, sUv, u0 + 64 * it, 640)
    NB = 5 + nX + nT
    for i in range(5):
        p2_pat(i)()
    for i in range(5):
        k.e(f"s_waitcnt vmcnt({6 - i + NB})")
        for d in range(4):
            k.e(f"v_lshlrev_b32 v{ux[4*i+d]}, 16, v{xr[i]+d}")
            k.e(f"v_and_b32 v{ux[4*i+d]+1}, 0xffff0000, v{xr[i]+d}")
            k.e(f"v_pk_add_f32 {vr(vs_,2)}, {vr(vs_,2)}, {vr(ux[4*i+d],2)}")
    k.e(f"v_add_f32 v{vs_}, v{vs_}, v{vs_+1}")
    dpp_rowsum(k, vs_)
    k.e(f"s_mov_b32 s{sB}, {f32bits(1.0/640)}")
    k.e(f"v_mul_f32 v{vs_}, s{sB}, v{vs_}")
    for i in range(20):
        k.e(f"v_pk_add_f32 {vr(ux[i],2)}, {vr(ux[i],2)}, {vr(vs_,2)} op_sel_hi:[1,0] neg_lo:[0,1] neg_hi:[0,1]")
        k.e(f"v_pk_fma_f32 {vr(vq_,2)}, {vr(ux[i],2)}, {vr(ux[i],2)}, {vr(vq_,2)}")
    k.e(f"v_add_f32 v{vq_}, v{vq_}, v{vq_+1}")
    dpp_rowsum(k, vq_)
    k.e(f"v_mul_f32 v{vq_}, s{sB}, v{vq_}")
    k.e(f"s_mov_b32 s{sB}, {f32bits(1e-5)}")
    ln_finalize_multi(k, [vs_], [vq_], sB)
    k.e(f"""
    v_lshrrev_b32 v{t1}, 7, v{t0}
    v_and_b32 v{t0}, 127, v{t0}
    v_lshlrev_b32 v{t0}, 2, v{t0}
    v_lshl_add_u32 v{t0}, v{t1}, 10, v{t0}
    s_mov_b32 exec_lo, 0x00010001
    s_mov_b32 exec_hi, 0x00010001
    buffer_store_dword v{vs_}, v{t0}, s[{srdS}:{srdS+3}], 0 offen sc1
    buffer_store_dword v{vq_}, v{t0}, s[{srdS}:{srdS+3}], 0 offen offset:512 sc1
    s_mov_b64 exec, -1
    """)

    def cs_sum(younger, nowait=False):
        for a in ca[0]:
            k.e(f"v_mov_b64 {vr(a,2)}, 0")
        if nowait:
            l_ = k.label("csw")
            k.e(f"s_and_b32 s3, s{sWave}, 6")
            k.e(f"s_cmp_eq_u32 s3, 4")
            k.e(f"s_cbranch_scc1 {l_}")
            k.e("s_waitcnt vmcnt(0)")
            k.place(l_)
        for it in range(5):
            if not nowait:
                k.e(f"s_waitcnt vmcnt({4 - it + younger})")
            for d in range(4):
                k.e(f"v_lshlrev_b32 v{cu}, 16, v{wb[it] + d}")
                k.e(f"v_and_b32 v{cu+1}, 0xffff0000, v{wb[it] + d}")
                k.e(f"v_pk_add_f32 {vr(ca[0][d],2)}, {vr(ca[0][d],2)}, {vr(cu,2)}")

    def cs_pub(off_ws, lds_off):
        vals = [a + i for a in ca[0] for i in range(2)]
        allreduce4_multi(k, vals, [wb[i // 4] + i % 4 for i in range(8)])
        for h in range(4):
            k.e(f"ds_write_b64 v{vlw}, {vr(ca[0][h],2)} offset:{lds_off + 8*h}")
        k.e("s_waitcnt lgkmcnt(0)")
        k.e("s_barrier")
        lsk = k.label("csk")
        k.e(f"s_cmp_lg_u32 s{sWave}, 0")
        k.e(f"s_cbranch_scc1 {lsk}")
        for w in range(8):
            k.e(f"ds_read_b128 {vr(wb[w],4)}, v{vlr} offset:{lds_off + 512*w}")
        k.e(f"""
        s_lshl_b32 s3, s{sPi}, 9
        s_add_u32 s3, s3, {off_ws - WS_ST1}
        s_waitcnt lgkmcnt(0)
        """)
        for w in range(1, 8):
            for j in range(2):
                k.e(f"v_pk_add_f32 {vr(wb[0]+2*j,2)}, {vr(wb[0]+2*j,2)}, {vr(wb[w]+2*j,2)}")
        k.e("s_mov_b32 exec_hi, 0")
        k.e(f"buffer_store_dwordx4 {vr(wb[0],4)}, v{vlr}, s[{srdS}:{srdS+3}], s3 offen sc1")
        k.e("s_mov_b64 exec, -1")
        k.e("s_nop 1")
        k.place(lsk)
    cs_sum(nT + nX + 2)
    k.stamp_c("p1_pre")
    cs_pub(WS_CS1, 0)
    set_srd(k, srdX, ptr['dbg'], 256)
    k.e("s_waitcnt vmcnt(0)")
    k.e("s_barrier")
    lf = k.label("svf")
    k.e(f"""
    s_cmp_eq_u32 s{sWave}, 7
    s_cbranch_scc0 {lf}
    s_lshl_b32 s3, s{sPi}, {1 if OPT['diag'] else 2}
    v_mov_b32 v{t0}, s3
    v_mov_b32 v{t1}, 1
    s_mov_b64 exec, 1
    {'buffer_store_short' if OPT['diag'] else 'buffer_store_dword'} v{t1}, v{t0}, s[{srdX}:{srdX+3}], 0 offen {'offset:128' if OPT['diag'] else ''} sc1
    s_mov_b64 exec, -1
    """)
    k.place(lf)
    k.stamp_c("p1_b0")
    k.e("s_barrier")
    n2 = 0
    while u0 + 64 * (nT + n2) < 160:
        TWs.unit(ptr['wqkv'], sCo, sUv, u0 + 64 * (nT + n2), 640, skip=True); n2 += 1
    T5 = Touch(k, vl, 5, 2 * D_, share=TWs)
    if OPT['svwo']:
        T5.unit(ptr['wo'], sCo, sUv, 0, 640, skip=True)
    else:
        T5.unit(ptr['wo'], sCo, sUv, 48, 640, skip=True)
    for it in range(5):
        k.e(f"buffer_load_dwordx4 {vr(wb[it],4)}, v{vw1}, s[{srdW1}:{srdW1+3}], s{sO1} offen")
        k.e(f"s_add_u32 s{sO1}, s{sO1}, {32 * 2 * F_}")
    T14 = Touch(k, vl, 14, 2 * F_, share=TWs)
    k.e(f"s_mul_i32 s{sB}, s{sCH}, {13 * 128}")
    for it in range(OPT['svw1']):
        T14.unit(ptr['w1'], sB, sUv, 64 * it, 640)
    cs_sum(OPT['svw1'])
    cs_pub(WS_CS3, 4096)
    for it in range(OPT['svw2']):
        T5.unit(ptr['w2'], sCo, sUv, 64 * it, 1728)
    k.e("s_waitcnt vmcnt(0)")
    k.stamp_c("p1_loop")
    k.e(f"s_mov_b32 s{sSvc}, 1")
    k.e(f"s_branch {Lrole}")
    k.release(mV)

    k.lines.append('; @SEC cons')
    k.place(Lc)
    sW0, sW1 = k.s(), k.s()
    sA = k.s(2, 2)
    sB = sA + 1
    sEps = k.s(2, 2)
    srd0, srd1, srd2 = k.s(4), k.s(4), k.s(4)
    k.e(f"""
    s_and_b32 s{sW0}, s{sWave}, 1
    s_lshr_b32 s{sW1}, s{sWave}, 1
    s_mov_b32 s{sEps}, {f32bits(1e-6)}
    s_mov_b32 s{sEps+1}, {f32bits(1e-6)}
    """)
    mC = k.mark()
    sG, sC, sTy = dec1()
    Lq, Lp1done, Lqs, Lsj, Lsv2 = (k.label(x) for x in ("consq", "p1done", "qset", "setj", "sv2"))
    srdK = srd0
    k.e("s_waitcnt lgkmcnt(0)")
    set_srd(k, srdK, ptr['ws'], KV_BYTES, WS_KV)
    k.e(f"s_cmp_eq_u32 s{sTy}, 2")
    k.e(f"s_cbranch_scc1 {Lsv2}")
    mP1 = k.mark()
    ar = [k.v() for _ in range(11)]
    va = {(vi, ki): ar[2 * vi + ki] for vi in range(2) for ki in range(2)}
    vz, vrd, vat = ar[4:6], ar[6], ar[7:11]
    ad, vso = [[ar[2 * hh], ar[2 * hh + 1]] for hh in range(4)], ar[8]
    m1 = k.mark()
    sB2 = k.s()
    vd, ve = [k.v(), k.v()], [k.v(), k.v()]
    voob, t1 = k.v(), k.v()
    sM = k.s(2)
    k.e(f"s_cmp_eq_u32 s{sTy}, 1")
    k.e(f"s_cbranch_scc1 {Lqs}")
    k.e(f"""
    s_movk_i32 s{sB2}, 504
    s_lshl_b32 s{sA}, s{sWave}, 2
    v_and_b32 v{t1}, 15, v{vl}
    v_subrev_u32 v{vd[0]}, s{sA}, v{t1}
    v_add_u32 v{vd[1]}, 16, v{vd[0]}
    v_lshrrev_b32 v{t1}, 4, v{vl}
    v_lshlrev_b32 v{t1}, 2, v{t1}
    v_subrev_u32 v{ve[0]}, s{sA}, v{t1}
    v_add_u32 v{ve[1]}, 16, v{ve[0]}
    v_mov_b32 v{voob}, 2048
    """)
    for vi in range(2):
        for ki in range(2):
            k.e(f"""
            v_mul_u32_u24 v{t1}, 24, v{ve[vi]}
            v_add_lshl_u32 v{t1}, v{t1}, v{vd[ki]}, 2
            v_cmp_gt_u32 vcc, 20, v{ve[vi]}
            v_cmp_gt_u32 s[{sM}:{sM+1}], 20, v{vd[ki]}
            s_nop 1
            s_and_b64 vcc, vcc, s[{sM}:{sM+1}]
            s_nop 1
            v_cndmask_b32 v{va[(vi,ki)]}, v{voob}, v{t1}, vcc
            """)
    for ki in range(2):
        k.e(f"""
        v_lshlrev_b32 v{t1}, 2, v{vd[ki]}
        v_add_u32 v{t1}, {20*96}, v{t1}
        v_cmp_gt_u32 vcc, 16, v{vl}
        v_cmp_gt_u32 s[{sM}:{sM+1}], 20, v{vd[ki]}
        s_nop 1
        s_and_b64 vcc, vcc, s[{sM}:{sM+1}]
        s_nop 1
        v_cndmask_b32 v{vz[ki]}, v{voob}, v{t1}, vcc
        """)
    assert P1_AT + 4 * 2560 <= LDS_TOTAL
    k.e(f"s_mul_i32 s{sA}, s{sWave}, 2560")
    k.e(f"s_add_u32 s{sA}, s{sA}, {P1_AT}")
    for x in list(va.values()) + vz:
        k.e(f"v_add_u32 v{x}, s{sA}, v{x}")
    k.e(f"v_lshl_add_u32 v{vrd}, v{vl}, 2, s{sA}")
    k.e(f"v_mov_b32 v{voob}, {OOB}")
    for n, base in enumerate((0, 64, 128, 448)):
        k.e(f"""
        v_add_u32 v{t1}, {base}, v{vl}
        v_mul_u32_u24 v{vd[0]}, 2731, v{t1}
        v_lshrrev_b32 v{vd[0]}, 16, v{vd[0]}
        v_mul_u32_u24 v{vd[0]}, 24, v{vd[0]}
        v_sub_u32 v{vd[0]}, v{t1}, v{vd[0]}
        v_cmp_gt_u32 vcc, 20, v{vd[0]}
        v_cmp_gt_u32 s[{sM}:{sM+1}], s{sB2}, v{t1}
        v_lshlrev_b32 v{t1}, 2, v{t1}
        s_nop 0
        s_and_b64 vcc, vcc, s[{sM}:{sM+1}]
        s_nop 1
        v_cndmask_b32 v{vat[n]}, v{voob}, v{t1}, vcc
        """)
    k.e(f"s_branch {Lsj}")
    k.place(Lqs)

    vb, vc, t0 = vd[0], vd[1], ve[0]
    k.e(f"""
    s_mul_i32 s{sA}, s{sW1}, 20480
    s_mul_i32 s{sB}, s{sW0}, 5120
    s_add_u32 s{sA}, s{sA}, s{sB}
    v_lshlrev_b32 v{vso}, 4, v{vl}
    v_mov_b32 v{ar[9]}, {OOB}
    v_mov_b32 v{ar[10]}, {OOB}
    v_and_b32 v{vb}, 3, v{vl}
    v_lshlrev_b32 v{vb}, 8, v{vb}
    v_add_u32 v{vb}, s{sA}, v{vb}
    v_lshrrev_b32 v{t0}, 4, v{vl}
    v_min_u32 v{t0}, 2, v{t0}
    v_bfe_u32 v{vc}, v{vl}, 2, 2
    v_lshl_add_u32 v{vc}, v{t0}, 3, v{vc}
    v_cmp_gt_u32 vcc, 2, v{t0}
    s_nop 1
    v_cndmask_b32 v{t1}, 0, 4, vcc
    """)
    for hh in range(4):
        for hf in range(2):
            a = ad[hh][hf]
            k.e(f"v_add_u32 v{t0}, {20*hh}, v{vc}")
            if hf:
                k.e(f"v_add_u32 v{t0}, v{t0}, v{t1}")
            k.e(f"""
            v_lshrrev_b32 v{a}, 4, v{t0}
            v_lshl_add_u32 v{a}, v{a}, 10, v{vb}
            v_and_b32 v{t0}, 15, v{t0}
            v_lshl_add_u32 v{a}, v{t0}, 4, v{a}
            """)
    k.place(Lsj)
    k.release(m1)
    vc0, vc2, vc3, vst, vx0, vx2, vxr = (k.v() for _ in range(7))
    ones = k.v(4)
    sX0, sX3 = k.s(), k.s()
    k.e(f"""
    s_cmp_eq_u32 s{sTy}, 1
    s_cselect_b32 s{sX0}, 5, 3
    s_cselect_b32 s{sX3}, 3, 5
    s_mul_i32 s{sX0}, s{sX0}, s{sW0}
    s_add_u32 s{sX3}, s{sX3}, s{sX0}
    v_and_b32 v{vc0}, 15, v{vl}
    v_lshlrev_b32 v{vc0}, 2, v{vc0}
    v_add_u32 v{vc0}, {P1_ST + 1024}, v{vc0}
    s_mul_i32 s{sA}, s{sW0}, 320
    v_add_u32 v{vc2}, s{sA}, v{vc0}
    s_lshl_b32 s{sA}, s{sX3}, 6
    v_add_u32 v{vc3}, s{sA}, v{vc0}
    s_lshl_b32 s{sA}, s{sX0}, 6
    v_add_u32 v{vc0}, s{sA}, v{vc0}
    v_lshrrev_b32 v{vst}, 4, v{vl}
    v_lshlrev_b32 v{vst}, 4, v{vst}
    s_lshl_b32 s{sA}, s{sW1}, 8
    s_add_u32 s{sA}, s{sA}, {P1_ST}
    v_add_u32 v{vst}, s{sA}, v{vst}
    v_lshlrev_b32 v{vxr}, 4, v{vl}
    s_mul_i32 s{sA}, s{sW1}, 20480
    s_lshl_b32 s{sB}, s{sX0}, 10
    s_add_u32 s{sB}, s{sB}, s{sA}
    v_add_u32 v{vx0}, s{sB}, v{vxr}
    s_mul_i32 s{sB}, s{sW0}, 5120
    s_add_u32 s{sB}, s{sB}, s{sA}
    v_add_u32 v{vx2}, s{sB}, v{vxr}
    s_lshl_b32 s{sA}, s{sWave}, 10
    v_add_u32 v{vxr}, s{sA}, v{vxr}
    """)
    for x in (sX0, sX3):
        k.e(f"""
        s_cmp_ge_u32 s{x}, 5
        s_cselect_b32 s3, {2560 - 160}, 0
        s_lshl_b32 s{x}, s{x}, 5
        s_add_u32 s{x}, s{x}, s3
        """)
    ckv.mixed = (sX0, sX3)
    for j in range(4):
        k.e(f"v_mov_b32 v{ones+j}, 0x3f803f80")
    o = consumer_setup(k, ckv, sW1, sW0, vl)
    k.e(f"s_mov_b32 s{sA}, {f32bits(LOG2E)}")
    k.e(f"s_mov_b32 s{sB}, {f32bits(LOG2E)}")
    consumer_loop(k, o, None, tag="p1")
    tp = k.v(2)
    cs = [k.v(2) for _ in range(5)]
    stm = [k.v(4) for _ in range(4)]
    str_ = [k.v(4) for _ in range(4)]
    r2 = [k.v(4) for _ in range(4)]
    fr = [k.v(4), k.v(4)]
    Dz = [k.v(4), k.v(4)]
    k.e("s_barrier")
    k.stamp_c("p1_e1")
    co = [0, 64, 128, 0, 64]
    for nt in range(5):
        k.e(f"ds_read_b32 v{cs[nt]}, v{[vc0, vc0, vc2, vc3, vc3][nt]} offset:{co[nt]}")
    for mt in range(4):
        k.e(f"ds_read_b128 {vr(stm[mt],4)}, v{vst} offset:{mt*64}")
    for mt in range(4):
        k.e(f"ds_read_b128 {vr(str_[mt],4)}, v{vst} offset:{512 + mt*64}")
    for mt in range(4):
        k.e(f"s_waitcnt lgkmcnt({7 - mt})")
        for nt in range(5):
            a = o.acc[mt][nt]
            for j in range(2):
                k.e(f"v_pk_fma_f32 {vr(a+2*j,2)}, {vr(stm[mt]+2*j,2)}, {vr(cs[nt],2)}, {vr(a+2*j,2)} op_sel_hi:[1,0,1] neg_lo:[1,0,0] neg_hi:[1,0,0]")
    k.e("s_waitcnt lgkmcnt(0)")
    assert sB == sA + 1 and sA % 2 == 0
    for mt in range(4):
        for j in range(2):
            k.e(f"v_pk_mul_f32 {vr(r2[mt]+2*j,2)}, {vr(str_[mt]+2*j,2)}, s[{sA}:{sA+1}]")
    xo = [0, 1, 2, 5, 6]

    def fin_tile(nt, is_k, xo=xo):
        for tg in range(2):
            for mt in (2 * tg, 2 * tg + 1):
                for j in range(2):
                    a = o.acc[mt][nt] + 2 * j
                    if is_k:
                        phi_pair(k, a, str_[mt] + 2 * j, r2[mt] + 2 * j, sEps, tp)
                    else:
                        k.e(f"v_pk_mul_f32 {vr(a,2)}, {vr(a,2)}, {vr(str_[mt]+2*j,2)}")
            f = fr[tg]
            for i, mt in enumerate((2 * tg, 2 * tg + 1)):
                a = o.acc[mt][nt]
                k.e(f"v_cvt_pk_bf16_f32 v{f + 2*i}, v{a}, v{a+1}")
                k.e(f"v_cvt_pk_bf16_f32 v{f + 2*i + 1}, v{a+2}, v{a+3}")
            k.e(f"ds_write_b128 v{vx2 if nt == 2 else vx0}, {vr(f,4)} offset:{tg*10240 + xo[nt]*1024}")
    for nt in (0, 1):
        fin_tile(nt, True)
    Lv, Lj, Lk2 = k.label("vpath"), k.label("vjoin"), k.label("k2")
    k.e(f"s_cmp_eq_u32 s{sTy}, 1")
    k.e(f"s_cbranch_scc1 {Lq}")
    for nt in (3, 4):
        fin_tile(nt, False)
    k.e(f"s_cmp_eq_u32 s{sW0}, 1")
    k.e(f"s_cbranch_scc1 {Lv}")
    fin_tile(2, True)
    k.e(f"s_branch {Lj}")
    k.place(Lv)
    fin_tile(2, False)
    k.place(Lj)
    k.e(f"""
    s_lshl_b32 s{sA}, s{sC}, 2
    s_add_u32 s{sA}, s{sA}, s{sWave}
    s_lshl_b32 s{sA}, s{sA}, 11
    s_waitcnt lgkmcnt(0)
    s_barrier
    """)
    k.stamp_c("p1_e2")
    accs = [o.acc[mt][nt] for mt in range(4) for nt in range(5)]
    F = {}
    idx = 0
    for tg in range(4):
        for nm, off in (("k0", 0), ("k1", 1), ("v0", 5), ("v1", 6)):
            F[(tg, nm)] = accs[idx]; idx += 1
            if idx == 16:
                k.e("s_waitcnt lgkmcnt(11)")
            k.e(f"ds_read_b128 {vr(F[(tg, nm)],4)}, v{vxr} offset:{tg*10240 + off*1024}")
    Dk = {(vi, ki): accs[16 + 2 * vi + ki] for vi in range(2) for ki in range(2)}
    for tg in range(4):
        k.e(f"s_waitcnt lgkmcnt({12 - 4*tg})")
        for vi in range(2):
            for ki in range(2):
                d = Dk[(vi, ki)]
                k.e(f"v_mfma_f32_16x16x32_bf16 {vr(d,4)}, {vr(F[(tg, f'v{vi}')],4)}, {vr(F[(tg, f'k{ki}')],4)}, " + ("0" if tg == 0 else vr(d, 4)))
        for ki in range(2):
            d = Dz[ki]
            k.e(f"v_mfma_f32_16x16x32_bf16 {vr(d,4)}, {vr(ones,4)}, {vr(F[(tg, f'k{ki}')],4)}, " + ("0" if tg == 0 else vr(d, 4)))
    k.e("s_nop 3")
    for vi in range(2):
        for ki in range(2):
            for j in range(4):
                k.e(f"ds_write_b32 v{va[(vi,ki)]}, v{Dk[(vi,ki)]+j} offset:{j*96}")
            if (vi, ki) == (1, 0):
                k.e("s_waitcnt lgkmcnt(6)")
    for ki in range(2):
        k.e(f"ds_write_b32 v{vz[ki]}, v{Dz[ki]}")
    k.e("s_waitcnt lgkmcnt(0)")
    for n in range(8):
        k.e(f"ds_read_b32 v{accs[n // 4] + n % 4}, v{vrd} offset:{n*256}")
    for n in range(8):
        k.e(f"s_waitcnt lgkmcnt({7 - n})")
        k.e(f"buffer_atomic_add_f32 v{accs[n // 4] + n % 4}, v{vat[n % 3] if n < 7 else vat[3]}, s[{srdK}:{srdK+3}], s{sA} offen offset:{(n // 3) * 768 if n < 7 else 0}")
    k.e(f"s_branch {Lp1done}")
    k.place(Lq)
    srdP = srd1
    set_srd(k, srdP, ptr['ws'], S_ * 1536, WS_PQ)
    sQ = k.s()
    k.e(f"""
    s_lshl_b32 s{sQ}, s{sG}, 1
    s_add_u32 s{sQ}, s{sQ}, s{sW1}
    s_lshl_b32 s{sQ}, s{sQ}, 4
    s_add_u32 s{sQ}, s{sQ}, s{sC}
    s_lshl_b32 s{sQ}, s{sQ}, 1
    s_add_u32 s{sQ}, s{sQ}, s{sW0}
    s_mul_i32 s{sQ}, s{sQ}, {4 * 768}
    """)
    qb = [stm[0], stm[1], stm[2], stm[3]]

    def q_rd(hh):
        k.e("s_waitcnt lgkmcnt(0)")
        for i in range(4):
            for hf in range(2):
                k.e(f"ds_read_b64_tr_b16 {vr(o.acc[i][hh] + 2*hf, 2)}, v{ad[hh][hf]} offset:{(i // 2) * 10240 + 8 * (i % 2)}")

    def q_st(hh, pend):
        k.e(f"s_waitcnt lgkmcnt({pend})")
        k.e("s_mov_b32 exec_hi, 0xffff")
        for i in range(4):
            k.e(f"s_add_u32 s3, s{sQ}, {i * 32 * 768}")
            k.e(f"buffer_store_dwordx4 {vr(o.acc[i][hh],4)}, v{vso}, s[{srdP}:{srdP+3}], s3 offen offset:{hh*768} sc1")
        k.e("s_mov_b64 exec, -1")
    xq = [0, 1, 2, 3, 4]
    for hh in range(4):
        q_rd(hh)
        if hh < 3:
            fin_tile(hh + 2, True, xo=xq)
            q_st(hh, 2)
        else:
            q_st(hh, 0)
        if hh == 1:
            k.e("s_barrier")
    k.stamp_c("p1_e2")
    k.e(f"s_branch {Lp1done}")
    k.release(mP1)
    k.place(Lsv2)
    k.e("s_barrier")
    k.e("s_barrier")
    k.e(f"s_branch {Lp1done}")
    k.lines.append('; @SEC cons2')
    k.place(Lp1done)
    k.stamp_c("p1_st")
    k.release(mC)
    sRB, sCT = dec2()
    PQ = [k.v(64, 4), k.v(64, 4)]
    big = k.v(80, 4)
    xr = [k.v(4), k.v(4), k.v(2)]
    cE = k.v(4)
    vO, vO2, vrow, vPq, vKa, vKb, vW, vW2, vXw, vXr, t0, t1, t2 = (k.v() for _ in range(13))
    sM = k.s(2)
    k.e(f"""
    s_lshl_b32 s{sA}, s{sRB}, 6
    s_lshl_b32 s{sB}, s{sW0}, 5
    s_add_u32 s{sA}, s{sA}, s{sB}
    s_lshl_b32 s{sB}, s{sW1}, 4
    s_add_u32 s{sA}, s{sA}, s{sB}
    v_and_b32 v{t2}, 15, v{vl}
    v_add_u32 v{vrow}, s{sA}, v{t2}
    v_mul_u32_u24 v{vO}, {2*D_}, v{vrow}
    s_mul_i32 s{sA}, s{sCT}, 160
    v_add_u32 v{vO}, s{sA}, v{vO}
    v_lshrrev_b32 v{t1}, 4, v{vl}
    v_lshl_add_u32 v{vO2}, v{t1}, 3, v{vO}
    v_bfe_u32 v{t0}, v{vl}, 4, 1
    v_lshl_add_u32 v{vO}, v{t0}, 5, v{vO}
    v_lshrrev_b32 v{t0}, 5, v{vl}
    v_lshl_add_u32 v{vO}, v{t0}, 4, v{vO}
    v_cmp_eq_u32 vcc, 3, v{t1}
    v_lshrrev_b32 v{t0}, 2, v{t2}
    v_add_u32 v{vKa}, v{t0}, v{t2}
    v_cndmask_b32 v{vPq}, v{t1}, 1, vcc
    v_lshlrev_b32 v{vPq}, 8, v{vPq}
    v_lshl_add_u32 v{vPq}, v{t2}, 4, v{vPq}
    v_mul_u32_u24 v{vKb}, 5, v{t0}
    v_add_u32 v{vKb}, 4, v{vKb}
    v_and_b32 v{t0}, 3, v{t2}
    v_cmp_eq_u32 s[{sM}:{sM+1}], 0, v{t0}
    v_mov_b32 v{t0}, 20
    s_nop 0
    v_cndmask_b32 v{vKb}, v{t0}, v{vKb}, s[{sM}:{sM+1}]
    v_mul_u32_u24 v{vKa}, 48, v{vKa}
    v_mul_u32_u24 v{vKb}, 48, v{vKb}
    v_lshl_add_u32 v{vKa}, v{t1}, 4, v{vKa}
    v_lshl_add_u32 v{vKb}, v{t1}, 4, v{vKb}
    v_mov_b32 v{t0}, 1008
    v_cndmask_b32 v{vKa}, v{vKa}, v{t0}, vcc
    v_cndmask_b32 v{vKb}, v{vKb}, v{t0}, vcc
    s_lshl_b32 s{sA}, s{sW1}, 14
    s_add_u32 s{sA}, s{sA}, {L_KV}
    v_add_u32 v{vKa}, s{sA}, v{vKa}
    v_add_u32 v{vKb}, s{sA}, v{vKb}
    v_bfe_u32 v{t0}, v{vl}, 2, 3
    v_lshrrev_b32 v{t1}, 5, v{vl}
    v_mul_u32_u24 v{t1}, 2560, v{t1}
    v_mul_u32_u24 v{t0}, 160, v{t0}
    v_add_u32 v{vW}, v{t1}, v{t0}
    v_and_b32 v{t0}, 3, v{vl}
    v_lshl_add_u32 v{vW}, v{t0}, 3, v{vW}
    s_mul_i32 s{sA}, s{sW1}, 51200
    s_add_u32 s{sA}, s{sA}, {L_W2}
    v_add_u32 v{vW}, s{sA}, v{vW}
    s_mul_i32 s{sA}, s{sWave}, 5120
    s_add_u32 s{sA}, s{sA}, {L_X2}
    v_lshlrev_b32 v{t0}, 4, v{vl}
    v_add_u32 v{vXw}, s{sA}, v{t0}
    s_xor_b32 s{sA}, s{sWave}, 2
    s_mul_i32 s{sA}, s{sA}, 5120
    s_add_u32 s{sA}, s{sA}, {L_X2}
    v_add_u32 v{vXr}, s{sA}, v{t0}
    v_lshlrev_b32 v{vW2}, 4, v0
    v_lshlrev_b32 v{t2}, 3, v0
    s_lshl_b32 s{sA}, s{sJ}, 11
    v_add_u32 v{t2}, s{sA}, v{t2}
    v_and_b32 v{t2}, 0x7fff, v{t2}
    v_mov_b32 v{cE}, 0
    v_mov_b32 v{cE+1}, s{sEps}
    v_mov_b64 {vr(cE+2,2)}, 0
    """)
    srdX, srdP = srd2, srd1
    set_srd(k, srdX, ptr['x'], S_ * D_ * 2)
    set_srd(k, srdP, ptr['ws'], S_ * 1536, WS_PQ)
    k.e(f"""
    s_lshl_b32 s{sA}, s{sRB}, 2
    s_lshl_b32 s{sB}, s{sW0}, 1
    s_add_u32 s{sA}, s{sA}, s{sB}
    s_add_u32 s{sA}, s{sA}, s{sW1}
    s_xor_b32 s{sB}, s{sA}, 1
    s_lshl_b32 s{sA}, s{sA}, 1
    s_add_u32 s{sA}, s{sA}, s{sW1}
    s_mul_i32 s{sA}, s{sA}, {16 * 768}
    s_lshl_b32 s{sB}, s{sB}, 1
    s_add_u32 s{sB}, s{sB}, s{sW1}
    s_mul_i32 s{sB}, s{sB}, {16 * 768}
    s_waitcnt vmcnt(0)
    s_barrier
    """)
    k.stamp_c("p1_e3")
    k.e(f"buffer_load_dwordx4 {vr(xr[0],4)}, v{vO}, s[{srdX}:{srdX+3}], 0 offen")
    k.e(f"buffer_load_dwordx4 {vr(xr[1],4)}, v{vO}, s[{srdX}:{srdX+3}], 0 offen offset:64")
    k.e(f"buffer_load_dwordx2 {vr(xr[2],2)}, v{vO2}, s[{srdX}:{srdX+3}], 0 offen offset:128")
    sKo = k.s()
    pql = []
    for h in range(16):
        pre = []
        if h % 5 == 0 and h:
            pre = [f"s_add_u32 s{sA}, s{sA}, {5 * 768}", f"s_add_u32 s{sB}, s{sB}, {5 * 768}"]
        for i, sx in enumerate((sA, sB)):
            pql.append(pre + [f"buffer_load_dwordx4 {vr(PQ[i] + 4*h, 4)}, v{vPq}, s[{srdP}:{srdP+3}], s{sx} offen offset:{(h % 5) * 768} sc1"])
            pre = []
    k.e("s_barrier")
    k.stamp_c("p2_q")
    lead = OPT['pqq']
    for x in pql[:lead]:
        k.emit_list(x)
    k.e("s_barrier")
    k.stamp_c("p2_k")
    k.e(f"s_lshl_b32 s{sKo}, s{sJ}, 12")
    for i in range(16):
        k.e(f"s_and_b32 s{sKo}, s{sKo}, 0xffff")
        k.e(f"buffer_load_dwordx4 {vr(big + 4*i, 4)}, v{vW2}, s[{srdK}:{srdK+3}], s{sKo} offen sc1")
        k.e(f"s_add_u32 s{sKo}, s{sKo}, 4096")
    npq = 0
    for i in range(16):
        r = big + 4 * i
        k.e(f"s_waitcnt vmcnt({15 - i + npq})")
        k.e(f"v_cvt_pk_bf16_f32 v{r}, v{r}, v{r+1}")
        k.e(f"v_cvt_pk_bf16_f32 v{r+1}, v{r+2}, v{r+3}")
        k.e(f"ds_write_b64 v{t2}, {vr(r,2)}")
        k.e(f"v_add_u32 v{t2}, 2048, v{t2}")
        k.e(f"v_and_b32 v{t2}, 0x7fff, v{t2}")
        if i == 7:
            k.e("s_waitcnt lgkmcnt(4)")
        if i >= 8 and lead < 32:
            k.emit_list(pql[lead]); lead += 1; npq += 1
    k.e("s_waitcnt lgkmcnt(0)")
    k.e("s_barrier")
    k.stamp_c("p2_c")
    fka = [[big + 0, big + 4], [big + 8, big + 12]]
    fkb = [[big + 16, big + 20], [big + 24, big + 28]]
    Da = [[big + 32, big + 36], [big + 40, big + 44]]
    Db = [[big + 48, big + 52], [big + 56, big + 60]]

    def rd(p_):
        b = p_ % 2
        out = []
        for i in range(2):
            h = 2 * p_ + i
            out.append(f"ds_read_b128 {vr(fkb[b][i],4)}, v{vKb} offset:{h*1024}")
            out.append(f"ds_read_b128 {vr(fka[b][i],4)}, v{vKa} offset:{h*1024}")
        return out

    def mm(u):
        p_, ti = u // 2, u % 2
        b = p_ % 2
        out = []
        for i in range(2):
            h = 2 * p_ + i
            out.append(f"v_mfma_f32_16x16x32_bf16 {vr(Db[ti][i],4)}, {vr(fkb[b][i],4)}, {vr(PQ[ti] + 4*h,4)}, {vr(cE,4)}")
            out.append(f"v_mfma_f32_16x16x32_bf16 {vr(Da[ti][i],4)}, {vr(fka[b][i],4)}, {vr(PQ[ti] + 4*h,4)}, 0")
        return out

    def fin(u):
        p_, ti = u // 2, u % 2
        out = [f"v_rcp_f32 v{Db[ti][i]+1}, v{Db[ti][i]+1}" for i in range(2)]
        vals = []
        for i in range(2):
            a, d = Da[ti][i], Db[ti][i]
            if OPT['omode'] == 1:
                out += [f"v_mul_f32 v{a+j}, v{a+j}, v{d+1}" for j in range(4)]
            else:
                out.append(f"v_pk_mul_f32 {vr(a,2)}, {vr(a,2)}, {vr(d,2)} op_sel:[0,1]")
                out.append(f"v_pk_mul_f32 {vr(a+2,2)}, {vr(a+2,2)}, {vr(d,2)} op_sel:[0,1]")
            out.append(f"v_mul_f32 v{d}, v{d}, v{d+1}")
            vals += [a, a + 1, a + 2, a + 3, d]
        out += [f"v_cvt_pk_bf16_f32 v{PQ[ti] + 5*p_ + d}, v{vals[2*d]}, v{vals[2*d+1]}" for d in range(5)]
        return out
    fw = [[big + 4 * i for i in range(5)], [big + 20 + 4 * i for i in range(5)]]

    def wrd(s):
        return [f"ds_read_b64_tr_b16 {vr(fw[s & 1][nt] + 2*h, 2)}, v{vW} offset:{s * 5120 + h * 1280 + nt * 32}" for nt in range(5) for h in range(2)]

    def vm_need(p_):
        assert lead >= 4 * p_ + 4
        k.e(f"s_waitcnt vmcnt({lead - (4 * p_ + 4)})")
    k.emit_list(rd(0) + rd(1))
    vm_need(0)
    k.e("s_waitcnt lgkmcnt(4)")
    k.emit_list(mm(0))
    k.e("s_nop 5")
    for u in range(16):
        f = fin(u)
        if u + 1 < 16:
            if (u + 1) % 2 == 0:
                vm_need((u + 1) // 2)
                k.e(f"s_waitcnt lgkmcnt({4 if (u + 1) // 2 + 1 < 8 else 0})")
            m_ = mm(u + 1)
            if OPT['omode'] == 2:
                k.emit_list(m_)
                k.emit_list(f)
            else:
                q_ = len(f) // 4
                for i in range(4):
                    k.e(m_[i])
                    k.emit_list(f[q_ * i: q_ * i + q_] if i < 3 else f[3 * q_:])
            if (u + 1) % 2 == 1 and (u + 1) // 2 + 2 < 8:
                k.emit_list(rd((u + 1) // 2 + 2))
            for _ in range(OPT['pqper']):
                if lead < 32:
                    k.emit_list(pql[lead]); lead += 1
                    if lead == 32:
                        k.e("s_barrier")
        else:
            k.emit_list(wrd(0))
            k.emit_list(f)
    k.stamp_c("p2_o")
    acc = [[big + 40 + 20 * ti + 4 * i for i in range(5)] for ti in range(2)]
    for s in range(10):
        r = wrd(s + 1) if s + 1 < 10 else []
        issued = 0
        for nt in range(5):
            k.e(f"s_waitcnt lgkmcnt({8 - 2*nt + issued})")
            for ti in range(2):
                k.e(f"v_mfma_f32_16x16x32_bf16 {vr(acc[ti][nt],4)}, {vr(fw[s & 1][nt],4)}, {vr(PQ[ti] + 4*s,4)}, " + ("0" if s == 0 else vr(acc[ti][nt], 4)))
                if r:
                    k.e(r[2 * nt + ti]); issued += 1
    srdH, srdS = srd1, srd2
    set_srd(k, srdH, ptr['ws'], S_ * D_ * 2, WS_H)
    set_srd(k, srdS, ptr['ws'], S_ * 64, WS_ST2)
    k.stamp_c("p2_g")
    for nt in range(5):
        k.e(f"ds_write_b128 v{vXw}, {vr(acc[1][nt],4)} offset:{nt*1024}")
    vs_, vq_, u = big + 20, big + 22, big + 24
    k.e(f"v_mov_b64 {vr(vs_,2)}, 0")
    k.e(f"v_mov_b64 {vr(vq_,2)}, 0")
    k.e("s_waitcnt lgkmcnt(0)")
    k.e("s_barrier")
    for nt in range(5):
        k.e(f"ds_read_b128 {vr(fw[0][nt],4)}, v{vXr} offset:{nt*1024}")
    pk = [big + 28, big + 32, big + 36]
    for nt in range(5):
        a = acc[0][nt]
        k.e(f"s_waitcnt lgkmcnt({4 - nt})")
        k.e(f"v_pk_add_f32 {vr(a,2)}, {vr(a,2)}, {vr(fw[0][nt],2)}")
        k.e(f"v_pk_add_f32 {vr(a+2,2)}, {vr(a+2,2)}, {vr(fw[0][nt]+2,2)}")
        d = pk[nt // 2] + 2 * (nt & 1)
        k.e(f"v_cvt_pk_bf16_f32 v{d}, v{a}, v{a+1}")
        k.e(f"v_cvt_pk_bf16_f32 v{d+1}, v{a+2}, v{a+3}")
    for pr in range(2):
        k.e(f"v_permlane16_swap_b32 v{pk[pr]}, v{pk[pr]+2}")
        k.e(f"v_permlane16_swap_b32 v{pk[pr]+1}, v{pk[pr]+3}")
    for pr in range(3):
        for d in range(4 if pr < 2 else 2):
            r, x = pk[pr] + d, xr[pr] + d
            k.e(f"""
            v_lshlrev_b32 v{u}, 16, v{r}
            v_and_b32 v{u+1}, 0xffff0000, v{r}
            v_lshlrev_b32 v{u+2}, 16, v{x}
            v_and_b32 v{u+3}, 0xffff0000, v{x}
            v_pk_add_f32 {vr(u,2)}, {vr(u,2)}, {vr(u+2,2)}
            v_cvt_pk_bf16_f32 v{r}, v{u}, v{u+1}
            """)
        if pr < 2:
            k.e(f"buffer_store_dwordx4 {vr(pk[pr],4)}, v{vO}, s[{srdH}:{srdH+3}], 0 offen offset:{pr*64} sc1")
        else:
            k.e(f"buffer_store_dwordx2 {vr(pk[pr],2)}, v{vO2}, s[{srdH}:{srdH+3}], 0 offen offset:128 sc1")
    for pr in range(3):
        for d in range(4 if pr < 2 else 2):
            r = pk[pr] + d
            k.e(f"""
            v_lshlrev_b32 v{u}, 16, v{r}
            v_and_b32 v{u+1}, 0xffff0000, v{r}
            v_pk_add_f32 {vr(vs_,2)}, {vr(vs_,2)}, {vr(u,2)}
            v_pk_fma_f32 {vr(vq_,2)}, {vr(u,2)}, {vr(u,2)}, {vr(vq_,2)}
            """)
    k.e(f"v_add_f32 v{vs_}, v{vs_}, v{vs_+1}")
    k.e(f"v_add_f32 v{vs_+1}, v{vq_}, v{vq_+1}")
    allreduce4_multi(k, [vs_, vs_ + 1], [t0, t1])
    k.e(f"""
    v_lshlrev_b32 v{vrow}, 3, v{vrow}
    s_lshl_b32 s{sA}, s{sCT}, 14
    s_mov_b64 exec, 0xffff
    buffer_store_dwordx2 {vr(vs_,2)}, v{vrow}, s[{srdS}:{srdS+3}], s{sA} offen sc1
    s_mov_b64 exec, -1
    """)
    k.stamp_c("p2_st")
    k.release(mC)
    Lp4c = k.label("p4c")
    sRB, sCT = dec3()
    c = c3
    vO, vSt, vCs, vA0, vA1, t0, t1, t2 = (k.v() for _ in range(8))
    vW = [k.v() for _ in range(4)]
    st = [k.v(2) for _ in range(2)]
    acc = [[k.v(4) for _ in range(4)] for _ in range(2)]
    fw = [[k.v(4) for _ in range(4)] for _ in range(2)]
    AR = [[k.v(4) for _ in range(2)] for _ in range(20)]
    k.e("s_waitcnt vmcnt(0)")
    k.e("s_barrier")
    k.stamp_c("p2_e")
    k.e(f"s_cmp_ge_u32 s{sJ}, 28")
    k.e(f"s_cbranch_scc1 {Lp4c}")
    srdO = srd1
    set_srd(k, srdO, ptr['ws'], S_ * F_ * 2, WS_HH)
    k.e(f"""
    v_and_b32 v{t0}, 15, v{vl}
    v_lshrrev_b32 v{t1}, 4, v{vl}
    v_lshlrev_b32 v{vSt}, 15, v{t1}
    v_lshl_add_u32 v{vSt}, v{t0}, 3, v{vSt}
    s_lshl_b32 s{sA}, s{sRB}, 10
    s_lshl_b32 s{sB}, s{sWave}, 8
    s_add_u32 s{sA}, s{sA}, s{sB}
    v_add_u32 v{vSt}, s{sA}, v{vSt}
    v_lshlrev_b32 v{vCs}, 4, v{t1}
    v_add_u32 v{vCs}, {P3_SCR + 1024}, v{vCs}
    v_and_b32 v{t2}, 6, v{t0}
    v_xor_b32 v{t2}, v{t2}, v{t1}
    v_lshlrev_b32 v{t2}, 4, v{t2}
    v_lshl_add_u32 v{vA0}, v{t0}, 7, v{t2}
    s_lshl_b32 s{sA}, s{sWave}, 12
    s_add_u32 s{sA}, s{sA}, {c.baseA}
    v_add_u32 v{vA0}, s{sA}, v{vA0}
    v_xor_b32 v{vA1}, 64, v{vA0}
    v_mul_u32_u24 v{vO}, {2*F_}, v{t0}
    v_bfe_u32 v{t0}, v{vl}, 4, 1
    v_lshl_add_u32 v{vO}, v{t0}, 5, v{vO}
    v_lshrrev_b32 v{t0}, 5, v{vl}
    v_lshl_add_u32 v{vO}, v{t0}, 4, v{vO}
    s_lshl_b32 s{sA}, s{sRB}, 7
    s_lshl_b32 s{sB}, s{sWave}, 5
    s_add_u32 s{sA}, s{sA}, s{sB}
    s_mul_i32 s{sA}, s{sA}, {2*F_}
    s_lshl_b32 s{sB}, s{sCT}, 8
    s_add_u32 s{sA}, s{sA}, s{sB}
    v_add_u32 v{vO}, s{sA}, v{vO}
    v_bfe_u32 v{t1}, v{vl}, 2, 3
    v_mul_u32_u24 v{t0}, {c.r16b}, v{t0}
    v_lshl_add_u32 v{t0}, v{t1}, 7, v{t0}
    v_and_b32 v{t2}, 3, v{vl}
    v_lshl_add_u32 v{t0}, v{t2}, 3, v{t0}
    v_lshrrev_b32 v{t1}, 1, v{t1}
    s_mov_b32 s{sB}, {16 * 2 * F_}
    """)
    for j in range(4):
        k.e(f"v_xor_b32 v{t2}, {j}, v{t1}")
        k.e(f"v_lshl_add_u32 v{vW[j]}, v{t2}, 5, v{t0}")
    wbase = [0]

    def rds(n):
        ps, s_, t = n // 20, (n % 20) // 2, n & 1
        out = []
        want = 40960 if s_ >= 5 else 0
        if want != wbase[0]:
            d = want - wbase[0]
            out += [f"v_add_u32 v{x}, {d & 0xffffffff}, v{x}" for x in vW]
            wbase[0] = want
        npre = len(out)
        if ps == 0:
            out += [f"ds_read_b128 {vr(AR[n][mt],4)}, v{vA1 if t else vA0} offset:{(s_ % 4) * 16384 + mt * 2048}" for mt in range(2)]
        for nt in range(4):
            for h in range(2):
                out.append(f"ds_read_b64_tr_b16 {vr(fw[n & 1][nt] + 2*h, 2)}, v{vW[nt]} offset:{s_ * 8192 - want + t * 4096 + h * 1024}")
        return out[:npre], out[npre:]

    def blk(n, nxt):
        na = 2 if n < 20 else 0
        nprev = na + 8
        pre, rd = rds(nxt) if nxt is not None else ([], [])
        k.emit_list(pre)
        issued = 0
        j = 0
        for nt in range(4):
            k.e(f"s_waitcnt lgkmcnt({nprev - (na + 2*nt + 2) + issued})")
            for mt in range(2):
                a = acc[mt][nt]
                k.e(f"v_mfma_f32_16x16x32_bf16 {vr(a,4)}, {vr(fw[n & 1][nt],4)}, {vr(AR[n % 20][mt],4)}, " + ("0" if n % 20 == 0 else vr(a, 4)))
                j += 1
                want = min(len(rd), -(-j * len(rd) * 100 // (8 * OPT['rf3'])))
                while issued < want:
                    k.e(rd[issued]); issued += 1

    def epi(ps):
        cs3 = fw[0]
        k.e("s_nop 4")
        for nt in range(4):
            k.e(f"ds_read_b128 {vr(cs3[nt],4)}, v{vCs} offset:{ps*256 + nt*64}")
        k.e("s_waitcnt lgkmcnt(0)")
        Lns = k.label("p3ns")
        if ps == 1:
            k.e(f"s_cmp_eq_u32 s{sCT}, 13")
            k.e(f"s_cbranch_scc1 {Lns}")
        for mt in range(2):
            for pr in range(2):
                a0, a1 = acc[mt][2*pr], acc[mt][2*pr+1]
                for a, nt in ((a0, 2*pr), (a1, 2*pr+1)):
                    for j in range(2):
                        k.e(f"v_pk_fma_f32 {vr(a+2*j,2)}, {vr(cs3[nt]+2*j,2)}, {vr(st[mt],2)}, {vr(a+2*j,2)} op_sel_hi:[1,0,1] neg_lo:[0,1,0] neg_hi:[0,1,0]")
                    for j in range(2):
                        k.e(f"v_pk_mul_f32 {vr(a+2*j,2)}, {vr(a+2*j,2)}, {vr(st[mt],2)} op_sel:[0,1]")
                pk = fw[1][2 * mt + pr]
                k.e(f"""
                v_cvt_pk_bf16_f32 v{pk}, v{a0}, v{a0+1}
                v_cvt_pk_bf16_f32 v{pk+2}, v{a1}, v{a1+1}
                v_cvt_pk_bf16_f32 v{pk+1}, v{a0+2}, v{a0+3}
                v_cvt_pk_bf16_f32 v{pk+3}, v{a1+2}, v{a1+3}
                v_permlane16_swap_b32 v{pk}, v{pk+2}
                s_nop 0
                v_permlane16_swap_b32 v{pk+1}, v{pk+3}
                v_pk_max_i16 v{pk}, v{pk}, 0
                v_pk_max_i16 v{pk+2}, v{pk+2}, 0
                v_pk_max_i16 v{pk+1}, v{pk+1}, 0
                v_pk_max_i16 v{pk+3}, v{pk+3}, 0
                buffer_store_dwordx4 {vr(pk,4)}, v{vO}, s[{srdO}:{srdO+3}], {'s%d' % sB if mt else '0'} offen offset:{ps*128 + pr*64} sc1
                """)
        k.place(Lns)
    sK16, sI6, sE5 = k.s(), k.s(), k.s()
    k.e(f"s_movk_i32 s{sK16}, 16384")
    k.e(f"s_mov_b32 s{sI6}, {f32bits(1.0/640)}")
    k.e(f"s_mov_b32 s{sE5}, {f32bits(1e-5)}")
    k.e("s_barrier")
    tq = [AR[10][0], AR[10][1]]
    for mt in range(2):
        k.e(f"buffer_load_dwordx2 {vr(st[mt],2)}, v{vSt}, s[{srd2}:{srd2+3}], 0 offen offset:{mt*128} sc1")
        k.e(f"buffer_load_dwordx2 {vr(tq[mt],2)}, v{vSt}, s[{srd2}:{srd2+3}], s{sK16} offen offset:{mt*128} sc1")
    k.e("s_waitcnt vmcnt(0)")
    for mt in range(2):
        k.e(f"v_pk_add_f32 {vr(st[mt],2)}, {vr(st[mt],2)}, {vr(tq[mt],2)}")
    vm_, vs__ = [st[0], st[1]], [st[0] + 1, st[1] + 1]
    allreduce4_multi(k, vm_ + vs__, [tq[0], tq[0] + 1, tq[0] + 2, tq[0] + 3])
    for mt in range(2):
        k.e(f"""
        v_mul_f32 v{vm_[mt]}, s{sI6}, v{vm_[mt]}
        v_mul_f32 v{vs__[mt]}, s{sI6}, v{vs__[mt]}
        v_fma_f32 v{vs__[mt]}, -v{vm_[mt]}, v{vm_[mt]}, v{vs__[mt]}
        v_max_f32 v{vs__[mt]}, 0, v{vs__[mt]}
        """)
    ln_finalize_multi(k, vm_, vs__, sE5)
    k.stamp_c("p3_pre")
    k.e("s_barrier")
    k.stamp_c("p3_b0")
    w3 = [AR[18][0], AR[18][1], AR[19][0], AR[19][1]]
    rot0 = [fw[0], fw[1], w3]
    buf0 = {n: rot0[n % 3] for n in range(15)}
    for n in range(15, 20):
        buf0[n] = fw[(n - 15) % 2]

    def rdW(n):
        s_, t = n // 2, n & 1
        pre = []
        want = 40960 if s_ >= 5 else 0
        if want != wbase[0]:
            pre = [(f"v_add_u32 v{x}, {(want - wbase[0]) & 0xffffffff}, v{x}", None) for x in vW]
            wbase[0] = want
        return pre + [(f"ds_read_b64_tr_b16 {vr(buf0[n][nt] + 2*h, 2)}, v{vW[nt]} offset:{s_ * 8192 - want + t * 4096 + h * 1024}", ('w', n, nt))
                      for nt in range(4) for h in range(2)]

    def rdA(s_):
        return [(f"ds_read_b128 {vr(AR[2*s_+t][mt],4)}, v{vA1 if t else vA0} offset:{(s_ % 4) * 16384 + mt * 2048}", ('a', 2*s_+t, mt))
                for t in range(2) for mt in range(2)]
    pend0 = []

    def issue(x):
        k.e(x[0])
        if x[1] is not None:
            pend0.append(x[1])

    def need(tags):
        idx = [i for i, x in enumerate(pend0) if x in tags]
        if idx:
            done = max(idx) + 1
            k.e(f"s_waitcnt lgkmcnt({min(15, len(pend0) - done)})")
            del pend0[:done]
    for x in rdA(0) + rdW(0) + rdW(1)[:3]:
        issue(x)
    carry = rdW(1)[3:]
    for n in range(20):
        rd = list(carry); carry = []
        if n % 2 == 0:
            s_ = n // 2
            need([('a', n + t, mt) for t in range(2) for mt in range(2)])
            k.e("s_barrier")
            if s_ + 1 < 10:
                rd = rdA(s_ + 1) + rd
        if n + 2 <= 16:
            rd += rdW(n + 2)
        elif n >= 16 and n + 1 < 20:
            rd += rdW(n + 1)
        issued = 0
        j = 0
        for nt in range(4):
            need([('w', n, nt)])
            for mt in range(2):
                a = acc[mt][nt]
                k.e(f"v_mfma_f32_16x16x32_bf16 {vr(a,4)}, {vr(buf0[n][nt],4)}, {vr(AR[n][mt],4)}, " + ("0" if n == 0 else vr(a, 4)))
                j += 1
                want = -(-j * len(rd) // (8 if n < 16 else 5))
                while issued < min(want, len(rd)):
                    issue(rd[issued]); issued += 1
    k.e("s_barrier")
    k.stamp_c("p3_loop")
    epi(0)
    k.e("s_barrier")
    k.stamp_c("p3_st")
    fw3 = [AR[0][0], AR[0][1], AR[1][0], AR[1][1]]
    buf = {20: fw[0], 21: fw[1], 22: fw[0], 23: fw[1]}
    rot = [fw3, fw[0], fw[1]]
    for n in range(24, 40):
        buf[n] = rot[(n - 24) % 3]

    def rds1(n):
        s_, t = (n % 20) // 2, n & 1
        pre = []
        want = 40960 if s_ >= 5 else 0
        if want != wbase[0]:
            pre = [f"v_add_u32 v{x}, {(want - wbase[0]) & 0xffffffff}, v{x}" for x in vW]
            wbase[0] = want
        return pre + [f"ds_read_b64_tr_b16 {vr(buf[n][nt] + 2*h, 2)}, v{vW[nt]} offset:{s_ * 8192 - want + t * 4096 + h * 1024}" for nt in range(4) for h in range(2)]
    sched = {20: [], 21: [22], 22: [23, 24]}
    for n in range(23, 40):
        sched[n] = [n + 2] if n + 2 < 40 else []
    k.emit_list(rds1(20) + rds1(21))
    pend = [20] * 8 + [21] * 8
    for n in range(20, 40):
        if n == 20 + 2 * OPT['m1at'] + 1:
            k.e("s_waitcnt vmcnt(0)")
            k.e("s_barrier")
        if n == 38:
            k.e("s_waitcnt lgkmcnt(0)")
            k.e("s_barrier")
        rd = [(x, m_) for m_ in sched[n] for x in rds1(m_)]
        assert all((m_ % 20) // 2 <= 4 for _, m_ in rd) or n >= 20 + 2 * OPT['m1at'] + 1
        issued = 0
        j = 0
        for nt in range(4):
            idx = [i for i, x in enumerate(pend) if x == n]
            if idx:
                done = idx[min(len(idx) - 1, 2 * nt + 1 - (8 - len(idx)))] + 1 if 2 * nt + 1 - (8 - len(idx)) >= 0 else 0
                if done:
                    k.e(f"s_waitcnt lgkmcnt({min(15, len(pend) - done)})")
                    pend = pend[done:]
            for mt in range(2):
                a = acc[mt][nt]
                k.e(f"v_mfma_f32_16x16x32_bf16 {vr(a,4)}, {vr(buf[n][nt],4)}, {vr(AR[n % 20][mt],4)}, " + ("0" if n == 20 else vr(a, 4)))
                j += 1
                want = -(-j * len(rd) // 8)
                while issued < want:
                    k.e(rd[issued][0])
                    if rd[issued][0].startswith("ds_"):
                        pend.append(rd[issued][1])
                    issued += 1
    epi(1)
    k.stamp_c("p3_e")
    k.place(Lp4c)
    k.release(mC)
    Lcend = k.label("cend")
    sRB, sCT = dec2()
    c = c4
    srdH, srdO = srd1, srd2
    set_srd(k, srdH, ptr['ws'], S_ * D_ * 2, WS_H)
    set_srd(k, srdO, ptr['out'], S_ * D_ * 2)
    vO, vO2, t0, t1 = (k.v() for _ in range(4))
    hr = [[k.v(4), k.v(2)] for _ in range(2)]
    k.e(f"""
    s_lshl_b32 s{sA}, s{sRB}, 6
    s_lshl_b32 s{sB}, s{sW1}, 5
    s_add_u32 s{sA}, s{sA}, s{sB}
    v_and_b32 v{t0}, 15, v{vl}
    v_add_u32 v{t0}, s{sA}, v{t0}
    v_mul_u32_u24 v{vO}, {2*D_}, v{t0}
    s_mul_i32 s{sA}, s{sCT}, 160
    s_lshl_b32 s{sB}, s{sW0}, 6
    s_add_u32 s{sA}, s{sA}, s{sB}
    v_add_u32 v{vO}, s{sA}, v{vO}
    v_lshrrev_b32 v{t1}, 4, v{vl}
    v_lshl_add_u32 v{vO2}, v{t1}, 3, v{vO}
    v_bfe_u32 v{t0}, v{vl}, 4, 1
    v_lshl_add_u32 v{vO}, v{t0}, 5, v{vO}
    v_lshrrev_b32 v{t0}, 5, v{vl}
    v_lshl_add_u32 v{vO}, v{t0}, 4, v{vO}
    s_movk_i32 s{sB}, {16 * 2 * D_}
    """)

    def h_loads():
        for mt in range(2):
            so = f"s{sB}" if mt else "0"
            k.e(f"buffer_load_dwordx4 {vr(hr[mt][0],4)}, v{vO}, s[{srdH}:{srdH+3}], {so} offen sc1")
            k.e(f"buffer_load_dwordx2 {vr(hr[mt][1],2)}, v{vO2}, s[{srdH}:{srdH+3}], {so} offen offset:64 sc1")
    o = consumer_setup(k, c, sW1, sW0, vl)
    h_loads()
    consumer_loop(k, o, None, tag="p4")
    pk = [[k.v(4), k.v(2)] for _ in range(2)]
    u = k.v(4)
    for mt in range(2):
        for nt in range(3):
            a = o.acc[mt][nt]
            d = pk[mt][nt // 2] + 2 * (nt & 1)
            k.e(f"v_cvt_pk_bf16_f32 v{d}, v{a}, v{a+1}")
            k.e(f"v_cvt_pk_bf16_f32 v{d+1}, v{a+2}, v{a+3}")
    k.e("s_waitcnt vmcnt(0)")
    for mt in range(2):
        k.e(f"v_permlane16_swap_b32 v{pk[mt][0]}, v{pk[mt][0]+2}")
        k.e(f"v_permlane16_swap_b32 v{pk[mt][0]+1}, v{pk[mt][0]+3}")
    fl = 'sc1' if OPT['outsc1'] else ''
    Lno = k.label("p4n")
    for pr in range(2):
        if pr == 1:
            k.e(f"s_cmp_eq_u32 s{sW0}, 0")
            k.e(f"s_cbranch_scc1 {Lno}")
        for mt in range(2):
            so = f"s{sB}" if mt else "0"
            for d in range(4 if pr == 0 else 2):
                r, x = pk[mt][pr] + d, hr[mt][pr] + d
                k.e(f"""
                v_lshlrev_b32 v{u}, 16, v{r}
                v_and_b32 v{u+1}, 0xffff0000, v{r}
                v_lshlrev_b32 v{u+2}, 16, v{x}
                v_and_b32 v{u+3}, 0xffff0000, v{x}
                v_pk_add_f32 {vr(u,2)}, {vr(u,2)}, {vr(u+2,2)}
                v_cvt_pk_bf16_f32 v{r}, v{u}, v{u+1}
                """)
            if pr == 0:
                k.e(f"buffer_store_dwordx4 {vr(pk[mt][0],4)}, v{vO}, s[{srdO}:{srdO+3}], {so} offen {fl}")
            else:
                k.e(f"buffer_store_dwordx2 {vr(pk[mt][1],2)}, v{vO2}, s[{srdO}:{srdO+3}], {so} offen offset:64 {fl}")
    k.place(Lno)
    k.stamp_c("p4_st")
    if OPT['diag']:
        ld_ = k.label("dg")
        names = ["p1_pre", "p1_b0", "p1_loop", "p1_e1", "p1_e2", "p1_e3", "p2_q", "p2_k", "p2_c", "p2_g", "p2_e", "p3_b0", "p3_loop", "p3_e", "p4_b0", "p4_loop"]
        set_srd(k, srd0, ptr['dbg'], 256)
        k.e(f"s_cmp_eq_u32 s2, {OPT['diag']}")
        k.e(f"s_cbranch_scc0 {ld_}")
        k.e(f"s_cmp_eq_u32 s{sWave}, 0")
        k.e(f"s_cbranch_scc0 {ld_}")
        k.e("s_mov_b64 exec, 1")
        k.e("v_mov_b32 v1, 0")
        for i, n in enumerate(names):
            k.e(f"s_sub_u32 s3, s{68 + k.stamps['c'][n]}, s68")
            k.e("v_mov_b32 v2, s3")
            k.e(f"buffer_store_dword v2, v1, s[{srd0}:{srd0+3}], 0 offen offset:{4*i}")
        k.e("s_mov_b64 exec, -1")
        k.place(ld_)
    k.place(Lcend)
    endwave()
    k.place(k.end)
    k.place(k.name + "_last")
    k.e("s_endpgm")
    secs, cur = {"head": []}, "head"
    for ln in k.lines:
        if ln.startswith("; @SEC "):
            cur = ln.split()[-1]; secs[cur] = []
        else:
            secs[cur].append(ln)
    order_ = list(OPT['secs'])
    if not OPT['hfirst']:
        order_ = ['head', 'head2', 'help', 'head3'] + order_[1:]
    k.lines = [ln for n in order_ for ln in secs[n]]
    return k


def write(k, path, header=""):
    out = header + f"; @launch grid=(256,1,1) block=(512,1,1) lds={LDS_TOTAL}\n"
    out += '.amdgcn_target "amdgcn-amd-amdhsa--gfx950"\n.text\n' + k.text() + '.section .rodata,"a"\n' + k.descriptor()
    open(path, "w").write(out)
    if k.prof3:
        json.dump(k.stamps, open(path + ".json", "w"))


def hdr():
    ref = open('sequential_preLN__linear_attn_block__dense_activation_relu__prompt.s.ref').read()
    return "".join(l + "\n" for l in ref.splitlines()[:10])


if __name__ == "__main__":
    write(gen(False), 'k7.s', hdr())
    write(gen(True), 'k7_prof.s', hdr())
    g3.DBG.update(nodma=True)
    write(gen(True), 'k7_nodma.s', hdr())
    g3.DBG.update(nodma=False, nomma=True)
    write(gen(True), 'k7_nomma.s', hdr())
```

```python
from asmlib import *
from g3 import *
import g3
import struct, json

S_, D_, F_ = 2048, 640, 1728
WS_PQ = 0x0
WS_H = 0x400000
WS_HH = 0x800000
WS_KV = 0x1000000
KV_BYTES = 65536
WS_FL = 0x1100000
FS = 4224
MS = 384
FL_MQ = 128 * FS
FL_M2 = FL_MQ + 256 * MS
FL_BYTES = FL_M2 + 256 * MS
FL_Q, FL_2, FL_3, FL_C, FL_G, FL_S, FL_R = 0, 16 * FS, 32 * FS, 48 * FS, 64 * FS, 96 * FS, 112 * FS
NREP = 16
WS_ST1 = 0x1020000
WS_CS1 = 0x1024000
WS_CS3 = 0x102C000
WS_W2P = 0x1200000
W2P_CT = 27 * 10240
WS_ST2 = 0x1040000
LOG2E = 1.4426950408889634
NAME = "sequential_preLN__linear_attn_block__dense_activation_relu__prompt_kernel"
OPT = dict(kvH=16, qH=11, p3H=16, p4H=24, touch1=True, touch1b=True, twarm=True, pretouch=True, e2pos=12, early3=False, psleep=8, w2a=6, w1at={'w2a': [0], 'c': [1], 'g': [2]}, tdist=1, hW=3, hX=10, jrot=8, ptf1=False, pollfirst=True, onehop=True, vfirst=0, tlbw=False, omode=2, pqper=3, w2b=0, p3H0=8, iw=17, iwser=False, rot3=True, rot4=False, otouch=False, hfirst=True, diag=False, wf4=5, p4H0=24, pf1=2, m1at=3, rf3=70, hb=11, svwo=True, inj=10, p4SA=8, p4SW=9, secs=('head', 'ltail', 'svc', 'cons', 'cons2'), p4early=False, dupst=False, dupfl='', accinit=True, svw2=0, svT1=1, kvH0=4, hW0=32, svw1=0, p4rot=True, selft=False, p4wl=4, pqlead=16, catom=True, pqtouch=False, rel=1, rf=65, rel4=2, rf4=90, lean=True, lprio=0, outsc1=False, w2early=True, pqq=10, codewarm=True)
LDS_TOTAL = 163840


def f32bits(x):
    return struct.unpack("<I", struct.pack("<f", x))[0]


def bf16_round_f32(k, v):
    k.e(f"v_cvt_pk_bf16_f32 v{v}, v{v}, v{v}")
    k.e(f"v_lshlrev_b32 v{v}, 16, v{v}")


def allreduce4_multi(k, xs, ts):
    for sw in ("v_permlane16_swap_b32", "v_permlane32_swap_b32"):
        for x, t in zip(xs, ts):
            k.e(f"v_mov_b32 v{t}, v{x}")
        k.e("s_nop 1" if len(xs) < 2 else "s_nop 0")
        for x, t in zip(xs, ts):
            k.e(f"{sw} v{x}, v{t}")
        k.e("s_nop 1" if len(xs) < 2 else "s_nop 0")
        for x, t in zip(xs, ts):
            k.e(f"v_add_f32 v{x}, v{x}, v{t}")


def ln_finalize_multi(k, vms, vvs, sEps):
    for vm in vms:
        bf16_round_f32(k, vm)
    for vv in vvs:
        bf16_round_f32(k, vv)
        k.e(f"v_add_f32 v{vv}, s{sEps}, v{vv}")
        bf16_round_f32(k, vv)
    for vv in vvs:
        k.e(f"v_sqrt_f32 v{vv}, v{vv}")
    k.e("s_nop 0")
    for vv in vvs:
        bf16_round_f32(k, vv)
    for vv in vvs:
        k.e(f"v_rcp_f32 v{vv}, v{vv}")
    k.e("s_nop 0")


def dpp_rowsum(k, x):
    for r in (8, 4, 2, 1):
        k.e("s_nop 1")
        k.e(f"v_add_f32_dpp v{x}, v{x}, v{x} row_ror:{r} row_mask:0xf bank_mask:0xf")


def set_srd(k, d, p, nbytes, off=0, bias=False):
    if bias and OPT['lean']:
        off -= BIAS
        nbytes += BIAS
    if off < 0:
        k.e(f"s_sub_u32 s{d}, s{p}, {-off}")
        k.e(f"s_subb_u32 s{d+1}, s{p+1}, 0")
    elif off:
        k.e(f"s_add_u32 s{d}, s{p}, {off}")
        k.e(f"s_addc_u32 s{d+1}, s{p+1}, 0")
    else:
        k.e(f"s_mov_b64 s[{d}:{d+1}], s[{p}:{p+1}]")
    k.e(f"s_mov_b32 s{d+2}, {nbytes}")
    k.e(f"s_mov_b32 s{d+3}, 0x20000")


class Touch:
    def __init__(self, k, vl, ncl, ld, seg5=False, share=None):
        self.k, self.ld = k, ld
        self.R = 64 // ncl
        self.vo = k.v()
        self.sO = share.sO if share else k.s()
        self.sB = share.sB if share else k.s(2, 2)
        t0, t1 = k.v(), k.v()
        magic = (1024 + ncl - 1) // ncl
        for l in range(64):
            assert (l * magic) >> 10 == l // ncl
        k.e(f"""
        v_min_u32 v{t1}, {self.R * ncl - 1}, v{vl}
        v_mul_u32_u24 v{t0}, {magic}, v{t1}
        v_lshrrev_b32 v{t0}, 10, v{t0}
        v_mul_u32_u24 v{self.vo}, {ncl}, v{t0}
        v_sub_u32 v{t1}, v{t1}, v{self.vo}
        v_mul_u32_u24 v{t0}, {ld}, v{t0}
        v_lshl_add_u32 v{self.vo}, v{t1}, 7, v{t0}
        """)
        if seg5:
            k.e(f"""
            v_mul_u32_u24 v{t0}, 205, v{t1}
            v_lshrrev_b32 v{t0}, 10, v{t0}
            v_mul_u32_u24 v{t0}, 640, v{t0}
            v_add_u32 v{self.vo}, v{self.vo}, v{t0}
            """)

    def unit(self, p, sOff, sU, add, nrows, skip=False):
        k = self.k
        le = k.label("tsk")
        k.e(f"""
        s_add_u32 s{self.sO}, s{sU}, {add}
        s_mul_i32 s{self.sO}, s{self.sO}, {self.R}
        """)
        if skip:
            k.e(f"s_cmp_ge_u32 s{self.sO}, {nrows}")
            k.e(f"s_cbranch_scc1 {le}")
        k.e(f"""
        s_min_u32 s{self.sO}, s{self.sO}, {nrows - self.R}
        s_mul_i32 s{self.sO}, s{self.sO}, {self.ld}
        s_add_u32 s{self.sO}, s{self.sO}, s{sOff}
        s_add_u32 s{self.sB}, s{p}, s{self.sO}
        s_addc_u32 s{self.sB+1}, s{p+1}, 0
        global_load_dword v{k.vdummy}, v{self.vo}, s[{self.sB}:{self.sB+1}]
        """)
        k.place(le)


def phi_pair(k, a, vrs, vr2, sEps2, t):
    k.e(f"v_pk_mul_f32 {vr(t,2)}, {vr(a,2)}, {vr(vr2,2)}")
    k.e(f"v_pk_fma_f32 {vr(a,2)}, {vr(a,2)}, {vr(vrs,2)}, 1.0 op_sel_hi:[1,1,0]")
    k.e(f"v_exp_f32_e64 v{t}, v{t} clamp")
    k.e(f"v_exp_f32_e64 v{t+1}, v{t+1} clamp")
    k.e(f"v_max_f32 v{a}, v{a}, v{t}")
    k.e(f"v_max_f32 v{a+1}, v{a+1}, v{t+1}")
    k.e(f"v_pk_add_f32 {vr(a,2)}, {vr(a,2)}, s[{sEps2}:{sEps2+1}]")


def gen(prof=False):
    k = Kern(NAME)
    k.prof3 = prof
    k.slimit, k.vlimit = 68, 256
    ckv = Cfg(BM=128, NS=10, lda=2 * D_, ldw=6 * D_, wl='odd', SA=4, SW=4, baseA=0, baseW=65536, WM=2, WN=2,
              transposed=False, colsum=False, H=OPT['kvH'], nseg=2, segd=None, mixed=True, rel=OPT['rel'], read_frac=OPT['rf'], lean=True, H0=OPT['kvH0'])
    P1_ST = ckv.endW
    P1_AT = P1_ST + 2048
    c3 = Cfg(BM=128, NS=10, lda=2 * D_, ldw=2 * F_, wl='x8', SA=4, SW=10, baseA=81920, baseW=0, WM=4, WN=1,
             transposed=True, colsum=False, H=OPT['p3H'], rel=1, lean=True, H0=OPT['p3H0'],
             dyn=(lambda j: (j, 10, 1, 0)) if OPT['rot3'] else None)
    P3_SCR = c3.endA
    HB = OPT['hb']
    c4 = Cfg(BM=64, NS=27, lda=2 * F_, ldw=160, wl='lin', SA=10, SW=8, baseA=0, baseW=81920, WM=2, WN=2,
             transposed=True, colsum=False, H=OPT['p4H'], rel=2, read_frac=OPT['rf4'], lean=True, wlead=OPT['p4wl'],
             smap=lambda j: 2 * j if j < 14 else 2 * (j - 14) + 1, afterA=lambda j: HB if j >= 14 else -99,
             afterW=lambda m: 0 if m >= 6 else -99, vmwait=True, wfirst=OPT['wf4'], H0=OPT['p4H0'],
             dyn=(lambda j: (j, 14, 2, 0) if j < 14 else (j - 14, 13, 2, 1)) if OPT['rot4'] else None)
    assert c4.endW <= LDS_TOTAL and c4.endA <= c4.baseW and P3_SCR + 2048 <= LDS_TOTAL and P1_ST + 1024 <= LDS_TOTAL
    L_W2, L_KV, L_X2 = 40960, 0, 143360

    F0V = '0x00010001' if OPT['diag'] else 1
    k.end = k.label("end")
    if prof:
        for i in range(28):
            k.e(f"s_mov_b32 s{68+i}, 0")
        k.stamp_c("start")
        k.e("s_memrealtime s[96:97]")
        k.e("s_waitcnt lgkmcnt(0)")
        k.e("s_mov_b32 s94, s96")
    k.e("s_cmp_ge_u32 s2, 256")
    k.e(f"s_cbranch_scc1 {k.end}")
    p = k.s(16, 4)
    pws = k.s(2, 2)
    k.e(f"s_load_dwordx16 s[{p}:{p+15}], s[0:1], 0")
    k.e(f"s_load_dwordx2 s[{pws}:{pws+1}], s[0:1], 64")
    ptr = dict(x=p, wqkv=p + 2, wo=p + 4, w1=p + 8, w2=p + 10, out=p + 12, dbg=p + 14, ws=pws)
    sWave, sJ, sRQ, sCH, sJ1 = k.s(), k.s(), k.s(), k.s(), k.s()
    vl = k.v()
    k.vdummy = k.v()
    k.e(f"""
    v_lshrrev_b32 v{vl}, 6, v0
    s_lshr_b32 s{sJ}, s2, 3
    v_readfirstlane_b32 s{sWave}, v{vl}
    v_and_b32 v{vl}, 63, v0
    s_bfe_u32 s{sRQ}, s2, 0x20001
    s_and_b32 s{sCH}, s2, 1
    s_sub_u32 s{sJ1}, s{sJ}, {OPT['jrot']}
    s_and_b32 s{sJ1}, s{sJ1}, 31
    """)

    def endwave():
        k.dump3(pws, sWave)
        k.e("s_endpgm")

    def dec1():
        sG, sC, sTy = k.s(), k.s(), k.s()
        k.e(f"""
        s_and_b32 s{sG}, s{sJ1}, 3
        s_lshl_b32 s3, s{sRQ}, 2
        s_add_u32 s{sG}, s{sG}, s3
        s_lshr_b32 s{sTy}, s{sJ1}, 3
        s_sub_u32 s{sTy}, s{sTy}, 1
        s_max_i32 s{sTy}, s{sTy}, 0
        s_lshr_b32 s{sC}, s{sJ1}, 2
        s_lshl_b32 s3, s{sCH}, 2
        s_add_u32 s{sC}, s{sC}, s3
        s_lshl_b32 s3, s{sCH}, 1
        s_add_u32 s3, s3, 4
        s_cmp_eq_u32 s{sTy}, 1
        s_cselect_b32 s3, s3, 0
        s_sub_u32 s{sC}, s{sC}, s3
        s_and_b32 s3, s{sJ1}, 7
        s_cmp_eq_u32 s{sTy}, 2
        s_cselect_b32 s{sC}, s3, s{sC}
        """)
        return sG, sC, sTy

    def dec2():
        sRB, sCT = k.s(), k.s()
        k.e(f"""
        s_and_b32 s{sRB}, s{sJ}, 7
        s_lshl_b32 s3, s{sRQ}, 3
        s_add_u32 s{sRB}, s{sRB}, s3
        s_lshr_b32 s{sCT}, s{sJ}, 3
        s_lshl_b32 s3, s{sCH}, 2
        s_add_u32 s{sCT}, s{sCT}, s3
        """)
        return sRB, sCT

    def dec3():
        sRB, sCT = k.s(), k.s()
        k.e(f"""
        s_and_b32 s{sRB}, s{sJ}, 3
        s_lshl_b32 s3, s{sRQ}, 2
        s_add_u32 s{sRB}, s{sRB}, s3
        s_lshr_b32 s{sCT}, s{sJ}, 2
        s_mul_i32 s3, s{sCH}, 7
        s_add_u32 s{sCT}, s{sCT}, s3
        """)
        return sRB, sCT

    def dec4():
        sRB, sCT, sId = k.s(), k.s(), k.s()
        k.e(f"""
        s_mul_i32 s{sRB}, s{sJ}, 205
        s_lshr_b32 s{sRB}, s{sRB}, 10
        s_mul_i32 s3, s{sRB}, 5
        s_sub_u32 s{sCT}, s{sJ}, s3
        s_mul_i32 s3, s{sCH}, 5
        s_add_u32 s{sCT}, s{sCT}, s3
        s_cmp_ge_u32 s{sRB}, 6
        s_cselect_b32 s{sId}, 1, 0
        s_mul_i32 s{sRB}, s{sRB}, 96
        s_lshl_b32 s3, s{sRQ}, 9
        s_add_u32 s{sRB}, s{sRB}, s3
        """)
        return sRB, sCT, sId

    Lc, Lh, Lsvc, Lrole = k.label("cons"), k.label("help"), k.label("svc"), k.label("role")
    sSvc = k.s()
    k.e(f"s_mov_b32 s{sSvc}, 0")
    k.e(f"s_cmp_ge_u32 s{sJ1}, 24")
    k.e(f"s_cbranch_scc1 {Lsvc}")
    if OPT['hfirst']:
        k.e(f"s_cmp_lt_u32 s{sWave}, 6")
        k.e(f"s_cbranch_scc1 {Lrole}")
    else:
        k.e(f"s_cmp_ge_u32 s{sWave}, 6")
        k.e(f"s_cbranch_scc1 {Lh}")
        k.lines.append('; @SEC help')
        k.place(Lh)
    mH = k.mark()
    sRo, sA = k.s(), k.s()
    Lh1 = k.label("h1")
    k.e(f"s_cmp_eq_u32 s{sWave}, 7")
    k.e(f"s_cbranch_scc1 {Lh1}")
    k.e(f"s_mul_i32 s{sRo}, s{sCH}, 640")
    TW = Touch(k, vl, 15, 6 * D_, seg5=True)
    k.e("s_waitcnt lgkmcnt(0)")
    for it in range(OPT['hW']):
        TW.unit(ptr['wqkv'], sRo, sJ1, 24 * it, 640)
    k.e("s_endpgm")
    k.place(Lh1)
    if OPT['codewarm']:
        va_ = k.v(2)
        sPC = k.s(2, 2)
        k.e(f"""
        s_getpc_b64 s[{sPC}:{sPC+1}]
        {k.name}_pc:
        s_sub_u32 s{sPC}, s{sPC}, {k.name}_pc-{k.name}
        s_subb_u32 s{sPC+1}, s{sPC+1}, 0
        s_lshl_b32 s{sA}, s{sJ1}, 11
        v_lshlrev_b32 v{va_}, 7, v{vl}
        v_add_u32 v{va_}, s{sA}, v{va_}
        v_min_u32 v{va_}, {k.name}_last-{k.name}, v{va_}
        v_mov_b32 v{va_+1}, s{sPC+1}
        v_add_co_u32 v{va_}, vcc, s{sPC}, v{va_}
        s_nop 1
        v_addc_co_u32 v{va_+1}, vcc, 0, v{va_+1}, vcc
        s_mov_b64 exec, 0xffff
        global_load_dword v{k.vdummy}, {vr(va_,2)}, off
        s_mov_b64 exec, -1
        """)
    if OPT['hX'] == 10:
        k.e(f"s_and_b32 s{sRo}, s2, 7")
        k.e(f"s_xor_b32 s{sRo}, s{sRo}, 1")
        k.e(f"s_mul_i32 s{sRo}, s{sRo}, {256 * 2 * D_}")
        TX = Touch(k, vl, 16, 2048, share=TW)
        k.e("s_waitcnt lgkmcnt(0)")
        TX.unit(ptr['x'], sRo, sJ1, 0, 160)
        lx = k.label("hx")
        k.e(f"s_cmp_ge_u32 s{sJ1}, 16")
        k.e(f"s_cbranch_scc1 {lx}")
        TX.unit(ptr['x'], sRo, sJ1, 24, 160)
        k.place(lx)
    else:
        k.e(f"s_mul_i32 s{sRo}, s{sRQ}, {512 * 2 * D_}")
        TX = Touch(k, vl, OPT['hX'], 2 * D_, share=TW)
        k.e("s_waitcnt lgkmcnt(0)")
        for it in range(-(-500 // (24 * TX.R))):
            TX.unit(ptr['x'], sRo, sJ1, 24 * it, 512)
    k.e("s_endpgm")
    k.release(mH)
    if not OPT['hfirst']:
        k.lines.append('; @SEC head2')
    k.place(Lrole)
    k.e(f"s_cmp_lt_u32 s{sWave}, 4")
    k.e(f"s_cbranch_scc1 {Lc}")
    k.e(f"s_cmp_ge_u32 s{sWave}, 6")
    k.e(f"s_cbranch_scc1 {k.end}")
    mL = k.mark()
    sLW, sRow, sCol, sSpin, sP, sU, sEx = (k.s() for _ in range(7))
    srdA, srdW, srdF = k.s(4), k.s(4), k.s(4)
    vf, vfa, vone = k.v(4), k.v(), k.v()
    c3r = k.v(4)
    vfb = k.v()
    sAct = k.s()
    sRotL = sEx
    k.e(f"s_sub_u32 s{sLW}, s{sWave}, 4")
    if OPT['lprio']:
        k.e(f"s_setprio {OPT['lprio']}")

    def poll(srd, expect, first_issued=False, tag="", wide=False, drain1=True, extra=None, younger=0, both=False):
        lp, lo = k.label("poll"), k.label("pollok")
        ldi = (f"buffer_load_dwordx3 {vr(vf,3)}, v{vfa}, s[{srd}:{srd+3}], 0 offen sc1" if wide
               else f"buffer_load_dword v{vf}, v{vfa}, s[{srd}:{srd+3}], 0 offen sc1")
        if extra is not None:
            ldi += f"\nbuffer_load_dword v{vf+3}, v{extra}, s[{srd}:{srd+3}], 0 offen sc1"
        if not both:
            k.e(f"s_cmp_eq_u32 s{sLW}, 1")
            k.e(f"s_cbranch_scc1 {lo}")
        k.e(f"s_mov_b32 s{sSpin}, 0")
        if not first_issued:
            k.e(ldi)
        if younger:
            k.e(f"s_waitcnt vmcnt({younger})")
            k.e(f"s_branch {lp}_c")
        k.place(lp)
        k.e("s_waitcnt vmcnt(0)")
        k.place(lp + "_c")
        if wide:
            k.e(f"v_and_b32 v{vf}, v{vf}, v{vf+2}")
        if extra is not None:
            k.e(f"v_and_b32 v{vf}, v{vf}, v{vf+3}")
        k.e(f"""
        v_cmp_ne_u32 vcc, {expect}, v{vf}
        s_add_u32 s{sSpin}, s{sSpin}, 1
        s_nop 3
        s_cbranch_vccz {lo}
        s_cmp_gt_u32 s{sSpin}, 0x40000
        s_cbranch_scc1 {k.end}
        s_sleep {OPT['psleep']}
        {ldi}
        s_branch {lp}
        """)
        k.place(lo)
        if drain1:
            k.e("s_waitcnt vmcnt(0)")
        k.stamp_l(tag)

    def set_flag(sOff, base, mask="1"):
        l0 = k.label("fl")
        k.e(f"""
        s_cmp_eq_u32 s{sLW}, 1
        s_cbranch_scc0 {l0}
        v_mul_u32_u24 v{vfa}, {MS}, v{vl}
        v_add_u32 v{vfa}, {base}, v{vfa}
        s_mov_b32 exec_hi, 0
        s_mov_b32 exec_lo, {mask}
        buffer_store_dword v{vone}, v{vfa}, s[{srdF}:{srdF+3}], s{sOff} offen sc1
        s_mov_b64 exec, -1
        """)
        k.place(l0)

    def warm(pw, ldw, ncl, colbytes, clampc, nrows, rounds):
        if not OPT['twarm'] or not rounds:
            return 0
        mm_ = k.mark()
        sCo = k.s()
        k.e(f"s_mul_i32 s{sCo}, s{sCH}, {colbytes}")
        if clampc is not None:
            k.e(f"s_min_u32 s{sCo}, s{sCo}, {clampc}")
        T = Touch(k, vl, ncl, ldw)
        for it in rounds:
            T.unit(pw, sCo, sU, 64 * it, nrows)
        k.release(mm_)
        return len(rounds)

    def w1warm(where):
        r = OPT['w1at'].get(where, [])
        return warm(ptr['w1'], 2 * F_, 14, 7 * 256, 13 * 128, 640, r) if r else 0

    m = k.mark()
    sG, sC, sTy = dec1()
    srdD = k.s(4)
    k.e(f"""
    s_mul_i32 s{sRow}, s{sG}, {128 * 2 * D_}
    s_mul_i32 s{sCol}, s{sC}, 160
    s_add_u32 s3, s{sCol}, {2 * D_}
    s_lshl_b32 s{sCol}, s{sCol}, 1
    s_cmp_eq_u32 s{sTy}, 0
    s_cselect_b32 s{sCol}, s3, s{sCol}
    s_movk_i32 s{sEx}, 160
    s_cselect_b32 s{sEx}, {2 * D_}, s{sEx}
    """)
    Llq, Ltail = k.label("ldq"), k.label("ldtail")
    pat = [[k.v() for _ in range(5)] for _ in range(5)]
    q0, q1, q2, vcs = (k.v() for _ in range(4))
    pvi, pvb = [k.v() for _ in range(5)], [k.v() for _ in range(5)]
    csr = [k.v(4) for _ in range(4)]
    rp = [k.v() for _ in range(6)]
    rpd = [k.v(4) for _ in range(6)]
    sRp, sRc, sRv = k.s(), k.s(), k.s()
    vLtop = k.vtop

    def p2_pat(mI):
        def f():
            vi_, vb_ = pvi[mI], pvb[mI]
            k.e(f"""
            s_and_b32 s3, s{sWave}, 1
            s_lshl_b32 s3, s3, 3
            v_add_u32 v{q0}, {64*mI}, v{vl}
            v_mul_u32_u24 v{q1}, 205, v{q0}
            v_lshrrev_b32 v{q1}, 11, v{q1}
            v_mul_u32_u24 v{q2}, 10, v{q1}
            v_sub_u32 v{q2}, v{q0}, v{q2}
            v_lshlrev_b32 v{vb_}, 4, v{q2}
            v_and_b32 v{vi_}, 3, v{q1}
            v_bfe_u32 v{q0}, v{q1}, 3, 1
            v_lshl_or_b32 v{vi_}, v{q0}, 2, v{vi_}
            v_add_u32 v{vi_}, s3, v{vi_}
            v_bfe_u32 v{q0}, v{q1}, 2, 1
            v_lshrrev_b32 v{q2}, 4, v{q1}
            v_lshl_or_b32 v{q0}, v{q2}, 1, v{q0}
            v_mul_u32_u24 v{q0}, {5 * 1280}, v{q0}
            v_add_u32 v{vb_}, v{vb_}, v{q0}
            """)
            return 0
        return f

    pdone = set()

    def p2_lazy(u, mI):
        if (u, mI) in pdone:
            return
        pdone.add((u, mI))
        k.e(f"""
        v_add_u32 v{q0}, {16*u}, v{pvi[mI]}
        v_mul_u32_u24 v{q1}, 205, v{q0}
        v_lshrrev_b32 v{q1}, 10, v{q1}
        v_mad_u32_u24 v{q0}, v{q1}, 15, v{q0}
        v_mad_u32_u24 v{pat[u][mI]}, v{q0}, s{sEx}, v{pvb[mI]}
        """)

    def rp_pat():
        mm_ = k.mark()
        sN, sH, sL = k.s(), k.s(), k.s()
        k.e(f"""
        s_lshl_b32 s{sRv}, s{sJ1}, 3
        s_and_b32 s3, s2, 7
        s_add_u32 s{sRv}, s{sRv}, s3
        s_lshl_b32 s{sRv}, s{sRv}, 1
        s_add_u32 s{sRv}, s{sRv}, s{sLW}
        s_min_u32 s{sRp}, s{sRv}, 359
        s_mul_i32 s{sRc}, s{sRp}, 1457
        s_lshr_b32 s{sRc}, s{sRc}, 16
        s_mul_i32 s3, s{sRc}, 45
        s_sub_u32 s{sN}, s{sRp}, s3
        s_mul_i32 s{sN}, s{sN}, 6
        s_mul_i32 s{sRp}, s{sRp}, 6144
        s_movk_i32 s{sL}, {2 * D_}
        """)
        for i in range(6):
            k.e(f"""
            s_mul_i32 s{sH}, s{sN}, 13108
            s_lshr_b32 s{sH}, s{sH}, 16
            s_mul_i32 s3, s{sH}, 5
            s_sub_u32 s3, s{sN}, s3
            s_lshl_b32 s3, s3, 6
            v_add_u32 v{q0}, s3, v{vl}
            s_mul_i32 s{sH}, s{sH}, {32 * 2 * D_}
            s_mul_i32 s3, s{sRc}, 160
            s_add_u32 s{sH}, s{sH}, s3
            v_mul_u32_u24 v{q1}, 205, v{q0}
            v_lshrrev_b32 v{q1}, 11, v{q1}
            v_mul_u32_u24 v{q2}, 10, v{q1}
            v_sub_u32 v{q2}, v{q0}, v{q2}
            v_lshl_add_u32 v{rp[i]}, v{q2}, 4, s{sH}
            v_and_b32 v{q2}, 19, v{q1}
            v_and_b32 v{q0}, 4, v{q1}
            v_lshl_or_b32 v{q2}, v{q0}, 1, v{q2}
            v_and_b32 v{q0}, 8, v{q1}
            v_lshrrev_b32 v{q0}, 1, v{q0}
            v_or_b32 v{q2}, v{q2}, v{q0}
            v_mad_u32_u24 v{rp[i]}, v{q2}, s{sL}, v{rp[i]}
            s_add_u32 s{sN}, s{sN}, 1
            """)
        k.release(mm_)

    def p1_srds():
        k.e("s_waitcnt lgkmcnt(0)")
        set_srd(k, srdA, ptr['x'], S_ * D_ * 2, bias=True)
        set_srd(k, srdW, ptr['wqkv'], 3 * D_ * D_ * 2, bias=True)
        k.stamp_l("ld_first")

    def p1_late():
        set_srd(k, srdF, ptr['ws'], FL_BYTES, WS_FL)
        k.e(f"""
        v_mov_b32 v{vone}, 1
        s_lshl_b32 s{sU}, s{sJ}, 1
        s_add_u32 s{sU}, s{sU}, s{sLW}
        s_mul_i32 s{sP}, s{sG}, {16 * MS}
        s_add_u32 s{sP}, s{sP}, {FL_MQ}
        s_lshl_b32 s3, s{sC}, 2
        s_add_u32 s{sP}, s{sP}, s3
        """)
        k.e(f"""
        s_and_b32 s3, s{sC}, 3
        s_mul_i32 s3, s3, 320
        s_add_u32 s3, s3, 1280
        s_and_b32 s{sSpin}, s{sC}, 1
        s_mul_i32 s{sSpin}, s{sSpin}, 640
        s_cmp_eq_u32 s{sTy}, 0
        s_cselect_b32 s3, s3, s{sSpin}
        s_cselect_b32 s{sSpin}, 960, 0
        v_lshlrev_b32 v{vcs}, 4, v{vl}
        v_add_u32 v{vcs}, s3, v{vcs}
        v_cmp_lt_u32 vcc, 19, v{vl}
        v_mov_b32 v{q0}, s{sSpin}
        s_lshl_b32 s3, s{sCH}, 12
        v_cndmask_b32 v{q0}, 0, v{q0}, vcc
        s_add_u32 s3, s3, {WS_CS1 - WS_ST1}
        v_add3_u32 v{vcs}, v{vcs}, v{q0}, s3
        v_cmp_gt_u32 vcc, 40, v{vl}
        v_mov_b32 v{q0}, {OOB}
        s_nop 0
        v_cndmask_b32 v{vcs}, v{q0}, v{vcs}, vcc
        """)
        return 0

    def p1_last():
        set_srd(k, srdD, ptr['dbg'], 256)
        k.e(f"""
        v_lshlrev_b32 v{vfa}, 2, v{vl}
        v_or_b32 v{vfa}, {128 if OPT['diag'] else 0}, v{vfa}
        s_lshl_b32 s3, s{sLW}, 12
        buffer_load_dword v{vf}, v{vfa}, s[{srdD}:{srdD+3}], s3 offen sc1
        """)
        nwo = 0
        if not OPT['svwo']:
            mm_ = k.mark()
            sCo, sV = sRow, sCol
            k.e(f"s_mul_i32 s{sCo}, s{sCH}, 640")
            k.e(f"s_lshl_b32 s{sV}, s{sJ1}, 1")
            k.e(f"s_add_u32 s{sV}, s{sV}, s{sLW}")
            T = Touch(k, vl, 5, 2 * D_)
            T.unit(ptr['wo'], sCo, sV, 0, 640)
            k.release(mm_)
            nwo = 1
        set_srd(k, srdA, ptr['w2'], F_ * D_ * 2)
        for mI in range(6):
            k.e(f"buffer_load_dwordx4 {vr(rpd[mI],4)}, v{rp[mI]}, s[{srdA}:{srdA+3}], 0 offen")
        return 7 + nwo
    hooks = {}
    k.e(f"s_cmp_eq_u32 s{sSvc}, 1")
    k.e(f"s_cbranch_scc1 {Llq}")
    m2 = k.mark()
    ckv.segd = f"s{sEx}"
    ld = Loader(k, ckv, vl, sLW)

    def first():
        ld.bases(sRow, sCol)
        p1_srds()
        ld.early_a(srdA)
        if not OPT['hfirst']:
            lj_ = k.label("hj")
            k.e(f"s_branch {lj_}")
            k.lines.append('; @SEC head3')
            k.place(lj_)
    if OPT['vfirst'] == 0:
        ld.patterns(between=first)
    else:
        ld.patterns()
        if OPT['vfirst'] == 2:
            for i in range(5):
                p2_pat(i)()
            rp_pat()
        first()

    def f0_part():
        poll(srdD, F0V, first_issued=True, tag="f0ok", drain1=False, younger=6 if OPT['svwo'] else 7)
        set_srd(k, srdA, ptr['ws'], WS_CS3 - WS_ST1, WS_ST1)
        lsd = k.label("std")
        k.e(f"""
        s_cmp_eq_u32 s{sLW}, 1
        s_cbranch_scc1 {lsd}
        s_mov_b32 m0, {P1_ST}
        s_lshl_b32 s3, s{sG}, 10
        v_lshlrev_b32 v{vfa}, 4, v{vl}
        buffer_load_dwordx4 v{vfa}, s[{srdA}:{srdA+3}], s3 offen sc1 lds
        s_movk_i32 s3, 8192
        buffer_load_dwordx4 {vr(csr[0],4)}, v{vcs}, s[{srdA}:{srdA+3}], 0 offen sc1
        buffer_load_dwordx4 {vr(csr[1],4)}, v{vcs}, s[{srdA}:{srdA+3}], s3 offen sc1
        s_movk_i32 s3, 16384
        buffer_load_dwordx4 {vr(csr[2],4)}, v{vcs}, s[{srdA}:{srdA+3}], s3 offen sc1
        s_movk_i32 s3, 24576
        buffer_load_dwordx4 {vr(csr[3],4)}, v{vcs}, s[{srdA}:{srdA+3}], s3 offen sc1
        v_add_u32 v{vfa}, {P1_ST + 1024}, v{vfa}
        """)
        k.place(lsd)
        return 0

    def early_valu():
        p1_late()
        if OPT['vfirst'] < 2:
            for i in range(5):
                p2_pat(i)()
            rp_pat()
    ld.stream(srdA, srdW, last=p1_last, tag="p1", inject=(OPT['inj'], early_valu), hooks={9: f0_part})
    k.e(f"s_branch {Ltail}")
    k.release(m2)
    k.place(Llq)
    p1_late()
    k.e(f"s_movk_i32 s{sRv}, 1000")
    k.e(f"s_mov_b32 s{sRp}, 0")
    k.e(f"s_mov_b32 s{sRc}, 0")
    k.e(f"""
    s_lshl_b32 s{sP}, s{sCH}, 3
    s_add_u32 s{sP}, s{sP}, s{sC}
    s_mul_i32 s{sP}, s{sP}, {FS}
    s_lshl_b32 s3, s{sRQ}, 2
    s_add_u32 s{sP}, s{sP}, s3
    s_add_u32 s{sP}, s{sP}, {FL_S}
    """)
    set_srd(k, srdD, ptr['dbg'], 256)
    k.e(f"s_branch {Ltail}_s")
    k.lines.append('; @SEC ltail')
    k.place(Ltail)
    lsd = k.label("std")
    k.e(f"s_cmp_eq_u32 s{sLW}, 1")
    k.e(f"s_cbranch_scc1 {lsd}")
    k.e(f"""
    s_waitcnt vmcnt(2)
    v_pk_add_f32 {vr(csr[0],2)}, {vr(csr[0],2)}, {vr(csr[1],2)}
    v_pk_add_f32 {vr(csr[0]+2,2)}, {vr(csr[0]+2,2)}, {vr(csr[1]+2,2)}
    s_waitcnt vmcnt(0)
    v_pk_add_f32 {vr(csr[2],2)}, {vr(csr[2],2)}, {vr(csr[3],2)}
    v_pk_add_f32 {vr(csr[2]+2,2)}, {vr(csr[2]+2,2)}, {vr(csr[3]+2,2)}
    v_pk_add_f32 {vr(csr[0],2)}, {vr(csr[0],2)}, {vr(csr[2],2)}
    v_pk_add_f32 {vr(csr[0]+2,2)}, {vr(csr[0]+2,2)}, {vr(csr[2]+2,2)}
    ds_write_b128 v{vfa}, {vr(csr[0],4)}
    s_waitcnt lgkmcnt(0)
    """)
    k.place(lsd)
    k.place(Ltail + "_s")
    sRB2, sCT2 = dec2()
    set_srd(k, srdW, ptr['wo'], D_ * D_ * 2)
    sT, sKW, sLWd = k.s(), k.s(), k.s()
    k.e(f"""
    s_mul_i32 s{sKW}, s{sCT2}, 160
    s_movk_i32 s{sEx}, 1280
    s_mul_i32 s{sLWd}, s{sLW}, 5120
    """)
    nx = w1warm('stats')
    k.e(f"s_waitcnt vmcnt({nx})")
    k.e("s_barrier")
    lrp = k.label("rp")
    set_srd(k, srdA, ptr['ws'], 8 * W2P_CT, WS_W2P)
    k.e(f"""
    s_cmp_ge_u32 s{sRv}, 360
    s_cbranch_scc1 {lrp}
    v_lshlrev_b32 v{rp[0]}, 4, v{vl}
    s_add_u32 s3, s{sRp}, 4096
    """)
    for mI in range(6):
        k.e(f"buffer_store_dwordx4 {vr(rpd[mI],4)}, v{rp[0]}, s[{srdA}:{srdA+3}], {'s%d' % sRp if mI < 4 else 's3'} offen offset:{(mI % 4) * 1024} sc1")
    k.place(lrp)

    def w2_steps(lst):
        for s in lst:
            u = (s % 10) // 2
            k.e(f"s_add_u32 s{sT}, s{sKW}, {(s // 10) * 320 * 1280}")
            for mI in range(5):
                p2_lazy(u, mI)
                k.e(f"s_add_u32 m0, s{sLWd}, {L_W2 + s * 5120 + mI * 1024}")
                k.e("s_nop 0")
                if not g3.DBG['nodma']:
                    k.e(f"buffer_load_dwordx4 v{pat[u][mI]}, s[{srdW}:{srdW+3}], s{sT} offen lds")
    order = [0, 10, 2, 12, 4, 14, 6, 16, 8, 18]
    w2_steps(order[:OPT['w2a']])
    lsv = k.label("svp")
    k.e(f"s_cmp_eq_u32 s{sSvc}, 0")
    k.e(f"s_cbranch_scc1 {lsv}")
    k.e(f"v_lshlrev_b32 v{vfa}, 2, v{vl}")
    k.e(f"v_or_b32 v{vfa}, {128 if OPT['diag'] else 0}, v{vfa}")
    poll(srdD, F0V, tag="f0ok", drain1=False)
    k.place(lsv)
    w1warm('w2a')
    k.stamp_l("w2iss")
    k.e("s_barrier")
    w2_steps(order[OPT['w2a']:OPT['w2b']])
    w1warm('w2b')
    k.e("s_barrier")
    lkv, lfd = k.label("f1kv"), k.label("f1d")
    k.e(f"s_cmp_eq_u32 s{sTy}, 0")
    k.e(f"s_cbranch_scc1 {lkv}")
    k.e(f"s_cmp_eq_u32 s{sTy}, 1")
    k.e(f"s_cselect_b32 s{sSpin}, 0xffff, 1")
    set_flag(sP, 0, mask=f"s{sSpin}")
    k.e(f"s_branch {lfd}")
    k.place(lkv)
    if not OPT['onehop']:
        k.e(f"""
        s_cmp_eq_u32 s{sLW}, 1
        s_cbranch_scc0 {lfd}
        s_mul_i32 s3, s{sC}, {FS}
        v_mov_b32 v{vfa}, {FL_C}
        v_mov_b32 v{vf}, 1
        s_mov_b64 exec, 1
        buffer_atomic_add v{vf}, v{vfa}, s[{srdF}:{srdF+3}], s3 offen sc0 sc1
        s_waitcnt vmcnt(0)
        v_readfirstlane_b32 s{sSpin}, v{vf}
        s_mov_b64 exec, -1
        s_cmp_eq_u32 s{sSpin}, 15
        s_cbranch_scc0 {lfd}
        v_mul_u32_u24 v{vfa}, {FS}, v{vl}
        v_add_u32 v{vfa}, {FL_G}, v{vfa}
        s_lshl_b32 s3, s{sC}, 2
        s_mov_b64 exec, {hex((1 << NREP) - 1)}
        buffer_store_dword v{vone}, v{vfa}, s[{srdF}:{srdF+3}], s3 offen sc1
        s_mov_b64 exec, -1
        """)
    else:
        k.e(f"""
        s_cmp_eq_u32 s{sLW}, 1
        s_cbranch_scc0 {lfd}
        v_mul_u32_u24 v{vfa}, {2 * FS}, v{vl}
        v_add_u32 v{vfa}, {FL_G}, v{vfa}
        s_and_b32 s3, s{sC}, 1
        s_mul_i32 s3, s3, {FS}
        s_mov_b64 exec, {hex((1 << NREP) - 1)}
        buffer_atomic_add v{vone}, v{vfa}, s[{srdF}:{srdF+3}], s3 offen sc1
        s_mov_b64 exec, -1
        """)
    k.place(lfd)
    k.stamp_l("f1set")
    if OPT['ptf1']:
        set_srd(k, srdA, ptr['ws'], S_ * D_ * 2, WS_H)
        k.e(f"""
        s_mul_i32 s{sRow}, s{sRB2}, {64 * 2 * D_}
        s_add_u32 s{sRow}, s{sRow}, s{sKW}
        s_mul_i32 s3, s{sLW}, 156
        s_add_u32 s{sRow}, s{sRow}, s3
        v_mul_u32_u24 v{vfa}, {2 * D_}, v{vl}
        buffer_load_dword v{k.vdummy}, v{vfa}, s[{srdA}:{srdA+3}], s{sRow} offen sc1
        """)
    w1warm('f1')
    w2_steps(order[max(OPT['w2a'], OPT['w2b']):])
    k.e(f"""
    s_lshl_b32 s3, s{sRB2}, 3
    s_add_u32 s3, s3, s{sCT2}
    s_mul_i32 s3, s3, {MS}
    s_add_u32 s3, s3, {FL_MQ}
    v_and_b32 v{q0}, 7, v{vl}
    v_lshlrev_b32 v{q0}, 2, v{q0}
    v_and_b32 v{vfa}, 12, v{q0}
    v_add_u32 v{vfa}, s3, v{vfa}
    """)
    poll(srdF, 1, tag="f1q", drain1=False)
    k.e(f"""
    s_and_b32 s3, s2, {NREP - 1}
    s_mul_i32 s3, s3, {FS * (2 if OPT['onehop'] else 1)}
    s_add_u32 s3, s3, {FL_G}
    v_add_u32 v{vfa}, s3, v{q0}
    """)
    if OPT['onehop']:
        k.e(f"v_and_b32 v{vfa}, 1, v{vl}")
        k.e(f"v_mul_u32_u24 v{vfa}, {FS}, v{vfa}")
        k.e(f"v_add_u32 v{vfa}, s3, v{vfa}")
    k.e(f"s_cmp_eq_u32 s{sLW}, 1")
    lq1 = k.label("q1")
    k.e(f"s_cbranch_scc1 {lq1}")
    k.e(f"buffer_load_dword v{vf}, v{vfa}, s[{srdF}:{srdF+3}], 0 offen sc1")
    k.place(lq1)
    k.e("s_barrier")
    poll(srdF, 64 if OPT['onehop'] else 1, tag="f1k", drain1=False, first_issued=True)
    k.e("s_barrier")
    k.e(f"""
    s_lshr_b32 s{sP}, s{sRB2}, 1
    s_mul_i32 s{sP}, s{sP}, {16 * MS}
    s_and_b32 s3, s{sRB2}, 1
    s_lshl_b32 s3, s3, 5
    s_add_u32 s{sP}, s{sP}, s3
    s_lshl_b32 s3, s{sCT2}, 2
    s_add_u32 s{sP}, s{sP}, s3
    s_waitcnt vmcnt(0)
    s_barrier
    s_barrier
    """)
    lrp = k.label("rp")
    k.e(f"""
    s_cmp_ge_u32 s{sRv}, 360
    s_cbranch_scc1 {lrp}
    s_mul_i32 s3, s{sRc}, {FS}
    v_mov_b32 v{rp[0]}, {FL_R}
    s_waitcnt vmcnt(0)
    s_mov_b64 exec, 1
    buffer_atomic_add v{vone}, v{rp[0]}, s[{srdF}:{srdF+3}], s3 offen sc1
    s_mov_b64 exec, -1
    """)
    k.place(lrp)
    if not OPT['w2early']:
        w2_steps(order[max(OPT['w2a'], OPT['w2b']):])
    set_srd(k, srdA, ptr['ws'], S_ * D_ * 2, WS_H, bias=True)
    k.e(f"""
    s_mul_i32 s{sRow}, s{sRB2}, {64 * 2 * D_}
    s_add_u32 s{sRow}, s{sRow}, {BIAS if OPT['lean'] else 0}
    s_add_u32 s{sRow}, s{sRow}, s{sKW}
    s_mul_i32 s3, s{sLW}, 156
    s_add_u32 s{sRow}, s{sRow}, s3
    v_mul_u32_u24 v{vfa}, {2 * D_}, v{vl}
    """)
    k.release(m)
    mS = k.mark()
    Lskip3 = k.label("ldskip3")
    sRB3, sCT3 = dec3()
    ld = Loader(k, c3, vl, sLW)
    nx = 0
    if OPT['pretouch'] and not OPT['ptf1']:
        k.e(f"buffer_load_dword v{k.vdummy}, v{vfa}, s[{srdA}:{srdA+3}], s{sRow} offen sc1")
        nx += 1
    nx += w1warm('c')
    k.e(f"""
    s_lshl_b32 s3, s{sCH}, 3
    s_lshr_b32 s{sSpin}, s{sJ}, 2
    s_add_u32 s3, s3, s{sSpin}
    s_mul_i32 s3, s3, {FS}
    s_add_u32 s3, s3, {FL_S}
    v_and_b32 v{vfa}, 3, v{vl}
    v_lshlrev_b32 v{vfa}, 2, v{vfa}
    v_add_u32 v{vfa}, s3, v{vfa}
    """)
    poll(srdF, 1, tag="fsok", drain1=False)
    set_srd(k, srdW, ptr['ws'], 32768, WS_CS3)
    csr = [k.v(4) for _ in range(4)]
    k.e(f"""
    s_lshl_b32 s3, s{sCH}, 12
    s_lshr_b32 s{sSpin}, s{sJ}, 2
    s_lshl_b32 s{sSpin}, s{sSpin}, 9
    s_add_u32 s3, s3, s{sSpin}
    s_lshl_b32 s{sSpin}, s{sLW}, 20
    s_add_u32 s3, s3, s{sSpin}
    v_and_b32 v{vfa}, 31, v{vl}
    v_lshlrev_b32 v{vfa}, 4, v{vfa}
    """)
    for q_ in range(4):
        k.e(f"buffer_load_dwordx4 {vr(csr[q_],4)}, v{vfa}, s[{srdW}:{srdW+3}], s3 offen sc1")
        k.e("s_add_u32 s3, s3, 8192")
    ng = w1warm('g')
    ld.patterns()
    k.e(f"s_mul_i32 s{sRow}, s{sRB3}, {128 * 2 * D_}")
    k.e(f"s_lshl_b32 s{sCol}, s{sCT3}, 8")
    ld.bases(sRow, sCol)
    set_srd(k, srdW, ptr['w1'], F_ * D_ * 2, bias=True)
    ld.sRot = sRotL
    k.e(f"s_lshr_b32 s{sRotL}, s{sJ}, 2")
    k.e(f"s_mul_i32 s{sRotL}, s{sRotL}, 23")
    k.e(f"s_lshr_b32 s{sRotL}, s{sRotL}, 4")
    k.e(f"s_min_u32 s{sRotL}, s{sRotL}, 9")
    k.e("s_barrier")
    k.e(f"s_waitcnt vmcnt({ng})")
    for j in range(2):
        k.e(f"v_pk_add_f32 {vr(csr[0]+2*j,2)}, {vr(csr[0]+2*j,2)}, {vr(csr[1]+2*j,2)}")
        k.e(f"v_pk_add_f32 {vr(csr[2]+2*j,2)}, {vr(csr[2]+2*j,2)}, {vr(csr[3]+2*j,2)}")
        k.e(f"v_pk_add_f32 {vr(c3r+2*j,2)}, {vr(csr[0]+2*j,2)}, {vr(csr[2]+2*j,2)}")
    k.e("s_barrier")
    set_flag(sP, FL_M2, mask='0x3fff')
    k.stamp_l("f2set")
    Lidle3 = k.label("ldidle3")
    k.e(f"s_cmp_ge_u32 s{sJ}, 28")
    k.e(f"s_cbranch_scc1 {Lidle3}")
    ld.prefill_w(srdW, c3.SW)
    vl2 = k.v()
    k.e(f"""
    v_and_b32 v{vl2}, 31, v{vl}
    v_lshlrev_b32 v{vl2}, 4, v{vl2}
    s_lshl_b32 s3, s{sLW}, 9
    s_add_u32 s3, s3, {P3_SCR + 1024}
    v_add_u32 v{vl2}, s3, v{vl2}
    ds_write_b128 v{vl2}, {vr(c3r,4)}
    s_waitcnt lgkmcnt(0)
    """)
    k.e(f"""
    s_lshl_b32 s3, s{sRB3}, 4
    s_add_u32 s3, s3, s{sCT3}
    s_mul_i32 s3, s3, {MS}
    s_add_u32 s3, s3, {FL_M2}
    v_and_b32 v{vfa}, 15, v{vl}
    v_lshlrev_b32 v{vfa}, 2, v{vfa}
    v_add_u32 v{vfa}, s3, v{vfa}
    """)
    def r_check():
        lp, lo = k.label("rchk"), k.label("rok")
        k.e(f"""
        s_mul_i32 s3, s{sCH}, {4 * FS}
        s_add_u32 s3, s3, {FL_R}
        v_and_b32 v{vfa}, 3, v{vl}
        v_mul_u32_u24 v{vfa}, {FS}, v{vfa}
        v_add_u32 v{vfa}, s3, v{vfa}
        s_mov_b32 s{sSpin}, 0
        """)
        k.place(lp)
        k.e(f"""
        buffer_load_dword v{vf}, v{vfa}, s[{srdF}:{srdF+3}], 0 offen sc1
        s_waitcnt vmcnt(0)
        v_cmp_ne_u32 vcc, 45, v{vf}
        s_add_u32 s{sSpin}, s{sSpin}, 1
        s_nop 3
        s_cbranch_vccz {lo}
        s_cmp_gt_u32 s{sSpin}, 0x40000
        s_cbranch_scc1 {k.end}
        s_sleep 16
        s_branch {lp}
        """)
        k.place(lo)

    poll(srdF, 1, tag="f2ok", drain1=False)
    lrc = k.label("rc")
    k.e(f"s_cmp_eq_u32 s{sLW}, 0")
    k.e(f"s_cbranch_scc1 {lrc}")
    r_check()
    k.place(lrc)
    k.e("s_barrier")

    def idle_warm():
        mm_ = k.mark()
        sCo = k.s()
        k.e(f"""
        s_lshl_b32 s{sCo}, s{sCH}, 2
        s_add_u32 s{sCo}, s{sCo}, s{sJ}
        s_sub_u32 s{sCo}, s{sCo}, 28
        s_mul_i32 s{sCo}, s{sCo}, {W2P_CT}
        s_add_u32 s{sCo}, s{sCo}, {WS_W2P}
        """)
        T = Touch(k, vl, 16, 2048)
        for it in range(OPT['iw']):
            T.unit(ptr['ws'], sCo, sLW, 2 * it, 135)
            if OPT['iwser']:
                k.e('s_waitcnt vmcnt(0)')
        k.release(mm_)

    def w1p(lst):
        def f():
            n = 0
            assert ld.issued >= 40 + 80
            for m in lst:
                for op in ld._W(m, srdW, coff=128):
                    ld.emit_op(op); n += 1
            return n
        return f
    ld.stream(srdA, srdW, aflags="sc1", tag="p3", hooks={7: w1p([0, 1, 2]), 8: w1p([3, 4, 5]), 9: w1p([6, 7])})
    w1p([8])()
    k.e("s_barrier")
    w1p([9])()
    k.e(f"""
    s_mul_i32 s{sP}, s{sRB3}, {16 * MS}
    s_lshl_b32 s3, s{sCT3}, 2
    s_add_u32 s{sP}, s{sP}, s3
    s_add_u32 s{sP}, s{sP}, {FL_MQ + 16}
    s_mov_b32 s{sAct}, 1
    s_waitcnt vmcnt(20)
    s_barrier
    s_branch {Lskip3}
    """)
    k.place(Lidle3)
    k.e(f"s_mov_b32 s{sAct}, 0")
    k.release(mS)
    r_check()
    idle_warm()
    k.place(Lskip3)
    Lend, Lno3, Lno4 = k.label("ldend"), k.label("ldno3"), k.label("ldno4")
    sRB4, sCT4 = dec2()
    ld = Loader(k, c4, vl, sLW)
    ld.patterns()
    k.e(f"s_mul_i32 s{sRow}, s{sRB4}, {64 * 2 * F_}")
    k.e(f"s_mul_i32 s{sCol}, s{sCT4}, {W2P_CT}")
    ld.bases(sRow, sCol)
    set_srd(k, srdA, ptr['ws'], S_ * F_ * 2, WS_HH, bias=True)
    set_srd(k, srdW, ptr['ws'], 8 * W2P_CT, WS_W2P)
    ld.sRot = sRotL
    k.e(f"s_lshr_b32 s{sRotL}, s{sJ}, 3")
    k.e(f"s_mul_i32 s{sRotL}, s{sRotL}, 7")
    k.e(f"s_lshr_b32 s{sRotL}, s{sRotL}, 1")
    ld.prefill_w(srdW, OPT['pf1'])
    k.e(f"""
    s_cmp_eq_u32 s{sAct}, 0
    s_cbranch_scc1 {Lno3}
    s_waitcnt vmcnt({5 * OPT['pf1']})
    s_barrier
    """)
    set_flag(sP, 0, mask='0xffff')
    k.stamp_l("f3set")
    k.place(Lno3)
    for m_ in range(OPT['pf1'], 6):
        for op in ld._W(m_, srdW):
            ld.emit_op(op)
    ld.pw = 6
    k.e(f"""
    s_cmp_eq_u32 s{sAct}, 0
    s_cbranch_scc1 {Lno4}
    s_barrier
    """)
    k.place(Lno4)
    k.e(f"""
    s_lshl_b32 s3, s{sRB4}, 3
    s_add_u32 s3, s3, s{sCT4}
    s_mul_i32 s3, s3, {MS}
    s_add_u32 s3, s3, {FL_MQ + 16}
    v_and_b32 v{vfa}, 15, v{vl}
    v_min_u32 v{vfb}, 12, v{vfa}
    v_min_u32 v{vfa}, 13, v{vfa}
    v_lshlrev_b32 v{vfa}, 2, v{vfa}
    v_add_u32 v{vfa}, s3, v{vfa}
    v_lshlrev_b32 v{vfb}, 2, v{vfb}
    v_add_u32 v{vfb}, s3, v{vfb}
    v_add_u32 v{vfb}, 56, v{vfb}
    """)
    poll(srdF, 1, tag="f3ok", drain1=False, both=True)
    mk = {}

    def f3b_set():
        k.e(f"""
        s_and_b32 s3, s{sAct}, s{sLW}
        s_cmp_eq_u32 s3, 1
        s_cselect_b32 s3, 56, {OOB}
        v_mul_u32_u24 v{vfa}, {MS}, v{vl}
        v_add_u32 v{vfa}, s3, v{vfa}
        s_mov_b64 exec, 0xffff
        buffer_store_dword v{vone}, v{vfa}, s[{srdF}:{srdF+3}], s{sP} offen sc1
        s_mov_b64 exec, -1
        """)
        return 1

    def f3b_issue():
        k.e(f"buffer_load_dword v{vf}, v{vfb}, s[{srdF}:{srdF+3}], 0 offen sc1")
        mk['n'] = ld.issued
        return 1

    def f3b_check():
        k.e(f"v_mov_b32 v{vfa}, v{vfb}")
        poll(srdF, 1, tag="f3bok", drain1=False, both=True, first_issued=True, younger=max(1, ld.issued - mk['n']) if ld.issued > mk['n'] else 0)
        return 0

    def out_touch():
        set_srd(k, srdF, ptr['out'], S_ * D_ * 2)
        k.e(f"""
        s_mul_i32 s3, s{sRB4}, {64 * 2 * D_}
        s_mul_i32 s{sSpin}, s{sCT4}, 160
        s_add_u32 s3, s3, s{sSpin}
        s_mul_i32 s{sSpin}, s{sLW}, 156
        s_add_u32 s3, s3, s{sSpin}
        v_mul_u32_u24 v{vfa}, {2 * D_}, v{vl}
        buffer_load_dword v{k.vdummy}, v{vfa}, s[{srdF}:{srdF+3}], s3 offen
        """)
        return 1
    ld.stream(srdA, srdW, aflags="sc1", tag="p4", hooks={1: f3b_set, HB - 2: f3b_issue, HB: f3b_check},
              last=out_touch if OPT['otouch'] else None)
    k.place(Lend)
    endwave()
    k.release(mL)

    k.lines.append('; @SEC svc')
    k.place(Lsvc)
    mV = k.mark()
    k.vtop = vLtop
    sS, sA, sB, sX8, sPi = (k.s() for _ in range(5))
    srdX, srdS, srdK, srdW_ = k.s(4), k.s(4), k.s(4), k.s(4)
    xr = [k.v(4) for _ in range(5)]
    ux = [k.v(2) for _ in range(20)]
    t0, t1, vs_, vq_ = k.v(), k.v(), k.v(2), k.v(2)
    z4 = k.v(4)
    k.e(f"""
    s_and_b32 s{sS}, s{sJ1}, 7
    s_and_b32 s{sX8}, s2, 7
    s_lshl_b32 s{sPi}, s{sX8}, 3
    s_add_u32 s{sPi}, s{sPi}, s{sS}
    s_lshl_b32 s{sA}, s{sPi}, 3
    s_add_u32 s{sA}, s{sA}, s{sWave}
    s_lshl_b32 s{sA}, s{sA}, 2
    v_lshrrev_b32 v{t0}, 4, v{vl}
    v_add_u32 v{t0}, s{sA}, v{t0}
    v_mul_u32_u24 v{t1}, {2*D_}, v{t0}
    v_and_b32 v{vs_}, 15, v{vl}
    v_lshl_add_u32 v{t1}, v{vs_}, 4, v{t1}
    s_waitcnt lgkmcnt(0)
    """)
    set_srd(k, srdX, ptr['x'], S_ * D_ * 2)
    for i in range(5):
        k.e(f"buffer_load_dwordx4 {vr(xr[i],4)}, v{t1}, s[{srdX}:{srdX+3}], 0 offen offset:{i*256}")
    set_srd(k, srdS, ptr['ws'], WS_FL - WS_ST1 + FL_BYTES, WS_ST1)
    set_srd(k, srdK, ptr['ws'], KV_BYTES, WS_KV)
    set_srd(k, srdW_, ptr['wqkv'], 3 * D_ * D_ * 2)
    k.e(f"""
    v_mov_b64 {vr(z4,2)}, 0
    v_mov_b64 {vr(z4+2,2)}, 0
    s_lshl_b32 s{sB}, s{sA}, 5
    v_lshlrev_b32 v{t1}, 4, v{vl}
    s_mov_b64 exec, 0xff
    buffer_store_dwordx4 {vr(z4,4)}, v{t1}, s[{srdK}:{srdK+3}], s{sB} offen sc1
    s_mul_i32 s{sB}, s{sA}, {MS // 4}
    s_add_u32 s{sB}, s{sB}, {WS_FL - WS_ST1 + FL_MQ}
    buffer_store_dwordx4 {vr(z4,4)}, v{t1}, s[{srdS}:{srdS+3}], s{sB} offen sc1
    s_mov_b64 exec, 3
    s_lshr_b32 s{sB}, s{sA}, 4
    s_mul_i32 s{sB}, s{sB}, {FS}
    s_and_b32 s3, s{sWave}, 3
    s_lshl_b32 s3, s3, 5
    s_add_u32 s{sB}, s{sB}, s3
    s_add_u32 s{sB}, s{sB}, {WS_FL - WS_ST1}
    buffer_store_dwordx4 {vr(z4,4)}, v{t1}, s[{srdS}:{srdS+3}], s{sB} offen sc1
    s_mov_b64 exec, -1
    v_mov_b64 {vr(vs_,2)}, 0
    v_mov_b64 {vr(vq_,2)}, 0
    """)
    NB = 10
    wb = [k.v(4) for _ in range(NB)]
    ca = [[k.v(2) for _ in range(4)] for _ in range(2)]
    cu = k.v(2)
    vw, vw1, vlw, vlr, t2 = (k.v() for _ in range(5))
    sO, sO1 = k.s(), k.s()
    srdW1 = k.s(4)
    set_srd(k, srdW1, ptr['w1'], F_ * D_ * 2)
    k.e(f"""
    s_lshl_b32 s3, s{sS}, 1
    v_bfe_u32 v{t2}, v{vl}, 3, 1
    v_add_u32 v{t2}, s3, v{t2}
    v_min_u32 v{t2}, 14, v{t2}
    v_mul_u32_u24 v{vw}, 205, v{t2}
    v_lshrrev_b32 v{vw}, 10, v{vw}
    v_mul_u32_u24 v{vw}, 640, v{vw}
    v_lshl_add_u32 v{vw}, v{t2}, 7, v{vw}
    v_and_b32 v{t2}, 7, v{vl}
    v_lshl_add_u32 v{vw}, v{t2}, 4, v{vw}
    v_lshrrev_b32 v{t2}, 4, v{vl}
    v_mul_u32_u24 v{vw1}, {6 * D_}, v{t2}
    v_add_u32 v{vw}, v{vw}, v{vw1}
    s_mul_i32 s{sB}, s{sRQ}, 40
    s_add_u32 s{sB}, s{sB}, s{sWave}
    s_mul_i32 s{sO}, s{sB}, {4 * 6 * D_}
    s_mul_i32 s3, s{sCH}, 640
    s_add_u32 s{sO}, s{sO}, s3
    """)
    for it in range(5):
        k.e(f"buffer_load_dwordx4 {vr(wb[it],4)}, v{vw}, s[{srdW_}:{srdW_+3}], s{sO} offen")
        k.e(f"s_add_u32 s{sO}, s{sO}, {32 * 6 * D_}")
    k.e(f"""
    v_mul_u32_u24 v{vw1}, {2 * F_}, v{t2}
    v_and_b32 v{t2}, 15, v{vl}
    v_lshl_add_u32 v{vw1}, v{t2}, 4, v{vw1}
    s_mul_i32 s{sO1}, s{sB}, {4 * 2 * F_}
    s_min_u32 s3, s{sS}, 6
    s_mul_i32 s{sB}, s{sCH}, 7
    s_add_u32 s3, s3, s{sB}
    s_lshl_b32 s3, s3, 8
    s_add_u32 s{sO1}, s{sO1}, s3
    """)
    k.e(f"""
    v_lshlrev_b32 v{vlw}, 5, v{t2}
    s_lshl_b32 s3, s{sWave}, 9
    v_add_u32 v{vlw}, s3, v{vlw}
    v_lshlrev_b32 v{vlr}, 4, v{vl}
    """)
    sUv, sCo = k.s(), k.s()
    k.e(f"""
    s_lshl_b32 s{sUv}, s{sWave}, 3
    s_add_u32 s{sUv}, s{sUv}, s{sS}
    s_mul_i32 s{sCo}, s{sCH}, 640
    """)
    TWs = Touch(k, vl, 15, 6 * D_, seg5=True)
    u0 = 24 * OPT['hW']
    nX = 0
    if OPT['hX'] != 10:
        sRo2 = k.s()
        k.e(f"""
        s_xor_b32 s{sRo2}, s{sX8}, 1
        s_mul_i32 s{sRo2}, s{sRo2}, {256 * 2 * D_}
        """)
        TXs = Touch(k, vl, 16, 2048, share=TWs)
        TXs.unit(ptr['x'], sRo2, sUv, 0, 160)
        nX = 1
    if OPT['tlbw']:
        lt_ = k.label("tlb")
        sTp = TWs.sB
        k.e(f"s_cmp_lg_u32 s{sWave}, 0")
        k.e(f"s_cbranch_scc1 {lt_}")
        k.e(f"s_mov_b64 s[{srdK}:{srdK+1}], s[{ptr['ws']}:{ptr['ws']+1}]")
        k.e(f"s_mov_b32 s{srdK+2}, {0x1500000}")
        k.e(f"s_lshl_b32 s3, s{sS}, 22")
        for i, (nm, nb) in enumerate((('out', S_ * D_ * 2), ('w2', F_ * D_ * 2))):
            k.e(f"s_cmp_eq_u32 s{sS}, {6 + i}")
            k.e(f"s_cselect_b64 s[{srdK}:{srdK+1}], s[{ptr[nm]}:{ptr[nm]+1}], s[{srdK}:{srdK+1}]")
            k.e(f"s_cselect_b32 s{srdK+2}, {nb}, s{srdK+2}")
            k.e(f"s_cselect_b32 s3, 0, s3")
        k.e(f"v_lshlrev_b32 v{cu}, 16, v{vl}")
        k.e(f"buffer_load_dword v{k.vdummy}, v{cu}, s[{srdK}:{srdK+3}], s3 offen")
        k.place(lt_)
    nT = OPT['svT1']
    for it in range(nT):
        TWs.unit(ptr['wqkv'], sCo, sUv, u0 + 64 * it, 640)
    NB = 5 + nX + nT
    for i in range(5):
        p2_pat(i)()
    for i in range(5):
        k.e(f"s_waitcnt vmcnt({7 - i + NB})")
        for d in range(4):
            k.e(f"v_lshlrev_b32 v{ux[4*i+d]}, 16, v{xr[i]+d}")
            k.e(f"v_and_b32 v{ux[4*i+d]+1}, 0xffff0000, v{xr[i]+d}")
            k.e(f"v_pk_add_f32 {vr(vs_,2)}, {vr(vs_,2)}, {vr(ux[4*i+d],2)}")
    k.e(f"v_add_f32 v{vs_}, v{vs_}, v{vs_+1}")
    dpp_rowsum(k, vs_)
    k.e(f"s_mov_b32 s{sB}, {f32bits(1.0/640)}")
    k.e(f"v_mul_f32 v{vs_}, s{sB}, v{vs_}")
    for i in range(20):
        k.e(f"v_pk_add_f32 {vr(ux[i],2)}, {vr(ux[i],2)}, {vr(vs_,2)} op_sel_hi:[1,0] neg_lo:[0,1] neg_hi:[0,1]")
        k.e(f"v_pk_fma_f32 {vr(vq_,2)}, {vr(ux[i],2)}, {vr(ux[i],2)}, {vr(vq_,2)}")
    k.e(f"v_add_f32 v{vq_}, v{vq_}, v{vq_+1}")
    dpp_rowsum(k, vq_)
    k.e(f"v_mul_f32 v{vq_}, s{sB}, v{vq_}")
    k.e(f"s_mov_b32 s{sB}, {f32bits(1e-5)}")
    ln_finalize_multi(k, [vs_], [vq_], sB)
    k.e(f"""
    v_lshrrev_b32 v{t1}, 7, v{t0}
    v_and_b32 v{t0}, 127, v{t0}
    v_lshlrev_b32 v{t0}, 2, v{t0}
    v_lshl_add_u32 v{t0}, v{t1}, 10, v{t0}
    s_mov_b32 exec_lo, 0x00010001
    s_mov_b32 exec_hi, 0x00010001
    buffer_store_dword v{vs_}, v{t0}, s[{srdS}:{srdS+3}], 0 offen sc1
    buffer_store_dword v{vq_}, v{t0}, s[{srdS}:{srdS+3}], 0 offen offset:512 sc1
    s_mov_b64 exec, -1
    """)

    def cs_sum(younger, nowait=False):
        for a in ca[0]:
            k.e(f"v_mov_b64 {vr(a,2)}, 0")
        if nowait:
            l_ = k.label("csw")
            k.e(f"s_and_b32 s3, s{sWave}, 6")
            k.e(f"s_cmp_eq_u32 s3, 4")
            k.e(f"s_cbranch_scc1 {l_}")
            k.e("s_waitcnt vmcnt(0)")
            k.place(l_)
        for it in range(5):
            if not nowait:
                k.e(f"s_waitcnt vmcnt({4 - it + younger})")
            for d in range(4):
                k.e(f"v_lshlrev_b32 v{cu}, 16, v{wb[it] + d}")
                k.e(f"v_and_b32 v{cu+1}, 0xffff0000, v{wb[it] + d}")
                k.e(f"v_pk_add_f32 {vr(ca[0][d],2)}, {vr(ca[0][d],2)}, {vr(cu,2)}")

    def cs_pub(off_ws, lds_off):
        vals = [a + i for a in ca[0] for i in range(2)]
        allreduce4_multi(k, vals, [wb[i // 4] + i % 4 for i in range(8)])
        for h in range(4):
            k.e(f"ds_write_b64 v{vlw}, {vr(ca[0][h],2)} offset:{lds_off + 8*h}")
        k.e("s_waitcnt lgkmcnt(0)")
        k.e("s_barrier")
        lsk = k.label("csk")
        k.e(f"s_cmp_lg_u32 s{sWave}, 0")
        k.e(f"s_cbranch_scc1 {lsk}")
        for w in range(8):
            k.e(f"ds_read_b128 {vr(wb[w],4)}, v{vlr} offset:{lds_off + 512*w}")
        k.e(f"""
        s_lshl_b32 s3, s{sPi}, 9
        s_add_u32 s3, s3, {off_ws - WS_ST1}
        s_waitcnt lgkmcnt(0)
        """)
        for w in range(1, 8):
            for j in range(2):
                k.e(f"v_pk_add_f32 {vr(wb[0]+2*j,2)}, {vr(wb[0]+2*j,2)}, {vr(wb[w]+2*j,2)}")
        k.e("s_mov_b32 exec_hi, 0")
        k.e(f"buffer_store_dwordx4 {vr(wb[0],4)}, v{vlr}, s[{srdS}:{srdS+3}], s3 offen sc1")
        k.e("s_mov_b64 exec, -1")
        k.e("s_nop 1")
        k.place(lsk)
    cs_sum(nT + nX + 2)
    k.stamp_c("p1_pre")
    cs_pub(WS_CS1, 0)
    set_srd(k, srdX, ptr['dbg'], 256)
    k.e("s_waitcnt vmcnt(0)")
    k.e("s_barrier")
    lf = k.label("svf")
    k.e(f"""
    s_cmp_eq_u32 s{sWave}, 7
    s_cbranch_scc0 {lf}
    s_lshl_b32 s3, s{sPi}, {1 if OPT['diag'] else 2}
    v_mov_b32 v{t0}, s3
    v_mov_b32 v{t1}, 1
    s_mov_b64 exec, 1
    {'buffer_store_short' if OPT['diag'] else 'buffer_store_dword'} v{t1}, v{t0}, s[{srdX}:{srdX+3}], 0 offen {'offset:128' if OPT['diag'] else ''} sc1
    s_mov_b64 exec, -1
    """)
    k.place(lf)
    k.stamp_c("p1_b0")
    k.e("s_barrier")
    n2 = 0
    while u0 + 64 * (nT + n2) < 160:
        TWs.unit(ptr['wqkv'], sCo, sUv, u0 + 64 * (nT + n2), 640, skip=True); n2 += 1
    T5 = Touch(k, vl, 5, 2 * D_, share=TWs)
    if OPT['svwo']:
        T5.unit(ptr['wo'], sCo, sUv, 0, 640, skip=True)
    else:
        T5.unit(ptr['wo'], sCo, sUv, 48, 640, skip=True)
    for it in range(5):
        k.e(f"buffer_load_dwordx4 {vr(wb[it],4)}, v{vw1}, s[{srdW1}:{srdW1+3}], s{sO1} offen")
        k.e(f"s_add_u32 s{sO1}, s{sO1}, {32 * 2 * F_}")
    T14 = Touch(k, vl, 14, 2 * F_, share=TWs)
    k.e(f"s_mul_i32 s{sB}, s{sCH}, {13 * 128}")
    for it in range(OPT['svw1']):
        T14.unit(ptr['w1'], sB, sUv, 64 * it, 640)
    cs_sum(OPT['svw1'])
    cs_pub(WS_CS3, 4096)
    for it in range(OPT['svw2']):
        T5.unit(ptr['w2'], sCo, sUv, 64 * it, 1728)
    k.e("s_waitcnt vmcnt(0)")
    k.stamp_c("p1_loop")
    k.e(f"s_mov_b32 s{sSvc}, 1")
    k.e(f"s_branch {Lrole}")
    k.release(mV)

    k.lines.append('; @SEC cons')
    k.place(Lc)
    sW0, sW1 = k.s(), k.s()
    sA = k.s(2, 2)
    sB = sA + 1
    sEps = k.s(2, 2)
    srd0, srd1, srd2 = k.s(4), k.s(4), k.s(4)
    k.e(f"""
    s_and_b32 s{sW0}, s{sWave}, 1
    s_lshr_b32 s{sW1}, s{sWave}, 1
    s_mov_b32 s{sEps}, {f32bits(1e-6)}
    s_mov_b32 s{sEps+1}, {f32bits(1e-6)}
    """)
    mC = k.mark()
    sG, sC, sTy = dec1()
    Lq, Lp1done, Lqs, Lsj, Lsv2 = (k.label(x) for x in ("consq", "p1done", "qset", "setj", "sv2"))
    srdK = srd0
    k.e("s_waitcnt lgkmcnt(0)")
    set_srd(k, srdK, ptr['ws'], KV_BYTES, WS_KV)
    k.e(f"s_cmp_eq_u32 s{sTy}, 2")
    k.e(f"s_cbranch_scc1 {Lsv2}")
    mP1 = k.mark()
    ar = [k.v() for _ in range(11)]
    va = {(vi, ki): ar[2 * vi + ki] for vi in range(2) for ki in range(2)}
    vz, vrd, vat = ar[4:6], ar[6], ar[7:11]
    ad, vso = [[ar[2 * hh], ar[2 * hh + 1]] for hh in range(4)], ar[8]
    m1 = k.mark()
    sB2 = k.s()
    vd, ve = [k.v(), k.v()], [k.v(), k.v()]
    voob, t1 = k.v(), k.v()
    sM = k.s(2)
    k.e(f"s_cmp_eq_u32 s{sTy}, 1")
    k.e(f"s_cbranch_scc1 {Lqs}")
    k.e(f"""
    s_movk_i32 s{sB2}, 504
    s_lshl_b32 s{sA}, s{sWave}, 2
    v_and_b32 v{t1}, 15, v{vl}
    v_subrev_u32 v{vd[0]}, s{sA}, v{t1}
    v_add_u32 v{vd[1]}, 16, v{vd[0]}
    v_lshrrev_b32 v{t1}, 4, v{vl}
    v_lshlrev_b32 v{t1}, 2, v{t1}
    v_subrev_u32 v{ve[0]}, s{sA}, v{t1}
    v_add_u32 v{ve[1]}, 16, v{ve[0]}
    v_mov_b32 v{voob}, 2048
    """)
    for vi in range(2):
        for ki in range(2):
            k.e(f"""
            v_mul_u32_u24 v{t1}, 24, v{ve[vi]}
            v_add_lshl_u32 v{t1}, v{t1}, v{vd[ki]}, 2
            v_cmp_gt_u32 vcc, 20, v{ve[vi]}
            v_cmp_gt_u32 s[{sM}:{sM+1}], 20, v{vd[ki]}
            s_nop 1
            s_and_b64 vcc, vcc, s[{sM}:{sM+1}]
            s_nop 1
            v_cndmask_b32 v{va[(vi,ki)]}, v{voob}, v{t1}, vcc
            """)
    for ki in range(2):
        k.e(f"""
        v_lshlrev_b32 v{t1}, 2, v{vd[ki]}
        v_add_u32 v{t1}, {20*96}, v{t1}
        v_cmp_gt_u32 vcc, 16, v{vl}
        v_cmp_gt_u32 s[{sM}:{sM+1}], 20, v{vd[ki]}
        s_nop 1
        s_and_b64 vcc, vcc, s[{sM}:{sM+1}]
        s_nop 1
        v_cndmask_b32 v{vz[ki]}, v{voob}, v{t1}, vcc
        """)
    assert P1_AT + 4 * 2560 <= LDS_TOTAL
    k.e(f"s_mul_i32 s{sA}, s{sWave}, 2560")
    k.e(f"s_add_u32 s{sA}, s{sA}, {P1_AT}")
    for x in list(va.values()) + vz:
        k.e(f"v_add_u32 v{x}, s{sA}, v{x}")
    k.e(f"v_lshl_add_u32 v{vrd}, v{vl}, 2, s{sA}")
    k.e(f"v_mov_b32 v{voob}, {OOB}")
    for n, base in enumerate((0, 64, 128, 448)):
        k.e(f"""
        v_add_u32 v{t1}, {base}, v{vl}
        v_mul_u32_u24 v{vd[0]}, 2731, v{t1}
        v_lshrrev_b32 v{vd[0]}, 16, v{vd[0]}
        v_mul_u32_u24 v{vd[0]}, 24, v{vd[0]}
        v_sub_u32 v{vd[0]}, v{t1}, v{vd[0]}
        v_cmp_gt_u32 vcc, 20, v{vd[0]}
        v_cmp_gt_u32 s[{sM}:{sM+1}], s{sB2}, v{t1}
        v_lshlrev_b32 v{t1}, 2, v{t1}
        s_nop 0
        s_and_b64 vcc, vcc, s[{sM}:{sM+1}]
        s_nop 1
        v_cndmask_b32 v{vat[n]}, v{voob}, v{t1}, vcc
        """)
    k.e(f"s_branch {Lsj}")
    k.place(Lqs)

    vb, vc, t0 = vd[0], vd[1], ve[0]
    k.e(f"""
    s_mul_i32 s{sA}, s{sW1}, 20480
    s_mul_i32 s{sB}, s{sW0}, 5120
    s_add_u32 s{sA}, s{sA}, s{sB}
    v_lshlrev_b32 v{vso}, 4, v{vl}
    v_mov_b32 v{ar[9]}, {OOB}
    v_mov_b32 v{ar[10]}, {OOB}
    v_and_b32 v{vb}, 3, v{vl}
    v_lshlrev_b32 v{vb}, 8, v{vb}
    v_add_u32 v{vb}, s{sA}, v{vb}
    v_lshrrev_b32 v{t0}, 4, v{vl}
    v_min_u32 v{t0}, 2, v{t0}
    v_bfe_u32 v{vc}, v{vl}, 2, 2
    v_lshl_add_u32 v{vc}, v{t0}, 3, v{vc}
    v_cmp_gt_u32 vcc, 2, v{t0}
    s_nop 1
    v_cndmask_b32 v{t1}, 0, 4, vcc
    """)
    for hh in range(4):
        for hf in range(2):
            a = ad[hh][hf]
            k.e(f"v_add_u32 v{t0}, {20*hh}, v{vc}")
            if hf:
                k.e(f"v_add_u32 v{t0}, v{t0}, v{t1}")
            k.e(f"""
            v_lshrrev_b32 v{a}, 4, v{t0}
            v_lshl_add_u32 v{a}, v{a}, 10, v{vb}
            v_and_b32 v{t0}, 15, v{t0}
            v_lshl_add_u32 v{a}, v{t0}, 4, v{a}
            """)
    k.place(Lsj)
    k.release(m1)
    vc0, vc2, vc3, vst, vx0, vx2, vxr = (k.v() for _ in range(7))
    ones = k.v(4)
    sX0, sX3 = k.s(), k.s()
    k.e(f"""
    s_cmp_eq_u32 s{sTy}, 1
    s_cselect_b32 s{sX0}, 5, 3
    s_cselect_b32 s{sX3}, 3, 5
    s_mul_i32 s{sX0}, s{sX0}, s{sW0}
    s_add_u32 s{sX3}, s{sX3}, s{sX0}
    v_and_b32 v{vc0}, 15, v{vl}
    v_lshlrev_b32 v{vc0}, 2, v{vc0}
    v_add_u32 v{vc0}, {P1_ST + 1024}, v{vc0}
    s_mul_i32 s{sA}, s{sW0}, 320
    v_add_u32 v{vc2}, s{sA}, v{vc0}
    s_lshl_b32 s{sA}, s{sX3}, 6
    v_add_u32 v{vc3}, s{sA}, v{vc0}
    s_lshl_b32 s{sA}, s{sX0}, 6
    v_add_u32 v{vc0}, s{sA}, v{vc0}
    v_lshrrev_b32 v{vst}, 4, v{vl}
    v_lshlrev_b32 v{vst}, 4, v{vst}
    s_lshl_b32 s{sA}, s{sW1}, 8
    s_add_u32 s{sA}, s{sA}, {P1_ST}
    v_add_u32 v{vst}, s{sA}, v{vst}
    v_lshlrev_b32 v{vxr}, 4, v{vl}
    s_mul_i32 s{sA}, s{sW1}, 20480
    s_lshl_b32 s{sB}, s{sX0}, 10
    s_add_u32 s{sB}, s{sB}, s{sA}
    v_add_u32 v{vx0}, s{sB}, v{vxr}
    s_mul_i32 s{sB}, s{sW0}, 5120
    s_add_u32 s{sB}, s{sB}, s{sA}
    v_add_u32 v{vx2}, s{sB}, v{vxr}
    s_lshl_b32 s{sA}, s{sWave}, 10
    v_add_u32 v{vxr}, s{sA}, v{vxr}
    """)
    for x in (sX0, sX3):
        k.e(f"""
        s_cmp_ge_u32 s{x}, 5
        s_cselect_b32 s3, {2560 - 160}, 0
        s_lshl_b32 s{x}, s{x}, 5
        s_add_u32 s{x}, s{x}, s3
        """)
    ckv.mixed = (sX0, sX3)
    for j in range(4):
        k.e(f"v_mov_b32 v{ones+j}, 0x3f803f80")
    o = consumer_setup(k, ckv, sW1, sW0, vl)
    k.e(f"s_mov_b32 s{sA}, {f32bits(LOG2E)}")
    k.e(f"s_mov_b32 s{sB}, {f32bits(LOG2E)}")
    consumer_loop(k, o, None, tag="p1")
    tp = k.v(2)
    cs = [k.v(2) for _ in range(5)]
    stm = [k.v(4) for _ in range(4)]
    str_ = [k.v(4) for _ in range(4)]
    r2 = [k.v(4) for _ in range(4)]
    fr = [k.v(4), k.v(4)]
    Dz = [k.v(4), k.v(4)]
    k.e("s_barrier")
    k.stamp_c("p1_e1")
    co = [0, 64, 128, 0, 64]
    for nt in range(5):
        k.e(f"ds_read_b32 v{cs[nt]}, v{[vc0, vc0, vc2, vc3, vc3][nt]} offset:{co[nt]}")
    for mt in range(4):
        k.e(f"ds_read_b128 {vr(stm[mt],4)}, v{vst} offset:{mt*64}")
    for mt in range(4):
        k.e(f"ds_read_b128 {vr(str_[mt],4)}, v{vst} offset:{512 + mt*64}")
    for mt in range(4):
        k.e(f"s_waitcnt lgkmcnt({7 - mt})")
        for nt in range(5):
            a = o.acc[mt][nt]
            for j in range(2):
                k.e(f"v_pk_fma_f32 {vr(a+2*j,2)}, {vr(stm[mt]+2*j,2)}, {vr(cs[nt],2)}, {vr(a+2*j,2)} op_sel_hi:[1,0,1] neg_lo:[1,0,0] neg_hi:[1,0,0]")
    k.e("s_waitcnt lgkmcnt(0)")
    assert sB == sA + 1 and sA % 2 == 0
    for mt in range(4):
        for j in range(2):
            k.e(f"v_pk_mul_f32 {vr(r2[mt]+2*j,2)}, {vr(str_[mt]+2*j,2)}, s[{sA}:{sA+1}]")
    xo = [0, 1, 2, 5, 6]

    def fin_tile(nt, is_k, xo=xo):
        for tg in range(2):
            for mt in (2 * tg, 2 * tg + 1):
                for j in range(2):
                    a = o.acc[mt][nt] + 2 * j
                    if is_k:
                        phi_pair(k, a, str_[mt] + 2 * j, r2[mt] + 2 * j, sEps, tp)
                    else:
                        k.e(f"v_pk_mul_f32 {vr(a,2)}, {vr(a,2)}, {vr(str_[mt]+2*j,2)}")
            f = fr[tg]
            for i, mt in enumerate((2 * tg, 2 * tg + 1)):
                a = o.acc[mt][nt]
                k.e(f"v_cvt_pk_bf16_f32 v{f + 2*i}, v{a}, v{a+1}")
                k.e(f"v_cvt_pk_bf16_f32 v{f + 2*i + 1}, v{a+2}, v{a+3}")
            k.e(f"ds_write_b128 v{vx2 if nt == 2 else vx0}, {vr(f,4)} offset:{tg*10240 + xo[nt]*1024}")
    for nt in (0, 1):
        fin_tile(nt, True)
    Lv, Lj, Lk2 = k.label("vpath"), k.label("vjoin"), k.label("k2")
    k.e(f"s_cmp_eq_u32 s{sTy}, 1")
    k.e(f"s_cbranch_scc1 {Lq}")
    for nt in (3, 4):
        fin_tile(nt, False)
    k.e(f"s_cmp_eq_u32 s{sW0}, 1")
    k.e(f"s_cbranch_scc1 {Lv}")
    fin_tile(2, True)
    k.e(f"s_branch {Lj}")
    k.place(Lv)
    fin_tile(2, False)
    k.place(Lj)
    k.e(f"""
    s_lshl_b32 s{sA}, s{sC}, 2
    s_add_u32 s{sA}, s{sA}, s{sWave}
    s_lshl_b32 s{sA}, s{sA}, 11
    s_waitcnt lgkmcnt(0)
    s_barrier
    """)
    k.stamp_c("p1_e2")
    accs = [o.acc[mt][nt] for mt in range(4) for nt in range(5)]
    F = {}
    idx = 0
    for tg in range(4):
        for nm, off in (("k0", 0), ("k1", 1), ("v0", 5), ("v1", 6)):
            F[(tg, nm)] = accs[idx]; idx += 1
            if idx == 16:
                k.e("s_waitcnt lgkmcnt(11)")
            k.e(f"ds_read_b128 {vr(F[(tg, nm)],4)}, v{vxr} offset:{tg*10240 + off*1024}")
    Dk = {(vi, ki): accs[16 + 2 * vi + ki] for vi in range(2) for ki in range(2)}
    for tg in range(4):
        k.e(f"s_waitcnt lgkmcnt({12 - 4*tg})")
        for vi in range(2):
            for ki in range(2):
                d = Dk[(vi, ki)]
                k.e(f"v_mfma_f32_16x16x32_bf16 {vr(d,4)}, {vr(F[(tg, f'v{vi}')],4)}, {vr(F[(tg, f'k{ki}')],4)}, " + ("0" if tg == 0 else vr(d, 4)))
        for ki in range(2):
            d = Dz[ki]
            k.e(f"v_mfma_f32_16x16x32_bf16 {vr(d,4)}, {vr(ones,4)}, {vr(F[(tg, f'k{ki}')],4)}, " + ("0" if tg == 0 else vr(d, 4)))
    k.e("s_nop 3")
    for vi in range(2):
        for ki in range(2):
            for j in range(4):
                k.e(f"ds_write_b32 v{va[(vi,ki)]}, v{Dk[(vi,ki)]+j} offset:{j*96}")
            if (vi, ki) == (1, 0):
                k.e("s_waitcnt lgkmcnt(6)")
    for ki in range(2):
        k.e(f"ds_write_b32 v{vz[ki]}, v{Dz[ki]}")
    k.e("s_waitcnt lgkmcnt(0)")
    for n in range(8):
        k.e(f"ds_read_b32 v{accs[n // 4] + n % 4}, v{vrd} offset:{n*256}")
    for n in range(8):
        k.e(f"s_waitcnt lgkmcnt({7 - n})")
        k.e(f"buffer_atomic_add_f32 v{accs[n // 4] + n % 4}, v{vat[n % 3] if n < 7 else vat[3]}, s[{srdK}:{srdK+3}], s{sA} offen offset:{(n // 3) * 768 if n < 7 else 0}")
    k.e(f"s_branch {Lp1done}")
    k.place(Lq)
    srdP = srd1
    set_srd(k, srdP, ptr['ws'], S_ * 1536, WS_PQ)
    sQ = k.s()
    k.e(f"""
    s_lshl_b32 s{sQ}, s{sG}, 1
    s_add_u32 s{sQ}, s{sQ}, s{sW1}
    s_lshl_b32 s{sQ}, s{sQ}, 4
    s_add_u32 s{sQ}, s{sQ}, s{sC}
    s_lshl_b32 s{sQ}, s{sQ}, 1
    s_add_u32 s{sQ}, s{sQ}, s{sW0}
    s_mul_i32 s{sQ}, s{sQ}, {4 * 768}
    """)
    qb = [stm[0], stm[1], stm[2], stm[3]]

    def q_rd(hh):
        k.e("s_waitcnt lgkmcnt(0)")
        for i in range(4):
            for hf in range(2):
                k.e(f"ds_read_b64_tr_b16 {vr(o.acc[i][hh] + 2*hf, 2)}, v{ad[hh][hf]} offset:{(i // 2) * 10240 + 8 * (i % 2)}")

    def q_st(hh, pend):
        k.e(f"s_waitcnt lgkmcnt({pend})")
        k.e("s_mov_b32 exec_hi, 0xffff")
        for i in range(4):
            k.e(f"s_add_u32 s3, s{sQ}, {i * 32 * 768}")
            k.e(f"buffer_store_dwordx4 {vr(o.acc[i][hh],4)}, v{vso}, s[{srdP}:{srdP+3}], s3 offen offset:{hh*768} sc1")
        k.e("s_mov_b64 exec, -1")
    xq = [0, 1, 2, 3, 4]
    for hh in range(4):
        q_rd(hh)
        if hh < 3:
            fin_tile(hh + 2, True, xo=xq)
            q_st(hh, 2)
        else:
            q_st(hh, 0)
        if hh == 1:
            k.e("s_barrier")
    k.stamp_c("p1_e2")
    k.e(f"s_branch {Lp1done}")
    k.release(mP1)
    k.place(Lsv2)
    k.e("s_barrier")
    k.e("s_barrier")
    k.e(f"s_branch {Lp1done}")
    k.lines.append('; @SEC cons2')
    k.place(Lp1done)
    k.stamp_c("p1_st")
    k.release(mC)
    sRB, sCT = dec2()
    PQ = [k.v(64, 4), k.v(64, 4)]
    big = k.v(80, 4)
    xr = [k.v(4), k.v(4), k.v(2)]
    cE = k.v(4)
    vO, vO2, vrow, vPq, vKa, vKb, vW, vW2, vXw, vXr, t0, t1, t2 = (k.v() for _ in range(13))
    sM = k.s(2)
    k.e(f"""
    s_lshl_b32 s{sA}, s{sRB}, 6
    s_lshl_b32 s{sB}, s{sW0}, 5
    s_add_u32 s{sA}, s{sA}, s{sB}
    s_lshl_b32 s{sB}, s{sW1}, 4
    s_add_u32 s{sA}, s{sA}, s{sB}
    v_and_b32 v{t2}, 15, v{vl}
    v_add_u32 v{vrow}, s{sA}, v{t2}
    v_mul_u32_u24 v{vO}, {2*D_}, v{vrow}
    s_mul_i32 s{sA}, s{sCT}, 160
    v_add_u32 v{vO}, s{sA}, v{vO}
    v_lshrrev_b32 v{t1}, 4, v{vl}
    v_lshl_add_u32 v{vO2}, v{t1}, 3, v{vO}
    v_bfe_u32 v{t0}, v{vl}, 4, 1
    v_lshl_add_u32 v{vO}, v{t0}, 5, v{vO}
    v_lshrrev_b32 v{t0}, 5, v{vl}
    v_lshl_add_u32 v{vO}, v{t0}, 4, v{vO}
    v_cmp_eq_u32 vcc, 3, v{t1}
    v_lshrrev_b32 v{t0}, 2, v{t2}
    v_add_u32 v{vKa}, v{t0}, v{t2}
    v_cndmask_b32 v{vPq}, v{t1}, 1, vcc
    v_lshlrev_b32 v{vPq}, 8, v{vPq}
    v_lshl_add_u32 v{vPq}, v{t2}, 4, v{vPq}
    v_mul_u32_u24 v{vKb}, 5, v{t0}
    v_add_u32 v{vKb}, 4, v{vKb}
    v_and_b32 v{t0}, 3, v{t2}
    v_cmp_eq_u32 s[{sM}:{sM+1}], 0, v{t0}
    v_mov_b32 v{t0}, 20
    s_nop 0
    v_cndmask_b32 v{vKb}, v{t0}, v{vKb}, s[{sM}:{sM+1}]
    v_mul_u32_u24 v{vKa}, 48, v{vKa}
    v_mul_u32_u24 v{vKb}, 48, v{vKb}
    v_lshl_add_u32 v{vKa}, v{t1}, 4, v{vKa}
    v_lshl_add_u32 v{vKb}, v{t1}, 4, v{vKb}
    v_mov_b32 v{t0}, 1008
    v_cndmask_b32 v{vKa}, v{vKa}, v{t0}, vcc
    v_cndmask_b32 v{vKb}, v{vKb}, v{t0}, vcc
    s_lshl_b32 s{sA}, s{sW1}, 14
    s_add_u32 s{sA}, s{sA}, {L_KV}
    v_add_u32 v{vKa}, s{sA}, v{vKa}
    v_add_u32 v{vKb}, s{sA}, v{vKb}
    v_bfe_u32 v{t0}, v{vl}, 2, 3
    v_lshrrev_b32 v{t1}, 5, v{vl}
    v_mul_u32_u24 v{t1}, 2560, v{t1}
    v_mul_u32_u24 v{t0}, 160, v{t0}
    v_add_u32 v{vW}, v{t1}, v{t0}
    v_and_b32 v{t0}, 3, v{vl}
    v_lshl_add_u32 v{vW}, v{t0}, 3, v{vW}
    s_mul_i32 s{sA}, s{sW1}, 51200
    s_add_u32 s{sA}, s{sA}, {L_W2}
    v_add_u32 v{vW}, s{sA}, v{vW}
    s_mul_i32 s{sA}, s{sWave}, 5120
    s_add_u32 s{sA}, s{sA}, {L_X2}
    v_lshlrev_b32 v{t0}, 4, v{vl}
    v_add_u32 v{vXw}, s{sA}, v{t0}
    s_xor_b32 s{sA}, s{sWave}, 2
    s_mul_i32 s{sA}, s{sA}, 5120
    s_add_u32 s{sA}, s{sA}, {L_X2}
    v_add_u32 v{vXr}, s{sA}, v{t0}
    v_lshlrev_b32 v{vW2}, 4, v0
    v_lshlrev_b32 v{t2}, 3, v0
    s_lshl_b32 s{sA}, s{sJ}, 11
    v_add_u32 v{t2}, s{sA}, v{t2}
    v_and_b32 v{t2}, 0x7fff, v{t2}
    v_mov_b32 v{cE}, 0
    v_mov_b32 v{cE+1}, s{sEps}
    v_mov_b64 {vr(cE+2,2)}, 0
    """)
    srdX, srdP = srd2, srd1
    set_srd(k, srdX, ptr['x'], S_ * D_ * 2)
    set_srd(k, srdP, ptr['ws'], S_ * 1536, WS_PQ)
    k.e(f"""
    s_lshl_b32 s{sA}, s{sRB}, 2
    s_lshl_b32 s{sB}, s{sW0}, 1
    s_add_u32 s{sA}, s{sA}, s{sB}
    s_add_u32 s{sA}, s{sA}, s{sW1}
    s_xor_b32 s{sB}, s{sA}, 1
    s_lshl_b32 s{sA}, s{sA}, 1
    s_add_u32 s{sA}, s{sA}, s{sW1}
    s_mul_i32 s{sA}, s{sA}, {16 * 768}
    s_lshl_b32 s{sB}, s{sB}, 1
    s_add_u32 s{sB}, s{sB}, s{sW1}
    s_mul_i32 s{sB}, s{sB}, {16 * 768}
    s_waitcnt vmcnt(0)
    s_barrier
    """)
    k.stamp_c("p1_e3")
    k.e(f"buffer_load_dwordx4 {vr(xr[0],4)}, v{vO}, s[{srdX}:{srdX+3}], 0 offen")
    k.e(f"buffer_load_dwordx4 {vr(xr[1],4)}, v{vO}, s[{srdX}:{srdX+3}], 0 offen offset:64")
    k.e(f"buffer_load_dwordx2 {vr(xr[2],2)}, v{vO2}, s[{srdX}:{srdX+3}], 0 offen offset:128")
    sKo = k.s()
    pql = []
    for h in range(16):
        pre = []
        if h % 5 == 0 and h:
            pre = [f"s_add_u32 s{sA}, s{sA}, {5 * 768}", f"s_add_u32 s{sB}, s{sB}, {5 * 768}"]
        for i, sx in enumerate((sA, sB)):
            pql.append(pre + [f"buffer_load_dwordx4 {vr(PQ[i] + 4*h, 4)}, v{vPq}, s[{srdP}:{srdP+3}], s{sx} offen offset:{(h % 5) * 768} sc1"])
            pre = []
    k.e("s_barrier")
    k.stamp_c("p2_q")
    lead = OPT['pqq']
    for x in pql[:lead]:
        k.emit_list(x)
    k.e("s_barrier")
    k.stamp_c("p2_k")
    k.e(f"s_lshl_b32 s{sKo}, s{sJ}, 12")
    for i in range(16):
        k.e(f"s_and_b32 s{sKo}, s{sKo}, 0xffff")
        k.e(f"buffer_load_dwordx4 {vr(big + 4*i, 4)}, v{vW2}, s[{srdK}:{srdK+3}], s{sKo} offen sc1")
        k.e(f"s_add_u32 s{sKo}, s{sKo}, 4096")
    npq = 0
    for i in range(16):
        r = big + 4 * i
        k.e(f"s_waitcnt vmcnt({15 - i + npq})")
        k.e(f"v_cvt_pk_bf16_f32 v{r}, v{r}, v{r+1}")
        k.e(f"v_cvt_pk_bf16_f32 v{r+1}, v{r+2}, v{r+3}")
        k.e(f"ds_write_b64 v{t2}, {vr(r,2)}")
        k.e(f"v_add_u32 v{t2}, 2048, v{t2}")
        k.e(f"v_and_b32 v{t2}, 0x7fff, v{t2}")
        if i == 7:
            k.e("s_waitcnt lgkmcnt(4)")
        if i >= 8 and lead < 32:
            k.emit_list(pql[lead]); lead += 1; npq += 1
    k.e("s_waitcnt lgkmcnt(0)")
    k.e("s_barrier")
    k.stamp_c("p2_c")
    fka = [[big + 0, big + 4], [big + 8, big + 12]]
    fkb = [[big + 16, big + 20], [big + 24, big + 28]]
    Da = [[big + 32, big + 36], [big + 40, big + 44]]
    Db = [[big + 48, big + 52], [big + 56, big + 60]]

    def rd(p_):
        b = p_ % 2
        out = []
        for i in range(2):
            h = 2 * p_ + i
            out.append(f"ds_read_b128 {vr(fkb[b][i],4)}, v{vKb} offset:{h*1024}")
            out.append(f"ds_read_b128 {vr(fka[b][i],4)}, v{vKa} offset:{h*1024}")
        return out

    def mm(u):
        p_, ti = u // 2, u % 2
        b = p_ % 2
        out = []
        for i in range(2):
            h = 2 * p_ + i
            out.append(f"v_mfma_f32_16x16x32_bf16 {vr(Db[ti][i],4)}, {vr(fkb[b][i],4)}, {vr(PQ[ti] + 4*h,4)}, {vr(cE,4)}")
            out.append(f"v_mfma_f32_16x16x32_bf16 {vr(Da[ti][i],4)}, {vr(fka[b][i],4)}, {vr(PQ[ti] + 4*h,4)}, 0")
        return out

    def fin(u):
        p_, ti = u // 2, u % 2
        out = [f"v_rcp_f32 v{Db[ti][i]+1}, v{Db[ti][i]+1}" for i in range(2)]
        vals = []
        for i in range(2):
            a, d = Da[ti][i], Db[ti][i]
            if OPT['omode'] == 1:
                out += [f"v_mul_f32 v{a+j}, v{a+j}, v{d+1}" for j in range(4)]
            else:
                out.append(f"v_pk_mul_f32 {vr(a,2)}, {vr(a,2)}, {vr(d,2)} op_sel:[0,1]")
                out.append(f"v_pk_mul_f32 {vr(a+2,2)}, {vr(a+2,2)}, {vr(d,2)} op_sel:[0,1]")
            out.append(f"v_mul_f32 v{d}, v{d}, v{d+1}")
            vals += [a, a + 1, a + 2, a + 3, d]
        out += [f"v_cvt_pk_bf16_f32 v{PQ[ti] + 5*p_ + d}, v{vals[2*d]}, v{vals[2*d+1]}" for d in range(5)]
        return out
    fw = [[big + 4 * i for i in range(5)], [big + 20 + 4 * i for i in range(5)]]

    def wrd(s):
        return [f"ds_read_b64_tr_b16 {vr(fw[s & 1][nt] + 2*h, 2)}, v{vW} offset:{s * 5120 + h * 1280 + nt * 32}" for nt in range(5) for h in range(2)]

    def vm_need(p_):
        assert lead >= 4 * p_ + 4
        k.e(f"s_waitcnt vmcnt({lead - (4 * p_ + 4)})")
    k.emit_list(rd(0) + rd(1))
    vm_need(0)
    k.e("s_waitcnt lgkmcnt(4)")
    k.emit_list(mm(0))
    k.e("s_nop 5")
    for u in range(16):
        f = fin(u)
        if u + 1 < 16:
            if (u + 1) % 2 == 0:
                vm_need((u + 1) // 2)
                k.e(f"s_waitcnt lgkmcnt({4 if (u + 1) // 2 + 1 < 8 else 0})")
            m_ = mm(u + 1)
            if OPT['omode'] == 2:
                k.emit_list(m_)
                k.emit_list(f)
            else:
                q_ = len(f) // 4
                for i in range(4):
                    k.e(m_[i])
                    k.emit_list(f[q_ * i: q_ * i + q_] if i < 3 else f[3 * q_:])
            if (u + 1) % 2 == 1 and (u + 1) // 2 + 2 < 8:
                k.emit_list(rd((u + 1) // 2 + 2))
            for _ in range(OPT['pqper']):
                if lead < 32:
                    k.emit_list(pql[lead]); lead += 1
                    if lead == 32:
                        k.e("s_barrier")
        else:
            k.emit_list(wrd(0))
            k.emit_list(f)
    k.stamp_c("p2_o")
    acc = [[big + 40 + 20 * ti + 4 * i for i in range(5)] for ti in range(2)]
    for s in range(10):
        r = wrd(s + 1) if s + 1 < 10 else []
        issued = 0
        for nt in range(5):
            k.e(f"s_waitcnt lgkmcnt({8 - 2*nt + issued})")
            for ti in range(2):
                k.e(f"v_mfma_f32_16x16x32_bf16 {vr(acc[ti][nt],4)}, {vr(fw[s & 1][nt],4)}, {vr(PQ[ti] + 4*s,4)}, " + ("0" if s == 0 else vr(acc[ti][nt], 4)))
                if r:
                    k.e(r[2 * nt + ti]); issued += 1
    srdH, srdS = srd1, srd2
    set_srd(k, srdH, ptr['ws'], S_ * D_ * 2, WS_H)
    set_srd(k, srdS, ptr['ws'], S_ * 64, WS_ST2)
    k.stamp_c("p2_g")
    for nt in range(5):
        k.e(f"ds_write_b128 v{vXw}, {vr(acc[1][nt],4)} offset:{nt*1024}")
    vs_, vq_, u = big + 20, big + 22, big + 24
    k.e(f"v_mov_b64 {vr(vs_,2)}, 0")
    k.e(f"v_mov_b64 {vr(vq_,2)}, 0")
    k.e("s_waitcnt lgkmcnt(0)")
    k.e("s_barrier")
    for nt in range(5):
        k.e(f"ds_read_b128 {vr(fw[0][nt],4)}, v{vXr} offset:{nt*1024}")
    pk = [big + 28, big + 32, big + 36]
    for nt in range(5):
        a = acc[0][nt]
        k.e(f"s_waitcnt lgkmcnt({4 - nt})")
        k.e(f"v_pk_add_f32 {vr(a,2)}, {vr(a,2)}, {vr(fw[0][nt],2)}")
        k.e(f"v_pk_add_f32 {vr(a+2,2)}, {vr(a+2,2)}, {vr(fw[0][nt]+2,2)}")
        d = pk[nt // 2] + 2 * (nt & 1)
        k.e(f"v_cvt_pk_bf16_f32 v{d}, v{a}, v{a+1}")
        k.e(f"v_cvt_pk_bf16_f32 v{d+1}, v{a+2}, v{a+3}")
    for pr in range(2):
        k.e(f"v_permlane16_swap_b32 v{pk[pr]}, v{pk[pr]+2}")
        k.e(f"v_permlane16_swap_b32 v{pk[pr]+1}, v{pk[pr]+3}")
    for pr in range(3):
        for d in range(4 if pr < 2 else 2):
            r, x = pk[pr] + d, xr[pr] + d
            k.e(f"""
            v_lshlrev_b32 v{u}, 16, v{r}
            v_and_b32 v{u+1}, 0xffff0000, v{r}
            v_lshlrev_b32 v{u+2}, 16, v{x}
            v_and_b32 v{u+3}, 0xffff0000, v{x}
            v_pk_add_f32 {vr(u,2)}, {vr(u,2)}, {vr(u+2,2)}
            v_cvt_pk_bf16_f32 v{r}, v{u}, v{u+1}
            """)
        if pr < 2:
            k.e(f"buffer_store_dwordx4 {vr(pk[pr],4)}, v{vO}, s[{srdH}:{srdH+3}], 0 offen offset:{pr*64} sc1")
        else:
            k.e(f"buffer_store_dwordx2 {vr(pk[pr],2)}, v{vO2}, s[{srdH}:{srdH+3}], 0 offen offset:128 sc1")
    for pr in range(3):
        for d in range(4 if pr < 2 else 2):
            r = pk[pr] + d
            k.e(f"""
            v_lshlrev_b32 v{u}, 16, v{r}
            v_and_b32 v{u+1}, 0xffff0000, v{r}
            v_pk_add_f32 {vr(vs_,2)}, {vr(vs_,2)}, {vr(u,2)}
            v_pk_fma_f32 {vr(vq_,2)}, {vr(u,2)}, {vr(u,2)}, {vr(vq_,2)}
            """)
    k.e(f"v_add_f32 v{vs_}, v{vs_}, v{vs_+1}")
    k.e(f"v_add_f32 v{vs_+1}, v{vq_}, v{vq_+1}")
    allreduce4_multi(k, [vs_, vs_ + 1], [t0, t1])
    k.e(f"""
    v_lshlrev_b32 v{vrow}, 3, v{vrow}
    s_lshl_b32 s{sA}, s{sCT}, 14
    s_mov_b64 exec, 0xffff
    buffer_store_dwordx2 {vr(vs_,2)}, v{vrow}, s[{srdS}:{srdS+3}], s{sA} offen sc1
    s_mov_b64 exec, -1
    """)
    k.stamp_c("p2_st")
    k.release(mC)
    Lp4c = k.label("p4c")
    sRB, sCT = dec3()
    c = c3
    vO, vSt, vCs, vA0, vA1, t0, t1, t2 = (k.v() for _ in range(8))
    vW = [k.v() for _ in range(4)]
    st = [k.v(2) for _ in range(2)]
    acc = [[k.v(4) for _ in range(4)] for _ in range(2)]
    fw = [[k.v(4) for _ in range(4)] for _ in range(2)]
    AR = [[k.v(4) for _ in range(2)] for _ in range(20)]
    k.e("s_waitcnt vmcnt(0)")
    k.e("s_barrier")
    k.stamp_c("p2_e")
    k.e(f"s_cmp_ge_u32 s{sJ}, 28")
    k.e(f"s_cbranch_scc1 {Lp4c}")
    srdO = srd1
    set_srd(k, srdO, ptr['ws'], S_ * F_ * 2, WS_HH)
    k.e(f"""
    v_and_b32 v{t0}, 15, v{vl}
    v_lshrrev_b32 v{t1}, 4, v{vl}
    v_lshlrev_b32 v{vSt}, 15, v{t1}
    v_lshl_add_u32 v{vSt}, v{t0}, 3, v{vSt}
    s_lshl_b32 s{sA}, s{sRB}, 10
    s_lshl_b32 s{sB}, s{sWave}, 8
    s_add_u32 s{sA}, s{sA}, s{sB}
    v_add_u32 v{vSt}, s{sA}, v{vSt}
    v_lshlrev_b32 v{vCs}, 4, v{t1}
    v_add_u32 v{vCs}, {P3_SCR + 1024}, v{vCs}
    v_and_b32 v{t2}, 6, v{t0}
    v_xor_b32 v{t2}, v{t2}, v{t1}
    v_lshlrev_b32 v{t2}, 4, v{t2}
    v_lshl_add_u32 v{vA0}, v{t0}, 7, v{t2}
    s_lshl_b32 s{sA}, s{sWave}, 12
    s_add_u32 s{sA}, s{sA}, {c.baseA}
    v_add_u32 v{vA0}, s{sA}, v{vA0}
    v_xor_b32 v{vA1}, 64, v{vA0}
    v_mul_u32_u24 v{vO}, {2*F_}, v{t0}
    v_bfe_u32 v{t0}, v{vl}, 4, 1
    v_lshl_add_u32 v{vO}, v{t0}, 5, v{vO}
    v_lshrrev_b32 v{t0}, 5, v{vl}
    v_lshl_add_u32 v{vO}, v{t0}, 4, v{vO}
    s_lshl_b32 s{sA}, s{sRB}, 7
    s_lshl_b32 s{sB}, s{sWave}, 5
    s_add_u32 s{sA}, s{sA}, s{sB}
    s_mul_i32 s{sA}, s{sA}, {2*F_}
    s_lshl_b32 s{sB}, s{sCT}, 8
    s_add_u32 s{sA}, s{sA}, s{sB}
    v_add_u32 v{vO}, s{sA}, v{vO}
    v_bfe_u32 v{t1}, v{vl}, 2, 3
    v_mul_u32_u24 v{t0}, {c.r16b}, v{t0}
    v_lshl_add_u32 v{t0}, v{t1}, 7, v{t0}
    v_and_b32 v{t2}, 3, v{vl}
    v_lshl_add_u32 v{t0}, v{t2}, 3, v{t0}
    v_lshrrev_b32 v{t1}, 1, v{t1}
    s_mov_b32 s{sB}, {16 * 2 * F_}
    """)
    for j in range(4):
        k.e(f"v_xor_b32 v{t2}, {j}, v{t1}")
        k.e(f"v_lshl_add_u32 v{vW[j]}, v{t2}, 5, v{t0}")
    wbase = [0]

    def rds(n):
        ps, s_, t = n // 20, (n % 20) // 2, n & 1
        out = []
        want = 40960 if s_ >= 5 else 0
        if want != wbase[0]:
            d = want - wbase[0]
            out += [f"v_add_u32 v{x}, {d & 0xffffffff}, v{x}" for x in vW]
            wbase[0] = want
        npre = len(out)
        if ps == 0:
            out += [f"ds_read_b128 {vr(AR[n][mt],4)}, v{vA1 if t else vA0} offset:{(s_ % 4) * 16384 + mt * 2048}" for mt in range(2)]
        for nt in range(4):
            for h in range(2):
                out.append(f"ds_read_b64_tr_b16 {vr(fw[n & 1][nt] + 2*h, 2)}, v{vW[nt]} offset:{s_ * 8192 - want + t * 4096 + h * 1024}")
        return out[:npre], out[npre:]

    def blk(n, nxt):
        na = 2 if n < 20 else 0
        nprev = na + 8
        pre, rd = rds(nxt) if nxt is not None else ([], [])
        k.emit_list(pre)
        issued = 0
        j = 0
        for nt in range(4):
            k.e(f"s_waitcnt lgkmcnt({nprev - (na + 2*nt + 2) + issued})")
            for mt in range(2):
                a = acc[mt][nt]
                k.e(f"v_mfma_f32_16x16x32_bf16 {vr(a,4)}, {vr(fw[n & 1][nt],4)}, {vr(AR[n % 20][mt],4)}, " + ("0" if n % 20 == 0 else vr(a, 4)))
                j += 1
                want = min(len(rd), -(-j * len(rd) * 100 // (8 * OPT['rf3'])))
                while issued < want:
                    k.e(rd[issued]); issued += 1

    def epi(ps):
        cs3 = fw[0]
        k.e("s_nop 4")
        for nt in range(4):
            k.e(f"ds_read_b128 {vr(cs3[nt],4)}, v{vCs} offset:{ps*256 + nt*64}")
        k.e("s_waitcnt lgkmcnt(0)")
        Lns = k.label("p3ns")
        if ps == 1:
            k.e(f"s_cmp_eq_u32 s{sCT}, 13")
            k.e(f"s_cbranch_scc1 {Lns}")
        for mt in range(2):
            for pr in range(2):
                a0, a1 = acc[mt][2*pr], acc[mt][2*pr+1]
                for a, nt in ((a0, 2*pr), (a1, 2*pr+1)):
                    for j in range(2):
                        k.e(f"v_pk_fma_f32 {vr(a+2*j,2)}, {vr(cs3[nt]+2*j,2)}, {vr(st[mt],2)}, {vr(a+2*j,2)} op_sel_hi:[1,0,1] neg_lo:[0,1,0] neg_hi:[0,1,0]")
                    for j in range(2):
                        k.e(f"v_pk_mul_f32 {vr(a+2*j,2)}, {vr(a+2*j,2)}, {vr(st[mt],2)} op_sel:[0,1]")
                pk = fw[1][2 * mt + pr]
                k.e(f"""
                v_cvt_pk_bf16_f32 v{pk}, v{a0}, v{a0+1}
                v_cvt_pk_bf16_f32 v{pk+2}, v{a1}, v{a1+1}
                v_cvt_pk_bf16_f32 v{pk+1}, v{a0+2}, v{a0+3}
                v_cvt_pk_bf16_f32 v{pk+3}, v{a1+2}, v{a1+3}
                v_permlane16_swap_b32 v{pk}, v{pk+2}
                s_nop 0
                v_permlane16_swap_b32 v{pk+1}, v{pk+3}
                v_pk_max_i16 v{pk}, v{pk}, 0
                v_pk_max_i16 v{pk+2}, v{pk+2}, 0
                v_pk_max_i16 v{pk+1}, v{pk+1}, 0
                v_pk_max_i16 v{pk+3}, v{pk+3}, 0
                buffer_store_dwordx4 {vr(pk,4)}, v{vO}, s[{srdO}:{srdO+3}], {'s%d' % sB if mt else '0'} offen offset:{ps*128 + pr*64} sc1
                """)
        k.place(Lns)
    sK16, sI6, sE5 = k.s(), k.s(), k.s()
    k.e(f"s_movk_i32 s{sK16}, 16384")
    k.e(f"s_mov_b32 s{sI6}, {f32bits(1.0/640)}")
    k.e(f"s_mov_b32 s{sE5}, {f32bits(1e-5)}")
    k.e("s_barrier")
    tq = [AR[10][0], AR[10][1]]
    for mt in range(2):
        k.e(f"buffer_load_dwordx2 {vr(st[mt],2)}, v{vSt}, s[{srd2}:{srd2+3}], 0 offen offset:{mt*128} sc1")
        k.e(f"buffer_load_dwordx2 {vr(tq[mt],2)}, v{vSt}, s[{srd2}:{srd2+3}], s{sK16} offen offset:{mt*128} sc1")
    k.e("s_waitcnt vmcnt(0)")
    for mt in range(2):
        k.e(f"v_pk_add_f32 {vr(st[mt],2)}, {vr(st[mt],2)}, {vr(tq[mt],2)}")
    vm_, vs__ = [st[0], st[1]], [st[0] + 1, st[1] + 1]
    allreduce4_multi(k, vm_ + vs__, [tq[0], tq[0] + 1, tq[0] + 2, tq[0] + 3])
    for mt in range(2):
        k.e(f"""
        v_mul_f32 v{vm_[mt]}, s{sI6}, v{vm_[mt]}
        v_mul_f32 v{vs__[mt]}, s{sI6}, v{vs__[mt]}
        v_fma_f32 v{vs__[mt]}, -v{vm_[mt]}, v{vm_[mt]}, v{vs__[mt]}
        v_max_f32 v{vs__[mt]}, 0, v{vs__[mt]}
        """)
    ln_finalize_multi(k, vm_, vs__, sE5)
    k.stamp_c("p3_pre")
    k.e("s_barrier")
    k.stamp_c("p3_b0")
    w3 = [AR[18][0], AR[18][1], AR[19][0], AR[19][1]]
    rot0 = [fw[0], fw[1], w3]
    buf0 = {n: rot0[n % 3] for n in range(15)}
    for n in range(15, 20):
        buf0[n] = fw[(n - 15) % 2]

    def rdW(n):
        s_, t = n // 2, n & 1
        pre = []
        want = 40960 if s_ >= 5 else 0
        if want != wbase[0]:
            pre = [(f"v_add_u32 v{x}, {(want - wbase[0]) & 0xffffffff}, v{x}", None) for x in vW]
            wbase[0] = want
        return pre + [(f"ds_read_b64_tr_b16 {vr(buf0[n][nt] + 2*h, 2)}, v{vW[nt]} offset:{s_ * 8192 - want + t * 4096 + h * 1024}", ('w', n, nt))
                      for nt in range(4) for h in range(2)]

    def rdA(s_):
        return [(f"ds_read_b128 {vr(AR[2*s_+t][mt],4)}, v{vA1 if t else vA0} offset:{(s_ % 4) * 16384 + mt * 2048}", ('a', 2*s_+t, mt))
                for t in range(2) for mt in range(2)]
    pend0 = []

    def issue(x):
        k.e(x[0])
        if x[1] is not None:
            pend0.append(x[1])

    def need(tags):
        idx = [i for i, x in enumerate(pend0) if x in tags]
        if idx:
            done = max(idx) + 1
            k.e(f"s_waitcnt lgkmcnt({min(15, len(pend0) - done)})")
            del pend0[:done]
    for x in rdA(0) + rdW(0) + rdW(1)[:3]:
        issue(x)
    carry = rdW(1)[3:]
    for n in range(20):
        rd = list(carry); carry = []
        if n % 2 == 0:
            s_ = n // 2
            need([('a', n + t, mt) for t in range(2) for mt in range(2)])
            k.e("s_barrier")
            if s_ + 1 < 10:
                rd = rdA(s_ + 1) + rd
        if n + 2 <= 16:
            rd += rdW(n + 2)
        elif n >= 16 and n + 1 < 20:
            rd += rdW(n + 1)
        issued = 0
        j = 0
        for nt in range(4):
            need([('w', n, nt)])
            for mt in range(2):
                a = acc[mt][nt]
                k.e(f"v_mfma_f32_16x16x32_bf16 {vr(a,4)}, {vr(buf0[n][nt],4)}, {vr(AR[n][mt],4)}, " + ("0" if n == 0 else vr(a, 4)))
                j += 1
                want = -(-j * len(rd) // (8 if n < 16 else 5))
                while issued < min(want, len(rd)):
                    issue(rd[issued]); issued += 1
    k.e("s_barrier")
    k.stamp_c("p3_loop")
    epi(0)
    k.e("s_barrier")
    k.stamp_c("p3_st")
    fw3 = [AR[0][0], AR[0][1], AR[1][0], AR[1][1]]
    buf = {20: fw[0], 21: fw[1], 22: fw[0], 23: fw[1]}
    rot = [fw3, fw[0], fw[1]]
    for n in range(24, 40):
        buf[n] = rot[(n - 24) % 3]

    def rds1(n):
        s_, t = (n % 20) // 2, n & 1
        pre = []
        want = 40960 if s_ >= 5 else 0
        if want != wbase[0]:
            pre = [f"v_add_u32 v{x}, {(want - wbase[0]) & 0xffffffff}, v{x}" for x in vW]
            wbase[0] = want
        return pre + [f"ds_read_b64_tr_b16 {vr(buf[n][nt] + 2*h, 2)}, v{vW[nt]} offset:{s_ * 8192 - want + t * 4096 + h * 1024}" for nt in range(4) for h in range(2)]
    sched = {20: [], 21: [22], 22: [23, 24]}
    for n in range(23, 40):
        sched[n] = [n + 2] if n + 2 < 40 else []
    k.emit_list(rds1(20) + rds1(21))
    pend = [20] * 8 + [21] * 8
    for n in range(20, 40):
        if n == 20 + 2 * OPT['m1at'] + 1:
            k.e("s_waitcnt vmcnt(0)")
            k.e("s_barrier")
        if n == 38:
            k.e("s_waitcnt lgkmcnt(0)")
            k.e("s_barrier")
        rd = [(x, m_) for m_ in sched[n] for x in rds1(m_)]
        assert all((m_ % 20) // 2 <= 4 for _, m_ in rd) or n >= 20 + 2 * OPT['m1at'] + 1
        issued = 0
        j = 0
        for nt in range(4):
            idx = [i for i, x in enumerate(pend) if x == n]
            if idx:
                done = idx[min(len(idx) - 1, 2 * nt + 1 - (8 - len(idx)))] + 1 if 2 * nt + 1 - (8 - len(idx)) >= 0 else 0
                if done:
                    k.e(f"s_waitcnt lgkmcnt({min(15, len(pend) - done)})")
                    pend = pend[done:]
            for mt in range(2):
                a = acc[mt][nt]
                k.e(f"v_mfma_f32_16x16x32_bf16 {vr(a,4)}, {vr(buf[n][nt],4)}, {vr(AR[n % 20][mt],4)}, " + ("0" if n == 20 else vr(a, 4)))
                j += 1
                want = -(-j * len(rd) // 8)
                while issued < want:
                    k.e(rd[issued][0])
                    if rd[issued][0].startswith("ds_"):
                        pend.append(rd[issued][1])
                    issued += 1
    epi(1)
    k.stamp_c("p3_e")
    k.place(Lp4c)
    k.release(mC)
    Lcend = k.label("cend")
    sRB, sCT = dec2()
    c = c4
    srdH, srdO = srd1, srd2
    set_srd(k, srdH, ptr['ws'], S_ * D_ * 2, WS_H)
    set_srd(k, srdO, ptr['out'], S_ * D_ * 2)
    vO, vO2, t0, t1 = (k.v() for _ in range(4))
    hr = [[k.v(4), k.v(2)] for _ in range(2)]
    k.e(f"""
    s_lshl_b32 s{sA}, s{sRB}, 6
    s_lshl_b32 s{sB}, s{sW1}, 5
    s_add_u32 s{sA}, s{sA}, s{sB}
    v_and_b32 v{t0}, 15, v{vl}
    v_add_u32 v{t0}, s{sA}, v{t0}
    v_mul_u32_u24 v{vO}, {2*D_}, v{t0}
    s_mul_i32 s{sA}, s{sCT}, 160
    s_lshl_b32 s{sB}, s{sW0}, 6
    s_add_u32 s{sA}, s{sA}, s{sB}
    v_add_u32 v{vO}, s{sA}, v{vO}
    v_lshrrev_b32 v{t1}, 4, v{vl}
    v_lshl_add_u32 v{vO2}, v{t1}, 3, v{vO}
    v_bfe_u32 v{t0}, v{vl}, 4, 1
    v_lshl_add_u32 v{vO}, v{t0}, 5, v{vO}
    v_lshrrev_b32 v{t0}, 5, v{vl}
    v_lshl_add_u32 v{vO}, v{t0}, 4, v{vO}
    s_movk_i32 s{sB}, {16 * 2 * D_}
    """)

    def h_loads():
        for mt in range(2):
            so = f"s{sB}" if mt else "0"
            k.e(f"buffer_load_dwordx4 {vr(hr[mt][0],4)}, v{vO}, s[{srdH}:{srdH+3}], {so} offen sc1")
            k.e(f"buffer_load_dwordx2 {vr(hr[mt][1],2)}, v{vO2}, s[{srdH}:{srdH+3}], {so} offen offset:64 sc1")
    o = consumer_setup(k, c, sW1, sW0, vl)
    h_loads()
    consumer_loop(k, o, None, tag="p4")
    pk = [[k.v(4), k.v(2)] for _ in range(2)]
    u = k.v(4)
    for mt in range(2):
        for nt in range(3):
            a = o.acc[mt][nt]
            d = pk[mt][nt // 2] + 2 * (nt & 1)
            k.e(f"v_cvt_pk_bf16_f32 v{d}, v{a}, v{a+1}")
            k.e(f"v_cvt_pk_bf16_f32 v{d+1}, v{a+2}, v{a+3}")
    k.e("s_waitcnt vmcnt(0)")
    for mt in range(2):
        k.e(f"v_permlane16_swap_b32 v{pk[mt][0]}, v{pk[mt][0]+2}")
        k.e(f"v_permlane16_swap_b32 v{pk[mt][0]+1}, v{pk[mt][0]+3}")
    fl = 'sc1' if OPT['outsc1'] else ''
    Lno = k.label("p4n")
    for pr in range(2):
        if pr == 1:
            k.e(f"s_cmp_eq_u32 s{sW0}, 0")
            k.e(f"s_cbranch_scc1 {Lno}")
        for mt in range(2):
            so = f"s{sB}" if mt else "0"
            for d in range(4 if pr == 0 else 2):
                r, x = pk[mt][pr] + d, hr[mt][pr] + d
                k.e(f"""
                v_lshlrev_b32 v{u}, 16, v{r}
                v_and_b32 v{u+1}, 0xffff0000, v{r}
                v_lshlrev_b32 v{u+2}, 16, v{x}
                v_and_b32 v{u+3}, 0xffff0000, v{x}
                v_pk_add_f32 {vr(u,2)}, {vr(u,2)}, {vr(u+2,2)}
                v_cvt_pk_bf16_f32 v{r}, v{u}, v{u+1}
                """)
            if pr == 0:
                k.e(f"buffer_store_dwordx4 {vr(pk[mt][0],4)}, v{vO}, s[{srdO}:{srdO+3}], {so} offen {fl}")
            else:
                k.e(f"buffer_store_dwordx2 {vr(pk[mt][1],2)}, v{vO2}, s[{srdO}:{srdO+3}], {so} offen offset:64 {fl}")
    k.place(Lno)
    k.stamp_c("p4_st")
    if OPT['diag']:
        ld_ = k.label("dg")
        names = ["p1_pre", "p1_b0", "p1_loop", "p1_e1", "p1_e2", "p1_e3", "p2_q", "p2_k", "p2_c", "p2_g", "p2_e", "p3_b0", "p3_loop", "p3_e", "p4_b0", "p4_loop"]
        set_srd(k, srd0, ptr['dbg'], 256)
        k.e(f"s_cmp_eq_u32 s2, {OPT['diag']}")
        k.e(f"s_cbranch_scc0 {ld_}")
        k.e(f"s_cmp_eq_u32 s{sWave}, 0")
        k.e(f"s_cbranch_scc0 {ld_}")
        k.e("s_mov_b64 exec, 1")
        k.e("v_mov_b32 v1, 0")
        for i, n in enumerate(names):
            k.e(f"s_sub_u32 s3, s{68 + k.stamps['c'][n]}, s68")
            k.e("v_mov_b32 v2, s3")
            k.e(f"buffer_store_dword v2, v1, s[{srd0}:{srd0+3}], 0 offen offset:{4*i}")
        k.e("s_mov_b64 exec, -1")
        k.place(ld_)
    k.place(Lcend)
    endwave()
    k.place(k.end)
    k.place(k.name + "_last")
    k.e("s_endpgm")
    secs, cur = {"head": []}, "head"
    for ln in k.lines:
        if ln.startswith("; @SEC "):
            cur = ln.split()[-1]; secs[cur] = []
        else:
            secs[cur].append(ln)
    order_ = list(OPT['secs'])
    if not OPT['hfirst']:
        order_ = ['head', 'head2', 'help', 'head3'] + order_[1:]
    k.lines = [ln for n in order_ for ln in secs[n]]
    return k


def write(k, path, header=""):
    out = header + f"; @launch grid=(256,1,1) block=(512,1,1) lds={LDS_TOTAL}\n"
    out += '.amdgcn_target "amdgcn-amd-amdhsa--gfx950"\n.text\n' + k.text() + '.section .rodata,"a"\n' + k.descriptor()
    open(path, "w").write(out)
    if k.prof3:
        json.dump(k.stamps, open(path + ".json", "w"))


def hdr():
    ref = open('sequential_preLN__linear_attn_block__dense_activation_relu__prompt.s.ref').read()
    return "".join(l + "\n" for l in ref.splitlines()[:10])


if __name__ == "__main__":
    write(gen(False), 'k8.s', hdr())
    write(gen(True), 'k8_prof.s', hdr())
    g3.DBG.update(nodma=True)
    write(gen(True), 'k8_nodma.s', hdr())
    g3.DBG.update(nodma=False, nomma=True)
    write(gen(True), 'k8_nomma.s', hdr())
```

```python
from asmlib import *
from g3 import *
import g3
import struct, json

S_, D_, F_ = 2048, 640, 1728
WS_PQ = 0x0
WS_H = 0x400000
WS_HH = 0x800000
WS_KV = 0x1000000
KV_BYTES = 65536
WS_FL = 0x1100000
FS = 4224
MS = 384
FL_MQ = 128 * FS
FL_M2 = FL_MQ + 256 * MS
FL_BYTES = FL_M2 + 256 * MS
FL_Q, FL_2, FL_3, FL_C, FL_G, FL_S, FL_R = 0, 16 * FS, 32 * FS, 48 * FS, 64 * FS, 96 * FS, 112 * FS
NREP = 16
WS_ST1 = 0x1020000
WS_CS1 = 0x1024000
WS_CS3 = 0x102C000
WS_W2P = 0x1200000
W2P_CT = 27 * 10240
WS_ST2 = 0x1040000
LOG2E = 1.4426950408889634
NAME = "sequential_preLN__linear_attn_block__dense_activation_relu__prompt_kernel"
OPT = dict(kvH=16, qH=11, p3H=16, p4H=24, touch1=True, touch1b=True, twarm=True, pretouch=True, e2pos=12, early3=False, psleep=8, w2a=6, w1at={'w2a': [0], 'c': [1], 'g': [2]}, tdist=1, hW=3, hX=10, jrot=8, e3n=0, pf3a=7, cw3=False, rcx=True, cw2=True, cprio=0, ptf1=False, pollfirst=True, onehop=True, vfirst=0, tlbw=False, omode=2, pqper=3, w2b=0, p3H0=8, iw=17, iwser=False, rot3=True, rot4=False, otouch=False, hfirst=True, diag=False, wf4=5, p4H0=24, pf1=2, m1at=3, rf3=70, hb=11, svwo=True, inj=10, p4SA=8, p4SW=9, secs=('head', 'ltail', 'svc', 'cons', 'cons2'), p4early=False, dupst=False, dupfl='', accinit=True, svw2=0, svT1=1, kvH0=4, hW0=32, svw1=0, p4rot=True, selft=False, p4wl=4, pqlead=16, catom=True, pqtouch=False, rel=1, rf=65, rel4=2, rf4=90, lean=True, lprio=0, outsc1=False, w2early=True, pqq=10, codewarm=True)
LDS_TOTAL = 163840


def f32bits(x):
    return struct.unpack("<I", struct.pack("<f", x))[0]


def bf16_round_f32(k, v):
    k.e(f"v_cvt_pk_bf16_f32 v{v}, v{v}, v{v}")
    k.e(f"v_lshlrev_b32 v{v}, 16, v{v}")


def allreduce4_multi(k, xs, ts):
    for sw in ("v_permlane16_swap_b32", "v_permlane32_swap_b32"):
        for x, t in zip(xs, ts):
            k.e(f"v_mov_b32 v{t}, v{x}")
        k.e("s_nop 1" if len(xs) < 2 else "s_nop 0")
        for x, t in zip(xs, ts):
            k.e(f"{sw} v{x}, v{t}")
        k.e("s_nop 1" if len(xs) < 2 else "s_nop 0")
        for x, t in zip(xs, ts):
            k.e(f"v_add_f32 v{x}, v{x}, v{t}")


def ln_finalize_multi(k, vms, vvs, sEps):
    for vm in vms:
        bf16_round_f32(k, vm)
    for vv in vvs:
        bf16_round_f32(k, vv)
        k.e(f"v_add_f32 v{vv}, s{sEps}, v{vv}")
        bf16_round_f32(k, vv)
    for vv in vvs:
        k.e(f"v_sqrt_f32 v{vv}, v{vv}")
    k.e("s_nop 0")
    for vv in vvs:
        bf16_round_f32(k, vv)
    for vv in vvs:
        k.e(f"v_rcp_f32 v{vv}, v{vv}")
    k.e("s_nop 0")


def dpp_rowsum(k, x):
    for r in (8, 4, 2, 1):
        k.e("s_nop 1")
        k.e(f"v_add_f32_dpp v{x}, v{x}, v{x} row_ror:{r} row_mask:0xf bank_mask:0xf")


def set_srd(k, d, p, nbytes, off=0, bias=False):
    if bias and OPT['lean']:
        off -= BIAS
        nbytes += BIAS
    if off < 0:
        k.e(f"s_sub_u32 s{d}, s{p}, {-off}")
        k.e(f"s_subb_u32 s{d+1}, s{p+1}, 0")
    elif off:
        k.e(f"s_add_u32 s{d}, s{p}, {off}")
        k.e(f"s_addc_u32 s{d+1}, s{p+1}, 0")
    else:
        k.e(f"s_mov_b64 s[{d}:{d+1}], s[{p}:{p+1}]")
    k.e(f"s_mov_b32 s{d+2}, {nbytes}")
    k.e(f"s_mov_b32 s{d+3}, 0x20000")


class Touch:
    def __init__(self, k, vl, ncl, ld, seg5=False, share=None):
        self.k, self.ld = k, ld
        self.R = 64 // ncl
        self.vo = k.v()
        self.sO = share.sO if share else k.s()
        self.sB = share.sB if share else k.s(2, 2)
        t0, t1 = k.v(), k.v()
        magic = (1024 + ncl - 1) // ncl
        for l in range(64):
            assert (l * magic) >> 10 == l // ncl
        k.e(f"""
        v_min_u32 v{t1}, {self.R * ncl - 1}, v{vl}
        v_mul_u32_u24 v{t0}, {magic}, v{t1}
        v_lshrrev_b32 v{t0}, 10, v{t0}
        v_mul_u32_u24 v{self.vo}, {ncl}, v{t0}
        v_sub_u32 v{t1}, v{t1}, v{self.vo}
        v_mul_u32_u24 v{t0}, {ld}, v{t0}
        v_lshl_add_u32 v{self.vo}, v{t1}, 7, v{t0}
        """)
        if seg5:
            k.e(f"""
            v_mul_u32_u24 v{t0}, 205, v{t1}
            v_lshrrev_b32 v{t0}, 10, v{t0}
            v_mul_u32_u24 v{t0}, 640, v{t0}
            v_add_u32 v{self.vo}, v{self.vo}, v{t0}
            """)

    def unit(self, p, sOff, sU, add, nrows, skip=False):
        k = self.k
        le = k.label("tsk")
        k.e(f"""
        s_add_u32 s{self.sO}, s{sU}, {add}
        s_mul_i32 s{self.sO}, s{self.sO}, {self.R}
        """)
        if skip:
            k.e(f"s_cmp_ge_u32 s{self.sO}, {nrows}")
            k.e(f"s_cbranch_scc1 {le}")
        k.e(f"""
        s_min_u32 s{self.sO}, s{self.sO}, {nrows - self.R}
        s_mul_i32 s{self.sO}, s{self.sO}, {self.ld}
        s_add_u32 s{self.sO}, s{self.sO}, s{sOff}
        s_add_u32 s{self.sB}, s{p}, s{self.sO}
        s_addc_u32 s{self.sB+1}, s{p+1}, 0
        global_load_dword v{k.vdummy}, v{self.vo}, s[{self.sB}:{self.sB+1}]
        """)
        k.place(le)


def phi_pair(k, a, vrs, vr2, sEps2, t):
    k.e(f"v_pk_mul_f32 {vr(t,2)}, {vr(a,2)}, {vr(vr2,2)}")
    k.e(f"v_pk_fma_f32 {vr(a,2)}, {vr(a,2)}, {vr(vrs,2)}, 1.0 op_sel_hi:[1,1,0]")
    k.e(f"v_exp_f32_e64 v{t}, v{t} clamp")
    k.e(f"v_exp_f32_e64 v{t+1}, v{t+1} clamp")
    k.e(f"v_max_f32 v{a}, v{a}, v{t}")
    k.e(f"v_max_f32 v{a+1}, v{a+1}, v{t+1}")
    k.e(f"v_pk_add_f32 {vr(a,2)}, {vr(a,2)}, s[{sEps2}:{sEps2+1}]")


def gen(prof=False):
    k = Kern(NAME)
    k.prof3 = prof
    k.slimit, k.vlimit = 68, 256
    ckv = Cfg(BM=128, NS=10, lda=2 * D_, ldw=6 * D_, wl='odd', SA=4, SW=4, baseA=0, baseW=65536, WM=2, WN=2,
              transposed=False, colsum=False, H=OPT['kvH'], nseg=2, segd=None, mixed=True, rel=OPT['rel'], read_frac=OPT['rf'], lean=True, H0=OPT['kvH0'])
    P1_ST = ckv.endW
    P1_AT = P1_ST + 2048
    c3 = Cfg(BM=128, NS=10, lda=2 * D_, ldw=2 * F_, wl='x8', SA=4, SW=10, baseA=81920, baseW=0, WM=4, WN=1,
             transposed=True, colsum=False, H=OPT['p3H'], rel=1, lean=True, H0=OPT['p3H0'],
             dyn=(lambda j: (j, 10, 1, 0)) if OPT['rot3'] else None)
    P3_SCR = c3.endA
    HB = OPT['hb']
    c4 = Cfg(BM=64, NS=27, lda=2 * F_, ldw=160, wl='lin', SA=10, SW=8, baseA=0, baseW=81920, WM=2, WN=2,
             transposed=True, colsum=False, H=OPT['p4H'], rel=2, read_frac=OPT['rf4'], lean=True, wlead=OPT['p4wl'],
             smap=lambda j: 2 * j if j < 14 else 2 * (j - 14) + 1, afterA=lambda j: HB if j >= 14 else -99,
             afterW=lambda m: 0 if m >= 6 else -99, vmwait=True, wfirst=OPT['wf4'], H0=OPT['p4H0'],
             dyn=(lambda j: (j, 14, 2, 0) if j < 14 else (j - 14, 13, 2, 1)) if OPT['rot4'] else None)
    assert c4.endW <= LDS_TOTAL and c4.endA <= c4.baseW and P3_SCR + 2048 <= LDS_TOTAL and P1_ST + 1024 <= LDS_TOTAL
    L_W2, L_KV, L_X2 = 40960, 0, 143360

    F0V = '0x00010001' if OPT['diag'] else 1
    k.end = k.label("end")
    if prof:
        for i in range(28):
            k.e(f"s_mov_b32 s{68+i}, 0")
        k.stamp_c("start")
        k.e("s_memrealtime s[96:97]")
        k.e("s_waitcnt lgkmcnt(0)")
        k.e("s_mov_b32 s94, s96")
    k.e("s_cmp_ge_u32 s2, 256")
    k.e(f"s_cbranch_scc1 {k.end}")
    p = k.s(16, 4)
    pws = k.s(2, 2)
    k.e(f"s_load_dwordx16 s[{p}:{p+15}], s[0:1], 0")
    k.e(f"s_load_dwordx2 s[{pws}:{pws+1}], s[0:1], 64")
    ptr = dict(x=p, wqkv=p + 2, wo=p + 4, w1=p + 8, w2=p + 10, out=p + 12, dbg=p + 14, ws=pws)
    sWave, sJ, sRQ, sCH, sJ1 = k.s(), k.s(), k.s(), k.s(), k.s()
    vl = k.v()
    k.vdummy = k.v()
    k.e(f"""
    v_lshrrev_b32 v{vl}, 6, v0
    s_lshr_b32 s{sJ}, s2, 3
    v_readfirstlane_b32 s{sWave}, v{vl}
    v_and_b32 v{vl}, 63, v0
    s_bfe_u32 s{sRQ}, s2, 0x20001
    s_and_b32 s{sCH}, s2, 1
    s_sub_u32 s{sJ1}, s{sJ}, {OPT['jrot']}
    s_and_b32 s{sJ1}, s{sJ1}, 31
    """)

    def endwave():
        k.dump3(pws, sWave)
        k.e("s_endpgm")

    def dec1():
        sG, sC, sTy = k.s(), k.s(), k.s()
        k.e(f"""
        s_and_b32 s{sG}, s{sJ1}, 3
        s_lshl_b32 s3, s{sRQ}, 2
        s_add_u32 s{sG}, s{sG}, s3
        s_lshr_b32 s{sTy}, s{sJ1}, 3
        s_sub_u32 s{sTy}, s{sTy}, 1
        s_max_i32 s{sTy}, s{sTy}, 0
        s_lshr_b32 s{sC}, s{sJ1}, 2
        s_lshl_b32 s3, s{sCH}, 2
        s_add_u32 s{sC}, s{sC}, s3
        s_lshl_b32 s3, s{sCH}, 1
        s_add_u32 s3, s3, 4
        s_cmp_eq_u32 s{sTy}, 1
        s_cselect_b32 s3, s3, 0
        s_sub_u32 s{sC}, s{sC}, s3
        s_and_b32 s3, s{sJ1}, 7
        s_cmp_eq_u32 s{sTy}, 2
        s_cselect_b32 s{sC}, s3, s{sC}
        """)
        return sG, sC, sTy

    def dec2():
        sRB, sCT = k.s(), k.s()
        k.e(f"""
        s_and_b32 s{sRB}, s{sJ}, 7
        s_lshl_b32 s3, s{sRQ}, 3
        s_add_u32 s{sRB}, s{sRB}, s3
        s_lshr_b32 s{sCT}, s{sJ}, 3
        s_lshl_b32 s3, s{sCH}, 2
        s_add_u32 s{sCT}, s{sCT}, s3
        """)
        return sRB, sCT

    def dec3():
        sRB, sCT = k.s(), k.s()
        k.e(f"""
        s_and_b32 s{sRB}, s{sJ}, 3
        s_lshl_b32 s3, s{sRQ}, 2
        s_add_u32 s{sRB}, s{sRB}, s3
        s_lshr_b32 s{sCT}, s{sJ}, 2
        s_mul_i32 s3, s{sCH}, 7
        s_add_u32 s{sCT}, s{sCT}, s3
        """)
        return sRB, sCT

    def dec4():
        sRB, sCT, sId = k.s(), k.s(), k.s()
        k.e(f"""
        s_mul_i32 s{sRB}, s{sJ}, 205
        s_lshr_b32 s{sRB}, s{sRB}, 10
        s_mul_i32 s3, s{sRB}, 5
        s_sub_u32 s{sCT}, s{sJ}, s3
        s_mul_i32 s3, s{sCH}, 5
        s_add_u32 s{sCT}, s{sCT}, s3
        s_cmp_ge_u32 s{sRB}, 6
        s_cselect_b32 s{sId}, 1, 0
        s_mul_i32 s{sRB}, s{sRB}, 96
        s_lshl_b32 s3, s{sRQ}, 9
        s_add_u32 s{sRB}, s{sRB}, s3
        """)
        return sRB, sCT, sId

    Lc, Lh, Lsvc, Lrole = k.label("cons"), k.label("help"), k.label("svc"), k.label("role")
    sSvc = k.s()
    k.e(f"s_mov_b32 s{sSvc}, 0")
    k.e(f"s_cmp_ge_u32 s{sJ1}, 24")
    k.e(f"s_cbranch_scc1 {Lsvc}")
    if OPT['hfirst']:
        k.e(f"s_cmp_lt_u32 s{sWave}, 6")
        k.e(f"s_cbranch_scc1 {Lrole}")
    else:
        k.e(f"s_cmp_ge_u32 s{sWave}, 6")
        k.e(f"s_cbranch_scc1 {Lh}")
        k.lines.append('; @SEC help')
        k.place(Lh)
    mH = k.mark()
    sRo, sA = k.s(), k.s()
    Lh1 = k.label("h1")
    k.e(f"s_cmp_eq_u32 s{sWave}, 7")
    k.e(f"s_cbranch_scc1 {Lh1}")
    k.e(f"s_mul_i32 s{sRo}, s{sCH}, 640")
    TW = Touch(k, vl, 15, 6 * D_, seg5=True)
    k.e("s_waitcnt lgkmcnt(0)")
    for it in range(OPT['hW']):
        TW.unit(ptr['wqkv'], sRo, sJ1, 24 * it, 640)
    k.e("s_endpgm")
    k.place(Lh1)
    if OPT['codewarm']:
        va_ = k.v(2)
        sPC = k.s(2, 2)
        k.e(f"""
        s_getpc_b64 s[{sPC}:{sPC+1}]
        {k.name}_pc:
        s_sub_u32 s{sPC}, s{sPC}, {k.name}_pc-{k.name}
        s_subb_u32 s{sPC+1}, s{sPC+1}, 0
        s_lshl_b32 s{sA}, s{sJ1}, 11
        v_lshlrev_b32 v{va_}, 7, v{vl}
        v_add_u32 v{va_}, s{sA}, v{va_}
        v_min_u32 v{va_}, {k.name}_last-{k.name}, v{va_}
        v_mov_b32 v{va_+1}, s{sPC+1}
        v_add_co_u32 v{va_}, vcc, s{sPC}, v{va_}
        s_nop 1
        v_addc_co_u32 v{va_+1}, vcc, 0, v{va_+1}, vcc
        s_mov_b64 exec, 0xffff
        global_load_dword v{k.vdummy}, {vr(va_,2)}, off
        s_mov_b64 exec, -1
        """)
    if OPT['hX'] == 10:
        k.e(f"s_and_b32 s{sRo}, s2, 7")
        k.e(f"s_xor_b32 s{sRo}, s{sRo}, 1")
        k.e(f"s_mul_i32 s{sRo}, s{sRo}, {256 * 2 * D_}")
        TX = Touch(k, vl, 16, 2048, share=TW)
        k.e("s_waitcnt lgkmcnt(0)")
        TX.unit(ptr['x'], sRo, sJ1, 0, 160)
        lx = k.label("hx")
        k.e(f"s_cmp_ge_u32 s{sJ1}, 16")
        k.e(f"s_cbranch_scc1 {lx}")
        TX.unit(ptr['x'], sRo, sJ1, 24, 160)
        k.place(lx)
    else:
        k.e(f"s_mul_i32 s{sRo}, s{sRQ}, {512 * 2 * D_}")
        TX = Touch(k, vl, OPT['hX'], 2 * D_, share=TW)
        k.e("s_waitcnt lgkmcnt(0)")
        for it in range(-(-500 // (24 * TX.R))):
            TX.unit(ptr['x'], sRo, sJ1, 24 * it, 512)
    k.e("s_endpgm")
    k.release(mH)
    if not OPT['hfirst']:
        k.lines.append('; @SEC head2')
    k.place(Lrole)
    k.e(f"s_cmp_lt_u32 s{sWave}, 4")
    k.e(f"s_cbranch_scc1 {Lc}")
    k.e(f"s_cmp_ge_u32 s{sWave}, 6")
    k.e(f"s_cbranch_scc1 {k.end}")
    mL = k.mark()
    sLW, sRow, sCol, sSpin, sP, sU, sEx = (k.s() for _ in range(7))
    srdA, srdW, srdF = k.s(4), k.s(4), k.s(4)
    vf, vfa, vone = k.v(4), k.v(), k.v()
    c3r = k.v(4)
    vfb = k.v()
    sAct = k.s()
    sRotL = sEx
    k.e(f"s_sub_u32 s{sLW}, s{sWave}, 4")
    if OPT['lprio']:
        k.e(f"s_setprio {OPT['lprio']}")

    def poll(srd, expect, first_issued=False, tag="", wide=False, drain1=True, extra=None, younger=0, both=False):
        lp, lo = k.label("poll"), k.label("pollok")
        ldi = (f"buffer_load_dwordx3 {vr(vf,3)}, v{vfa}, s[{srd}:{srd+3}], 0 offen sc1" if wide
               else f"buffer_load_dword v{vf}, v{vfa}, s[{srd}:{srd+3}], 0 offen sc1")
        if extra is not None:
            ldi += f"\nbuffer_load_dword v{vf+3}, v{extra}, s[{srd}:{srd+3}], 0 offen sc1"
        if not both:
            k.e(f"s_cmp_eq_u32 s{sLW}, 1")
            k.e(f"s_cbranch_scc1 {lo}")
        k.e(f"s_mov_b32 s{sSpin}, 0")
        if not first_issued:
            k.e(ldi)
        if younger:
            k.e(f"s_waitcnt vmcnt({younger})")
            k.e(f"s_branch {lp}_c")
        k.place(lp)
        k.e("s_waitcnt vmcnt(0)")
        k.place(lp + "_c")
        if wide:
            k.e(f"v_and_b32 v{vf}, v{vf}, v{vf+2}")
        if extra is not None:
            k.e(f"v_and_b32 v{vf}, v{vf}, v{vf+3}")
        k.e(f"""
        v_cmp_ne_u32 vcc, {expect}, v{vf}
        s_add_u32 s{sSpin}, s{sSpin}, 1
        s_nop 3
        s_cbranch_vccz {lo}
        s_cmp_gt_u32 s{sSpin}, 0x40000
        s_cbranch_scc1 {k.end}
        s_sleep {OPT['psleep']}
        {ldi}
        s_branch {lp}
        """)
        k.place(lo)
        if drain1:
            k.e("s_waitcnt vmcnt(0)")
        k.stamp_l(tag)

    def set_flag(sOff, base, mask="1"):
        l0 = k.label("fl")
        k.e(f"""
        s_cmp_eq_u32 s{sLW}, 1
        s_cbranch_scc0 {l0}
        v_mul_u32_u24 v{vfa}, {MS}, v{vl}
        v_add_u32 v{vfa}, {base}, v{vfa}
        s_mov_b32 exec_hi, 0
        s_mov_b32 exec_lo, {mask}
        buffer_store_dword v{vone}, v{vfa}, s[{srdF}:{srdF+3}], s{sOff} offen sc1
        s_mov_b64 exec, -1
        """)
        k.place(l0)

    def warm(pw, ldw, ncl, colbytes, clampc, nrows, rounds):
        if not OPT['twarm'] or not rounds:
            return 0
        mm_ = k.mark()
        sCo = k.s()
        k.e(f"s_mul_i32 s{sCo}, s{sCH}, {colbytes}")
        if clampc is not None:
            k.e(f"s_min_u32 s{sCo}, s{sCo}, {clampc}")
        T = Touch(k, vl, ncl, ldw)
        for it in rounds:
            T.unit(pw, sCo, sU, 64 * it, nrows)
        k.release(mm_)
        return len(rounds)

    def code_warm(n):
        mm_ = k.mark()
        va_ = k.v(2)
        sPC = k.s(2, 2)
        k.e(f"""
        s_getpc_b64 s[{sPC}:{sPC+1}]
        {k.name}_pc{n}:
        s_lshl_b32 s3, s{sU}, 10
        v_lshlrev_b32 v{va_}, 7, v{vl}
        v_add_u32 v{va_}, s3, v{va_}
        v_min_u32 v{va_}, {k.name}_last-{k.name}_pc{n}, v{va_}
        v_mov_b32 v{va_+1}, s{sPC+1}
        v_add_co_u32 v{va_}, vcc, s{sPC}, v{va_}
        s_nop 1
        v_addc_co_u32 v{va_+1}, vcc, 0, v{va_+1}, vcc
        s_mov_b64 exec, 0xff
        global_load_dword v{k.vdummy}, {vr(va_,2)}, off
        s_mov_b64 exec, -1
        """)
        k.release(mm_)

    def w1warm(where):
        r = OPT['w1at'].get(where, [])
        return warm(ptr['w1'], 2 * F_, 14, 7 * 256, 13 * 128, 640, r) if r else 0

    m = k.mark()
    sG, sC, sTy = dec1()
    srdD = k.s(4)
    k.e(f"""
    s_mul_i32 s{sRow}, s{sG}, {128 * 2 * D_}
    s_mul_i32 s{sCol}, s{sC}, 160
    s_add_u32 s3, s{sCol}, {2 * D_}
    s_lshl_b32 s{sCol}, s{sCol}, 1
    s_cmp_eq_u32 s{sTy}, 0
    s_cselect_b32 s{sCol}, s3, s{sCol}
    s_movk_i32 s{sEx}, 160
    s_cselect_b32 s{sEx}, {2 * D_}, s{sEx}
    """)
    Llq, Ltail = k.label("ldq"), k.label("ldtail")
    pat = [[k.v() for _ in range(5)] for _ in range(5)]
    q0, q1, q2, vcs = (k.v() for _ in range(4))
    pvi, pvb = [k.v() for _ in range(5)], [k.v() for _ in range(5)]
    csr = [k.v(4) for _ in range(4)]
    rp = [k.v() for _ in range(6)]
    rpd = [k.v(4) for _ in range(6)]
    sRp, sRc, sRv = k.s(), k.s(), k.s()
    vLtop = k.vtop

    def p2_pat(mI):
        def f():
            vi_, vb_ = pvi[mI], pvb[mI]
            k.e(f"""
            s_and_b32 s3, s{sWave}, 1
            s_lshl_b32 s3, s3, 3
            v_add_u32 v{q0}, {64*mI}, v{vl}
            v_mul_u32_u24 v{q1}, 205, v{q0}
            v_lshrrev_b32 v{q1}, 11, v{q1}
            v_mul_u32_u24 v{q2}, 10, v{q1}
            v_sub_u32 v{q2}, v{q0}, v{q2}
            v_lshlrev_b32 v{vb_}, 4, v{q2}
            v_and_b32 v{vi_}, 3, v{q1}
            v_bfe_u32 v{q0}, v{q1}, 3, 1
            v_lshl_or_b32 v{vi_}, v{q0}, 2, v{vi_}
            v_add_u32 v{vi_}, s3, v{vi_}
            v_bfe_u32 v{q0}, v{q1}, 2, 1
            v_lshrrev_b32 v{q2}, 4, v{q1}
            v_lshl_or_b32 v{q0}, v{q2}, 1, v{q0}
            v_mul_u32_u24 v{q0}, {5 * 1280}, v{q0}
            v_add_u32 v{vb_}, v{vb_}, v{q0}
            """)
            return 0
        return f

    pdone = set()

    def p2_lazy(u, mI):
        if (u, mI) in pdone:
            return
        pdone.add((u, mI))
        k.e(f"""
        v_add_u32 v{q0}, {16*u}, v{pvi[mI]}
        v_mul_u32_u24 v{q1}, 205, v{q0}
        v_lshrrev_b32 v{q1}, 10, v{q1}
        v_mad_u32_u24 v{q0}, v{q1}, 15, v{q0}
        v_mad_u32_u24 v{pat[u][mI]}, v{q0}, s{sEx}, v{pvb[mI]}
        """)

    def rp_pat():
        mm_ = k.mark()
        sN, sH, sL = k.s(), k.s(), k.s()
        k.e(f"""
        s_lshl_b32 s{sRv}, s{sJ1}, 3
        s_and_b32 s3, s2, 7
        s_add_u32 s{sRv}, s{sRv}, s3
        s_lshl_b32 s{sRv}, s{sRv}, 1
        s_add_u32 s{sRv}, s{sRv}, s{sLW}
        s_min_u32 s{sRp}, s{sRv}, 359
        s_mul_i32 s{sRc}, s{sRp}, 1457
        s_lshr_b32 s{sRc}, s{sRc}, 16
        s_mul_i32 s3, s{sRc}, 45
        s_sub_u32 s{sN}, s{sRp}, s3
        s_mul_i32 s{sN}, s{sN}, 6
        s_mul_i32 s{sRp}, s{sRp}, 6144
        s_movk_i32 s{sL}, {2 * D_}
        """)
        for i in range(6):
            k.e(f"""
            s_mul_i32 s{sH}, s{sN}, 13108
            s_lshr_b32 s{sH}, s{sH}, 16
            s_mul_i32 s3, s{sH}, 5
            s_sub_u32 s3, s{sN}, s3
            s_lshl_b32 s3, s3, 6
            v_add_u32 v{q0}, s3, v{vl}
            s_mul_i32 s{sH}, s{sH}, {32 * 2 * D_}
            s_mul_i32 s3, s{sRc}, 160
            s_add_u32 s{sH}, s{sH}, s3
            v_mul_u32_u24 v{q1}, 205, v{q0}
            v_lshrrev_b32 v{q1}, 11, v{q1}
            v_mul_u32_u24 v{q2}, 10, v{q1}
            v_sub_u32 v{q2}, v{q0}, v{q2}
            v_lshl_add_u32 v{rp[i]}, v{q2}, 4, s{sH}
            v_and_b32 v{q2}, 19, v{q1}
            v_and_b32 v{q0}, 4, v{q1}
            v_lshl_or_b32 v{q2}, v{q0}, 1, v{q2}
            v_and_b32 v{q0}, 8, v{q1}
            v_lshrrev_b32 v{q0}, 1, v{q0}
            v_or_b32 v{q2}, v{q2}, v{q0}
            v_mad_u32_u24 v{rp[i]}, v{q2}, s{sL}, v{rp[i]}
            s_add_u32 s{sN}, s{sN}, 1
            """)
        k.release(mm_)

    def p1_srds():
        k.e("s_waitcnt lgkmcnt(0)")
        set_srd(k, srdA, ptr['x'], S_ * D_ * 2, bias=True)
        set_srd(k, srdW, ptr['wqkv'], 3 * D_ * D_ * 2, bias=True)
        k.stamp_l("ld_first")

    def p1_late():
        set_srd(k, srdF, ptr['ws'], FL_BYTES, WS_FL)
        k.e(f"""
        v_mov_b32 v{vone}, 1
        s_lshl_b32 s{sU}, s{sJ}, 1
        s_add_u32 s{sU}, s{sU}, s{sLW}
        s_mul_i32 s{sP}, s{sG}, {16 * MS}
        s_add_u32 s{sP}, s{sP}, {FL_MQ}
        s_lshl_b32 s3, s{sC}, 2
        s_add_u32 s{sP}, s{sP}, s3
        """)
        k.e(f"""
        s_and_b32 s3, s{sC}, 3
        s_mul_i32 s3, s3, 320
        s_add_u32 s3, s3, 1280
        s_and_b32 s{sSpin}, s{sC}, 1
        s_mul_i32 s{sSpin}, s{sSpin}, 640
        s_cmp_eq_u32 s{sTy}, 0
        s_cselect_b32 s3, s3, s{sSpin}
        s_cselect_b32 s{sSpin}, 960, 0
        v_lshlrev_b32 v{vcs}, 4, v{vl}
        v_add_u32 v{vcs}, s3, v{vcs}
        v_cmp_lt_u32 vcc, 19, v{vl}
        v_mov_b32 v{q0}, s{sSpin}
        s_lshl_b32 s3, s{sCH}, 12
        v_cndmask_b32 v{q0}, 0, v{q0}, vcc
        s_add_u32 s3, s3, {WS_CS1 - WS_ST1}
        v_add3_u32 v{vcs}, v{vcs}, v{q0}, s3
        v_cmp_gt_u32 vcc, 40, v{vl}
        v_mov_b32 v{q0}, {OOB}
        s_nop 0
        v_cndmask_b32 v{vcs}, v{q0}, v{vcs}, vcc
        """)
        return 0

    def p1_last():
        set_srd(k, srdD, ptr['dbg'], 256)
        k.e(f"""
        v_lshlrev_b32 v{vfa}, 2, v{vl}
        v_or_b32 v{vfa}, {128 if OPT['diag'] else 0}, v{vfa}
        s_lshl_b32 s3, s{sLW}, 12
        buffer_load_dword v{vf}, v{vfa}, s[{srdD}:{srdD+3}], s3 offen sc1
        """)
        nwo = 0
        if not OPT['svwo']:
            mm_ = k.mark()
            sCo, sV = sRow, sCol
            k.e(f"s_mul_i32 s{sCo}, s{sCH}, 640")
            k.e(f"s_lshl_b32 s{sV}, s{sJ1}, 1")
            k.e(f"s_add_u32 s{sV}, s{sV}, s{sLW}")
            T = Touch(k, vl, 5, 2 * D_)
            T.unit(ptr['wo'], sCo, sV, 0, 640)
            k.release(mm_)
            nwo = 1
        set_srd(k, srdA, ptr['w2'], F_ * D_ * 2)
        for mI in range(6):
            k.e(f"buffer_load_dwordx4 {vr(rpd[mI],4)}, v{rp[mI]}, s[{srdA}:{srdA+3}], 0 offen")
        return 7 + nwo
    hooks = {}
    k.e(f"s_cmp_eq_u32 s{sSvc}, 1")
    k.e(f"s_cbranch_scc1 {Llq}")
    m2 = k.mark()
    ckv.segd = f"s{sEx}"
    ld = Loader(k, ckv, vl, sLW)

    def first():
        ld.bases(sRow, sCol)
        p1_srds()
        ld.early_a(srdA)
        if not OPT['hfirst']:
            lj_ = k.label("hj")
            k.e(f"s_branch {lj_}")
            k.lines.append('; @SEC head3')
            k.place(lj_)
    if OPT['vfirst'] == 0:
        ld.patterns(between=first)
    else:
        ld.patterns()
        if OPT['vfirst'] == 2:
            for i in range(5):
                p2_pat(i)()
            rp_pat()
        first()

    def f0_part():
        poll(srdD, F0V, first_issued=True, tag="f0ok", drain1=False, younger=6 if OPT['svwo'] else 7)
        set_srd(k, srdA, ptr['ws'], WS_CS3 - WS_ST1, WS_ST1)
        lsd = k.label("std")
        k.e(f"""
        s_cmp_eq_u32 s{sLW}, 1
        s_cbranch_scc1 {lsd}
        s_mov_b32 m0, {P1_ST}
        s_lshl_b32 s3, s{sG}, 10
        v_lshlrev_b32 v{vfa}, 4, v{vl}
        buffer_load_dwordx4 v{vfa}, s[{srdA}:{srdA+3}], s3 offen sc1 lds
        s_movk_i32 s3, 8192
        buffer_load_dwordx4 {vr(csr[0],4)}, v{vcs}, s[{srdA}:{srdA+3}], 0 offen sc1
        buffer_load_dwordx4 {vr(csr[1],4)}, v{vcs}, s[{srdA}:{srdA+3}], s3 offen sc1
        s_movk_i32 s3, 16384
        buffer_load_dwordx4 {vr(csr[2],4)}, v{vcs}, s[{srdA}:{srdA+3}], s3 offen sc1
        s_movk_i32 s3, 24576
        buffer_load_dwordx4 {vr(csr[3],4)}, v{vcs}, s[{srdA}:{srdA+3}], s3 offen sc1
        v_add_u32 v{vfa}, {P1_ST + 1024}, v{vfa}
        """)
        k.place(lsd)
        return 0

    def early_valu():
        p1_late()
        if OPT['vfirst'] < 2:
            for i in range(5):
                p2_pat(i)()
            rp_pat()
    ld.stream(srdA, srdW, last=p1_last, tag="p1", inject=(OPT['inj'], early_valu), hooks={9: f0_part})
    k.e(f"s_branch {Ltail}")
    k.release(m2)
    k.place(Llq)
    p1_late()
    k.e(f"s_movk_i32 s{sRv}, 1000")
    k.e(f"s_mov_b32 s{sRp}, 0")
    k.e(f"s_mov_b32 s{sRc}, 0")
    k.e(f"""
    s_lshl_b32 s{sP}, s{sCH}, 3
    s_add_u32 s{sP}, s{sP}, s{sC}
    s_mul_i32 s{sP}, s{sP}, {FS}
    s_lshl_b32 s3, s{sRQ}, 2
    s_add_u32 s{sP}, s{sP}, s3
    s_add_u32 s{sP}, s{sP}, {FL_S}
    """)
    set_srd(k, srdD, ptr['dbg'], 256)
    k.e(f"s_branch {Ltail}_s")
    k.lines.append('; @SEC ltail')
    k.place(Ltail)
    lsd = k.label("std")
    k.e(f"s_cmp_eq_u32 s{sLW}, 1")
    k.e(f"s_cbranch_scc1 {lsd}")
    k.e(f"""
    s_waitcnt vmcnt(2)
    v_pk_add_f32 {vr(csr[0],2)}, {vr(csr[0],2)}, {vr(csr[1],2)}
    v_pk_add_f32 {vr(csr[0]+2,2)}, {vr(csr[0]+2,2)}, {vr(csr[1]+2,2)}
    s_waitcnt vmcnt(0)
    v_pk_add_f32 {vr(csr[2],2)}, {vr(csr[2],2)}, {vr(csr[3],2)}
    v_pk_add_f32 {vr(csr[2]+2,2)}, {vr(csr[2]+2,2)}, {vr(csr[3]+2,2)}
    v_pk_add_f32 {vr(csr[0],2)}, {vr(csr[0],2)}, {vr(csr[2],2)}
    v_pk_add_f32 {vr(csr[0]+2,2)}, {vr(csr[0]+2,2)}, {vr(csr[2]+2,2)}
    ds_write_b128 v{vfa}, {vr(csr[0],4)}
    s_waitcnt lgkmcnt(0)
    """)
    k.place(lsd)
    k.place(Ltail + "_s")
    sRB2, sCT2 = dec2()
    set_srd(k, srdW, ptr['wo'], D_ * D_ * 2)
    sT, sKW, sLWd = k.s(), k.s(), k.s()
    k.e(f"""
    s_mul_i32 s{sKW}, s{sCT2}, 160
    s_movk_i32 s{sEx}, 1280
    s_mul_i32 s{sLWd}, s{sLW}, 5120
    """)
    nx = w1warm('stats')
    k.e(f"s_waitcnt vmcnt({nx})")
    k.e("s_barrier")
    lrp = k.label("rp")
    set_srd(k, srdA, ptr['ws'], 8 * W2P_CT, WS_W2P)
    k.e(f"""
    s_cmp_ge_u32 s{sRv}, 360
    s_cbranch_scc1 {lrp}
    v_lshlrev_b32 v{rp[0]}, 4, v{vl}
    s_add_u32 s3, s{sRp}, 4096
    """)
    for mI in range(6):
        k.e(f"buffer_store_dwordx4 {vr(rpd[mI],4)}, v{rp[0]}, s[{srdA}:{srdA+3}], {'s%d' % sRp if mI < 4 else 's3'} offen offset:{(mI % 4) * 1024} sc1")
    k.place(lrp)

    def w2_steps(lst):
        for s in lst:
            u = (s % 10) // 2
            k.e(f"s_add_u32 s{sT}, s{sKW}, {(s // 10) * 320 * 1280}")
            for mI in range(5):
                p2_lazy(u, mI)
                k.e(f"s_add_u32 m0, s{sLWd}, {L_W2 + s * 5120 + mI * 1024}")
                k.e("s_nop 0")
                if not g3.DBG['nodma']:
                    k.e(f"buffer_load_dwordx4 v{pat[u][mI]}, s[{srdW}:{srdW+3}], s{sT} offen lds")
    order = [0, 10, 2, 12, 4, 14, 6, 16, 8, 18]
    w2_steps(order[:OPT['w2a']])
    lsv = k.label("svp")
    k.e(f"s_cmp_eq_u32 s{sSvc}, 0")
    k.e(f"s_cbranch_scc1 {lsv}")
    k.e(f"v_lshlrev_b32 v{vfa}, 2, v{vl}")
    k.e(f"v_or_b32 v{vfa}, {128 if OPT['diag'] else 0}, v{vfa}")
    poll(srdD, F0V, tag="f0ok", drain1=False)
    k.place(lsv)
    w1warm('w2a')
    k.stamp_l("w2iss")
    k.e("s_barrier")
    w2_steps(order[OPT['w2a']:OPT['w2b']])
    w1warm('w2b')
    if OPT['cw2']:
        code_warm(2)
    k.e("s_barrier")
    lkv, lfd = k.label("f1kv"), k.label("f1d")
    k.e(f"s_cmp_eq_u32 s{sTy}, 0")
    k.e(f"s_cbranch_scc1 {lkv}")
    k.e(f"s_cmp_eq_u32 s{sTy}, 1")
    k.e(f"s_cselect_b32 s{sSpin}, 0xffff, 1")
    set_flag(sP, 0, mask=f"s{sSpin}")
    k.e(f"s_branch {lfd}")
    k.place(lkv)
    if not OPT['onehop']:
        k.e(f"""
        s_cmp_eq_u32 s{sLW}, 1
        s_cbranch_scc0 {lfd}
        s_mul_i32 s3, s{sC}, {FS}
        v_mov_b32 v{vfa}, {FL_C}
        v_mov_b32 v{vf}, 1
        s_mov_b64 exec, 1
        buffer_atomic_add v{vf}, v{vfa}, s[{srdF}:{srdF+3}], s3 offen sc0 sc1
        s_waitcnt vmcnt(0)
        v_readfirstlane_b32 s{sSpin}, v{vf}
        s_mov_b64 exec, -1
        s_cmp_eq_u32 s{sSpin}, 15
        s_cbranch_scc0 {lfd}
        v_mul_u32_u24 v{vfa}, {FS}, v{vl}
        v_add_u32 v{vfa}, {FL_G}, v{vfa}
        s_lshl_b32 s3, s{sC}, 2
        s_mov_b64 exec, {hex((1 << NREP) - 1)}
        buffer_store_dword v{vone}, v{vfa}, s[{srdF}:{srdF+3}], s3 offen sc1
        s_mov_b64 exec, -1
        """)
    else:
        k.e(f"""
        s_cmp_eq_u32 s{sLW}, 1
        s_cbranch_scc0 {lfd}
        v_mul_u32_u24 v{vfa}, {2 * FS}, v{vl}
        v_add_u32 v{vfa}, {FL_G}, v{vfa}
        s_and_b32 s3, s{sC}, 1
        s_mul_i32 s3, s3, {FS}
        s_mov_b64 exec, {hex((1 << NREP) - 1)}
        buffer_atomic_add v{vone}, v{vfa}, s[{srdF}:{srdF+3}], s3 offen sc1
        s_mov_b64 exec, -1
        """)
    k.place(lfd)
    k.stamp_l("f1set")
    if OPT['ptf1']:
        set_srd(k, srdA, ptr['ws'], S_ * D_ * 2, WS_H)
        k.e(f"""
        s_mul_i32 s{sRow}, s{sRB2}, {64 * 2 * D_}
        s_add_u32 s{sRow}, s{sRow}, s{sKW}
        s_mul_i32 s3, s{sLW}, 156
        s_add_u32 s{sRow}, s{sRow}, s3
        v_mul_u32_u24 v{vfa}, {2 * D_}, v{vl}
        buffer_load_dword v{k.vdummy}, v{vfa}, s[{srdA}:{srdA+3}], s{sRow} offen sc1
        """)
    w1warm('f1')
    w2_steps(order[max(OPT['w2a'], OPT['w2b']):])
    k.e(f"""
    s_lshl_b32 s3, s{sRB2}, 3
    s_add_u32 s3, s3, s{sCT2}
    s_mul_i32 s3, s3, {MS}
    s_add_u32 s3, s3, {FL_MQ}
    v_and_b32 v{q0}, 7, v{vl}
    v_lshlrev_b32 v{q0}, 2, v{q0}
    v_and_b32 v{vfa}, 12, v{q0}
    v_add_u32 v{vfa}, s3, v{vfa}
    """)
    poll(srdF, 1, tag="f1q", drain1=False)
    k.e(f"""
    s_and_b32 s3, s2, {NREP - 1}
    s_mul_i32 s3, s3, {FS * (2 if OPT['onehop'] else 1)}
    s_add_u32 s3, s3, {FL_G}
    v_add_u32 v{vfa}, s3, v{q0}
    """)
    if OPT['onehop']:
        k.e(f"v_and_b32 v{vfa}, 1, v{vl}")
        k.e(f"v_mul_u32_u24 v{vfa}, {FS}, v{vfa}")
        k.e(f"v_add_u32 v{vfa}, s3, v{vfa}")
    k.e(f"s_cmp_eq_u32 s{sLW}, 1")
    lq1 = k.label("q1")
    k.e(f"s_cbranch_scc1 {lq1}")
    k.e(f"buffer_load_dword v{vf}, v{vfa}, s[{srdF}:{srdF+3}], 0 offen sc1")
    k.place(lq1)
    k.e("s_barrier")
    poll(srdF, 64 if OPT['onehop'] else 1, tag="f1k", drain1=False, first_issued=True)
    k.e("s_barrier")
    k.e(f"""
    s_lshr_b32 s{sP}, s{sRB2}, 1
    s_mul_i32 s{sP}, s{sP}, {16 * MS}
    s_and_b32 s3, s{sRB2}, 1
    s_lshl_b32 s3, s3, 5
    s_add_u32 s{sP}, s{sP}, s3
    s_lshl_b32 s3, s{sCT2}, 2
    s_add_u32 s{sP}, s{sP}, s3
    s_waitcnt vmcnt(0)
    s_barrier
    s_barrier
    """)
    lrp = k.label("rp")
    k.e(f"""
    s_cmp_ge_u32 s{sRv}, 360
    s_cbranch_scc1 {lrp}
    s_mul_i32 s3, s{sRc}, {FS}
    v_mov_b32 v{rp[0]}, {FL_R}
    s_waitcnt vmcnt(0)
    s_mov_b64 exec, 1
    buffer_atomic_add v{vone}, v{rp[0]}, s[{srdF}:{srdF+3}], s3 offen sc1
    s_mov_b64 exec, -1
    """)
    k.place(lrp)
    if not OPT['w2early']:
        w2_steps(order[max(OPT['w2a'], OPT['w2b']):])
    set_srd(k, srdA, ptr['ws'], S_ * D_ * 2, WS_H, bias=True)
    k.e(f"""
    s_mul_i32 s{sRow}, s{sRB2}, {64 * 2 * D_}
    s_add_u32 s{sRow}, s{sRow}, {BIAS if OPT['lean'] else 0}
    s_add_u32 s{sRow}, s{sRow}, s{sKW}
    s_mul_i32 s3, s{sLW}, 156
    s_add_u32 s{sRow}, s{sRow}, s3
    v_mul_u32_u24 v{vfa}, {2 * D_}, v{vl}
    """)
    k.release(m)
    mS = k.mark()
    Lskip3 = k.label("ldskip3")
    sRB3, sCT3 = dec3()
    ld = Loader(k, c3, vl, sLW)
    nx = 0
    if OPT['pretouch'] and not OPT['ptf1']:
        k.e(f"buffer_load_dword v{k.vdummy}, v{vfa}, s[{srdA}:{srdA+3}], s{sRow} offen sc1")
        nx += 1
    nx += w1warm('c')
    k.e(f"""
    s_lshl_b32 s3, s{sCH}, 3
    s_lshr_b32 s{sSpin}, s{sJ}, 2
    s_add_u32 s3, s3, s{sSpin}
    s_mul_i32 s3, s3, {FS}
    s_add_u32 s3, s3, {FL_S}
    v_and_b32 v{vfa}, 3, v{vl}
    v_lshlrev_b32 v{vfa}, 2, v{vfa}
    v_add_u32 v{vfa}, s3, v{vfa}
    """)
    poll(srdF, 1, tag="fsok", drain1=False)
    set_srd(k, srdW, ptr['ws'], 32768, WS_CS3)
    csr = [k.v(4) for _ in range(4)]
    k.e(f"""
    s_lshl_b32 s3, s{sCH}, 12
    s_lshr_b32 s{sSpin}, s{sJ}, 2
    s_lshl_b32 s{sSpin}, s{sSpin}, 9
    s_add_u32 s3, s3, s{sSpin}
    s_lshl_b32 s{sSpin}, s{sLW}, 20
    s_add_u32 s3, s3, s{sSpin}
    v_and_b32 v{vfa}, 31, v{vl}
    v_lshlrev_b32 v{vfa}, 4, v{vfa}
    """)
    for q_ in range(4):
        k.e(f"buffer_load_dwordx4 {vr(csr[q_],4)}, v{vfa}, s[{srdW}:{srdW+3}], s3 offen sc1")
        k.e("s_add_u32 s3, s3, 8192")
    ng = w1warm('g')
    if OPT['cw3']:
        code_warm(3)
        ng += 1
    ld.patterns()
    k.e(f"s_mul_i32 s{sRow}, s{sRB3}, {128 * 2 * D_}")
    k.e(f"s_lshl_b32 s{sCol}, s{sCT3}, 8")
    ld.bases(sRow, sCol)
    set_srd(k, srdW, ptr['w1'], F_ * D_ * 2, bias=True)
    ld.sRot = sRotL
    k.e(f"s_lshr_b32 s{sRotL}, s{sJ}, 2")
    k.e(f"s_mul_i32 s{sRotL}, s{sRotL}, 23")
    k.e(f"s_lshr_b32 s{sRotL}, s{sRotL}, 4")
    k.e(f"s_min_u32 s{sRotL}, s{sRotL}, 9")
    k.e("s_barrier")
    for m_ in range(OPT['e3n']):
        for op in ld._W(m_, srdW):
            ld.emit_op(op); ng += 1
    k.e(f"s_waitcnt vmcnt({ng})")
    for j in range(2):
        k.e(f"v_pk_add_f32 {vr(csr[0]+2*j,2)}, {vr(csr[0]+2*j,2)}, {vr(csr[1]+2*j,2)}")
        k.e(f"v_pk_add_f32 {vr(csr[2]+2*j,2)}, {vr(csr[2]+2*j,2)}, {vr(csr[3]+2*j,2)}")
        k.e(f"v_pk_add_f32 {vr(c3r+2*j,2)}, {vr(csr[0]+2*j,2)}, {vr(csr[2]+2*j,2)}")
    def r_check():
        lp, lo = k.label("rchk"), k.label("rok")
        k.e(f"""
        s_mul_i32 s3, s{sCH}, {4 * FS}
        s_add_u32 s3, s3, {FL_R}
        v_and_b32 v{vfa}, 3, v{vl}
        v_mul_u32_u24 v{vfa}, {FS}, v{vfa}
        v_add_u32 v{vfa}, s3, v{vfa}
        s_mov_b32 s{sSpin}, 0
        """)
        k.place(lp)
        k.e(f"""
        buffer_load_dword v{vf}, v{vfa}, s[{srdF}:{srdF+3}], 0 offen sc1
        s_waitcnt vmcnt(0)
        v_cmp_ne_u32 vcc, 45, v{vf}
        s_add_u32 s{sSpin}, s{sSpin}, 1
        s_nop 3
        s_cbranch_vccz {lo}
        s_cmp_gt_u32 s{sSpin}, 0x40000
        s_cbranch_scc1 {k.end}
        s_sleep 16
        s_branch {lp}
        """)
        k.place(lo)

    if OPT['rcx']:
        lrc = k.label("rc")
        k.e(f"s_cmp_eq_u32 s{sLW}, 0")
        k.e(f"s_cbranch_scc1 {lrc}")
        r_check()
        k.place(lrc)
    k.e("s_barrier")
    set_flag(sP, FL_M2, mask='0x3fff')
    k.stamp_l("f2set")
    Lidle3 = k.label("ldidle3")
    k.e(f"s_cmp_ge_u32 s{sJ}, 28")
    k.e(f"s_cbranch_scc1 {Lidle3}")
    vl2 = k.v()
    k.e(f"""
    v_and_b32 v{vl2}, 31, v{vl}
    v_lshlrev_b32 v{vl2}, 4, v{vl2}
    s_lshl_b32 s3, s{sLW}, 9
    s_add_u32 s3, s3, {P3_SCR + 1024}
    v_add_u32 v{vl2}, s3, v{vl2}
    ds_write_b128 v{vl2}, {vr(c3r,4)}
    s_waitcnt lgkmcnt(0)
    """)
    k.e(f"""
    s_lshl_b32 s3, s{sRB3}, 4
    s_add_u32 s3, s3, s{sCT3}
    s_mul_i32 s3, s3, {MS}
    s_add_u32 s3, s3, {FL_M2}
    v_and_b32 v{vfa}, 15, v{vl}
    v_lshlrev_b32 v{vfa}, 2, v{vfa}
    v_add_u32 v{vfa}, s3, v{vfa}
    """)
    for m_ in range(OPT['e3n'], OPT['pf3a']):
        for op in ld._W(m_, srdW):
            ld.emit_op(op)
    k.e(f"s_lshl_b32 s3, s{sLW}, 24")
    k.e(f"buffer_load_dword v{vf}, v{vfa}, s[{srdF}:{srdF+3}], s3 offen sc1")
    for m_ in range(OPT['pf3a'], 10):
        for op in ld._W(m_, srdW):
            ld.emit_op(op)
    ld.pw = 10
    poll(srdF, 1, tag="f2ok", drain1=False, first_issued=True, younger=4 * (10 - OPT['pf3a']))
    if not OPT['rcx']:
        lrc = k.label("rc")
        k.e(f"s_cmp_eq_u32 s{sLW}, 0")
        k.e(f"s_cbranch_scc1 {lrc}")
        r_check()
        k.place(lrc)
    k.e("s_barrier")

    def idle_warm():
        mm_ = k.mark()
        sCo = k.s()
        k.e(f"""
        s_lshl_b32 s{sCo}, s{sCH}, 2
        s_add_u32 s{sCo}, s{sCo}, s{sJ}
        s_sub_u32 s{sCo}, s{sCo}, 28
        s_mul_i32 s{sCo}, s{sCo}, {W2P_CT}
        s_add_u32 s{sCo}, s{sCo}, {WS_W2P}
        """)
        T = Touch(k, vl, 16, 2048)
        for it in range(OPT['iw']):
            T.unit(ptr['ws'], sCo, sLW, 2 * it, 135)
            if OPT['iwser']:
                k.e('s_waitcnt vmcnt(0)')
        k.release(mm_)

    def w1p(lst):
        def f():
            n = 0
            assert ld.issued >= 40 + 80
            for m in lst:
                for op in ld._W(m, srdW, coff=128):
                    ld.emit_op(op); n += 1
            return n
        return f
    ld.stream(srdA, srdW, aflags="sc1", tag="p3", hooks={7: w1p([0, 1, 2]), 8: w1p([3, 4, 5]), 9: w1p([6, 7])})
    w1p([8])()
    k.e("s_barrier")
    w1p([9])()
    k.e(f"""
    s_mul_i32 s{sP}, s{sRB3}, {16 * MS}
    s_lshl_b32 s3, s{sCT3}, 2
    s_add_u32 s{sP}, s{sP}, s3
    s_add_u32 s{sP}, s{sP}, {FL_MQ + 16}
    s_mov_b32 s{sAct}, 1
    s_waitcnt vmcnt(20)
    s_barrier
    s_branch {Lskip3}
    """)
    k.place(Lidle3)
    k.e(f"s_mov_b32 s{sAct}, 0")
    k.release(mS)
    if not OPT['rcx']:
        r_check()
    idle_warm()
    k.place(Lskip3)
    Lend, Lno3, Lno4 = k.label("ldend"), k.label("ldno3"), k.label("ldno4")
    sRB4, sCT4 = dec2()
    ld = Loader(k, c4, vl, sLW)
    ld.patterns()
    k.e(f"s_mul_i32 s{sRow}, s{sRB4}, {64 * 2 * F_}")
    k.e(f"s_mul_i32 s{sCol}, s{sCT4}, {W2P_CT}")
    ld.bases(sRow, sCol)
    set_srd(k, srdA, ptr['ws'], S_ * F_ * 2, WS_HH, bias=True)
    set_srd(k, srdW, ptr['ws'], 8 * W2P_CT, WS_W2P)
    ld.sRot = sRotL
    k.e(f"s_lshr_b32 s{sRotL}, s{sJ}, 3")
    k.e(f"s_mul_i32 s{sRotL}, s{sRotL}, 7")
    k.e(f"s_lshr_b32 s{sRotL}, s{sRotL}, 1")
    ld.prefill_w(srdW, OPT['pf1'])
    k.e(f"""
    s_cmp_eq_u32 s{sAct}, 0
    s_cbranch_scc1 {Lno3}
    s_waitcnt vmcnt({5 * OPT['pf1']})
    s_barrier
    """)
    set_flag(sP, 0, mask='0xffff')
    k.stamp_l("f3set")
    k.place(Lno3)
    for m_ in range(OPT['pf1'], 6):
        for op in ld._W(m_, srdW):
            ld.emit_op(op)
    ld.pw = 6
    k.e(f"""
    s_cmp_eq_u32 s{sAct}, 0
    s_cbranch_scc1 {Lno4}
    s_barrier
    """)
    k.place(Lno4)
    k.e(f"""
    s_lshl_b32 s3, s{sRB4}, 3
    s_add_u32 s3, s3, s{sCT4}
    s_mul_i32 s3, s3, {MS}
    s_add_u32 s3, s3, {FL_MQ + 16}
    v_and_b32 v{vfa}, 15, v{vl}
    v_min_u32 v{vfb}, 12, v{vfa}
    v_min_u32 v{vfa}, 13, v{vfa}
    v_lshlrev_b32 v{vfa}, 2, v{vfa}
    v_add_u32 v{vfa}, s3, v{vfa}
    v_lshlrev_b32 v{vfb}, 2, v{vfb}
    v_add_u32 v{vfb}, s3, v{vfb}
    v_add_u32 v{vfb}, 56, v{vfb}
    """)
    poll(srdF, 1, tag="f3ok", drain1=False, both=True)
    mk = {}

    def f3b_set():
        k.e(f"""
        s_and_b32 s3, s{sAct}, s{sLW}
        s_cmp_eq_u32 s3, 1
        s_cselect_b32 s3, 56, {OOB}
        v_mul_u32_u24 v{vfa}, {MS}, v{vl}
        v_add_u32 v{vfa}, s3, v{vfa}
        s_mov_b64 exec, 0xffff
        buffer_store_dword v{vone}, v{vfa}, s[{srdF}:{srdF+3}], s{sP} offen sc1
        s_mov_b64 exec, -1
        """)
        return 1

    def f3b_issue():
        k.e(f"buffer_load_dword v{vf}, v{vfb}, s[{srdF}:{srdF+3}], 0 offen sc1")
        mk['n'] = ld.issued
        return 1

    def f3b_check():
        k.e(f"v_mov_b32 v{vfa}, v{vfb}")
        poll(srdF, 1, tag="f3bok", drain1=False, both=True, first_issued=True, younger=max(1, ld.issued - mk['n']) if ld.issued > mk['n'] else 0)
        return 0

    def out_touch():
        set_srd(k, srdF, ptr['out'], S_ * D_ * 2)
        k.e(f"""
        s_mul_i32 s3, s{sRB4}, {64 * 2 * D_}
        s_mul_i32 s{sSpin}, s{sCT4}, 160
        s_add_u32 s3, s3, s{sSpin}
        s_mul_i32 s{sSpin}, s{sLW}, 156
        s_add_u32 s3, s3, s{sSpin}
        v_mul_u32_u24 v{vfa}, {2 * D_}, v{vl}
        buffer_load_dword v{k.vdummy}, v{vfa}, s[{srdF}:{srdF+3}], s3 offen
        """)
        return 1
    ld.stream(srdA, srdW, aflags="sc1", tag="p4", hooks={1: f3b_set, HB - 2: f3b_issue, HB: f3b_check},
              last=out_touch if OPT['otouch'] else None)
    k.place(Lend)
    endwave()
    k.release(mL)

    k.lines.append('; @SEC svc')
    k.place(Lsvc)
    mV = k.mark()
    k.vtop = vLtop
    sS, sA, sB, sX8, sPi = (k.s() for _ in range(5))
    srdX, srdS, srdK, srdW_ = k.s(4), k.s(4), k.s(4), k.s(4)
    xr = [k.v(4) for _ in range(5)]
    ux = [k.v(2) for _ in range(20)]
    t0, t1, vs_, vq_ = k.v(), k.v(), k.v(2), k.v(2)
    z4 = k.v(4)
    k.e(f"""
    s_and_b32 s{sS}, s{sJ1}, 7
    s_and_b32 s{sX8}, s2, 7
    s_lshl_b32 s{sPi}, s{sX8}, 3
    s_add_u32 s{sPi}, s{sPi}, s{sS}
    s_lshl_b32 s{sA}, s{sPi}, 3
    s_add_u32 s{sA}, s{sA}, s{sWave}
    s_lshl_b32 s{sA}, s{sA}, 2
    v_lshrrev_b32 v{t0}, 4, v{vl}
    v_add_u32 v{t0}, s{sA}, v{t0}
    v_mul_u32_u24 v{t1}, {2*D_}, v{t0}
    v_and_b32 v{vs_}, 15, v{vl}
    v_lshl_add_u32 v{t1}, v{vs_}, 4, v{t1}
    s_waitcnt lgkmcnt(0)
    """)
    set_srd(k, srdX, ptr['x'], S_ * D_ * 2)
    for i in range(5):
        k.e(f"buffer_load_dwordx4 {vr(xr[i],4)}, v{t1}, s[{srdX}:{srdX+3}], 0 offen offset:{i*256}")
    set_srd(k, srdS, ptr['ws'], WS_FL - WS_ST1 + FL_BYTES, WS_ST1)
    set_srd(k, srdK, ptr['ws'], KV_BYTES, WS_KV)
    set_srd(k, srdW_, ptr['wqkv'], 3 * D_ * D_ * 2)
    k.e(f"""
    v_mov_b64 {vr(z4,2)}, 0
    v_mov_b64 {vr(z4+2,2)}, 0
    s_lshl_b32 s{sB}, s{sA}, 5
    v_lshlrev_b32 v{t1}, 4, v{vl}
    s_mov_b64 exec, 0xff
    buffer_store_dwordx4 {vr(z4,4)}, v{t1}, s[{srdK}:{srdK+3}], s{sB} offen sc1
    s_mul_i32 s{sB}, s{sA}, {MS // 4}
    s_add_u32 s{sB}, s{sB}, {WS_FL - WS_ST1 + FL_MQ}
    buffer_store_dwordx4 {vr(z4,4)}, v{t1}, s[{srdS}:{srdS+3}], s{sB} offen sc1
    s_mov_b64 exec, 3
    s_lshr_b32 s{sB}, s{sA}, 4
    s_mul_i32 s{sB}, s{sB}, {FS}
    s_and_b32 s3, s{sWave}, 3
    s_lshl_b32 s3, s3, 5
    s_add_u32 s{sB}, s{sB}, s3
    s_add_u32 s{sB}, s{sB}, {WS_FL - WS_ST1}
    buffer_store_dwordx4 {vr(z4,4)}, v{t1}, s[{srdS}:{srdS+3}], s{sB} offen sc1
    s_mov_b64 exec, -1
    v_mov_b64 {vr(vs_,2)}, 0
    v_mov_b64 {vr(vq_,2)}, 0
    """)
    NB = 10
    wb = [k.v(4) for _ in range(NB)]
    ca = [[k.v(2) for _ in range(4)] for _ in range(2)]
    cu = k.v(2)
    vw, vw1, vlw, vlr, t2 = (k.v() for _ in range(5))
    sO, sO1 = k.s(), k.s()
    srdW1 = k.s(4)
    set_srd(k, srdW1, ptr['w1'], F_ * D_ * 2)
    k.e(f"""
    s_lshl_b32 s3, s{sS}, 1
    v_bfe_u32 v{t2}, v{vl}, 3, 1
    v_add_u32 v{t2}, s3, v{t2}
    v_min_u32 v{t2}, 14, v{t2}
    v_mul_u32_u24 v{vw}, 205, v{t2}
    v_lshrrev_b32 v{vw}, 10, v{vw}
    v_mul_u32_u24 v{vw}, 640, v{vw}
    v_lshl_add_u32 v{vw}, v{t2}, 7, v{vw}
    v_and_b32 v{t2}, 7, v{vl}
    v_lshl_add_u32 v{vw}, v{t2}, 4, v{vw}
    v_lshrrev_b32 v{t2}, 4, v{vl}
    v_mul_u32_u24 v{vw1}, {6 * D_}, v{t2}
    v_add_u32 v{vw}, v{vw}, v{vw1}
    s_mul_i32 s{sB}, s{sRQ}, 40
    s_add_u32 s{sB}, s{sB}, s{sWave}
    s_mul_i32 s{sO}, s{sB}, {4 * 6 * D_}
    s_mul_i32 s3, s{sCH}, 640
    s_add_u32 s{sO}, s{sO}, s3
    """)
    for it in range(5):
        k.e(f"buffer_load_dwordx4 {vr(wb[it],4)}, v{vw}, s[{srdW_}:{srdW_+3}], s{sO} offen")
        k.e(f"s_add_u32 s{sO}, s{sO}, {32 * 6 * D_}")
    k.e(f"""
    v_mul_u32_u24 v{vw1}, {2 * F_}, v{t2}
    v_and_b32 v{t2}, 15, v{vl}
    v_lshl_add_u32 v{vw1}, v{t2}, 4, v{vw1}
    s_mul_i32 s{sO1}, s{sB}, {4 * 2 * F_}
    s_min_u32 s3, s{sS}, 6
    s_mul_i32 s{sB}, s{sCH}, 7
    s_add_u32 s3, s3, s{sB}
    s_lshl_b32 s3, s3, 8
    s_add_u32 s{sO1}, s{sO1}, s3
    """)
    k.e(f"""
    v_lshlrev_b32 v{vlw}, 5, v{t2}
    s_lshl_b32 s3, s{sWave}, 9
    v_add_u32 v{vlw}, s3, v{vlw}
    v_lshlrev_b32 v{vlr}, 4, v{vl}
    """)
    sUv, sCo = k.s(), k.s()
    k.e(f"""
    s_lshl_b32 s{sUv}, s{sWave}, 3
    s_add_u32 s{sUv}, s{sUv}, s{sS}
    s_mul_i32 s{sCo}, s{sCH}, 640
    """)
    TWs = Touch(k, vl, 15, 6 * D_, seg5=True)
    u0 = 24 * OPT['hW']
    nX = 0
    if OPT['hX'] != 10:
        sRo2 = k.s()
        k.e(f"""
        s_xor_b32 s{sRo2}, s{sX8}, 1
        s_mul_i32 s{sRo2}, s{sRo2}, {256 * 2 * D_}
        """)
        TXs = Touch(k, vl, 16, 2048, share=TWs)
        TXs.unit(ptr['x'], sRo2, sUv, 0, 160)
        nX = 1
    if OPT['tlbw']:
        lt_ = k.label("tlb")
        sTp = TWs.sB
        k.e(f"s_cmp_lg_u32 s{sWave}, 0")
        k.e(f"s_cbranch_scc1 {lt_}")
        k.e(f"s_mov_b64 s[{srdK}:{srdK+1}], s[{ptr['ws']}:{ptr['ws']+1}]")
        k.e(f"s_mov_b32 s{srdK+2}, {0x1500000}")
        k.e(f"s_lshl_b32 s3, s{sS}, 22")
        for i, (nm, nb) in enumerate((('out', S_ * D_ * 2), ('w2', F_ * D_ * 2))):
            k.e(f"s_cmp_eq_u32 s{sS}, {6 + i}")
            k.e(f"s_cselect_b64 s[{srdK}:{srdK+1}], s[{ptr[nm]}:{ptr[nm]+1}], s[{srdK}:{srdK+1}]")
            k.e(f"s_cselect_b32 s{srdK+2}, {nb}, s{srdK+2}")
            k.e(f"s_cselect_b32 s3, 0, s3")
        k.e(f"v_lshlrev_b32 v{cu}, 16, v{vl}")
        k.e(f"buffer_load_dword v{k.vdummy}, v{cu}, s[{srdK}:{srdK+3}], s3 offen")
        k.place(lt_)
    nT = OPT['svT1']
    for it in range(nT):
        TWs.unit(ptr['wqkv'], sCo, sUv, u0 + 64 * it, 640)
    NB = 5 + nX + nT
    for i in range(5):
        p2_pat(i)()
    for i in range(5):
        k.e(f"s_waitcnt vmcnt({7 - i + NB})")
        for d in range(4):
            k.e(f"v_lshlrev_b32 v{ux[4*i+d]}, 16, v{xr[i]+d}")
            k.e(f"v_and_b32 v{ux[4*i+d]+1}, 0xffff0000, v{xr[i]+d}")
            k.e(f"v_pk_add_f32 {vr(vs_,2)}, {vr(vs_,2)}, {vr(ux[4*i+d],2)}")
    k.e(f"v_add_f32 v{vs_}, v{vs_}, v{vs_+1}")
    dpp_rowsum(k, vs_)
    k.e(f"s_mov_b32 s{sB}, {f32bits(1.0/640)}")
    k.e(f"v_mul_f32 v{vs_}, s{sB}, v{vs_}")
    for i in range(20):
        k.e(f"v_pk_add_f32 {vr(ux[i],2)}, {vr(ux[i],2)}, {vr(vs_,2)} op_sel_hi:[1,0] neg_lo:[0,1] neg_hi:[0,1]")
        k.e(f"v_pk_fma_f32 {vr(vq_,2)}, {vr(ux[i],2)}, {vr(ux[i],2)}, {vr(vq_,2)}")
    k.e(f"v_add_f32 v{vq_}, v{vq_}, v{vq_+1}")
    dpp_rowsum(k, vq_)
    k.e(f"v_mul_f32 v{vq_}, s{sB}, v{vq_}")
    k.e(f"s_mov_b32 s{sB}, {f32bits(1e-5)}")
    ln_finalize_multi(k, [vs_], [vq_], sB)
    k.e(f"""
    v_lshrrev_b32 v{t1}, 7, v{t0}
    v_and_b32 v{t0}, 127, v{t0}
    v_lshlrev_b32 v{t0}, 2, v{t0}
    v_lshl_add_u32 v{t0}, v{t1}, 10, v{t0}
    s_mov_b32 exec_lo, 0x00010001
    s_mov_b32 exec_hi, 0x00010001
    buffer_store_dword v{vs_}, v{t0}, s[{srdS}:{srdS+3}], 0 offen sc1
    buffer_store_dword v{vq_}, v{t0}, s[{srdS}:{srdS+3}], 0 offen offset:512 sc1
    s_mov_b64 exec, -1
    """)

    def cs_sum(younger, nowait=False):
        for a in ca[0]:
            k.e(f"v_mov_b64 {vr(a,2)}, 0")
        if nowait:
            l_ = k.label("csw")
            k.e(f"s_and_b32 s3, s{sWave}, 6")
            k.e(f"s_cmp_eq_u32 s3, 4")
            k.e(f"s_cbranch_scc1 {l_}")
            k.e("s_waitcnt vmcnt(0)")
            k.place(l_)
        for it in range(5):
            if not nowait:
                k.e(f"s_waitcnt vmcnt({4 - it + younger})")
            for d in range(4):
                k.e(f"v_lshlrev_b32 v{cu}, 16, v{wb[it] + d}")
                k.e(f"v_and_b32 v{cu+1}, 0xffff0000, v{wb[it] + d}")
                k.e(f"v_pk_add_f32 {vr(ca[0][d],2)}, {vr(ca[0][d],2)}, {vr(cu,2)}")

    def cs_pub(off_ws, lds_off):
        vals = [a + i for a in ca[0] for i in range(2)]
        allreduce4_multi(k, vals, [wb[i // 4] + i % 4 for i in range(8)])
        for h in range(4):
            k.e(f"ds_write_b64 v{vlw}, {vr(ca[0][h],2)} offset:{lds_off + 8*h}")
        k.e("s_waitcnt lgkmcnt(0)")
        k.e("s_barrier")
        lsk = k.label("csk")
        k.e(f"s_cmp_lg_u32 s{sWave}, 0")
        k.e(f"s_cbranch_scc1 {lsk}")
        for w in range(8):
            k.e(f"ds_read_b128 {vr(wb[w],4)}, v{vlr} offset:{lds_off + 512*w}")
        k.e(f"""
        s_lshl_b32 s3, s{sPi}, 9
        s_add_u32 s3, s3, {off_ws - WS_ST1}
        s_waitcnt lgkmcnt(0)
        """)
        for w in range(1, 8):
            for j in range(2):
                k.e(f"v_pk_add_f32 {vr(wb[0]+2*j,2)}, {vr(wb[0]+2*j,2)}, {vr(wb[w]+2*j,2)}")
        k.e("s_mov_b32 exec_hi, 0")
        k.e(f"buffer_store_dwordx4 {vr(wb[0],4)}, v{vlr}, s[{srdS}:{srdS+3}], s3 offen sc1")
        k.e("s_mov_b64 exec, -1")
        k.e("s_nop 1")
        k.place(lsk)
    cs_sum(nT + nX + 2)
    k.stamp_c("p1_pre")
    cs_pub(WS_CS1, 0)
    set_srd(k, srdX, ptr['dbg'], 256)
    k.e("s_waitcnt vmcnt(0)")
    k.e("s_barrier")
    lf = k.label("svf")
    k.e(f"""
    s_cmp_eq_u32 s{sWave}, 7
    s_cbranch_scc0 {lf}
    s_lshl_b32 s3, s{sPi}, {1 if OPT['diag'] else 2}
    v_mov_b32 v{t0}, s3
    v_mov_b32 v{t1}, 1
    s_mov_b64 exec, 1
    {'buffer_store_short' if OPT['diag'] else 'buffer_store_dword'} v{t1}, v{t0}, s[{srdX}:{srdX+3}], 0 offen {'offset:128' if OPT['diag'] else ''} sc1
    s_mov_b64 exec, -1
    """)
    k.place(lf)
    k.stamp_c("p1_b0")
    k.e("s_barrier")
    n2 = 0
    while u0 + 64 * (nT + n2) < 160:
        TWs.unit(ptr['wqkv'], sCo, sUv, u0 + 64 * (nT + n2), 640, skip=True); n2 += 1
    T5 = Touch(k, vl, 5, 2 * D_, share=TWs)
    if OPT['svwo']:
        T5.unit(ptr['wo'], sCo, sUv, 0, 640, skip=True)
    else:
        T5.unit(ptr['wo'], sCo, sUv, 48, 640, skip=True)
    for it in range(5):
        k.e(f"buffer_load_dwordx4 {vr(wb[it],4)}, v{vw1}, s[{srdW1}:{srdW1+3}], s{sO1} offen")
        k.e(f"s_add_u32 s{sO1}, s{sO1}, {32 * 2 * F_}")
    T14 = Touch(k, vl, 14, 2 * F_, share=TWs)
    k.e(f"s_mul_i32 s{sB}, s{sCH}, {13 * 128}")
    for it in range(OPT['svw1']):
        T14.unit(ptr['w1'], sB, sUv, 64 * it, 640)
    cs_sum(OPT['svw1'])
    cs_pub(WS_CS3, 4096)
    for it in range(OPT['svw2']):
        T5.unit(ptr['w2'], sCo, sUv, 64 * it, 1728)
    k.e("s_waitcnt vmcnt(0)")
    k.stamp_c("p1_loop")
    k.e(f"s_mov_b32 s{sSvc}, 1")
    k.e(f"s_branch {Lrole}")
    k.release(mV)

    k.lines.append('; @SEC cons')
    k.place(Lc)
    if OPT['cprio']:
        k.e(f"s_setprio {OPT['cprio']}")
    sW0, sW1 = k.s(), k.s()
    sA = k.s(2, 2)
    sB = sA + 1
    sEps = k.s(2, 2)
    srd0, srd1, srd2 = k.s(4), k.s(4), k.s(4)
    k.e(f"""
    s_and_b32 s{sW0}, s{sWave}, 1
    s_lshr_b32 s{sW1}, s{sWave}, 1
    s_mov_b32 s{sEps}, {f32bits(1e-6)}
    s_mov_b32 s{sEps+1}, {f32bits(1e-6)}
    """)
    mC = k.mark()
    sG, sC, sTy = dec1()
    Lq, Lp1done, Lqs, Lsj, Lsv2 = (k.label(x) for x in ("consq", "p1done", "qset", "setj", "sv2"))
    srdK = srd0
    k.e("s_waitcnt lgkmcnt(0)")
    set_srd(k, srdK, ptr['ws'], KV_BYTES, WS_KV)
    k.e(f"s_cmp_eq_u32 s{sTy}, 2")
    k.e(f"s_cbranch_scc1 {Lsv2}")
    mP1 = k.mark()
    ar = [k.v() for _ in range(11)]
    va = {(vi, ki): ar[2 * vi + ki] for vi in range(2) for ki in range(2)}
    vz, vrd, vat = ar[4:6], ar[6], ar[7:11]
    ad, vso = [[ar[2 * hh], ar[2 * hh + 1]] for hh in range(4)], ar[8]
    m1 = k.mark()
    sB2 = k.s()
    vd, ve = [k.v(), k.v()], [k.v(), k.v()]
    voob, t1 = k.v(), k.v()
    sM = k.s(2)
    k.e(f"s_cmp_eq_u32 s{sTy}, 1")
    k.e(f"s_cbranch_scc1 {Lqs}")
    k.e(f"""
    s_movk_i32 s{sB2}, 504
    s_lshl_b32 s{sA}, s{sWave}, 2
    v_and_b32 v{t1}, 15, v{vl}
    v_subrev_u32 v{vd[0]}, s{sA}, v{t1}
    v_add_u32 v{vd[1]}, 16, v{vd[0]}
    v_lshrrev_b32 v{t1}, 4, v{vl}
    v_lshlrev_b32 v{t1}, 2, v{t1}
    v_subrev_u32 v{ve[0]}, s{sA}, v{t1}
    v_add_u32 v{ve[1]}, 16, v{ve[0]}
    v_mov_b32 v{voob}, 2048
    """)
    for vi in range(2):
        for ki in range(2):
            k.e(f"""
            v_mul_u32_u24 v{t1}, 24, v{ve[vi]}
            v_add_lshl_u32 v{t1}, v{t1}, v{vd[ki]}, 2
            v_cmp_gt_u32 vcc, 20, v{ve[vi]}
            v_cmp_gt_u32 s[{sM}:{sM+1}], 20, v{vd[ki]}
            s_nop 1
            s_and_b64 vcc, vcc, s[{sM}:{sM+1}]
            s_nop 1
            v_cndmask_b32 v{va[(vi,ki)]}, v{voob}, v{t1}, vcc
            """)
    for ki in range(2):
        k.e(f"""
        v_lshlrev_b32 v{t1}, 2, v{vd[ki]}
        v_add_u32 v{t1}, {20*96}, v{t1}
        v_cmp_gt_u32 vcc, 16, v{vl}
        v_cmp_gt_u32 s[{sM}:{sM+1}], 20, v{vd[ki]}
        s_nop 1
        s_and_b64 vcc, vcc, s[{sM}:{sM+1}]
        s_nop 1
        v_cndmask_b32 v{vz[ki]}, v{voob}, v{t1}, vcc
        """)
    assert P1_AT + 4 * 2560 <= LDS_TOTAL
    k.e(f"s_mul_i32 s{sA}, s{sWave}, 2560")
    k.e(f"s_add_u32 s{sA}, s{sA}, {P1_AT}")
    for x in list(va.values()) + vz:
        k.e(f"v_add_u32 v{x}, s{sA}, v{x}")
    k.e(f"v_lshl_add_u32 v{vrd}, v{vl}, 2, s{sA}")
    k.e(f"v_mov_b32 v{voob}, {OOB}")
    for n, base in enumerate((0, 64, 128, 448)):
        k.e(f"""
        v_add_u32 v{t1}, {base}, v{vl}
        v_mul_u32_u24 v{vd[0]}, 2731, v{t1}
        v_lshrrev_b32 v{vd[0]}, 16, v{vd[0]}
        v_mul_u32_u24 v{vd[0]}, 24, v{vd[0]}
        v_sub_u32 v{vd[0]}, v{t1}, v{vd[0]}
        v_cmp_gt_u32 vcc, 20, v{vd[0]}
        v_cmp_gt_u32 s[{sM}:{sM+1}], s{sB2}, v{t1}
        v_lshlrev_b32 v{t1}, 2, v{t1}
        s_nop 0
        s_and_b64 vcc, vcc, s[{sM}:{sM+1}]
        s_nop 1
        v_cndmask_b32 v{vat[n]}, v{voob}, v{t1}, vcc
        """)
    k.e(f"s_branch {Lsj}")
    k.place(Lqs)

    vb, vc, t0 = vd[0], vd[1], ve[0]
    k.e(f"""
    s_mul_i32 s{sA}, s{sW1}, 20480
    s_mul_i32 s{sB}, s{sW0}, 5120
    s_add_u32 s{sA}, s{sA}, s{sB}
    v_lshlrev_b32 v{vso}, 4, v{vl}
    v_mov_b32 v{ar[9]}, {OOB}
    v_mov_b32 v{ar[10]}, {OOB}
    v_and_b32 v{vb}, 3, v{vl}
    v_lshlrev_b32 v{vb}, 8, v{vb}
    v_add_u32 v{vb}, s{sA}, v{vb}
    v_lshrrev_b32 v{t0}, 4, v{vl}
    v_min_u32 v{t0}, 2, v{t0}
    v_bfe_u32 v{vc}, v{vl}, 2, 2
    v_lshl_add_u32 v{vc}, v{t0}, 3, v{vc}
    v_cmp_gt_u32 vcc, 2, v{t0}
    s_nop 1
    v_cndmask_b32 v{t1}, 0, 4, vcc
    """)
    for hh in range(4):
        for hf in range(2):
            a = ad[hh][hf]
            k.e(f"v_add_u32 v{t0}, {20*hh}, v{vc}")
            if hf:
                k.e(f"v_add_u32 v{t0}, v{t0}, v{t1}")
            k.e(f"""
            v_lshrrev_b32 v{a}, 4, v{t0}
            v_lshl_add_u32 v{a}, v{a}, 10, v{vb}
            v_and_b32 v{t0}, 15, v{t0}
            v_lshl_add_u32 v{a}, v{t0}, 4, v{a}
            """)
    k.place(Lsj)
    k.release(m1)
    vc0, vc2, vc3, vst, vx0, vx2, vxr = (k.v() for _ in range(7))
    ones = k.v(4)
    sX0, sX3 = k.s(), k.s()
    k.e(f"""
    s_cmp_eq_u32 s{sTy}, 1
    s_cselect_b32 s{sX0}, 5, 3
    s_cselect_b32 s{sX3}, 3, 5
    s_mul_i32 s{sX0}, s{sX0}, s{sW0}
    s_add_u32 s{sX3}, s{sX3}, s{sX0}
    v_and_b32 v{vc0}, 15, v{vl}
    v_lshlrev_b32 v{vc0}, 2, v{vc0}
    v_add_u32 v{vc0}, {P1_ST + 1024}, v{vc0}
    s_mul_i32 s{sA}, s{sW0}, 320
    v_add_u32 v{vc2}, s{sA}, v{vc0}
    s_lshl_b32 s{sA}, s{sX3}, 6
    v_add_u32 v{vc3}, s{sA}, v{vc0}
    s_lshl_b32 s{sA}, s{sX0}, 6
    v_add_u32 v{vc0}, s{sA}, v{vc0}
    v_lshrrev_b32 v{vst}, 4, v{vl}
    v_lshlrev_b32 v{vst}, 4, v{vst}
    s_lshl_b32 s{sA}, s{sW1}, 8
    s_add_u32 s{sA}, s{sA}, {P1_ST}
    v_add_u32 v{vst}, s{sA}, v{vst}
    v_lshlrev_b32 v{vxr}, 4, v{vl}
    s_mul_i32 s{sA}, s{sW1}, 20480
    s_lshl_b32 s{sB}, s{sX0}, 10
    s_add_u32 s{sB}, s{sB}, s{sA}
    v_add_u32 v{vx0}, s{sB}, v{vxr}
    s_mul_i32 s{sB}, s{sW0}, 5120
    s_add_u32 s{sB}, s{sB}, s{sA}
    v_add_u32 v{vx2}, s{sB}, v{vxr}
    s_lshl_b32 s{sA}, s{sWave}, 10
    v_add_u32 v{vxr}, s{sA}, v{vxr}
    """)
    for x in (sX0, sX3):
        k.e(f"""
        s_cmp_ge_u32 s{x}, 5
        s_cselect_b32 s3, {2560 - 160}, 0
        s_lshl_b32 s{x}, s{x}, 5
        s_add_u32 s{x}, s{x}, s3
        """)
    ckv.mixed = (sX0, sX3)
    for j in range(4):
        k.e(f"v_mov_b32 v{ones+j}, 0x3f803f80")
    o = consumer_setup(k, ckv, sW1, sW0, vl)
    k.e(f"s_mov_b32 s{sA}, {f32bits(LOG2E)}")
    k.e(f"s_mov_b32 s{sB}, {f32bits(LOG2E)}")
    consumer_loop(k, o, None, tag="p1")
    tp = k.v(2)
    cs = [k.v(2) for _ in range(5)]
    stm = [k.v(4) for _ in range(4)]
    str_ = [k.v(4) for _ in range(4)]
    r2 = [k.v(4) for _ in range(4)]
    fr = [k.v(4), k.v(4)]
    Dz = [k.v(4), k.v(4)]
    k.e("s_barrier")
    k.stamp_c("p1_e1")
    co = [0, 64, 128, 0, 64]
    for nt in range(5):
        k.e(f"ds_read_b32 v{cs[nt]}, v{[vc0, vc0, vc2, vc3, vc3][nt]} offset:{co[nt]}")
    for mt in range(4):
        k.e(f"ds_read_b128 {vr(stm[mt],4)}, v{vst} offset:{mt*64}")
    for mt in range(4):
        k.e(f"ds_read_b128 {vr(str_[mt],4)}, v{vst} offset:{512 + mt*64}")
    for mt in range(4):
        k.e(f"s_waitcnt lgkmcnt({7 - mt})")
        for nt in range(5):
            a = o.acc[mt][nt]
            for j in range(2):
                k.e(f"v_pk_fma_f32 {vr(a+2*j,2)}, {vr(stm[mt]+2*j,2)}, {vr(cs[nt],2)}, {vr(a+2*j,2)} op_sel_hi:[1,0,1] neg_lo:[1,0,0] neg_hi:[1,0,0]")
    k.e("s_waitcnt lgkmcnt(0)")
    assert sB == sA + 1 and sA % 2 == 0
    for mt in range(4):
        for j in range(2):
            k.e(f"v_pk_mul_f32 {vr(r2[mt]+2*j,2)}, {vr(str_[mt]+2*j,2)}, s[{sA}:{sA+1}]")
    xo = [0, 1, 2, 5, 6]

    def fin_tile(nt, is_k, xo=xo):
        for tg in range(2):
            for mt in (2 * tg, 2 * tg + 1):
                for j in range(2):
                    a = o.acc[mt][nt] + 2 * j
                    if is_k:
                        phi_pair(k, a, str_[mt] + 2 * j, r2[mt] + 2 * j, sEps, tp)
                    else:
                        k.e(f"v_pk_mul_f32 {vr(a,2)}, {vr(a,2)}, {vr(str_[mt]+2*j,2)}")
            f = fr[tg]
            for i, mt in enumerate((2 * tg, 2 * tg + 1)):
                a = o.acc[mt][nt]
                k.e(f"v_cvt_pk_bf16_f32 v{f + 2*i}, v{a}, v{a+1}")
                k.e(f"v_cvt_pk_bf16_f32 v{f + 2*i + 1}, v{a+2}, v{a+3}")
            k.e(f"ds_write_b128 v{vx2 if nt == 2 else vx0}, {vr(f,4)} offset:{tg*10240 + xo[nt]*1024}")
    for nt in (0, 1):
        fin_tile(nt, True)
    Lv, Lj, Lk2 = k.label("vpath"), k.label("vjoin"), k.label("k2")
    k.e(f"s_cmp_eq_u32 s{sTy}, 1")
    k.e(f"s_cbranch_scc1 {Lq}")
    for nt in (3, 4):
        fin_tile(nt, False)
    k.e(f"s_cmp_eq_u32 s{sW0}, 1")
    k.e(f"s_cbranch_scc1 {Lv}")
    fin_tile(2, True)
    k.e(f"s_branch {Lj}")
    k.place(Lv)
    fin_tile(2, False)
    k.place(Lj)
    k.e(f"""
    s_lshl_b32 s{sA}, s{sC}, 2
    s_add_u32 s{sA}, s{sA}, s{sWave}
    s_lshl_b32 s{sA}, s{sA}, 11
    s_waitcnt lgkmcnt(0)
    s_barrier
    """)
    k.stamp_c("p1_e2")
    accs = [o.acc[mt][nt] for mt in range(4) for nt in range(5)]
    F = {}
    idx = 0
    for tg in range(4):
        for nm, off in (("k0", 0), ("k1", 1), ("v0", 5), ("v1", 6)):
            F[(tg, nm)] = accs[idx]; idx += 1
            if idx == 16:
                k.e("s_waitcnt lgkmcnt(11)")
            k.e(f"ds_read_b128 {vr(F[(tg, nm)],4)}, v{vxr} offset:{tg*10240 + off*1024}")
    Dk = {(vi, ki): accs[16 + 2 * vi + ki] for vi in range(2) for ki in range(2)}
    for tg in range(4):
        k.e(f"s_waitcnt lgkmcnt({12 - 4*tg})")
        for vi in range(2):
            for ki in range(2):
                d = Dk[(vi, ki)]
                k.e(f"v_mfma_f32_16x16x32_bf16 {vr(d,4)}, {vr(F[(tg, f'v{vi}')],4)}, {vr(F[(tg, f'k{ki}')],4)}, " + ("0" if tg == 0 else vr(d, 4)))
        for ki in range(2):
            d = Dz[ki]
            k.e(f"v_mfma_f32_16x16x32_bf16 {vr(d,4)}, {vr(ones,4)}, {vr(F[(tg, f'k{ki}')],4)}, " + ("0" if tg == 0 else vr(d, 4)))
    k.e("s_nop 3")
    for vi in range(2):
        for ki in range(2):
            for j in range(4):
                k.e(f"ds_write_b32 v{va[(vi,ki)]}, v{Dk[(vi,ki)]+j} offset:{j*96}")
            if (vi, ki) == (1, 0):
                k.e("s_waitcnt lgkmcnt(6)")
    for ki in range(2):
        k.e(f"ds_write_b32 v{vz[ki]}, v{Dz[ki]}")
    k.e("s_waitcnt lgkmcnt(0)")
    for n in range(8):
        k.e(f"ds_read_b32 v{accs[n // 4] + n % 4}, v{vrd} offset:{n*256}")
    for n in range(8):
        k.e(f"s_waitcnt lgkmcnt({7 - n})")
        k.e(f"buffer_atomic_add_f32 v{accs[n // 4] + n % 4}, v{vat[n % 3] if n < 7 else vat[3]}, s[{srdK}:{srdK+3}], s{sA} offen offset:{(n // 3) * 768 if n < 7 else 0}")
    k.e(f"s_branch {Lp1done}")
    k.place(Lq)
    srdP = srd1
    set_srd(k, srdP, ptr['ws'], S_ * 1536, WS_PQ)
    sQ = k.s()
    k.e(f"""
    s_lshl_b32 s{sQ}, s{sG}, 1
    s_add_u32 s{sQ}, s{sQ}, s{sW1}
    s_lshl_b32 s{sQ}, s{sQ}, 4
    s_add_u32 s{sQ}, s{sQ}, s{sC}
    s_lshl_b32 s{sQ}, s{sQ}, 1
    s_add_u32 s{sQ}, s{sQ}, s{sW0}
    s_mul_i32 s{sQ}, s{sQ}, {4 * 768}
    """)
    qb = [stm[0], stm[1], stm[2], stm[3]]

    def q_rd(hh):
        k.e("s_waitcnt lgkmcnt(0)")
        for i in range(4):
            for hf in range(2):
                k.e(f"ds_read_b64_tr_b16 {vr(o.acc[i][hh] + 2*hf, 2)}, v{ad[hh][hf]} offset:{(i // 2) * 10240 + 8 * (i % 2)}")

    def q_st(hh, pend):
        k.e(f"s_waitcnt lgkmcnt({pend})")
        k.e("s_mov_b32 exec_hi, 0xffff")
        for i in range(4):
            k.e(f"s_add_u32 s3, s{sQ}, {i * 32 * 768}")
            k.e(f"buffer_store_dwordx4 {vr(o.acc[i][hh],4)}, v{vso}, s[{srdP}:{srdP+3}], s3 offen offset:{hh*768} sc1")
        k.e("s_mov_b64 exec, -1")
    xq = [0, 1, 2, 3, 4]
    for hh in range(4):
        q_rd(hh)
        if hh < 3:
            fin_tile(hh + 2, True, xo=xq)
            q_st(hh, 2)
        else:
            q_st(hh, 0)
        if hh == 1:
            k.e("s_barrier")
    k.stamp_c("p1_e2")
    k.e(f"s_branch {Lp1done}")
    k.release(mP1)
    k.place(Lsv2)
    k.e("s_barrier")
    k.e("s_barrier")
    k.e(f"s_branch {Lp1done}")
    k.lines.append('; @SEC cons2')
    k.place(Lp1done)
    k.stamp_c("p1_st")
    k.release(mC)
    sRB, sCT = dec2()
    PQ = [k.v(64, 4), k.v(64, 4)]
    big = k.v(80, 4)
    xr = [k.v(4), k.v(4), k.v(2)]
    cE = k.v(4)
    vO, vO2, vrow, vPq, vKa, vKb, vW, vW2, vXw, vXr, t0, t1, t2 = (k.v() for _ in range(13))
    sM = k.s(2)
    k.e(f"""
    s_lshl_b32 s{sA}, s{sRB}, 6
    s_lshl_b32 s{sB}, s{sW0}, 5
    s_add_u32 s{sA}, s{sA}, s{sB}
    s_lshl_b32 s{sB}, s{sW1}, 4
    s_add_u32 s{sA}, s{sA}, s{sB}
    v_and_b32 v{t2}, 15, v{vl}
    v_add_u32 v{vrow}, s{sA}, v{t2}
    v_mul_u32_u24 v{vO}, {2*D_}, v{vrow}
    s_mul_i32 s{sA}, s{sCT}, 160
    v_add_u32 v{vO}, s{sA}, v{vO}
    v_lshrrev_b32 v{t1}, 4, v{vl}
    v_lshl_add_u32 v{vO2}, v{t1}, 3, v{vO}
    v_bfe_u32 v{t0}, v{vl}, 4, 1
    v_lshl_add_u32 v{vO}, v{t0}, 5, v{vO}
    v_lshrrev_b32 v{t0}, 5, v{vl}
    v_lshl_add_u32 v{vO}, v{t0}, 4, v{vO}
    v_cmp_eq_u32 vcc, 3, v{t1}
    v_lshrrev_b32 v{t0}, 2, v{t2}
    v_add_u32 v{vKa}, v{t0}, v{t2}
    v_cndmask_b32 v{vPq}, v{t1}, 1, vcc
    v_lshlrev_b32 v{vPq}, 8, v{vPq}
    v_lshl_add_u32 v{vPq}, v{t2}, 4, v{vPq}
    v_mul_u32_u24 v{vKb}, 5, v{t0}
    v_add_u32 v{vKb}, 4, v{vKb}
    v_and_b32 v{t0}, 3, v{t2}
    v_cmp_eq_u32 s[{sM}:{sM+1}], 0, v{t0}
    v_mov_b32 v{t0}, 20
    s_nop 0
    v_cndmask_b32 v{vKb}, v{t0}, v{vKb}, s[{sM}:{sM+1}]
    v_mul_u32_u24 v{vKa}, 48, v{vKa}
    v_mul_u32_u24 v{vKb}, 48, v{vKb}
    v_lshl_add_u32 v{vKa}, v{t1}, 4, v{vKa}
    v_lshl_add_u32 v{vKb}, v{t1}, 4, v{vKb}
    v_mov_b32 v{t0}, 1008
    v_cndmask_b32 v{vKa}, v{vKa}, v{t0}, vcc
    v_cndmask_b32 v{vKb}, v{vKb}, v{t0}, vcc
    s_lshl_b32 s{sA}, s{sW1}, 14
    s_add_u32 s{sA}, s{sA}, {L_KV}
    v_add_u32 v{vKa}, s{sA}, v{vKa}
    v_add_u32 v{vKb}, s{sA}, v{vKb}
    v_bfe_u32 v{t0}, v{vl}, 2, 3
    v_lshrrev_b32 v{t1}, 5, v{vl}
    v_mul_u32_u24 v{t1}, 2560, v{t1}
    v_mul_u32_u24 v{t0}, 160, v{t0}
    v_add_u32 v{vW}, v{t1}, v{t0}
    v_and_b32 v{t0}, 3, v{vl}
    v_lshl_add_u32 v{vW}, v{t0}, 3, v{vW}
    s_mul_i32 s{sA}, s{sW1}, 51200
    s_add_u32 s{sA}, s{sA}, {L_W2}
    v_add_u32 v{vW}, s{sA}, v{vW}
    s_mul_i32 s{sA}, s{sWave}, 5120
    s_add_u32 s{sA}, s{sA}, {L_X2}
    v_lshlrev_b32 v{t0}, 4, v{vl}
    v_add_u32 v{vXw}, s{sA}, v{t0}
    s_xor_b32 s{sA}, s{sWave}, 2
    s_mul_i32 s{sA}, s{sA}, 5120
    s_add_u32 s{sA}, s{sA}, {L_X2}
    v_add_u32 v{vXr}, s{sA}, v{t0}
    v_lshlrev_b32 v{vW2}, 4, v0
    v_lshlrev_b32 v{t2}, 3, v0
    s_lshl_b32 s{sA}, s{sJ}, 11
    v_add_u32 v{t2}, s{sA}, v{t2}
    v_and_b32 v{t2}, 0x7fff, v{t2}
    v_mov_b32 v{cE}, 0
    v_mov_b32 v{cE+1}, s{sEps}
    v_mov_b64 {vr(cE+2,2)}, 0
    """)
    srdX, srdP = srd2, srd1
    set_srd(k, srdX, ptr['x'], S_ * D_ * 2)
    set_srd(k, srdP, ptr['ws'], S_ * 1536, WS_PQ)
    k.e(f"""
    s_lshl_b32 s{sA}, s{sRB}, 2
    s_lshl_b32 s{sB}, s{sW0}, 1
    s_add_u32 s{sA}, s{sA}, s{sB}
    s_add_u32 s{sA}, s{sA}, s{sW1}
    s_xor_b32 s{sB}, s{sA}, 1
    s_lshl_b32 s{sA}, s{sA}, 1
    s_add_u32 s{sA}, s{sA}, s{sW1}
    s_mul_i32 s{sA}, s{sA}, {16 * 768}
    s_lshl_b32 s{sB}, s{sB}, 1
    s_add_u32 s{sB}, s{sB}, s{sW1}
    s_mul_i32 s{sB}, s{sB}, {16 * 768}
    s_waitcnt vmcnt(0)
    s_barrier
    """)
    k.stamp_c("p1_e3")
    k.e(f"buffer_load_dwordx4 {vr(xr[0],4)}, v{vO}, s[{srdX}:{srdX+3}], 0 offen")
    k.e(f"buffer_load_dwordx4 {vr(xr[1],4)}, v{vO}, s[{srdX}:{srdX+3}], 0 offen offset:64")
    k.e(f"buffer_load_dwordx2 {vr(xr[2],2)}, v{vO2}, s[{srdX}:{srdX+3}], 0 offen offset:128")
    sKo = k.s()
    pql = []
    for h in range(16):
        pre = []
        if h % 5 == 0 and h:
            pre = [f"s_add_u32 s{sA}, s{sA}, {5 * 768}", f"s_add_u32 s{sB}, s{sB}, {5 * 768}"]
        for i, sx in enumerate((sA, sB)):
            pql.append(pre + [f"buffer_load_dwordx4 {vr(PQ[i] + 4*h, 4)}, v{vPq}, s[{srdP}:{srdP+3}], s{sx} offen offset:{(h % 5) * 768} sc1"])
            pre = []
    k.e("s_barrier")
    k.stamp_c("p2_q")
    lead = OPT['pqq']
    for x in pql[:lead]:
        k.emit_list(x)
    k.e("s_barrier")
    k.stamp_c("p2_k")
    k.e(f"s_lshl_b32 s{sKo}, s{sJ}, 12")
    for i in range(16):
        k.e(f"s_and_b32 s{sKo}, s{sKo}, 0xffff")
        k.e(f"buffer_load_dwordx4 {vr(big + 4*i, 4)}, v{vW2}, s[{srdK}:{srdK+3}], s{sKo} offen sc1")
        k.e(f"s_add_u32 s{sKo}, s{sKo}, 4096")
    npq = 0
    for i in range(16):
        r = big + 4 * i
        k.e(f"s_waitcnt vmcnt({15 - i + npq})")
        k.e(f"v_cvt_pk_bf16_f32 v{r}, v{r}, v{r+1}")
        k.e(f"v_cvt_pk_bf16_f32 v{r+1}, v{r+2}, v{r+3}")
        k.e(f"ds_write_b64 v{t2}, {vr(r,2)}")
        k.e(f"v_add_u32 v{t2}, 2048, v{t2}")
        k.e(f"v_and_b32 v{t2}, 0x7fff, v{t2}")
        if i == 7:
            k.e("s_waitcnt lgkmcnt(4)")
        if i >= 8 and lead < 32:
            k.emit_list(pql[lead]); lead += 1; npq += 1
    k.e("s_waitcnt lgkmcnt(0)")
    k.e("s_barrier")
    k.stamp_c("p2_c")
    fka = [[big + 0, big + 4], [big + 8, big + 12]]
    fkb = [[big + 16, big + 20], [big + 24, big + 28]]
    Da = [[big + 32, big + 36], [big + 40, big + 44]]
    Db = [[big + 48, big + 52], [big + 56, big + 60]]

    def rd(p_):
        b = p_ % 2
        out = []
        for i in range(2):
            h = 2 * p_ + i
            out.append(f"ds_read_b128 {vr(fkb[b][i],4)}, v{vKb} offset:{h*1024}")
            out.append(f"ds_read_b128 {vr(fka[b][i],4)}, v{vKa} offset:{h*1024}")
        return out

    def mm(u):
        p_, ti = u // 2, u % 2
        b = p_ % 2
        out = []
        for i in range(2):
            h = 2 * p_ + i
            out.append(f"v_mfma_f32_16x16x32_bf16 {vr(Db[ti][i],4)}, {vr(fkb[b][i],4)}, {vr(PQ[ti] + 4*h,4)}, {vr(cE,4)}")
            out.append(f"v_mfma_f32_16x16x32_bf16 {vr(Da[ti][i],4)}, {vr(fka[b][i],4)}, {vr(PQ[ti] + 4*h,4)}, 0")
        return out

    def fin(u):
        p_, ti = u // 2, u % 2
        out = [f"v_rcp_f32 v{Db[ti][i]+1}, v{Db[ti][i]+1}" for i in range(2)]
        vals = []
        for i in range(2):
            a, d = Da[ti][i], Db[ti][i]
            if OPT['omode'] == 1:
                out += [f"v_mul_f32 v{a+j}, v{a+j}, v{d+1}" for j in range(4)]
            else:
                out.append(f"v_pk_mul_f32 {vr(a,2)}, {vr(a,2)}, {vr(d,2)} op_sel:[0,1]")
                out.append(f"v_pk_mul_f32 {vr(a+2,2)}, {vr(a+2,2)}, {vr(d,2)} op_sel:[0,1]")
            out.append(f"v_mul_f32 v{d}, v{d}, v{d+1}")
            vals += [a, a + 1, a + 2, a + 3, d]
        out += [f"v_cvt_pk_bf16_f32 v{PQ[ti] + 5*p_ + d}, v{vals[2*d]}, v{vals[2*d+1]}" for d in range(5)]
        return out
    fw = [[big + 4 * i for i in range(5)], [big + 20 + 4 * i for i in range(5)]]

    def wrd(s):
        return [f"ds_read_b64_tr_b16 {vr(fw[s & 1][nt] + 2*h, 2)}, v{vW} offset:{s * 5120 + h * 1280 + nt * 32}" for nt in range(5) for h in range(2)]

    def vm_need(p_):
        assert lead >= 4 * p_ + 4
        k.e(f"s_waitcnt vmcnt({lead - (4 * p_ + 4)})")
    k.emit_list(rd(0) + rd(1))
    vm_need(0)
    k.e("s_waitcnt lgkmcnt(4)")
    k.emit_list(mm(0))
    k.e("s_nop 5")
    for u in range(16):
        f = fin(u)
        if u + 1 < 16:
            if (u + 1) % 2 == 0:
                vm_need((u + 1) // 2)
                k.e(f"s_waitcnt lgkmcnt({4 if (u + 1) // 2 + 1 < 8 else 0})")
            m_ = mm(u + 1)
            if OPT['omode'] == 2:
                k.emit_list(m_)
                k.emit_list(f)
            else:
                q_ = len(f) // 4
                for i in range(4):
                    k.e(m_[i])
                    k.emit_list(f[q_ * i: q_ * i + q_] if i < 3 else f[3 * q_:])
            if (u + 1) % 2 == 1 and (u + 1) // 2 + 2 < 8:
                k.emit_list(rd((u + 1) // 2 + 2))
            for _ in range(OPT['pqper']):
                if lead < 32:
                    k.emit_list(pql[lead]); lead += 1
                    if lead == 32:
                        k.e("s_barrier")
        else:
            k.emit_list(wrd(0))
            k.emit_list(f)
    k.stamp_c("p2_o")
    acc = [[big + 40 + 20 * ti + 4 * i for i in range(5)] for ti in range(2)]
    for s in range(10):
        r = wrd(s + 1) if s + 1 < 10 else []
        issued = 0
        for nt in range(5):
            k.e(f"s_waitcnt lgkmcnt({8 - 2*nt + issued})")
            for ti in range(2):
                k.e(f"v_mfma_f32_16x16x32_bf16 {vr(acc[ti][nt],4)}, {vr(fw[s & 1][nt],4)}, {vr(PQ[ti] + 4*s,4)}, " + ("0" if s == 0 else vr(acc[ti][nt], 4)))
                if r:
                    k.e(r[2 * nt + ti]); issued += 1
    srdH, srdS = srd1, srd2
    set_srd(k, srdH, ptr['ws'], S_ * D_ * 2, WS_H)
    set_srd(k, srdS, ptr['ws'], S_ * 64, WS_ST2)
    k.stamp_c("p2_g")
    for nt in range(5):
        k.e(f"ds_write_b128 v{vXw}, {vr(acc[1][nt],4)} offset:{nt*1024}")
    vs_, vq_, u = big + 20, big + 22, big + 24
    k.e(f"v_mov_b64 {vr(vs_,2)}, 0")
    k.e(f"v_mov_b64 {vr(vq_,2)}, 0")
    k.e("s_waitcnt lgkmcnt(0)")
    k.e("s_barrier")
    for nt in range(5):
        k.e(f"ds_read_b128 {vr(fw[0][nt],4)}, v{vXr} offset:{nt*1024}")
    pk = [big + 28, big + 32, big + 36]
    for nt in range(5):
        a = acc[0][nt]
        k.e(f"s_waitcnt lgkmcnt({4 - nt})")
        k.e(f"v_pk_add_f32 {vr(a,2)}, {vr(a,2)}, {vr(fw[0][nt],2)}")
        k.e(f"v_pk_add_f32 {vr(a+2,2)}, {vr(a+2,2)}, {vr(fw[0][nt]+2,2)}")
        d = pk[nt // 2] + 2 * (nt & 1)
        k.e(f"v_cvt_pk_bf16_f32 v{d}, v{a}, v{a+1}")
        k.e(f"v_cvt_pk_bf16_f32 v{d+1}, v{a+2}, v{a+3}")
    for pr in range(2):
        k.e(f"v_permlane16_swap_b32 v{pk[pr]}, v{pk[pr]+2}")
        k.e(f"v_permlane16_swap_b32 v{pk[pr]+1}, v{pk[pr]+3}")
    for pr in range(3):
        for d in range(4 if pr < 2 else 2):
            r, x = pk[pr] + d, xr[pr] + d
            k.e(f"""
            v_lshlrev_b32 v{u}, 16, v{r}
            v_and_b32 v{u+1}, 0xffff0000, v{r}
            v_lshlrev_b32 v{u+2}, 16, v{x}
            v_and_b32 v{u+3}, 0xffff0000, v{x}
            v_pk_add_f32 {vr(u,2)}, {vr(u,2)}, {vr(u+2,2)}
            v_cvt_pk_bf16_f32 v{r}, v{u}, v{u+1}
            """)
        if pr < 2:
            k.e(f"buffer_store_dwordx4 {vr(pk[pr],4)}, v{vO}, s[{srdH}:{srdH+3}], 0 offen offset:{pr*64} sc1")
        else:
            k.e(f"buffer_store_dwordx2 {vr(pk[pr],2)}, v{vO2}, s[{srdH}:{srdH+3}], 0 offen offset:128 sc1")
    for pr in range(3):
        for d in range(4 if pr < 2 else 2):
            r = pk[pr] + d
            k.e(f"""
            v_lshlrev_b32 v{u}, 16, v{r}
            v_and_b32 v{u+1}, 0xffff0000, v{r}
            v_pk_add_f32 {vr(vs_,2)}, {vr(vs_,2)}, {vr(u,2)}
            v_pk_fma_f32 {vr(vq_,2)}, {vr(u,2)}, {vr(u,2)}, {vr(vq_,2)}
            """)
    k.e(f"v_add_f32 v{vs_}, v{vs_}, v{vs_+1}")
    k.e(f"v_add_f32 v{vs_+1}, v{vq_}, v{vq_+1}")
    allreduce4_multi(k, [vs_, vs_ + 1], [t0, t1])
    k.e(f"""
    v_lshlrev_b32 v{vrow}, 3, v{vrow}
    s_lshl_b32 s{sA}, s{sCT}, 14
    s_mov_b64 exec, 0xffff
    buffer_store_dwordx2 {vr(vs_,2)}, v{vrow}, s[{srdS}:{srdS+3}], s{sA} offen sc1
    s_mov_b64 exec, -1
    """)
    k.stamp_c("p2_st")
    k.release(mC)
    Lp4c = k.label("p4c")
    sRB, sCT = dec3()
    c = c3
    vO, vSt, vCs, vA0, vA1, t0, t1, t2 = (k.v() for _ in range(8))
    vW = [k.v() for _ in range(4)]
    st = [k.v(2) for _ in range(2)]
    acc = [[k.v(4) for _ in range(4)] for _ in range(2)]
    fw = [[k.v(4) for _ in range(4)] for _ in range(2)]
    AR = [[k.v(4) for _ in range(2)] for _ in range(20)]
    k.e("s_waitcnt vmcnt(0)")
    k.e("s_barrier")
    k.stamp_c("p2_e")
    k.e(f"s_cmp_ge_u32 s{sJ}, 28")
    k.e(f"s_cbranch_scc1 {Lp4c}")
    srdO = srd1
    set_srd(k, srdO, ptr['ws'], S_ * F_ * 2, WS_HH)
    k.e(f"""
    v_and_b32 v{t0}, 15, v{vl}
    v_lshrrev_b32 v{t1}, 4, v{vl}
    v_lshlrev_b32 v{vSt}, 15, v{t1}
    v_lshl_add_u32 v{vSt}, v{t0}, 3, v{vSt}
    s_lshl_b32 s{sA}, s{sRB}, 10
    s_lshl_b32 s{sB}, s{sWave}, 8
    s_add_u32 s{sA}, s{sA}, s{sB}
    v_add_u32 v{vSt}, s{sA}, v{vSt}
    v_lshlrev_b32 v{vCs}, 4, v{t1}
    v_add_u32 v{vCs}, {P3_SCR + 1024}, v{vCs}
    v_and_b32 v{t2}, 6, v{t0}
    v_xor_b32 v{t2}, v{t2}, v{t1}
    v_lshlrev_b32 v{t2}, 4, v{t2}
    v_lshl_add_u32 v{vA0}, v{t0}, 7, v{t2}
    s_lshl_b32 s{sA}, s{sWave}, 12
    s_add_u32 s{sA}, s{sA}, {c.baseA}
    v_add_u32 v{vA0}, s{sA}, v{vA0}
    v_xor_b32 v{vA1}, 64, v{vA0}
    v_mul_u32_u24 v{vO}, {2*F_}, v{t0}
    v_bfe_u32 v{t0}, v{vl}, 4, 1
    v_lshl_add_u32 v{vO}, v{t0}, 5, v{vO}
    v_lshrrev_b32 v{t0}, 5, v{vl}
    v_lshl_add_u32 v{vO}, v{t0}, 4, v{vO}
    s_lshl_b32 s{sA}, s{sRB}, 7
    s_lshl_b32 s{sB}, s{sWave}, 5
    s_add_u32 s{sA}, s{sA}, s{sB}
    s_mul_i32 s{sA}, s{sA}, {2*F_}
    s_lshl_b32 s{sB}, s{sCT}, 8
    s_add_u32 s{sA}, s{sA}, s{sB}
    v_add_u32 v{vO}, s{sA}, v{vO}
    v_bfe_u32 v{t1}, v{vl}, 2, 3
    v_mul_u32_u24 v{t0}, {c.r16b}, v{t0}
    v_lshl_add_u32 v{t0}, v{t1}, 7, v{t0}
    v_and_b32 v{t2}, 3, v{vl}
    v_lshl_add_u32 v{t0}, v{t2}, 3, v{t0}
    v_lshrrev_b32 v{t1}, 1, v{t1}
    s_mov_b32 s{sB}, {16 * 2 * F_}
    """)
    for j in range(4):
        k.e(f"v_xor_b32 v{t2}, {j}, v{t1}")
        k.e(f"v_lshl_add_u32 v{vW[j]}, v{t2}, 5, v{t0}")
    wbase = [0]

    def rds(n):
        ps, s_, t = n // 20, (n % 20) // 2, n & 1
        out = []
        want = 40960 if s_ >= 5 else 0
        if want != wbase[0]:
            d = want - wbase[0]
            out += [f"v_add_u32 v{x}, {d & 0xffffffff}, v{x}" for x in vW]
            wbase[0] = want
        npre = len(out)
        if ps == 0:
            out += [f"ds_read_b128 {vr(AR[n][mt],4)}, v{vA1 if t else vA0} offset:{(s_ % 4) * 16384 + mt * 2048}" for mt in range(2)]
        for nt in range(4):
            for h in range(2):
                out.append(f"ds_read_b64_tr_b16 {vr(fw[n & 1][nt] + 2*h, 2)}, v{vW[nt]} offset:{s_ * 8192 - want + t * 4096 + h * 1024}")
        return out[:npre], out[npre:]

    def blk(n, nxt):
        na = 2 if n < 20 else 0
        nprev = na + 8
        pre, rd = rds(nxt) if nxt is not None else ([], [])
        k.emit_list(pre)
        issued = 0
        j = 0
        for nt in range(4):
            k.e(f"s_waitcnt lgkmcnt({nprev - (na + 2*nt + 2) + issued})")
            for mt in range(2):
                a = acc[mt][nt]
                k.e(f"v_mfma_f32_16x16x32_bf16 {vr(a,4)}, {vr(fw[n & 1][nt],4)}, {vr(AR[n % 20][mt],4)}, " + ("0" if n % 20 == 0 else vr(a, 4)))
                j += 1
                want = min(len(rd), -(-j * len(rd) * 100 // (8 * OPT['rf3'])))
                while issued < want:
                    k.e(rd[issued]); issued += 1

    def epi(ps):
        cs3 = fw[0]
        k.e("s_nop 4")
        for nt in range(4):
            k.e(f"ds_read_b128 {vr(cs3[nt],4)}, v{vCs} offset:{ps*256 + nt*64}")
        k.e("s_waitcnt lgkmcnt(0)")
        Lns = k.label("p3ns")
        if ps == 1:
            k.e(f"s_cmp_eq_u32 s{sCT}, 13")
            k.e(f"s_cbranch_scc1 {Lns}")
        for mt in range(2):
            for pr in range(2):
                a0, a1 = acc[mt][2*pr], acc[mt][2*pr+1]
                for a, nt in ((a0, 2*pr), (a1, 2*pr+1)):
                    for j in range(2):
                        k.e(f"v_pk_fma_f32 {vr(a+2*j,2)}, {vr(cs3[nt]+2*j,2)}, {vr(st[mt],2)}, {vr(a+2*j,2)} op_sel_hi:[1,0,1] neg_lo:[0,1,0] neg_hi:[0,1,0]")
                    for j in range(2):
                        k.e(f"v_pk_mul_f32 {vr(a+2*j,2)}, {vr(a+2*j,2)}, {vr(st[mt],2)} op_sel:[0,1]")
                pk = fw[1][2 * mt + pr]
                k.e(f"""
                v_cvt_pk_bf16_f32 v{pk}, v{a0}, v{a0+1}
                v_cvt_pk_bf16_f32 v{pk+2}, v{a1}, v{a1+1}
                v_cvt_pk_bf16_f32 v{pk+1}, v{a0+2}, v{a0+3}
                v_cvt_pk_bf16_f32 v{pk+3}, v{a1+2}, v{a1+3}
                v_permlane16_swap_b32 v{pk}, v{pk+2}
                s_nop 0
                v_permlane16_swap_b32 v{pk+1}, v{pk+3}
                v_pk_max_i16 v{pk}, v{pk}, 0
                v_pk_max_i16 v{pk+2}, v{pk+2}, 0
                v_pk_max_i16 v{pk+1}, v{pk+1}, 0
                v_pk_max_i16 v{pk+3}, v{pk+3}, 0
                buffer_store_dwordx4 {vr(pk,4)}, v{vO}, s[{srdO}:{srdO+3}], {'s%d' % sB if mt else '0'} offen offset:{ps*128 + pr*64} sc1
                """)
        k.place(Lns)
    sK16, sI6, sE5 = k.s(), k.s(), k.s()
    k.e(f"s_movk_i32 s{sK16}, 16384")
    k.e(f"s_mov_b32 s{sI6}, {f32bits(1.0/640)}")
    k.e(f"s_mov_b32 s{sE5}, {f32bits(1e-5)}")
    k.e("s_barrier")
    tq = [AR[10][0], AR[10][1]]
    for mt in range(2):
        k.e(f"buffer_load_dwordx2 {vr(st[mt],2)}, v{vSt}, s[{srd2}:{srd2+3}], 0 offen offset:{mt*128} sc1")
        k.e(f"buffer_load_dwordx2 {vr(tq[mt],2)}, v{vSt}, s[{srd2}:{srd2+3}], s{sK16} offen offset:{mt*128} sc1")
    k.e("s_waitcnt vmcnt(0)")
    for mt in range(2):
        k.e(f"v_pk_add_f32 {vr(st[mt],2)}, {vr(st[mt],2)}, {vr(tq[mt],2)}")
    vm_, vs__ = [st[0], st[1]], [st[0] + 1, st[1] + 1]
    allreduce4_multi(k, vm_ + vs__, [tq[0], tq[0] + 1, tq[0] + 2, tq[0] + 3])
    for mt in range(2):
        k.e(f"""
        v_mul_f32 v{vm_[mt]}, s{sI6}, v{vm_[mt]}
        v_mul_f32 v{vs__[mt]}, s{sI6}, v{vs__[mt]}
        v_fma_f32 v{vs__[mt]}, -v{vm_[mt]}, v{vm_[mt]}, v{vs__[mt]}
        v_max_f32 v{vs__[mt]}, 0, v{vs__[mt]}
        """)
    ln_finalize_multi(k, vm_, vs__, sE5)
    k.stamp_c("p3_pre")
    k.e("s_barrier")
    k.stamp_c("p3_b0")
    w3 = [AR[18][0], AR[18][1], AR[19][0], AR[19][1]]
    rot0 = [fw[0], fw[1], w3]
    buf0 = {n: rot0[n % 3] for n in range(15)}
    for n in range(15, 20):
        buf0[n] = fw[(n - 15) % 2]

    def rdW(n):
        s_, t = n // 2, n & 1
        pre = []
        want = 40960 if s_ >= 5 else 0
        if want != wbase[0]:
            pre = [(f"v_add_u32 v{x}, {(want - wbase[0]) & 0xffffffff}, v{x}", None) for x in vW]
            wbase[0] = want
        return pre + [(f"ds_read_b64_tr_b16 {vr(buf0[n][nt] + 2*h, 2)}, v{vW[nt]} offset:{s_ * 8192 - want + t * 4096 + h * 1024}", ('w', n, nt))
                      for nt in range(4) for h in range(2)]

    def rdA(s_):
        return [(f"ds_read_b128 {vr(AR[2*s_+t][mt],4)}, v{vA1 if t else vA0} offset:{(s_ % 4) * 16384 + mt * 2048}", ('a', 2*s_+t, mt))
                for t in range(2) for mt in range(2)]
    pend0 = []

    def issue(x):
        k.e(x[0])
        if x[1] is not None:
            pend0.append(x[1])

    def need(tags):
        idx = [i for i, x in enumerate(pend0) if x in tags]
        if idx:
            done = max(idx) + 1
            k.e(f"s_waitcnt lgkmcnt({min(15, len(pend0) - done)})")
            del pend0[:done]
    for x in rdA(0) + rdW(0) + rdW(1)[:3]:
        issue(x)
    carry = rdW(1)[3:]
    for n in range(20):
        rd = list(carry); carry = []
        if n % 2 == 0:
            s_ = n // 2
            need([('a', n + t, mt) for t in range(2) for mt in range(2)])
            k.e("s_barrier")
            if s_ + 1 < 10:
                rd = rdA(s_ + 1) + rd
        if n + 2 <= 16:
            rd += rdW(n + 2)
        elif n >= 16 and n + 1 < 20:
            rd += rdW(n + 1)
        issued = 0
        j = 0
        for nt in range(4):
            need([('w', n, nt)])
            for mt in range(2):
                a = acc[mt][nt]
                k.e(f"v_mfma_f32_16x16x32_bf16 {vr(a,4)}, {vr(buf0[n][nt],4)}, {vr(AR[n][mt],4)}, " + ("0" if n == 0 else vr(a, 4)))
                j += 1
                want = -(-j * len(rd) // (8 if n < 16 else 5))
                while issued < min(want, len(rd)):
                    issue(rd[issued]); issued += 1
    k.e("s_barrier")
    k.stamp_c("p3_loop")
    epi(0)
    k.e("s_barrier")
    k.stamp_c("p3_st")
    fw3 = [AR[0][0], AR[0][1], AR[1][0], AR[1][1]]
    buf = {20: fw[0], 21: fw[1], 22: fw[0], 23: fw[1]}
    rot = [fw3, fw[0], fw[1]]
    for n in range(24, 40):
        buf[n] = rot[(n - 24) % 3]

    def rds1(n):
        s_, t = (n % 20) // 2, n & 1
        pre = []
        want = 40960 if s_ >= 5 else 0
        if want != wbase[0]:
            pre = [f"v_add_u32 v{x}, {(want - wbase[0]) & 0xffffffff}, v{x}" for x in vW]
            wbase[0] = want
        return pre + [f"ds_read_b64_tr_b16 {vr(buf[n][nt] + 2*h, 2)}, v{vW[nt]} offset:{s_ * 8192 - want + t * 4096 + h * 1024}" for nt in range(4) for h in range(2)]
    sched = {20: [], 21: [22], 22: [23, 24]}
    for n in range(23, 40):
        sched[n] = [n + 2] if n + 2 < 40 else []
    k.emit_list(rds1(20) + rds1(21))
    pend = [20] * 8 + [21] * 8
    for n in range(20, 40):
        if n == 20 + 2 * OPT['m1at'] + 1:
            k.e("s_waitcnt vmcnt(0)")
            k.e("s_barrier")
        if n == 38:
            k.e("s_waitcnt lgkmcnt(0)")
            k.e("s_barrier")
        rd = [(x, m_) for m_ in sched[n] for x in rds1(m_)]
        assert all((m_ % 20) // 2 <= 4 for _, m_ in rd) or n >= 20 + 2 * OPT['m1at'] + 1
        issued = 0
        j = 0
        for nt in range(4):
            idx = [i for i, x in enumerate(pend) if x == n]
            if idx:
                done = idx[min(len(idx) - 1, 2 * nt + 1 - (8 - len(idx)))] + 1 if 2 * nt + 1 - (8 - len(idx)) >= 0 else 0
                if done:
                    k.e(f"s_waitcnt lgkmcnt({min(15, len(pend) - done)})")
                    pend = pend[done:]
            for mt in range(2):
                a = acc[mt][nt]
                k.e(f"v_mfma_f32_16x16x32_bf16 {vr(a,4)}, {vr(buf[n][nt],4)}, {vr(AR[n % 20][mt],4)}, " + ("0" if n == 20 else vr(a, 4)))
                j += 1
                want = -(-j * len(rd) // 8)
                while issued < want:
                    k.e(rd[issued][0])
                    if rd[issued][0].startswith("ds_"):
                        pend.append(rd[issued][1])
                    issued += 1
    epi(1)
    k.stamp_c("p3_e")
    k.place(Lp4c)
    k.release(mC)
    Lcend = k.label("cend")
    sRB, sCT = dec2()
    c = c4
    srdH, srdO = srd1, srd2
    set_srd(k, srdH, ptr['ws'], S_ * D_ * 2, WS_H)
    set_srd(k, srdO, ptr['out'], S_ * D_ * 2)
    vO, vO2, t0, t1 = (k.v() for _ in range(4))
    hr = [[k.v(4), k.v(2)] for _ in range(2)]
    k.e(f"""
    s_lshl_b32 s{sA}, s{sRB}, 6
    s_lshl_b32 s{sB}, s{sW1}, 5
    s_add_u32 s{sA}, s{sA}, s{sB}
    v_and_b32 v{t0}, 15, v{vl}
    v_add_u32 v{t0}, s{sA}, v{t0}
    v_mul_u32_u24 v{vO}, {2*D_}, v{t0}
    s_mul_i32 s{sA}, s{sCT}, 160
    s_lshl_b32 s{sB}, s{sW0}, 6
    s_add_u32 s{sA}, s{sA}, s{sB}
    v_add_u32 v{vO}, s{sA}, v{vO}
    v_lshrrev_b32 v{t1}, 4, v{vl}
    v_lshl_add_u32 v{vO2}, v{t1}, 3, v{vO}
    v_bfe_u32 v{t0}, v{vl}, 4, 1
    v_lshl_add_u32 v{vO}, v{t0}, 5, v{vO}
    v_lshrrev_b32 v{t0}, 5, v{vl}
    v_lshl_add_u32 v{vO}, v{t0}, 4, v{vO}
    s_movk_i32 s{sB}, {16 * 2 * D_}
    """)

    def h_loads():
        for mt in range(2):
            so = f"s{sB}" if mt else "0"
            k.e(f"buffer_load_dwordx4 {vr(hr[mt][0],4)}, v{vO}, s[{srdH}:{srdH+3}], {so} offen sc1")
            k.e(f"buffer_load_dwordx2 {vr(hr[mt][1],2)}, v{vO2}, s[{srdH}:{srdH+3}], {so} offen offset:64 sc1")
    o = consumer_setup(k, c, sW1, sW0, vl)
    h_loads()
    consumer_loop(k, o, None, tag="p4")
    pk = [[k.v(4), k.v(2)] for _ in range(2)]
    u = k.v(4)
    for mt in range(2):
        for nt in range(3):
            a = o.acc[mt][nt]
            d = pk[mt][nt // 2] + 2 * (nt & 1)
            k.e(f"v_cvt_pk_bf16_f32 v{d}, v{a}, v{a+1}")
            k.e(f"v_cvt_pk_bf16_f32 v{d+1}, v{a+2}, v{a+3}")
    k.e("s_waitcnt vmcnt(0)")
    for mt in range(2):
        k.e(f"v_permlane16_swap_b32 v{pk[mt][0]}, v{pk[mt][0]+2}")
        k.e(f"v_permlane16_swap_b32 v{pk[mt][0]+1}, v{pk[mt][0]+3}")
    fl = 'sc1' if OPT['outsc1'] else ''
    Lno = k.label("p4n")
    for pr in range(2):
        if pr == 1:
            k.e(f"s_cmp_eq_u32 s{sW0}, 0")
            k.e(f"s_cbranch_scc1 {Lno}")
        for mt in range(2):
            so = f"s{sB}" if mt else "0"
            for d in range(4 if pr == 0 else 2):
                r, x = pk[mt][pr] + d, hr[mt][pr] + d
                k.e(f"""
                v_lshlrev_b32 v{u}, 16, v{r}
                v_and_b32 v{u+1}, 0xffff0000, v{r}
                v_lshlrev_b32 v{u+2}, 16, v{x}
                v_and_b32 v{u+3}, 0xffff0000, v{x}
                v_pk_add_f32 {vr(u,2)}, {vr(u,2)}, {vr(u+2,2)}
                v_cvt_pk_bf16_f32 v{r}, v{u}, v{u+1}
                """)
            if pr == 0:
                k.e(f"buffer_store_dwordx4 {vr(pk[mt][0],4)}, v{vO}, s[{srdO}:{srdO+3}], {so} offen {fl}")
            else:
                k.e(f"buffer_store_dwordx2 {vr(pk[mt][1],2)}, v{vO2}, s[{srdO}:{srdO+3}], {so} offen offset:64 {fl}")
    k.place(Lno)
    k.stamp_c("p4_st")
    if OPT['diag']:
        ld_ = k.label("dg")
        names = ["p1_pre", "p1_b0", "p1_loop", "p1_e1", "p1_e2", "p1_e3", "p2_q", "p2_k", "p2_c", "p2_g", "p2_e", "p3_b0", "p3_loop", "p3_e", "p4_b0", "p4_loop"]
        set_srd(k, srd0, ptr['dbg'], 256)
        k.e(f"s_cmp_eq_u32 s2, {OPT['diag']}")
        k.e(f"s_cbranch_scc0 {ld_}")
        k.e(f"s_cmp_eq_u32 s{sWave}, 0")
        k.e(f"s_cbranch_scc0 {ld_}")
        k.e("s_mov_b64 exec, 1")
        k.e("v_mov_b32 v1, 0")
        for i, n in enumerate(names):
            k.e(f"s_sub_u32 s3, s{68 + k.stamps['c'][n]}, s68")
            k.e("v_mov_b32 v2, s3")
            k.e(f"buffer_store_dword v2, v1, s[{srd0}:{srd0+3}], 0 offen offset:{4*i}")
        k.e("s_mov_b64 exec, -1")
        k.place(ld_)
    k.place(Lcend)
    endwave()
    k.place(k.end)
    k.place(k.name + "_last")
    k.e("s_endpgm")
    secs, cur = {"head": []}, "head"
    for ln in k.lines:
        if ln.startswith("; @SEC "):
            cur = ln.split()[-1]; secs[cur] = []
        else:
            secs[cur].append(ln)
    order_ = list(OPT['secs'])
    if not OPT['hfirst']:
        order_ = ['head', 'head2', 'help', 'head3'] + order_[1:]
    k.lines = [ln for n in order_ for ln in secs[n]]
    return k


def write(k, path, header=""):
    out = header + f"; @launch grid=(256,1,1) block=(512,1,1) lds={LDS_TOTAL}\n"
    out += '.amdgcn_target "amdgcn-amd-amdhsa--gfx950"\n.text\n' + k.text() + '.section .rodata,"a"\n' + k.descriptor()
    open(path, "w").write(out)
    if k.prof3:
        json.dump(k.stamps, open(path + ".json", "w"))


def hdr():
    ref = open('sequential_preLN__linear_attn_block__dense_activation_relu__prompt.s.ref').read()
    return "".join(l + "\n" for l in ref.splitlines()[:10])


if __name__ == "__main__":
    write(gen(False), 'k8.s', hdr())
    write(gen(True), 'k8_prof.s', hdr())
    g3.DBG.update(nodma=True)
    write(gen(True), 'k8_nodma.s', hdr())
    g3.DBG.update(nodma=False, nomma=True)
    write(gen(True), 'k8_nomma.s', hdr())
```
